```python
import torch

def _softmax(x, axis=-1):
    return torch.softmax(x, dim=axis)
def _gelu(x):
    return torch.nn.functional.gelu(x, approximate="tanh")
def _silu(x):
    return torch.nn.functional.silu(x)
def _sigmoid(x):
    return torch.sigmoid(x)
def _layernorm(x, axis=-1, eps=1e-5):
    m = x.mean(dim=axis, keepdim=True)
    v = x.var(dim=axis, keepdim=True, unbiased=False)
    return (x - m) / torch.sqrt(v + eps)
def _scatter_add(tgt, idx, src, axis=0):
    return tgt.clone().index_add_(axis, idx, src)
def _segment_sum(src, seg, n):
    out = torch.zeros((n,) + src.shape[1:], dtype=src.dtype)
    return out.index_add_(0, seg, src)
def _pad(x, pw):
    flat = tuple(v for pair in reversed(pw) for v in pair)
    return torch.nn.functional.pad(x, flat)

kernel_name = 'interleave_layers__spectral_fnet__glu_gated_glu__prompt'

def setup_inputs():

    _w = (lambda a: (lambda t: t.to(torch.bfloat16) if t.is_floating_point() else t)(torch.as_tensor(a)))
    def _A_setup():
        B, S, D = 1, 2048, 576
        ns = torch.arange(S)[:, None] * torch.arange(S)[None, :]
        nd = torch.arange(D)[:, None] * torch.arange(D)[None, :]
        Ws_re = torch.cos(-2.0 * torch.pi * ns / S).to(float)
        Ws_im = torch.sin(-2.0 * torch.pi * ns / S).to(float)
        Wd_re = torch.cos(-2.0 * torch.pi * nd / D).to(float)
        Wd_im = torch.sin(-2.0 * torch.pi * nd / D).to(float)
        return {
            "x": _w((lambda *s: torch.randn(*s, dtype=torch.bfloat16) * 0.05)(B, S, D)),
            "dft_seq_re": _w(Ws_re),
            "dft_seq_im": _w(Ws_im),
            "dft_hid_re": _w(Wd_re),
            "dft_hid_im": _w(Wd_im),
        }
    _A_in = _A_setup()

    def _B_setup():
        B, S, D, F = 1, 2048, 576, 4608
        return {
            "x": _w((lambda *s: torch.randn(*s, dtype=torch.bfloat16) * 0.05)(B, S, D)),
            "w_gate": _w((lambda *s: torch.randn(*s, dtype=torch.bfloat16) * 1.6)(D, F)),
            "w_up": _w((lambda *s: torch.randn(*s, dtype=torch.bfloat16) * 0.4)(D, F)),
            "w_down": _w((lambda *s: torch.randn(*s, dtype=torch.bfloat16) * 0.4)(F, D)),
        }
    _B_in = _B_setup()

    return {
        "A_x": _A_in["x"],
        "A_dft_seq_re": _A_in["dft_seq_re"],
        "A_dft_seq_im": _A_in["dft_seq_im"],
        "A_dft_hid_re": _A_in["dft_hid_re"],
        "A_dft_hid_im": _A_in["dft_hid_im"],
        "B_x": _B_in["x"],
        "B_w_gate": _B_in["w_gate"],
        "B_w_up": _B_in["w_up"],
        "B_w_down": _B_in["w_down"],
    }

def reference(A_x, A_dft_seq_re, A_dft_seq_im, A_dft_hid_re, A_dft_hid_im, B_x, B_w_gate, B_w_up, B_w_down):
    def _A_ref(x, dft_seq_re, dft_seq_im, dft_hid_re, dft_hid_im):
        a = torch.einsum("bsd,ed->bse", x, dft_hid_re)
        b = torch.einsum("bsd,ed->bse", x, dft_hid_im)
        y = torch.einsum("ts,bse->bte", dft_seq_re, a) - torch.einsum("ts,bse->bte", dft_seq_im, b)
        return y

    def _B_ref(x, w_gate, w_up, w_down):
        g = torch.einsum("bsd,df->bsf", x, w_gate)
        u = torch.einsum("bsd,df->bsf", x, w_up)
        h = _sigmoid(g) * u
        return torch.einsum("bsf,fd->bsd", h, w_down)

    x = A_x
    x = x + _A_ref(_layernorm(x, axis=-1), A_dft_seq_re, A_dft_seq_im, A_dft_hid_re, A_dft_hid_im)
    x = x + _B_ref(_layernorm(x, axis=-1), B_w_gate, B_w_up, B_w_down)
    x = x + _A_ref(_layernorm(x, axis=-1), A_dft_seq_re, A_dft_seq_im, A_dft_hid_re, A_dft_hid_im)
    x = x + _B_ref(_layernorm(x, axis=-1), B_w_gate, B_w_up, B_w_down)
    return x
```

```python
import sys

MAIN = "interleave_layers__spectral_fnet__glu_gated_glu__prompt"

S, D, F = 2048, 576, 4608
KA_X, KA_CR, KA_CI, KA_WR, KA_WI, KA_BX, KA_WG, KA_WU, KA_WD, KA_OUT, KA_DBG, KA_WS = [8 * i for i in range(12)]
WS_XN = 0x0000000
WS_X1 = 0x0400000
WS_X2 = 0x0800000
WS_AB = 0x0C00000
WS_P = 0x1400000
WS_H = 0x3000000
XB = S * D * 2
PB = S * D * 4
HB = S * F * 2


class K:
    def __init__(self, name):
        self.name = name
        self.lines = []
        self.pend = []
        self.nlab = 0

    def e(self, s):
        self.lines.append("    " + s)

    def label(self, l):
        self.lines.append(l + ":")

    def newlabel(self, p="L"):
        self.nlab += 1
        return "%s_%s_%d" % (p, self.name, self.nlab)

    def lds(self, s, tag):
        if len(self.pend) >= 15:
            self.e("s_waitcnt lgkmcnt(13)")
            self.pend = self.pend[-13:]
        self.e(s)
        self.pend.append(tag)

    def need(self, *tags):
        idx = -1
        for t in tags:
            for i, p in enumerate(self.pend):
                if p == t:
                    idx = max(idx, i)
        if idx < 0:
            return
        n = len(self.pend) - 1 - idx
        n = min(n, 14)
        self.e("s_waitcnt lgkmcnt(%d)" % n)
        self.pend = self.pend[len(self.pend) - n:] if n else []

    def lgkm0(self):
        self.e("s_waitcnt lgkmcnt(0)")
        self.pend = []


def vr(b, n=4):
    return "v[%d:%d]" % (b, b + n - 1)


def sr(b, n=4):
    return "s[%d:%d]" % (b, b + n - 1)


def header(k, nwg):
    k.lines.append(".p2align 8")
    k.lines.append(".type %s,@function" % k.name)
    k.label(k.name)
    k.e("s_cmp_ge_u32 s2, %d" % nwg)
    k.e("s_cbranch_scc1 L_end_%s" % k.name)


def footer(k, nvgpr, nsgpr=64):
    k.label("L_end_%s" % k.name)
    k.e("s_endpgm")
    acc = (nvgpr + 3) // 4 * 4
    kd = """.section .rodata,"a"
.p2align 6
.amdhsa_kernel %s
  .amdhsa_next_free_vgpr %d
  .amdhsa_next_free_sgpr %d
  .amdhsa_accum_offset %d
  .amdhsa_group_segment_fixed_size 0
  .amdhsa_kernarg_size 96
  .amdhsa_user_sgpr_count 2
  .amdhsa_user_sgpr_kernarg_segment_ptr 1
  .amdhsa_system_sgpr_workgroup_id_x 1
.end_amdhsa_kernel
.text""" % (k.name, nvgpr, nsgpr, acc)
    k.lines.append(kd)


def srd(k, d, pbase, off_const, off_sgpr, total):
    if off_sgpr is None:
        k.e("s_add_u32 s%d, s%d, 0x%x" % (d, pbase, off_const))
        k.e("s_addc_u32 s%d, s%d, 0" % (d + 1, pbase + 1))
        k.e("s_mov_b32 s%d, 0x%x" % (d + 2, total - off_const))
    else:
        k.e("s_add_u32 s%d, s%d, 0x%x" % (d, pbase, off_const))
        k.e("s_addc_u32 s%d, s%d, 0" % (d + 1, pbase + 1))
        k.e("s_add_u32 s%d, s%d, s%d" % (d, d, off_sgpr))
        k.e("s_addc_u32 s%d, s%d, 0" % (d + 1, d + 1))
        k.e("s_sub_u32 s%d, 0x%x, s%d" % (d + 2, total - off_const, off_sgpr))
    k.e("s_and_b32 s%d, s%d, 0xffff" % (d + 1, d + 1))
    k.e("s_mov_b32 s%d, 0x20000" % (d + 3))


def wave_sum(k, v, t, sbase):
    k.e("s_nop 1")
    k.e("v_add_f32_dpp %s, %s, %s quad_perm:[1,0,3,2] row_mask:0xf bank_mask:0xf" % (v, v, v))
    k.e("s_nop 1")
    k.e("v_add_f32_dpp %s, %s, %s quad_perm:[2,3,0,1] row_mask:0xf bank_mask:0xf" % (v, v, v))
    k.e("s_nop 1")
    k.e("v_add_f32_dpp %s, %s, %s row_half_mirror row_mask:0xf bank_mask:0xf" % (v, v, v))
    k.e("s_nop 1")
    k.e("v_add_f32_dpp %s, %s, %s row_mirror row_mask:0xf bank_mask:0xf" % (v, v, v))
    k.e("s_nop 1")
    for i in range(4):
        k.e("v_readlane_b32 s%d, %s, %d" % (sbase + i, v, 16 * i))
    k.e("s_nop 1")
    k.e("v_mov_b32 %s, s%d" % (v, sbase))
    k.e("v_add_f32 %s, s%d, %s" % (v, sbase + 1, v))
    k.e("v_add_f32 %s, s%d, %s" % (v, sbase + 2, v))
    k.e("v_add_f32 %s, s%d, %s" % (v, sbase + 3, v))


def gen_r(name, xin, npart, xout, ln):
    k = K(name)
    nwg = S // 4
    header(k, nwg)
    k.e("s_load_dwordx2 s[4:5], s[0:1], %d" % KA_WS)
    if xin[0] == 'in':
        k.e("s_load_dwordx2 s[6:7], s[0:1], %d" % xin[1])
    if xout and xout[0] == 'out':
        k.e("s_load_dwordx2 s[8:9], s[0:1], %d" % KA_OUT)
    k.e("v_lshrrev_b32 v1, 6, v0")
    k.e("v_and_b32 v2, 63, v0")
    k.e("s_lshl_b32 s3, s2, 2")
    k.e("v_add_u32 v1, s3, v1")
    k.e("v_mul_u32_u24 v3, 2304, v1")
    k.e("v_mul_u32_u24 v4, 1152, v1")
    k.e("v_lshl_add_u32 v5, v2, 4, v3")
    k.e("v_lshl_add_u32 v6, v2, 2, v3")
    k.e("v_lshl_add_u32 v7, v2, 3, v4")
    k.e("v_lshl_add_u32 v8, v2, 1, v4")
    k.e("s_waitcnt lgkmcnt(0)")
    if xin[0] == 'in':
        srd(k, 12, 6, 0, None, XB)
    else:
        srd(k, 12, 4, xin[1], None, xin[1] + XB)
    if npart:
        srd(k, 16, 4, WS_P, None, WS_P + npart * PB)
    if xout:
        if xout[0] == 'out':
            srd(k, 20, 8, 0, None, XB)
        else:
            srd(k, 20, 4, xout[1], None, xout[1] + XB)
    if ln:
        srd(k, 24, 4, WS_XN, None, WS_XN + XB)
    k.e("buffer_load_dwordx2 v[10:11], v7, s[12:15], 0 offen")
    k.e("buffer_load_dwordx2 v[12:13], v7, s[12:15], 0 offen offset:512")
    k.e("buffer_load_ushort v14, v8, s[12:15], 0 offen offset:1024")
    for z in range(npart):
        b = 16 + 12 * z
        k.e("s_mov_b32 s28, 0x%x" % (z * PB))
        k.e("buffer_load_dwordx4 %s, v5, s[16:19], s28 offen" % vr(b))
        k.e("buffer_load_dwordx4 %s, v5, s[16:19], s28 offen offset:1024" % vr(b + 4))
        k.e("buffer_load_dword v%d, v6, s[16:19], s28 offen offset:2048" % (b + 8))
    X = 64
    k.e("s_waitcnt vmcnt(%d)" % (3 * npart))
    for i, src in enumerate([10, 11, 12, 13]):
        k.e("v_lshlrev_b32 v%d, 16, v%d" % (X + 2 * i, src))
        k.e("v_and_b32 v%d, 0xffff0000, v%d" % (X + 2 * i + 1, src))
    k.e("v_lshlrev_b32 v%d, 16, v14" % (X + 8))
    if npart:
        k.e("s_waitcnt vmcnt(0)")
        for e in range(9):
            k.e("v_add_f32 v%d, v%d, v%d" % (16 + e, 16 + e, 28 + e))
            k.e("v_add_f32 v%d, v%d, v%d" % (40 + e, 40 + e, 52 + e))
        for e in range(9):
            k.e("v_add_f32 v%d, v%d, v%d" % (16 + e, 16 + e, 40 + e))
        for e in range(9):
            k.e("v_add_f32 v%d, v%d, v%d" % (X + e, X + e, 16 + e))
        for i in range(4):
            k.e("v_cvt_pk_bf16_f32 v%d, v%d, v%d" % (10 + i, X + 2 * i, X + 2 * i + 1))
        k.e("v_cvt_pk_bf16_f32 v14, v%d, v%d" % (X + 8, X + 8))
        if xout:
            k.e("buffer_store_dwordx2 v[10:11], v7, s[20:23], 0 offen")
            k.e("buffer_store_dwordx2 v[12:13], v7, s[20:23], 0 offen offset:512")
            k.e("buffer_store_short v14, v8, s[20:23], 0 offen offset:1024")
        if ln:
            for i, src in enumerate([10, 11, 12, 13]):
                k.e("v_lshlrev_b32 v%d, 16, v%d" % (X + 2 * i, src))
                k.e("v_and_b32 v%d, 0xffff0000, v%d" % (X + 2 * i + 1, src))
            k.e("v_lshlrev_b32 v%d, 16, v14" % (X + 8))
    if ln:
        k.e("v_add_f32 v20, v%d, v%d" % (X, X + 1))
        k.e("v_add_f32 v21, v%d, v%d" % (X + 2, X + 3))
        k.e("v_add_f32 v22, v%d, v%d" % (X + 4, X + 5))
        k.e("v_add_f32 v23, v%d, v%d" % (X + 6, X + 7))
        k.e("v_add_f32 v20, v20, v21")
        k.e("v_add_f32 v22, v22, v23")
        k.e("v_add_f32 v20, v20, v%d" % (X + 8))
        k.e("v_add_f32 v20, v20, v22")
        wave_sum(k, "v20", "v21", 32)
        k.e("v_mul_f32 v20, 0x%08x, v20" % f32bits(1.0 / D))
        for e in range(9):
            k.e("v_sub_f32 v%d, v%d, v20" % (X + e, X + e))
        k.e("v_mul_f32 v21, v%d, v%d" % (X, X))
        k.e("v_mul_f32 v22, v%d, v%d" % (X + 1, X + 1))
        for e in range(2, 9):
            k.e("v_fmac_f32 v%d, v%d, v%d" % (21 + (e & 1), X + e, X + e))
        k.e("v_add_f32 v21, v21, v22")
        wave_sum(k, "v21", "v22", 32)
        k.e("v_mov_b32 v22, 0x%08x" % f32bits(1e-5))
        k.e("v_fmac_f32 v22, 0x%08x, v21" % f32bits(1.0 / D))
        k.e("v_rsq_f32 v22, v22")
        k.e("s_nop 0")
        for e in range(9):
            k.e("v_mul_f32 v%d, v%d, v22" % (X + e, X + e))
        for i in range(4):
            k.e("v_cvt_pk_bf16_f32 v%d, v%d, v%d" % (24 + i, X + 2 * i, X + 2 * i + 1))
        k.e("v_cvt_pk_bf16_f32 v28, v%d, v%d" % (X + 8, X + 8))
        k.e("buffer_store_dwordx2 v[24:25], v7, s[24:27], 0 offen")
        k.e("buffer_store_dwordx2 v[26:27], v7, s[24:27], 0 offen offset:512")
        k.e("buffer_store_short v28, v8, s[24:27], 0 offen offset:1024")
    footer(k, 76, 40)
    return k, nwg, 256, 0


def f32bits(x):
    import struct
    return struct.unpack("<I", struct.pack("<f", x))[0]


MTB = 18432


def gen_gemm(name, kind):
    k = K(name)
    nwg = 256
    if kind in ('A2', 'B2'):
        NFR, WK, NMAT, NBUF, mmode = 2, 2, 1, 4, 'tr'
        NS = 16 if kind == 'A2' else 18
        strideN = 4096 if kind == 'A2' else 9216
        strideM = 1152
    elif kind == 'A1':
        NFR, WK, NMAT, NBUF, mmode = 1, 2, 1, 4, 'row'
        NS = 9
        strideN, strideM = 1152, 1152
    elif kind == 'B1':
        NFR, WK, NMAT, NBUF, mmode = 4, 1, 2, 2, 'tr'
        NS = 9
        strideN, strideM = 1152, 9216
    NT = 4 * NFR * 16
    NTB = NT * 128
    STB = NTB + NMAT * MTB
    NDN = NT // 64
    ND = NDN + 3 * NMAT
    KS = 2 if WK == 1 else 1

    vLane, vT0, vT1, vT2, vT3, vT4 = 1, 2, 3, 4, 5, 6
    vDN = 8
    vDM = [9, 10, 11]
    nxt = 12
    vRN = [[0] * KS for _ in range(NBUF)]
    nrm = KS if mmode == 'row' else 1
    vRM = [[0] * nrm for _ in range(NBUF)]
    for b in range(NBUF):
        for s_ in range(KS):
            vRN[b][s_] = nxt; nxt += 1
        for s_ in range(nrm):
            vRM[b][s_] = nxt; nxt += 1
    nxt = (nxt + 3) // 4 * 4
    vM = [nxt + 4 * j for j in range(9)]; nxt += 36
    vN = [[nxt + 4 * (p * NFR + i) for i in range(NFR)] for p in range(2)]; nxt += 8 * NFR
    vA = [[nxt + 4 * (j * NFR + i) for i in range(NFR)] for j in range(9)]; nxt += 36 * NFR
    nvgpr = nxt
    assert nvgpr <= 256, nvgpr

    sW, sW1024, sW256, sKN, sKM, sTmp, sLoop = 28, 29, 30, 31, 32, 33, 40
    SRN, SRM, SRO = 12, [16, 20], 24

    header(k, nwg)
    k.e("s_load_dwordx2 s[4:5], s[0:1], %d" % KA_WS)
    if kind == 'A2':
        k.e("s_load_dwordx4 s[8:11], s[0:1], %d" % KA_CR)
    elif kind == 'B2':
        k.e("s_load_dwordx2 s[8:9], s[0:1], %d" % KA_WD)
    elif kind == 'A1':
        k.e("s_load_dwordx2 s[8:9], s[0:1], %d" % KA_WR)
        k.e("s_load_dwordx2 s[10:11], s[0:1], %d" % KA_WI)
    elif kind == 'B1':
        k.e("s_load_dwordx4 s[8:11], s[0:1], %d" % KA_WG)
    k.e("v_and_b32 v%d, 63, v0" % vLane)
    k.e("v_lshrrev_b32 v%d, 6, v0" % vT0)
    k.e("s_nop 0")
    k.e("v_readfirstlane_b32 s%d, v%d" % (sW, vT0))
    k.e("s_and_b32 s34, s2, 7")
    k.e("s_lshr_b32 s35, s2, 3")
    if kind in ('A2', 'B2'):
        k.e("s_and_b32 s36, s34, 3")
        k.e("s_lshr_b32 s37, s34, 2")
        k.e("s_lshl_b32 s37, s37, 3")
        k.e("s_lshr_b32 s38, s35, 2")
        k.e("s_add_u32 s37, s37, s38")
        k.e("s_and_b32 s38, s35, 3")
    elif kind == 'B1':
        k.e("s_lshl_b32 s38, s34, 2")
        k.e("s_and_b32 s36, s35, 3")
        k.e("s_add_u32 s38, s38, s36")
        k.e("s_lshr_b32 s37, s35, 2")
    elif kind == 'A1':
        k.e("s_mov_b32 s38, s34")
        k.e("s_mov_b32 s37, s35")
    k.e("s_lshl_b32 s%d, s%d, 10" % (sW1024, sW))
    k.e("s_lshl_b32 s%d, s%d, 8" % (sW256, sW))
    k.e("v_lshrrev_b32 v%d, 3, v%d" % (vT0, vLane))
    k.e("s_lshl_b32 s%d, s%d, 3" % (sTmp, sW))
    k.e("v_add_u32 v%d, s%d, v%d" % (vT0, sTmp, vT0))
    k.e("v_bfe_u32 v%d, v%d, 1, 3" % (vT1, vT0))
    k.e("v_and_b32 v%d, 7, v%d" % (vT2, vLane))
    k.e("v_xor_b32 v%d, v%d, v%d" % (vT1, vT1, vT2))
    k.e("v_mul_u32_u24 v%d, %d, v%d" % (vDN, strideN, vT0))
    k.e("v_lshl_add_u32 v%d, v%d, 4, v%d" % (vDN, vT1, vDN))
    if mmode == 'row':
        k.e("v_mul_u32_u24 v%d, %d, v%d" % (vDM[0], strideM, vT0))
        k.e("v_lshl_add_u32 v%d, v%d, 4, v%d" % (vDM[0], vT1, vDM[0]))
        k.e("v_lshrrev_b32 v%d, 3, v%d" % (vT0, vLane))
        k.e("s_lshl_b32 s%d, s%d, 1" % (sTmp, sW))
        k.e("s_add_u32 s%d, s%d, 128" % (sTmp, sTmp))
        k.e("v_add_u32 v%d, s%d, v%d" % (vT0, sTmp, vT0))
        k.e("v_bfe_u32 v%d, v%d, 1, 3" % (vT1, vT0))
        k.e("v_xor_b32 v%d, v%d, v%d" % (vT1, vT1, vT2))
        k.e("v_mul_u32_u24 v%d, %d, v%d" % (vDM[2], strideM, vT0))
        k.e("v_lshl_add_u32 v%d, v%d, 4, v%d" % (vDM[2], vT1, vDM[2]))
    else:
        for q in range(3):
            if q < 2:
                k.e("s_lshl_b32 s%d, s%d, 6" % (sTmp, sW))
                k.e("s_add_u32 s%d, s%d, %d" % (sTmp, sTmp, 512 * q))
            else:
                k.e("s_lshl_b32 s%d, s%d, 4" % (sTmp, sW))
                k.e("s_add_u32 s%d, s%d, 1024" % (sTmp, sTmp))
            k.e("v_add_u32 v%d, s%d, v%d" % (vT0, sTmp, vLane))
            k.e("v_mul_u32_u24 v%d, 3641, v%d" % (vT1, vT0))
            k.e("v_lshrrev_b32 v%d, 16, v%d" % (vT1, vT1))
            k.e("v_mul_u32_u24 v%d, 18, v%d" % (vT2, vT1))
            k.e("v_sub_u32 v%d, v%d, v%d" % (vT2, vT0, vT2))
            k.e("v_and_b32 v%d, 0x33, v%d" % (vT3, vT1))
            k.e("v_and_b32 v%d, 4, v%d" % (vT4, vT1))
            k.e("v_lshl_or_b32 v%d, v%d, 1, v%d" % (vT3, vT4, vT3))
            k.e("v_and_b32 v%d, 8, v%d" % (vT4, vT1))
            k.e("v_lshrrev_b32 v%d, 1, v%d" % (vT4, vT4))
            k.e("v_or_b32 v%d, v%d, v%d" % (vT3, vT3, vT4))
            k.e("v_mul_u32_u24 v%d, %d, v%d" % (vDM[q], strideM, vT3))
            k.e("v_lshl_add_u32 v%d, v%d, 4, v%d" % (vDM[q], vT2, vDM[q]))
    k.e("s_and_b32 s%d, s%d, 3" % (sTmp, sW))
    k.e("s_mul_i32 s%d, s%d, %d" % (sTmp, sTmp, NFR * 16 * 128))
    k.e("v_and_b32 v%d, 15, v%d" % (vT0, vLane))
    k.e("v_lshrrev_b32 v%d, 4, v%d" % (vT1, vLane))
    k.e("v_bfe_u32 v%d, v%d, 1, 3" % (vT2, vLane))
    k.e("v_xor_b32 v%d, v%d, v%d" % (vT2, vT1, vT2))
    k.e("v_lshlrev_b32 v%d, 4, v%d" % (vT2, vT2))
    k.e("v_lshl_add_u32 v%d, v%d, 7, v%d" % (vT2, vT0, vT2))
    k.e("s_lshr_b32 s39, s%d, 2" % sW)
    if WK == 2:
        k.e("s_lshl_b32 s41, s39, 6")
        k.e("v_xor_b32 v%d, s41, v%d" % (vT2, vT2))
    k.e("v_add_u32 v%d, s%d, v%d" % (vT3, sTmp, vT2))
    for b in range(NBUF):
        k.e("v_add_u32 v%d, 0x%x, v%d" % (vRN[b][0], b * STB, vT3))
        if KS == 2:
            k.e("v_xor_b32 v%d, 64, v%d" % (vRN[b][1], vRN[b][0]))
    if mmode == 'row':
        for b in range(NBUF):
            k.e("v_add_u32 v%d, 0x%x, v%d" % (vRM[b][0], b * STB + NTB, vT2))
    else:
        k.e("v_lshrrev_b32 v%d, 5, v%d" % (vT2, vLane))
        k.e("v_lshlrev_b32 v%d, 4, v%d" % (vT2, vT2))
        k.e("v_bfe_u32 v%d, v%d, 4, 1" % (vT3, vLane))
        k.e("v_lshl_add_u32 v%d, v%d, 2, v%d" % (vT2, vT3, vT2))
        k.e("v_bfe_u32 v%d, v%d, 2, 2" % (vT3, vLane))
        k.e("v_add_u32 v%d, v%d, v%d" % (vT2, vT2, vT3))
        k.e("v_mul_u32_u24 v%d, 288, v%d" % (vT2, vT2))
        k.e("v_and_b32 v%d, 3, v%d" % (vT3, vLane))
        k.e("v_lshl_add_u32 v%d, v%d, 3, v%d" % (vT2, vT3, vT2))
        k.e("s_mul_i32 s41, s39, %d" % (9216 if WK == 2 else MTB))
        k.e("v_add_u32 v%d, s41, v%d" % (vT2, vT2))
        for b in range(NBUF):
            k.e("v_add_u32 v%d, 0x%x, v%d" % (vRM[b][0], b * STB + NTB, vT2))
    k.e("s_mov_b32 s42, 0xffff")
    k.e("s_mov_b32 s43, 0")
    k.e("s_mov_b32 s%d, 0" % sKN)
    k.e("s_mov_b32 s%d, 0" % sKM)
    k.e("s_waitcnt lgkmcnt(0)")
    if kind == 'A2':
        k.e("s_cmp_lt_u32 s36, 2")
        k.e("s_cselect_b32 s6, s8, s10")
        k.e("s_cselect_b32 s7, s9, s11")
        k.e("s_mul_i32 s44, s37, %d" % (128 * 4096))
        k.e("s_and_b32 s45, s36, 1")
        k.e("s_lshl_b32 s45, s45, 11")
        k.e("s_add_u32 s44, s44, s45")
        srd(k, SRN, 6, 0, 44, S * S * 2)
        k.e("s_mul_i32 s44, s36, %d" % (1024 * 1152))
        k.e("s_mul_i32 s45, s38, 288")
        k.e("s_add_u32 s44, s44, s45")
        srd(k, SRM[0], 4, WS_AB, 44, WS_AB + 2 * XB)
    elif kind == 'B2':
        k.e("s_mul_i32 s44, s37, %d" % (128 * 9216))
        k.e("s_mul_i32 s45, s36, 2304")
        k.e("s_add_u32 s44, s44, s45")
        srd(k, SRN, 4, WS_H, 44, WS_H + HB)
        k.e("s_mul_i32 s44, s36, %d" % (1152 * 1152))
        k.e("s_mul_i32 s45, s38, 288")
        k.e("s_add_u32 s44, s44, s45")
        srd(k, SRM[0], 8, 0, 44, F * D * 2)
    elif kind == 'A1':
        k.e("s_mul_i32 s44, s37, %d" % (64 * 1152))
        srd(k, SRN, 4, WS_XN, 44, WS_XN + XB)
        k.e("s_cmp_lt_u32 s38, 4")
        k.e("s_cselect_b32 s6, s8, s10")
        k.e("s_cselect_b32 s7, s9, s11")
        k.e("s_and_b32 s45, s38, 3")
        k.e("s_mul_i32 s44, s45, %d" % (144 * 1152))
        srd(k, SRM[0], 6, 0, 44, D * D * 2)
    elif kind == 'B1':
        k.e("s_mul_i32 s44, s37, %d" % (256 * 1152))
        srd(k, SRN, 4, WS_XN, 44, WS_XN + XB)
        k.e("s_mul_i32 s44, s38, 288")
        srd(k, SRM[0], 8, 0, 44, D * F * 2)
        srd(k, SRM[1], 10, 0, 44, D * F * 2)

    def dma_pieces(b):
        P = []
        for mat in range(NMAT):
            mb_ = b * STB + NTB + mat * MTB
            for q in range(3):
                L = []
                if q < 2:
                    L.append("s_add_u32 m0, s%d, 0x%x" % (sW1024, mb_ + q * 8192))
                else:
                    L.append("s_add_u32 m0, s%d, 0x%x" % (sW256, mb_ + 16384))
                if mmode == 'row' and q == 1:
                    L.append("s_add_u32 s%d, s%d, 0x%x" % (sTmp, sKM, 64 * strideM))
                    so, vo = sTmp, vDM[0]
                else:
                    so, vo = sKM, vDM[q]
                    L.append("s_nop 0")
                if q == 2:
                    L.append("s_mov_b64 exec, s[42:43]")
                L.append("buffer_load_dwordx4 v%d, %s, s%d offen lds" % (vo, sr(SRM[mat]), so))
                if q == 2:
                    L.append("s_mov_b64 exec, -1")
                P.append(L)
        for j in range(NDN):
            L = ["s_add_u32 m0, s%d, 0x%x" % (sW1024, b * STB + j * 8192)]
            if j:
                L.append("s_add_u32 s%d, s%d, 0x%x" % (sTmp, sKN, j * 64 * strideN))
                L.append("buffer_load_dwordx4 v%d, %s, s%d offen lds" % (vDN, sr(SRN), sTmp))
            else:
                L.append("s_nop 0")
                L.append("buffer_load_dwordx4 v%d, %s, s%d offen lds" % (vDN, sr(SRN), sKN))
            P.append(L)
        P[-1] = P[-1] + ["s_add_u32 s%d, s%d, 128" % (sKN, sKN),
                         "s_add_u32 s%d, s%d, 0x%x" % (sKM, sKM, 128 if mmode == 'row' else 64 * strideM)]
        return P

    def read_m(j, b, ks, tag):
        if mmode == 'row':
            k.lds("ds_read_b128 %s, v%d offset:%d" % (vr(vM[j]), vRM[b][ks if KS == 2 else 0], j * 2048), tag)
        else:
            o = (ks * 9216 if KS == 2 else 0) + j * 32
            k.lds("ds_read_b64_tr_b16 %s, v%d offset:%d" % (vr(vM[j], 2), vRM[b][0], o), tag)
            k.lds("ds_read_b64_tr_b16 %s, v%d offset:%d" % (vr(vM[j] + 2, 2), vRM[b][0], o + 2304), tag)

    def read_n(p, b, ks):
        for i in range(NFR):
            k.lds("ds_read_b128 %s, v%d offset:%d" % (vr(vN[p][i]), vRN[b][ks if KS == 2 else 0], i * 2048), "N%d_%d" % (p, i))

    def mfma(j, i, p, first):
        c = "0" if first else vr(vA[j][i])
        k.e("v_mfma_f32_16x16x32_bf16 %s, %s, %s, %s" % (vr(vA[j][i]), vr(vM[j]), vr(vN[p][i]), c))

    blocks = []

    def cut():
        blocks.append(k.lines)
        k.lines = []

    pre = None
    if WK == 2:
        for st in range(NBUF - 1):
            for L in dma_pieces(st):
                for x in L:
                    k.e(x)
        k.e("s_waitcnt vmcnt(%d)" % (ND * (NBUF - 2)))
        k.e("s_barrier")
        read_n(0, 0, 0)
        for j in range(9):
            read_m(j, 0, 0, "M%d" % j)
        pre = k.lines; k.lines = []
        for t in range(NS):
            b = t % NBUF
            p = t % 2
            last = (t == NS - 1)
            extras = []
            if not last:
                infl = min(t + NBUF - 2, NS - 1) - (t + 1)
                k.e("s_waitcnt vmcnt(%d)" % (ND * infl))
                k.e("s_barrier")
                if t + NBUF - 1 < NS:
                    extras = dma_pieces((t + NBUF - 1) % NBUF)
                read_n(1 - p, (t + 1) % NBUF, 0)
            for j in range(9):
                k.need("M%d" % j, *["N%d_%d" % (p, i) for i in range(NFR)])
                for i in range(NFR):
                    mfma(j, i, p, t == 0)
                if not last:
                    read_m(j, (t + 1) % NBUF, 0, "M%d" % j)
                if extras:
                    for x in extras.pop(0):
                        k.e(x)
            assert not extras
            cut()
        U = NBUF
    else:
        JB = 3
        for st in range(2):
            for L in dma_pieces(st):
                for x in L:
                    k.e(x)
        k.e("s_waitcnt vmcnt(%d)" % ND)
        k.e("s_barrier")
        read_n(0, 0, 0)
        for j in range(9):
            read_m(j, 0, 0, "M%d" % j)
        pre = k.lines; k.lines = []
        for st in range(NS):
            b = st % 2
            last = (st == NS - 1)
            read_n(1, b, 1)
            for j in range(9):
                k.need("M%d" % j, *["N0_%d" % i for i in range(NFR)])
                for i in range(NFR):
                    mfma(j, i, 0, st == 0)
                read_m(j, b, 1, "M%d" % j)
            extras = []
            for j in range(9):
                k.need("M%d" % j, *["N1_%d" % i for i in range(NFR)])
                for i in range(NFR):
                    mfma(j, i, 1, False)
                if last:
                    continue
                if j == JB - 1:
                    k.e("s_waitcnt vmcnt(0) lgkmcnt(0)")
                    k.pend = []
                    k.e("s_barrier")
                    read_n(0, 1 - b, 0)
                    for jj in range(JB):
                        read_m(jj, 1 - b, 0, "M%d" % jj)
                    if st + 2 < NS:
                        extras = dma_pieces(b)
                elif j >= JB:
                    read_m(j, 1 - b, 0, "M%d" % j)
                if j >= JB - 1:
                    n = (len(extras) + (8 - j)) // (9 - j) if extras else 0
                    for _ in range(n):
                        for x in extras.pop(0):
                            k.e(x)
            assert not extras
            cut()
        U = 2

    best = None
    for a in range(NS):
        bnd = a + U
        while bnd + U <= NS and all(blocks[bnd + x] == blocks[a + x] for x in range(U)):
            bnd += U
        cnt = (bnd - a) // U
        if cnt >= 2 and (best is None or cnt > best[2]):
            best = (a, bnd, cnt)
    out = pre
    if best is None:
        for bl in blocks:
            out += bl
    else:
        a, bnd, cnt = best
        for bl in blocks[:a]:
            out += bl
        lab = k.newlabel("LP")
        out.append("    s_mov_b32 s%d, %d" % (sLoop, cnt))
        out.append(lab + ":")
        for bl in blocks[a:a + U]:
            out += bl
        out.append("    s_sub_u32 s%d, s%d, 1" % (sLoop, sLoop))
        out.append("    s_cmp_lg_u32 s%d, 0" % sLoop)
        out.append("    s_cbranch_scc1 %s" % lab)
        for bl in blocks[bnd:]:
            out += bl
    k.lines = out
    k.pend = []

    k.e("s_nop 7")
    k.e("s_nop 3")
    k.e("s_barrier")
    if kind in ('A2', 'B2', 'A1'):
        tiles = [(j, i) for i in range(NFR) for j in range(9)]
        h = (len(tiles) + 1) // 2
        keep = [tiles[:h], tiles[h:]]
        k.e("v_lshlrev_b32 v%d, 4, v%d" % (vT0, vLane))
        k.e("s_mul_i32 s%d, s%d, 9216" % (sTmp, sW))
        k.e("v_add_u32 v%d, s%d, v%d" % (vT1, sTmp, vT0))
        k.e("s_xor_b32 s41, s%d, 4" % sW)
        k.e("s_mul_i32 s%d, s41, 9216" % sTmp)
        k.e("v_add_u32 v%d, s%d, v%d" % (vT2, sTmp, vT0))
        k.e("s_and_b32 s%d, s%d, 3" % (sTmp, sW))
        k.e("s_mul_i32 s%d, s%d, %d" % (sTmp, sTmp, NFR * 16))
        k.e("v_and_b32 v%d, 15, v%d" % (vT3, vLane))
        k.e("v_add_u32 v%d, s%d, v%d" % (vT3, sTmp, vT3))
        k.e("v_lshrrev_b32 v%d, 4, v%d" % (vT4, vLane))
        if kind == 'A1':
            k.e("v_mul_u32_u24 v%d, 1152, v%d" % (vT3, vT3))
            k.e("v_lshl_add_u32 v%d, v%d, 3, v%d" % (vT3, vT4, vT3))
            k.e("s_lshr_b32 s45, s38, 2")
            k.e("s_mul_i32 s44, s45, %d" % XB)
            k.e("s_mul_i32 s46, s37, %d" % (64 * 1152))
            k.e("s_add_u32 s44, s44, s46")
            k.e("s_and_b32 s46, s38, 3")
            k.e("s_mul_i32 s46, s46, 288")
            k.e("s_add_u32 s44, s44, s46")
            srd(k, SRO, 4, WS_AB, 44, WS_AB + 2 * XB)
            k.e("s_mul_i32 s47, s45, 0x80008000")
        else:
            k.e("v_mul_u32_u24 v%d, 2304, v%d" % (vT3, vT3))
            k.e("v_lshl_add_u32 v%d, v%d, 4, v%d" % (vT3, vT4, vT3))
            k.e("s_mul_i32 s44, s36, %d" % PB)
            k.e("s_mul_i32 s46, s37, %d" % (128 * 2304))
            k.e("s_add_u32 s44, s44, s46")
            k.e("s_mul_i32 s46, s38, 576")
            k.e("s_add_u32 s44, s44, s46")
            srd(k, SRO, 4, WS_P, 44, WS_P + 4 * PB)
        lhi = k.newlabel("LH")
        lend = k.newlabel("LE")
        k.e("s_cmp_ge_u32 s%d, 4" % sW)
        k.e("s_cbranch_scc1 %s" % lhi)
        for g in range(2):
            if g == 1:
                k.label(lhi)
            for n, (j, i) in enumerate(keep[1 - g]):
                k.e("ds_write_b128 v%d, %s offset:%d" % (vT1, vr(vA[j][i]), n * 1024))
            k.e("s_waitcnt lgkmcnt(0)")
            k.e("s_barrier")
            for n, (j, i) in enumerate(keep[g]):
                k.e("ds_read_b128 %s, v%d offset:%d" % (vr(vM[n]), vT2, n * 1024))
            nk = len(keep[g])
            for n, (j, i) in enumerate(keep[g]):
                k.e("s_waitcnt lgkmcnt(%d)" % (nk - 1 - n))
                a = vA[j][i]
                for r in range(4):
                    k.e("v_add_f32 v%d, v%d, v%d" % (a + r, a + r, vM[n] + r))
                if kind == 'A1':
                    k.e("v_cvt_pk_bf16_f32 v%d, v%d, v%d" % (a, a, a + 1))
                    k.e("v_cvt_pk_bf16_f32 v%d, v%d, v%d" % (a + 1, a + 2, a + 3))
                    k.e("v_xor_b32 v%d, s47, v%d" % (a, a))
                    k.e("v_xor_b32 v%d, s47, v%d" % (a + 1, a + 1))
                    k.e("buffer_store_dwordx2 %s, v%d, %s, 0 offen offset:%d" % (vr(a, 2), vT3, sr(SRO), j * 32 + i * 16 * 1152))
                else:
                    k.e("s_mov_b32 s%d, %d" % (sTmp, i * 16 * 2304))
                    k.e("buffer_store_dwordx4 %s, v%d, %s, s%d offen offset:%d" % (vr(a), vT3, sr(SRO), sTmp, j * 64))
            if g == 0:
                k.e("s_branch %s" % lend)
        k.label(lend)
        lds = NBUF * STB
    else:
        RS = 304
        REG = 256 * RS
        k.e("s_and_b32 s%d, s%d, 3" % (sTmp, sW))
        k.e("s_mul_i32 s%d, s%d, %d" % (sTmp, sTmp, 64 * RS))
        k.e("s_mul_i32 s41, s39, %d" % REG)
        k.e("s_add_u32 s%d, s%d, s41" % (sTmp, sTmp))
        k.e("v_and_b32 v%d, 15, v%d" % (vT0, vLane))
        k.e("v_mul_u32_u24 v%d, %d, v%d" % (vT0, RS, vT0))
        k.e("v_lshrrev_b32 v%d, 4, v%d" % (vT1, vLane))
        k.e("v_lshl_add_u32 v%d, v%d, 3, v%d" % (vT0, vT1, vT0))
        k.e("v_add_u32 v%d, s%d, v%d" % (vT0, sTmp, vT0))
        for i in range(NFR):
            for j in range(9):
                a = vA[j][i]
                k.e("v_cvt_pk_bf16_f32 v%d, v%d, v%d" % (a, a, a + 1))
                k.e("v_cvt_pk_bf16_f32 v%d, v%d, v%d" % (a + 1, a + 2, a + 3))
                k.e("ds_write_b64 v%d, %s offset:%d" % (vT0, vr(a, 2), i * 16 * RS + j * 32))
        k.e("s_mul_i32 s44, s37, %d" % (256 * 9216))
        k.e("s_mul_i32 s46, s38, 288")
        k.e("s_add_u32 s44, s44, s46")
        srd(k, SRO, 4, WS_H, 44, WS_H + HB)
        LA, GA = 16, 28
        for it in range(9):
            k.e("v_add_u32 v%d, %d, v0" % (vT1, it * 512))
            k.e("v_mul_u32_u24 v%d, 3641, v%d" % (vT2, vT1))
            k.e("v_lshrrev_b32 v%d, 16, v%d" % (vT2, vT2))
            k.e("v_mul_u32_u24 v%d, 18, v%d" % (vT3, vT2))
            k.e("v_sub_u32 v%d, v%d, v%d" % (vT3, vT1, vT3))
            k.e("v_mul_u32_u24 v%d, %d, v%d" % (vT4, RS, vT2))
            k.e("v_lshl_add_u32 v%d, v%d, 4, v%d" % (LA + it, vT3, vT4))
            k.e("v_mul_u32_u24 v%d, 9216, v%d" % (vT4, vT2))
            k.e("v_lshl_add_u32 v%d, v%d, 4, v%d" % (GA + it, vT3, vT4))
        k.e("s_waitcnt lgkmcnt(0)")
        k.e("s_barrier")
        k.e("s_mov_b32 s45, 0x%x" % REG)
        GB, UB = 40, 80
        for it in range(9):
            k.e("ds_read_b128 %s, v%d" % (vr(GB + 4 * it), LA + it))
            k.e("v_add_u32 v%d, s45, v%d" % (LA + it, LA + it))
            k.e("ds_read_b128 %s, v%d" % (vr(UB + 4 * it), LA + it))
            if it == 6:
                k.e("s_waitcnt lgkmcnt(6)")
        nl2e = f32bits(-1.4426950408889634)
        k.e("s_mov_b32 s46, 0x%08x" % nl2e)
        T = 120
        for it in range(9):
            k.e("s_waitcnt lgkmcnt(%d)" % min(2 * (8 - it), 14))
            for r in range(4):
                g = GB + 4 * it + r
                u = UB + 4 * it + r
                t = T + 8 * r
                k.e("v_lshlrev_b32 v%d, 16, v%d" % (t, g))
                k.e("v_and_b32 v%d, 0xffff0000, v%d" % (t + 1, g))
                k.e("v_mul_f32 v%d, s46, v%d" % (t, t))
                k.e("v_mul_f32 v%d, s46, v%d" % (t + 1, t + 1))
                k.e("v_exp_f32 v%d, v%d" % (t, t))
                k.e("v_exp_f32 v%d, v%d" % (t + 1, t + 1))
                k.e("v_lshlrev_b32 v%d, 16, v%d" % (t + 2, u))
                k.e("v_and_b32 v%d, 0xffff0000, v%d" % (t + 3, u))
                k.e("v_add_f32 v%d, 1.0, v%d" % (t, t))
                k.e("v_add_f32 v%d, 1.0, v%d" % (t + 1, t + 1))
                k.e("v_rcp_f32 v%d, v%d" % (t, t))
                k.e("v_rcp_f32 v%d, v%d" % (t + 1, t + 1))
                k.e("s_nop 0")
                k.e("v_mul_f32 v%d, v%d, v%d" % (t, t, t + 2))
                k.e("v_mul_f32 v%d, v%d, v%d" % (t + 1, t + 1, t + 3))
                k.e("v_cvt_pk_bf16_f32 v%d, v%d, v%d" % (g, t, t + 1))
            k.e("buffer_store_dwordx4 %s, v%d, %s, 0 offen" % (vr(GB + 4 * it), GA + it, sr(SRO)))
        lds = max(NBUF * STB, 2 * REG)
    footer(k, nvgpr, 56)
    return k, nwg, 512, lds


def main():
    ks = {}
    ks['r0'] = gen_r(MAIN + "_kernel", ('in', KA_X), 0, None, True)
    ks['a1'] = gen_gemm("a1_kernel", 'A1')
    ks['a2'] = gen_gemm("a2_kernel", 'A2')
    ks['ra1'] = gen_r("ra1_kernel", ('in', KA_X), 4, ('ws', WS_X1), True)
    ks['b1'] = gen_gemm("b1_kernel", 'B1')
    ks['b2'] = gen_gemm("b2_kernel", 'B2')
    ks['rb'] = gen_r("rb_kernel", ('ws', WS_X1), 4, ('ws', WS_X2), True)
    ks['ra2'] = gen_r("ra2_kernel", ('ws', WS_X2), 4, ('ws', WS_X1), True)
    ks['rf'] = gen_r("rf_kernel", ('ws', WS_X1), 4, ('out',), False)
    order = ['r0', 'a1', 'a2', 'ra1', 'b1', 'b2', 'rb', 'a1', 'a2', 'ra2', 'b1', 'b2', 'rf']
    out = []
    out.append("; FNet (DFT matmul) + GLU interleaved layers; generated by gen.py")
    for n in order:
        kk, nwg, blk, lds = ks[n]
        out.append("; @launch kernel=%s grid=(%d,1,1) block=(%d,1,1) lds=%d" % (kk.name, nwg, blk, lds))
    out.append('.amdgcn_target "amdgcn-amd-amdhsa--gfx950"')
    out.append(".text")
    for n, (kk, nwg, blk, lds) in ks.items():
        out.append(".globl %s" % kk.name)
        out += kk.lines
    open(sys.argv[1] if len(sys.argv) > 1 else "cdna_kernels/%s.s" % MAIN, "w").write("\n".join(out) + "\n")


if __name__ == "__main__":
    main()
```

```python
import sys, os, struct
OPT = dict(x.split('=') for x in os.environ.get('GENOPT', '').split(',') if x)
STAMP = int(OPT.get('stamp', 0))
NOMFMA = OPT.get('nomfma', '')
NODMA = OPT.get('nodma', '')
PBF = int(OPT.get('pbf', 1))
PF = int(OPT.get('pf', 1))
STF = {'': '', 'sc1': ' sc1', 'nt': ' nt', 'sc01': ' sc0 sc1'}[OPT.get('stf', 'sc01')]

MAIN = "interleave_layers__spectral_fnet__glu_gated_glu__prompt"
S, D, F = 2048, 576, 4608
KA_X, KA_CR, KA_CI, KA_WR, KA_WI, KA_BX, KA_WG, KA_WU, KA_WD, KA_OUT, KA_DBG, KA_WS = [8 * i for i in range(12)]
WS_XN = 0x0000000
WS_X1 = 0x0400000
WS_X2 = 0x0800000
WS_AB = 0x0C00000
WS_FL = 0x1200000
WS_P = 0x1400000
WS_H = 0x3000000
WS_DBG = 0x8000000
XB = S * D * 2
PB = S * D * 4
HB = S * F * 2
MTB = 18432


def f32bits(x):
    return struct.unpack("<I", struct.pack("<f", x))[0]


class K:
    def __init__(self, name):
        self.name = name
        self.lines = []
        self.pend = []
        self.nlab = 0

    def e(self, s):
        if s.startswith('buffer_store') and ' sc' not in s:
            s += STF
        self.lines.append("    " + s)

    def label(self, l):
        self.lines.append(l + ":")

    def newlabel(self, p="L"):
        self.nlab += 1
        return "%s_%s_%d" % (p, self.name[-12:], self.nlab)

    def lds(self, s, tag):
        if len(self.pend) >= 15:
            self.e("s_waitcnt lgkmcnt(13)")
            self.pend = self.pend[-13:]
        self.e(s)
        self.pend.append(tag)

    def need(self, *tags):
        idx = -1
        for i, p in enumerate(self.pend):
            if p in tags:
                idx = i
        if idx < 0:
            return
        n = min(len(self.pend) - 1 - idx, 14)
        self.e("s_waitcnt lgkmcnt(%d)" % n)
        self.pend = self.pend[len(self.pend) - n:] if n else []


def vr(b, n=4):
    return "v[%d:%d]" % (b, b + n - 1)


def sr(b, n=4):
    return "s[%d:%d]" % (b, b + n - 1)


def header(k, nwg):
    k.lines.append(".p2align 8")
    k.lines.append(".type %s,@function" % k.name)
    k.label(k.name)
    k.e("s_cmp_ge_u32 s2, %d" % nwg)
    k.e("s_cbranch_scc1 L_end_%s" % k.name)


def footer(k, nvgpr, nsgpr=64):
    k.label("L_end_%s" % k.name)
    k.e("s_endpgm")
    acc = (nvgpr + 3) // 4 * 4
    k.lines.append(""".section .rodata,"a"
.p2align 6
.amdhsa_kernel %s
  .amdhsa_next_free_vgpr %d
  .amdhsa_next_free_sgpr %d
  .amdhsa_accum_offset %d
  .amdhsa_group_segment_fixed_size 0
  .amdhsa_kernarg_size 96
  .amdhsa_user_sgpr_count 2
  .amdhsa_user_sgpr_kernarg_segment_ptr 1
  .amdhsa_system_sgpr_workgroup_id_x 1
.end_amdhsa_kernel
.text""" % (k.name, nvgpr, nsgpr, acc))


def srd(k, d, pbase, off_const, off_sgpr, total):
    k.e("s_add_u32 s%d, s%d, 0x%x" % (d, pbase, off_const))
    k.e("s_addc_u32 s%d, s%d, 0" % (d + 1, pbase + 1))
    if off_sgpr is None:
        k.e("s_mov_b32 s%d, 0x%x" % (d + 2, total - off_const))
    else:
        k.e("s_add_u32 s%d, s%d, s%d" % (d, d, off_sgpr))
        k.e("s_addc_u32 s%d, s%d, 0" % (d + 1, d + 1))
        k.e("s_sub_u32 s%d, 0x%x, s%d" % (d + 2, total - off_const, off_sgpr))
    k.e("s_and_b32 s%d, s%d, 0xffff" % (d + 1, d + 1))
    k.e("s_mov_b32 s%d, 0x20000" % (d + 3))


def stamp(k, idx, real=0):
    if not STAMP:
        return
    k.e("s_memtime s[%d:%d]" % (64 + 2 * idx, 65 + 2 * idx))
    if real:
        k.e("s_memrealtime s[%d:%d]" % (80 + 2 * real - 2, 81 + 2 * real - 2))
    k.e("s_waitcnt lgkmcnt(0)")
    k.pend = []


def stamp_store(k, kidx):
    if not STAMP:
        return
    k.e("s_waitcnt vmcnt(0)")
    stamp(k, 7, 2)
    k.e("s_lshl_b32 s44, s2, 7")
    k.e("s_add_u32 s44, s44, 0x%x" % (kidx * 65536))
    srd(k, 24, 4, WS_DBG, 44, WS_DBG + 16 * 65536)
    k.e("v_cmp_eq_u32 vcc, 0, v0")
    k.e("s_and_saveexec_b64 s[46:47], vcc")
    k.e("s_cbranch_execz L_end_%s" % k.name)
    k.e("v_mov_b32 v1, 0")
    for i in range(10):
        k.e("v_mov_b32 v2, s%d" % (64 + 2 * i))
        k.e("v_mov_b32 v3, s%d" % (65 + 2 * i))
        k.e("buffer_store_dwordx2 v[2:3], v1, s[24:27], 0 offen offset:%d" % (8 * i))
        k.e("s_nop 1")


def wave_sum(k, v, sbase):
    for ctl in ("quad_perm:[1,0,3,2]", "quad_perm:[2,3,0,1]", "row_half_mirror", "row_mirror"):
        k.e("s_nop 1")
        k.e("v_add_f32_dpp %s, %s, %s %s row_mask:0xf bank_mask:0xf" % (v, v, v, ctl))
    k.e("s_nop 1")
    for i in range(4):
        k.e("v_readlane_b32 s%d, %s, %d" % (sbase + i, v, 16 * i))
    k.e("s_nop 1")
    k.e("v_mov_b32 %s, s%d" % (v, sbase))
    for i in range(1, 4):
        k.e("v_add_f32 %s, s%d, %s" % (v, sbase + i, v))


def r_body(k, vrow, vlane, npart, has_xout, ln, SX, SP, SO, SN, ldflag="", hook=None):
    k.e("v_mul_u32_u24 v3, 2304, v%d" % vrow)
    k.e("v_mul_u32_u24 v4, 1152, v%d" % vrow)
    k.e("v_lshl_add_u32 v5, v%d, 4, v3" % vlane)
    k.e("v_lshl_add_u32 v6, v%d, 2, v3" % vlane)
    k.e("v_lshl_add_u32 v7, v%d, 3, v4" % vlane)
    k.e("v_lshl_add_u32 v8, v%d, 1, v4" % vlane)
    for z in range(npart):
        b = 16 + 12 * z
        if PBF:
            k.e("s_mov_b32 s28, 0x%x" % (z * XB))
            k.e("buffer_load_dwordx2 %s, v7, %s, s28 offen%s" % (vr(b, 2), sr(SP), ldflag))
            k.e("buffer_load_dwordx2 %s, v7, %s, s28 offen offset:512%s" % (vr(b + 2, 2), sr(SP), ldflag))
            k.e("buffer_load_ushort v%d, v8, %s, s28 offen offset:1024%s" % (b + 4, sr(SP), ldflag))
        else:
            k.e("s_mov_b32 s28, 0x%x" % (z * PB))
            k.e("buffer_load_dwordx4 %s, v5, %s, s28 offen%s" % (vr(b), sr(SP), ldflag))
            k.e("buffer_load_dwordx4 %s, v5, %s, s28 offen offset:1024%s" % (vr(b + 4), sr(SP), ldflag))
            k.e("buffer_load_dword v%d, v6, %s, s28 offen offset:2048%s" % (b + 8, sr(SP), ldflag))
    k.e("buffer_load_dwordx2 v[10:11], v7, %s, 0 offen" % sr(SX))
    k.e("buffer_load_dwordx2 v[12:13], v7, %s, 0 offen offset:512" % sr(SX))
    k.e("buffer_load_ushort v14, v8, %s, 0 offen offset:1024" % sr(SX))
    npf = hook() if hook else 0
    X = 64
    if npart:
        k.e("s_waitcnt vmcnt(3)")
        if PBF:
            for z in range(npart):
                b = 16 + 12 * z
                k.e("v_lshlrev_b32 v%d, 16, v%d" % (b + 8, b + 4))
                for i in (3, 2, 1, 0):
                    k.e("v_and_b32 v%d, 0xffff0000, v%d" % (b + 2 * i + 1, b + i))
                    k.e("v_lshlrev_b32 v%d, 16, v%d" % (b + 2 * i, b + i))
        for e in range(9):
            k.e("v_add_f32 v%d, v%d, v%d" % (16 + e, 16 + e, 28 + e))
            k.e("v_add_f32 v%d, v%d, v%d" % (40 + e, 40 + e, 52 + e))
        for e in range(9):
            k.e("v_add_f32 v%d, v%d, v%d" % (16 + e, 16 + e, 40 + e))
    k.e("s_waitcnt vmcnt(%d)" % npf)
    for i, src in enumerate([10, 11, 12, 13]):
        k.e("v_lshlrev_b32 v%d, 16, v%d" % (X + 2 * i, src))
        k.e("v_and_b32 v%d, 0xffff0000, v%d" % (X + 2 * i + 1, src))
    k.e("v_lshlrev_b32 v%d, 16, v14" % (X + 8))
    if npart:
        for e in range(9):
            k.e("v_add_f32 v%d, v%d, v%d" % (X + e, X + e, 16 + e))
        for i in range(4):
            k.e("v_cvt_pk_bf16_f32 v%d, v%d, v%d" % (10 + i, X + 2 * i, X + 2 * i + 1))
        k.e("v_cvt_pk_bf16_f32 v14, v%d, v%d" % (X + 8, X + 8))
        if has_xout:
            k.e("buffer_store_dwordx2 v[10:11], v7, %s, 0 offen" % sr(SO))
            k.e("buffer_store_dwordx2 v[12:13], v7, %s, 0 offen offset:512" % sr(SO))
            k.e("buffer_store_short v14, v8, %s, 0 offen offset:1024" % sr(SO))
        if ln:
            for i, src in enumerate([10, 11, 12, 13]):
                k.e("v_lshlrev_b32 v%d, 16, v%d" % (X + 2 * i, src))
                k.e("v_and_b32 v%d, 0xffff0000, v%d" % (X + 2 * i + 1, src))
            k.e("v_lshlrev_b32 v%d, 16, v14" % (X + 8))
    if ln:
        k.e("v_add_f32 v20, v%d, v%d" % (X, X + 1))
        k.e("v_add_f32 v21, v%d, v%d" % (X + 2, X + 3))
        k.e("v_add_f32 v22, v%d, v%d" % (X + 4, X + 5))
        k.e("v_add_f32 v23, v%d, v%d" % (X + 6, X + 7))
        k.e("v_add_f32 v20, v20, v21")
        k.e("v_add_f32 v22, v22, v23")
        k.e("v_add_f32 v20, v20, v%d" % (X + 8))
        k.e("v_add_f32 v20, v20, v22")
        wave_sum(k, "v20", 32)
        k.e("v_mul_f32 v20, 0x%08x, v20" % f32bits(1.0 / D))
        for e in range(9):
            k.e("v_sub_f32 v%d, v%d, v20" % (X + e, X + e))
        k.e("v_mul_f32 v21, v%d, v%d" % (X, X))
        k.e("v_mul_f32 v22, v%d, v%d" % (X + 1, X + 1))
        for e in range(2, 9):
            k.e("v_fmac_f32 v%d, v%d, v%d" % (21 + (e & 1), X + e, X + e))
        k.e("v_add_f32 v21, v21, v22")
        wave_sum(k, "v21", 32)
        k.e("v_mov_b32 v22, 0x%08x" % f32bits(1e-5))
        k.e("v_fmac_f32 v22, 0x%08x, v21" % f32bits(1.0 / D))
        k.e("v_rsq_f32 v22, v22")
        k.e("s_nop 0")
        for e in range(9):
            k.e("v_mul_f32 v%d, v%d, v22" % (X + e, X + e))
        for i in range(4):
            k.e("v_cvt_pk_bf16_f32 v%d, v%d, v%d" % (24 + i, X + 2 * i, X + 2 * i + 1))
        k.e("v_cvt_pk_bf16_f32 v28, v%d, v%d" % (X + 8, X + 8))
        k.e("buffer_store_dwordx2 v[24:25], v7, %s, 0 offen" % sr(SN))
        k.e("buffer_store_dwordx2 v[26:27], v7, %s, 0 offen offset:512" % sr(SN))
        k.e("buffer_store_short v28, v8, %s, 0 offen offset:1024" % sr(SN))


def prefetch(k, items, swave, vlane, vaddr, vdst, sptr, ssrd):
    k.e("s_lshl_b32 s%d, s%d, 12" % (sptr + 2, swave))
    k.e("v_lshl_add_u32 v%d, v%d, 6, s%d" % (vaddr, vlane, sptr + 2))
    for n, (ka, nbytes) in enumerate(items):
        k.e("s_load_dwordx2 s[%d:%d], s[0:1], %d" % (sptr, sptr + 1, ka))
        k.e("s_waitcnt lgkmcnt(0)")
        srd(k, ssrd, sptr, 0, None, nbytes)
        k.e("buffer_load_dword v%d, v%d, %s, 0 offen" % (vdst, vaddr, sr(ssrd)))
    k.pend = []
    return len(items)


def gen_r0(name):
    k = K(name)
    nwg = S // 4
    header(k, nwg)
    k.e("s_load_dwordx2 s[4:5], s[0:1], %d" % KA_WS)
    k.e("s_load_dwordx2 s[6:7], s[0:1], %d" % KA_X)
    k.e("v_lshrrev_b32 v1, 6, v0")
    k.e("v_and_b32 v2, 63, v0")
    k.e("s_lshl_b32 s3, s2, 2")
    k.e("v_add_u32 v1, s3, v1")
    k.e("s_waitcnt lgkmcnt(0)")
    srd(k, 12, 6, 0, None, XB)
    srd(k, 24, 4, WS_XN, None, WS_XN + XB)
    lz = k.newlabel("LZ")
    k.e("s_cmp_ge_u32 s2, 4")
    k.e("s_cbranch_scc1 %s" % lz)
    srd(k, 16, 4, WS_FL, None, WS_FL + 4096)
    k.e("s_lshl_b32 s3, s2, 10")
    k.e("v_lshl_add_u32 v3, v0, 2, s3")
    k.e("v_mov_b32 v4, 0")
    k.e("buffer_store_dword v4, v3, s[16:19], 0 offen")
    k.label(lz)
    hook = None
    if PF:
        k.e("v_readfirstlane_b32 s30, v1")
        hook = lambda: prefetch(k, [(KA_WR, D * D * 2), (KA_WI, D * D * 2), (KA_CR, S * S * 2), (KA_CI, S * S * 2)], 30, 2, 74, 75, 8, 16)
    r_body(k, 1, 2, 0, False, True, 12, None, None, 24, hook=hook)
    footer(k, 76, 40)
    return k, nwg, 256, 0


def gen_gemm(name, kind, rcfg=None, kidx=0, pf=()):
    k = K(name)
    nwg = 256
    if kind in ('A2', 'B2'):
        NFR, NMAT, NBUF, mmode = 2, 1, 4, 'tr'
        NS = 16 if kind == 'A2' else 18
        strideN = 4096 if kind == 'A2' else 9216
        strideM = 1152
        groups = [[(0, j) for j in range(5)], [(0, j) for j in range(5, 9)]]
        WN, NSET, WMUL = 4, 4, 2
    elif kind == 'A1':
        NFR, NMAT, NBUF, mmode = 1, 1, 4, 'row'
        NS = 9
        strideN, strideM = 1152, 1152
        groups = [[(0, j) for j in range(5)], [(0, j) for j in range(5, 9)]]
        WN, NSET, WMUL = 4, 4, 2
    elif kind == 'B1':
        NFR, NMAT, NBUF, mmode = 2, 2, 2, 'tr'
        NS = 9
        strideN, strideM = 1152, 9216
        groups = [[(m, j) for j in range(9) for m in range(2)]]
        WN, NSET, WMUL = 8, 2, 0
    NT = WN * NFR * 16
    NTB = NT * 128
    STB = NTB + NMAT * MTB
    NDN = NT // 64
    ND = NDN + 3 * NMAT
    KS = 2
    maxt = max(len(g) for g in groups)
    Wmax = maxt * WMUL if WMUL else int(OPT.get('b1w', 12))

    vLane, vT0, vT1, vT2, vT3, vT4 = 1, 2, 3, 4, 5, 6
    vDN = 8
    vDM = [9, 10, 11]
    nxt = 12
    nrm = KS if mmode == 'row' else 1
    vRN = [[0] * KS for _ in range(NBUF)]
    vRM = [[0] * nrm for _ in range(NBUF)]
    for b in range(NBUF):
        for s_ in range(KS):
            vRN[b][s_] = nxt; nxt += 1
        for s_ in range(nrm):
            vRM[b][s_] = nxt; nxt += 1
    nxt = (nxt + 3) // 4 * 4
    vM = [nxt + 4 * j for j in range(Wmax)]; nxt += 4 * Wmax
    vN = [[nxt + 4 * (p * NFR + i) for i in range(NFR)] for p in range(NSET)]; nxt += 4 * NSET * NFR
    vAbase = nxt
    nxt += 4 * maxt * NFR
    nvgpr = max(nxt, 80)
    assert nvgpr <= 256, nvgpr

    sW, sW1024, sW256, sKN, sKM, sTmp, sLoop = 28, 29, 30, 31, 32, 33, 40
    SRN, SRM, SRO = 12, [16, 20], 24

    header(k, nwg)
    stamp(k, 0, 1)
    k.e("s_load_dwordx2 s[4:5], s[0:1], %d" % KA_WS)
    if kind == 'A2':
        k.e("s_load_dwordx4 s[8:11], s[0:1], %d" % KA_CR)
    elif kind == 'B2':
        k.e("s_load_dwordx2 s[8:9], s[0:1], %d" % KA_WD)
    elif kind == 'A1':
        k.e("s_load_dwordx2 s[8:9], s[0:1], %d" % KA_WR)
        k.e("s_load_dwordx2 s[10:11], s[0:1], %d" % KA_WI)
    elif kind == 'B1':
        k.e("s_load_dwordx4 s[8:11], s[0:1], %d" % KA_WG)
    if rcfg:
        if rcfg[1][0] == 'in':
            k.e("s_load_dwordx2 s[48:49], s[0:1], %d" % rcfg[1][1])
        if rcfg[2][0] == 'out':
            k.e("s_load_dwordx2 s[50:51], s[0:1], %d" % KA_OUT)
    if not PF:
        pf = ()
    for n, (ka, nb_) in enumerate(pf):
        k.e("s_load_dwordx2 s[%d:%d], s[0:1], %d" % (56 + 4 * n, 57 + 4 * n, ka))
    k.e("v_and_b32 v%d, 63, v0" % vLane)
    k.e("v_lshrrev_b32 v%d, 6, v0" % vT0)
    k.e("s_nop 0")
    k.e("v_readfirstlane_b32 s%d, v%d" % (sW, vT0))
    k.e("s_and_b32 s34, s2, 7")
    k.e("s_lshr_b32 s35, s2, 3")
    if kind in ('A2', 'B2'):
        k.e("s_and_b32 s36, s34, 3")
        k.e("s_lshr_b32 s37, s34, 2")
        k.e("s_lshl_b32 s37, s37, 3")
        k.e("s_lshr_b32 s38, s35, 2")
        k.e("s_add_u32 s37, s37, s38")
        k.e("s_and_b32 s38, s35, 3")
    elif kind == 'B1':
        k.e("s_lshl_b32 s38, s34, 2")
        k.e("s_and_b32 s36, s35, 3")
        k.e("s_add_u32 s38, s38, s36")
        k.e("s_lshr_b32 s37, s35, 2")
    elif kind == 'A1':
        k.e("s_mov_b32 s38, s34")
        k.e("s_mov_b32 s37, s35")
    k.e("s_lshl_b32 s%d, s%d, 10" % (sW1024, sW))
    k.e("s_lshl_b32 s%d, s%d, 8" % (sW256, sW))
    k.e("v_lshrrev_b32 v%d, 3, v%d" % (vT0, vLane))
    k.e("s_lshl_b32 s%d, s%d, 3" % (sTmp, sW))
    k.e("v_add_u32 v%d, s%d, v%d" % (vT0, sTmp, vT0))
    k.e("v_bfe_u32 v%d, v%d, 1, 3" % (vT1, vT0))
    k.e("v_and_b32 v%d, 7, v%d" % (vT2, vLane))
    k.e("v_xor_b32 v%d, v%d, v%d" % (vT1, vT1, vT2))
    k.e("v_mul_u32_u24 v%d, %d, v%d" % (vDN, strideN, vT0))
    k.e("v_lshl_add_u32 v%d, v%d, 4, v%d" % (vDN, vT1, vDN))
    if mmode == 'row':
        k.e("v_mul_u32_u24 v%d, %d, v%d" % (vDM[0], strideM, vT0))
        k.e("v_lshl_add_u32 v%d, v%d, 4, v%d" % (vDM[0], vT1, vDM[0]))
        k.e("v_lshrrev_b32 v%d, 3, v%d" % (vT0, vLane))
        k.e("s_lshl_b32 s%d, s%d, 1" % (sTmp, sW))
        k.e("s_add_u32 s%d, s%d, 128" % (sTmp, sTmp))
        k.e("v_add_u32 v%d, s%d, v%d" % (vT0, sTmp, vT0))
        k.e("v_bfe_u32 v%d, v%d, 1, 3" % (vT1, vT0))
        k.e("v_xor_b32 v%d, v%d, v%d" % (vT1, vT1, vT2))
        k.e("v_mul_u32_u24 v%d, %d, v%d" % (vDM[2], strideM, vT0))
        k.e("v_lshl_add_u32 v%d, v%d, 4, v%d" % (vDM[2], vT1, vDM[2]))
    else:
        for q in range(3):
            if q < 2:
                k.e("s_lshl_b32 s%d, s%d, 6" % (sTmp, sW))
                k.e("s_add_u32 s%d, s%d, %d" % (sTmp, sTmp, 512 * q))
            else:
                k.e("s_lshl_b32 s%d, s%d, 4" % (sTmp, sW))
                k.e("s_add_u32 s%d, s%d, 1024" % (sTmp, sTmp))
            k.e("v_add_u32 v%d, s%d, v%d" % (vT0, sTmp, vLane))
            k.e("v_mul_u32_u24 v%d, 3641, v%d" % (vT1, vT0))
            k.e("v_lshrrev_b32 v%d, 16, v%d" % (vT1, vT1))
            k.e("v_mul_u32_u24 v%d, 18, v%d" % (vT2, vT1))
            k.e("v_sub_u32 v%d, v%d, v%d" % (vT2, vT0, vT2))
            k.e("v_and_b32 v%d, 0x33, v%d" % (vT3, vT1))
            k.e("v_and_b32 v%d, 4, v%d" % (vT4, vT1))
            k.e("v_lshl_or_b32 v%d, v%d, 1, v%d" % (vT3, vT4, vT3))
            k.e("v_and_b32 v%d, 8, v%d" % (vT4, vT1))
            k.e("v_lshrrev_b32 v%d, 1, v%d" % (vT4, vT4))
            k.e("v_or_b32 v%d, v%d, v%d" % (vT3, vT3, vT4))
            k.e("v_mul_u32_u24 v%d, %d, v%d" % (vDM[q], strideM, vT3))
            k.e("v_lshl_add_u32 v%d, v%d, 4, v%d" % (vDM[q], vT2, vDM[q]))
    k.e("s_mov_b32 s42, 0xffff")
    k.e("s_mov_b32 s43, 0")
    k.e("s_mov_b32 s%d, 0" % sKN)
    k.e("s_mov_b32 s%d, 0" % sKM)
    k.e("s_waitcnt lgkmcnt(0)")
    if kind == 'A2':
        k.e("s_cmp_lt_u32 s36, 2")
        k.e("s_cselect_b32 s6, s8, s10")
        k.e("s_cselect_b32 s7, s9, s11")
        k.e("s_mul_i32 s44, s37, %d" % (128 * 4096))
        k.e("s_and_b32 s45, s36, 1")
        k.e("s_lshl_b32 s45, s45, 11")
        k.e("s_add_u32 s44, s44, s45")
        srd(k, SRN, 6, 0, 44, S * S * 2)
        k.e("s_mul_i32 s44, s36, %d" % (1024 * 1152))
        k.e("s_mul_i32 s45, s38, 288")
        k.e("s_add_u32 s44, s44, s45")
        srd(k, SRM[0], 4, WS_AB, 44, WS_AB + 2 * XB)
    elif kind == 'B2':
        k.e("s_mul_i32 s44, s37, %d" % (128 * 9216))
        k.e("s_mul_i32 s45, s36, 2304")
        k.e("s_add_u32 s44, s44, s45")
        srd(k, SRN, 4, WS_H, 44, WS_H + HB)
        k.e("s_mul_i32 s44, s36, %d" % (1152 * 1152))
        k.e("s_mul_i32 s45, s38, 288")
        k.e("s_add_u32 s44, s44, s45")
        srd(k, SRM[0], 8, 0, 44, F * D * 2)
    elif kind == 'A1':
        k.e("s_mul_i32 s44, s37, %d" % (64 * 1152))
        srd(k, SRN, 4, WS_XN, 44, WS_XN + XB)
        k.e("s_cmp_lt_u32 s38, 4")
        k.e("s_cselect_b32 s6, s8, s10")
        k.e("s_cselect_b32 s7, s9, s11")
        k.e("s_and_b32 s45, s38, 3")
        k.e("s_mul_i32 s44, s45, %d" % (144 * 1152))
        srd(k, SRM[0], 6, 0, 44, D * D * 2)
    elif kind == 'B1':
        k.e("s_mul_i32 s44, s37, %d" % (256 * 1152))
        srd(k, SRN, 4, WS_XN, 44, WS_XN + XB)
        k.e("s_mul_i32 s44, s38, 288")
        srd(k, SRM[0], 8, 0, 44, D * F * 2)
        srd(k, SRM[1], 10, 0, 44, D * F * 2)

    for n, (ka, nb_) in enumerate(pf):
        srd(k, 56 + 4 * n, 56 + 4 * n, 0, None, nb_)
    started = [False]

    def dma_pieces(b):
        P = []
        for j in range(NDN):
            L = ["s_add_u32 m0, s%d, 0x%x" % (sW1024, b * STB + j * 8192)]
            if j:
                L.append("s_add_u32 s%d, s%d, 0x%x" % (sTmp, sKN, j * 64 * strideN))
                L.append("buffer_load_dwordx4 v%d, %s, s%d offen lds" % (vDN, sr(SRN), sTmp))
            else:
                L.append("s_nop 0")
                L.append("buffer_load_dwordx4 v%d, %s, s%d offen lds" % (vDN, sr(SRN), sKN))
            P.append(L)
        for mat in range(NMAT):
            mb_ = b * STB + NTB + mat * MTB
            for q in range(3):
                L = []
                if q < 2:
                    L.append("s_add_u32 m0, s%d, 0x%x" % (sW1024, mb_ + q * 8192))
                else:
                    L.append("s_add_u32 m0, s%d, 0x%x" % (sW256, mb_ + 16384))
                if mmode == 'row' and q == 1:
                    L.append("s_add_u32 s%d, s%d, 0x%x" % (sTmp, sKM, 64 * strideM))
                    so, vo = sTmp, vDM[0]
                else:
                    so, vo = sKM, vDM[q]
                    L.append("s_nop 0")
                if q == 2:
                    L.append("s_mov_b64 exec, s[42:43]")
                L.append("buffer_load_dwordx4 v%d, %s, s%d offen lds" % (vo, sr(SRM[mat]), so))
                if q == 2:
                    L.append("s_mov_b64 exec, -1")
                P.append(L)
        if kind in NODMA and started[0]:
            P = [[x for x in L if not x.startswith("buffer_load")] for L in P]
        P[-1] = P[-1] + ["s_add_u32 s%d, s%d, 128" % (sKN, sKN),
                         "s_add_u32 s%d, s%d, 0x%x" % (sKM, sKM, 128 if mmode == 'row' else 64 * strideM)]
        return P

    npro = NBUF - 1 if NBUF > 2 else 2
    for st in range(npro):
        for L in dma_pieces(st):
            for x in L:
                k.e(x)
    started[0] = True
    wnmask = WN - 1
    k.e("s_and_b32 s%d, s%d, %d" % (sTmp, sW, wnmask))
    k.e("s_mul_i32 s%d, s%d, %d" % (sTmp, sTmp, NFR * 16 * 128))
    k.e("v_and_b32 v%d, 15, v%d" % (vT0, vLane))
    k.e("v_lshrrev_b32 v%d, 4, v%d" % (vT1, vLane))
    k.e("v_bfe_u32 v%d, v%d, 1, 3" % (vT2, vLane))
    k.e("v_xor_b32 v%d, v%d, v%d" % (vT2, vT1, vT2))
    k.e("v_lshlrev_b32 v%d, 4, v%d" % (vT2, vT2))
    k.e("v_lshl_add_u32 v%d, v%d, 7, v%d" % (vT2, vT0, vT2))
    k.e("v_add_u32 v%d, s%d, v%d" % (vT3, sTmp, vT2))
    for b in range(NBUF):
        k.e("v_add_u32 v%d, 0x%x, v%d" % (vRN[b][0], b * STB, vT3))
        k.e("v_xor_b32 v%d, 64, v%d" % (vRN[b][1], vRN[b][0]))
    if mmode == 'row':
        for b in range(NBUF):
            k.e("v_add_u32 v%d, 0x%x, v%d" % (vRM[b][0], b * STB + NTB, vT2))
            k.e("v_xor_b32 v%d, 64, v%d" % (vRM[b][1], vRM[b][0]))
    else:
        k.e("v_lshrrev_b32 v%d, 5, v%d" % (vT2, vLane))
        k.e("v_lshlrev_b32 v%d, 4, v%d" % (vT2, vT2))
        k.e("v_bfe_u32 v%d, v%d, 4, 1" % (vT3, vLane))
        k.e("v_lshl_add_u32 v%d, v%d, 2, v%d" % (vT2, vT3, vT2))
        k.e("v_bfe_u32 v%d, v%d, 2, 2" % (vT3, vLane))
        k.e("v_add_u32 v%d, v%d, v%d" % (vT2, vT2, vT3))
        k.e("v_mul_u32_u24 v%d, 288, v%d" % (vT2, vT2))
        k.e("v_and_b32 v%d, 3, v%d" % (vT3, vLane))
        k.e("v_lshl_add_u32 v%d, v%d, 3, v%d" % (vT2, vT3, vT2))
        for b in range(NBUF):
            k.e("v_add_u32 v%d, 0x%x, v%d" % (vRM[b][0], b * STB + NTB, vT2))
    vO = 7
    k.e("s_and_b32 s%d, s%d, %d" % (sTmp, sW, wnmask))
    k.e("s_mul_i32 s%d, s%d, %d" % (sTmp, sTmp, NFR * 16))
    k.e("v_and_b32 v%d, 15, v%d" % (vT3, vLane))
    k.e("v_add_u32 v%d, s%d, v%d" % (vT3, sTmp, vT3))
    k.e("v_lshrrev_b32 v%d, 4, v%d" % (vT4, vLane))
    if kind in ('A2', 'B2') and not PBF:
        k.e("v_mul_u32_u24 v%d, 2304, v%d" % (vT3, vT3))
        k.e("v_lshl_add_u32 v%d, v%d, 4, v%d" % (vO, vT4, vT3))
        k.e("s_mul_i32 s44, s36, %d" % PB)
        k.e("s_mul_i32 s46, s37, %d" % (128 * 2304))
        k.e("s_add_u32 s44, s44, s46")
        k.e("s_mul_i32 s46, s38, 576")
        k.e("s_add_u32 s44, s44, s46")
        srd(k, SRO, 4, WS_P, 44, WS_P + 4 * PB)
    else:
        ostride = 9216 if kind == 'B1' else 1152
        k.e("v_mul_u32_u24 v%d, %d, v%d" % (vT3, ostride, vT3))
        k.e("v_and_b32 v%d, 1, v%d" % (vT0, vT4))
        k.e("v_lshl_add_u32 v%d, v%d, 5, v%d" % (vO, vT0, vT3))
        k.e("v_lshrrev_b32 v%d, 1, v%d" % (vT0, vT4))
        k.e("v_lshl_add_u32 v%d, v%d, 4, v%d" % (vO, vT0, vO))
        k.e("v_lshl_add_u32 v%d, v%d, 3, v%d" % (vT4, vT4, vT3))
        if kind == 'A1':
            k.e("s_lshr_b32 s45, s38, 2")
            k.e("s_mul_i32 s44, s45, %d" % XB)
            k.e("s_mul_i32 s46, s37, %d" % (64 * 1152))
            k.e("s_add_u32 s44, s44, s46")
            k.e("s_and_b32 s46, s38, 3")
            k.e("s_mul_i32 s46, s46, 288")
            k.e("s_add_u32 s44, s44, s46")
            srd(k, SRO, 4, WS_AB, 44, WS_AB + 2 * XB)
            k.e("s_mul_i32 s47, s45, 0x80008000")
        elif kind in ('A2', 'B2'):
            k.e("s_mul_i32 s44, s36, %d" % XB)
            k.e("s_mul_i32 s46, s37, %d" % (128 * 1152))
            k.e("s_add_u32 s44, s44, s46")
            k.e("s_mul_i32 s46, s38, 288")
            k.e("s_add_u32 s44, s44, s46")
            srd(k, SRO, 4, WS_P, 44, WS_P + 4 * XB)
        else:
            k.e("s_mul_i32 s44, s37, %d" % (256 * 9216))
            k.e("s_mul_i32 s46, s38, 288")
            k.e("s_add_u32 s44, s44, s46")
            srd(k, SRO, 4, WS_H, 44, WS_H + HB)
            k.e("s_mov_b32 s46, 0x%08x" % f32bits(-1.4426950408889634))
    vO2 = vT4
    stamp(k, 1)
    k.e("s_waitcnt vmcnt(%d)" % (ND * (npro - 1)))
    k.e("s_barrier")
    stamp(k, 2)

    ljoin = k.newlabel("LJ")
    glabels = [k.newlabel("LG") for _ in groups]
    if len(groups) == 2:
        k.e("s_cmp_ge_u32 s%d, 4" % sW)
        k.e("s_cbranch_scc1 %s" % glabels[1])

    for gi, tiles in enumerate(groups):
        if gi:
            k.label(glabels[gi])
        nt = len(tiles)
        W = nt * WMUL if WMUL else Wmax
        UPS = KS * nt
        total = NS * UPS
        vA = {(t, i): vAbase + 4 * (ti * NFR + i) for ti, t in enumerate(tiles) for i in range(NFR)}
        st8 = {'nrM': 0, 'nrN': 0, 'pub': 0}
        k.pend = []

        def read_m(u):
            stg, rem = divmod(u, UPS)
            ks, ti = divmod(rem, nt)
            mat, j = tiles[ti]
            b = stg % NBUF
            reg = vM[u % W]
            tag = "M%d" % (u % W)
            if mmode == 'row':
                k.lds("ds_read_b128 %s, v%d offset:%d" % (vr(reg), vRM[b][ks], j * 2048), tag)
            else:
                o = mat * MTB + ks * 9216 + j * 32
                k.lds("ds_read_b64_tr_b16 %s, v%d offset:%d" % (vr(reg, 2), vRM[b][0], o), tag)
                k.lds("ds_read_b64_tr_b16 %s, v%d offset:%d" % (vr(reg + 2, 2), vRM[b][0], o + 2304), tag)

        def read_n(s):
            stg, ks = divmod(s, KS)
            b = stg % NBUF
            p = s % NSET
            for i in range(NFR):
                k.lds("ds_read_b128 %s, v%d offset:%d" % (vr(vN[p][i]), vRN[b][ks], i * 2048), "N%d" % p)

        def pump(udone, maxm=2):
            while st8['nrN'] < NS * KS and st8['nrN'] // KS <= st8['pub'] and st8['nrN'] - NSET < udone // nt:
                read_n(st8['nrN']); st8['nrN'] += 1
            c = 0
            while st8['nrM'] < total and st8['nrM'] // UPS <= st8['pub'] and st8['nrM'] - W < udone and c < maxm:
                read_m(st8['nrM']); st8['nrM'] += 1; c += 1

        pump(0, maxm=99)
        pre = k.lines; k.lines = []
        blocks = []
        DELTA = int(OPT.get('delta', 3))
        for t in range(NS):
            last = (t == NS - 1)
            extras = []
            if NBUF > 2 and not last:
                infl = min(t + NBUF - 2, NS - 1) - (t + 1)
                k.e("s_waitcnt vmcnt(%d)" % (ND * infl + st8.get('npf', 0)))
                k.e("s_barrier")
                st8['pub'] = t + 1
                if t + NBUF - 1 < NS:
                    extras = dma_pieces((t + NBUF - 1) % NBUF)
                elif pf and not st8.get('npf'):
                    k.e("s_lshl_b32 s%d, s2, 3" % sTmp)
                    k.e("s_add_u32 s%d, s%d, s%d" % (sTmp, sTmp, sW))
                    k.e("s_lshl_b32 s%d, s%d, 12" % (sTmp, sTmp))
                    k.e("v_lshl_add_u32 v%d, v%d, 6, s%d" % (vT0, vLane, sTmp))
                    for n in range(len(pf)):
                        k.e("buffer_load_dword v%d, v%d, %s, 0 offen" % (vT1, vT0, sr(56 + 4 * n)))
                    st8['npf'] = len(pf)
                pump(t * UPS)
            for r in range(UPS):
                u = t * UPS + r
                ks, ti = divmod(r, nt)
                s = t * KS + ks
                k.need("M%d" % (u % W), "N%d" % (s % NSET))
                for i in range(NFR):
                    a = vA[(tiles[ti], i)]
                    c = "0" if s == 0 else vr(a)
                    if not (kind in NOMFMA and s):
                        k.e("v_mfma_f32_16x16x32_bf16 %s, %s, %s, %s" % (vr(a), vr(vM[u % W]), vr(vN[s % NSET][i]), c))
                if NBUF == 2 and not last and r + 1 == UPS - W + DELTA:
                    assert st8['nrM'] == (t + 1) * UPS and st8['nrN'] == (t + 1) * KS, (st8, t)
                    k.e("s_waitcnt vmcnt(0) lgkmcnt(0)")
                    k.pend = []
                    k.e("s_barrier")
                    st8['pub'] = t + 1
                    if t + 2 < NS:
                        extras = dma_pieces(t % 2)
                pump(u + 1)
                if extras:
                    left = UPS - r
                    n = (len(extras) + left - 1) // left
                    for _ in range(n):
                        for x in extras.pop(0):
                            k.e(x)
            assert not extras
            blocks.append(k.lines); k.lines = []
        best = None
        for U in (NBUF, 2 * NBUF):
            for a in range(NS):
                bnd = a + U
                while bnd + U <= NS and all(blocks[bnd + x] == blocks[a + x] for x in range(U)):
                    bnd += U
                cnt = (bnd - a) // U
                if cnt >= 2 and (best is None or cnt * U > best[2] * best[3]):
                    best = (a, bnd, cnt, U)
        out = pre
        if best is None:
            for bl in blocks:
                out += bl
        else:
            a, bnd, cnt, U = best
            for bl in blocks[:a]:
                out += bl
            lab = k.newlabel("LP")
            out.append("    s_mov_b32 s%d, %d" % (sLoop, cnt))
            out.append(lab + ":")
            for bl in blocks[a:a + U]:
                out += bl
            out.append("    s_sub_u32 s%d, s%d, 1" % (sLoop, sLoop))
            out.append("    s_cmp_lg_u32 s%d, 0" % sLoop)
            out.append("    s_cbranch_scc1 %s" % lab)
            for bl in blocks[bnd:]:
                out += bl
        k.lines = out
        k.pend = []

        k.e("s_nop 7")
        k.e("s_nop 3")
        stamp(k, 3)
        if kind in ('A2', 'B2') and not PBF:
            for i in range(NFR):
                k.e("s_mov_b32 s%d, %d" % (sTmp, i * 16 * 2304))
                for (m, j) in tiles:
                    k.e("buffer_store_dwordx4 %s, v%d, %s, s%d offen offset:%d sc0 sc1" % (vr(vA[((m, j), i)]), vO, sr(SRO), sTmp, j * 64))
        else:
            js = sorted(set(j for (m, j) in tiles))
            ostride = 9216 if kind == 'B1' else 1152
            sfl = " sc0 sc1" if kind in ('A2', 'B2') else ""
            TB = 12
            for i in range(NFR):
                k.e("s_mov_b32 s%d, %d" % (sTmp, i * 16 * ostride))
                idx = 0
                slot = 0
                while idx < len(js):
                    pr = js[idx:idx + 2]
                    if len(pr) == 2 and pr[1] != pr[0] + 1:
                        pr = pr[:1]
                    o = TB + 4 * (slot % 4) + 16
                    for n_, j in enumerate(pr):
                        if kind == 'A1':
                            a = vA[((0, j), i)]
                            k.e("v_cvt_pk_bf16_f32 v%d, v%d, v%d" % (o + 2 * n_, a, a + 1))
                            k.e("v_cvt_pk_bf16_f32 v%d, v%d, v%d" % (o + 2 * n_ + 1, a + 2, a + 3))
                            k.e("v_xor_b32 v%d, s47, v%d" % (o + 2 * n_, o + 2 * n_))
                            k.e("v_xor_b32 v%d, s47, v%d" % (o + 2 * n_ + 1, o + 2 * n_ + 1))
                        elif kind in ('A2', 'B2'):
                            a = vA[((0, j), i)]
                            k.e("v_cvt_pk_bf16_f32 v%d, v%d, v%d" % (o + 2 * n_, a, a + 1))
                            k.e("v_cvt_pk_bf16_f32 v%d, v%d, v%d" % (o + 2 * n_ + 1, a + 2, a + 3))
                        else:
                            g = vA[((0, j), i)]
                            u_ = vA[((1, j), i)]
                            for r in range(4):
                                k.e("v_mul_f32 v%d, s46, v%d" % (g + r, g + r))
                            for r in range(4):
                                k.e("v_exp_f32 v%d, v%d" % (g + r, g + r))
                            for r in range(4):
                                k.e("v_add_f32 v%d, 1.0, v%d" % (g + r, g + r))
                            for r in range(4):
                                k.e("v_rcp_f32 v%d, v%d" % (g + r, g + r))
                            for r in range(4):
                                k.e("v_mul_f32 v%d, v%d, v%d" % (g + r, g + r, u_ + r))
                            k.e("v_cvt_pk_bf16_f32 v%d, v%d, v%d" % (o + 2 * n_, g, g + 1))
                            k.e("v_cvt_pk_bf16_f32 v%d, v%d, v%d" % (o + 2 * n_ + 1, g + 2, g + 3))
                    if len(pr) == 2:
                        k.e("s_nop 1")
                        k.e("v_permlane16_swap_b32 v%d, v%d" % (o, o + 2))
                        k.e("v_permlane16_swap_b32 v%d, v%d" % (o + 1, o + 3))
                        k.e("s_nop 0")
                        k.e("buffer_store_dwordx4 %s, v%d, %s, s%d offen offset:%d%s" % (vr(o), vO, sr(SRO), sTmp, pr[0] * 32, sfl))
                    else:
                        k.e("buffer_store_dwordx2 %s, v%d, %s, s%d offen offset:%d%s" % (vr(o, 2), vO2, sr(SRO), sTmp, pr[0] * 32, sfl))
                    idx += len(pr)
                    slot += 1
        if gi == 0 and len(groups) == 2:
            k.e("s_branch %s" % ljoin)
    k.label(ljoin)
    stamp(k, 4)
    if rcfg:
        freg, xin, xout, ln = rcfg
        k.e("s_lshl_b32 s44, s37, 6")
        srd(k, 16, 4, WS_FL + freg * 1024, 44, WS_FL + 4096)
        k.e("s_lshl_b32 s45, s36, 2")
        k.e("s_add_u32 s45, s45, s38")
        if xin[0] == 'in':
            srd(k, 12, 48, 0, None, XB)
        else:
            srd(k, 12, 4, xin[1], None, xin[1] + XB)
        srd(k, 20, 4, WS_P, None, WS_P + 4 * (XB if PBF else PB))
        if xout[0] == 'out':
            srd(k, 24, 50, 0, None, XB)
        else:
            srd(k, 24, 4, xout[1], None, xout[1] + XB)
        if ln:
            srd(k, 52, 4, WS_XN, None, WS_XN + XB)
        k.e("s_waitcnt vmcnt(0)")
        k.e("s_barrier")
        lskip = k.newlabel("LS")
        lp = k.newlabel("LW")
        ld = k.newlabel("LD")
        k.e("s_cmp_lg_u32 s%d, 0" % sW)
        k.e("s_cbranch_scc1 %s" % lskip)
        k.e("s_mov_b64 exec, 1")
        k.e("s_lshl_b32 s46, s45, 2")
        k.e("v_mov_b32 v2, s46")
        k.e("v_mov_b32 v3, 1")
        k.e("buffer_store_dword v3, v2, s[16:19], 0 offen sc0 sc1")
        k.e("s_mov_b64 exec, s[42:43]")
        k.e("v_lshlrev_b32 v2, 2, v%d" % vLane)
        k.e("s_mov_b32 s47, 0")
        k.label(lp)
        k.e("buffer_load_dword v3, v2, s[16:19], 0 offen sc0 sc1")
        k.e("s_waitcnt vmcnt(0)")
        k.e("v_cmp_eq_u32 vcc, 1, v3")
        k.e("s_nop 3")
        k.e("s_cmp_eq_u32 vcc_lo, 0xffff")
        k.e("s_cbranch_scc1 %s" % ld)
        k.e("s_add_u32 s47, s47, 1")
        k.e("s_cmp_lt_u32 s47, 0x400000")
        k.e("s_cbranch_scc1 %s" % lp)
        k.label(ld)
        k.e("s_mov_b64 exec, -1")
        k.label(lskip)
        k.e("s_barrier")
        stamp(k, 5)
        k.e("s_lshl_b32 s46, s37, 7")
        k.e("s_lshl_b32 s47, s45, 3")
        k.e("s_add_u32 s46, s46, s47")
        k.e("s_add_u32 s46, s46, s%d" % sW)
        k.e("v_mov_b32 v2, s46")
        r_body(k, 2, vLane, 4, True, ln, 12, 20, 24, 52, " sc0 sc1")
    stamp(k, 6)
    stamp_store(k, kidx)
    footer(k, nvgpr, 96 if STAMP else 64)
    return k, nwg, 512, NBUF * STB


def main():
    ks = {}
    ks['r0'] = gen_r0(MAIN + "_kernel")
    ks['a1'] = gen_gemm("a1_kernel", 'A1', None, 0, pf=((KA_WG, D * F * 2), (KA_WU, D * F * 2)))
    ks['a2r1'] = gen_gemm("a2r1_kernel", 'A2', (0, ('in', KA_X), ('ws', WS_X1), True), 1, pf=((KA_WD, D * F * 2),))
    ks['b1'] = gen_gemm("b1_kernel", 'B1', None, 2)
    ks['b2r1'] = gen_gemm("b2r1_kernel", 'B2', (1, ('ws', WS_X1), ('ws', WS_X2), True), 3)
    ks['a2r2'] = gen_gemm("a2r2_kernel", 'A2', (2, ('ws', WS_X2), ('ws', WS_X1), True), 5)
    ks['b2r2'] = gen_gemm("b2r2_kernel", 'B2', (3, ('ws', WS_X1), ('out', 0), False), 7)
    order = ['r0', 'a1', 'a2r1', 'b1', 'b2r1', 'a1', 'a2r2', 'b1', 'b2r2']
    if STAMP:
        ks['a1b'] = gen_gemm("a1b_kernel", 'A1', None, 4)
        ks['b1b'] = gen_gemm("b1b_kernel", 'B1', None, 6)
        order = ['r0', 'a1', 'a2r1', 'b1', 'b2r1', 'a1b', 'a2r2', 'b1b', 'b2r2']
    out = ["; FNet (DFT matmul) + GLU interleaved layers; generated by gen2.py"]
    for n in order:
        kk, nwg, blk, lds = ks[n]
        out.append("; @launch kernel=%s grid=(%d,1,1) block=(%d,1,1) lds=%d" % (kk.name, nwg, blk, lds))
    out.append('.amdgcn_target "amdgcn-amd-amdhsa--gfx950"')
    out.append(".text")
    for n, (kk, nwg, blk, lds) in ks.items():
        out.append(".globl %s" % kk.name)
        out += kk.lines
    open(sys.argv[1] if len(sys.argv) > 1 else "cdna_kernels/%s.s" % MAIN, "w").write("\n".join(out) + "\n")


if __name__ == "__main__":
    main()
```

```python
import sys, os, struct
OPT = dict(x.split('=') for x in os.environ.get('GENOPT', '').split(',') if x)
STAMP = int(OPT.get('stamp', 0))
PF = int(OPT.get('pf', 1))
STF = {'': '', 'sc1': ' sc1', 'nt': ' nt', 'sc01': ' sc0 sc1'}[OPT.get('stf', 'sc01')]
XF = {'sc1': ' sc1', 'sc01': ' sc0 sc1'}[OPT.get('xf', 'sc01')]

LF = {'x': XF, 'p': '', 'sc1': ' sc1', 'nt': ' nt'}[OPT.get('lf', 'x')]
MAIN = "interleave_layers__spectral_fnet__glu_gated_glu__prompt"
S, D, F = 2048, 576, 4608
KA_X, KA_CR, KA_CI, KA_WR, KA_WI, KA_BX, KA_WG, KA_WU, KA_WD, KA_OUT, KA_DBG, KA_WS = [8 * i for i in range(12)]
WS_XN = 0x0000000
WS_X1 = 0x0400000
WS_X2 = 0x0800000
WS_AB = 0x0C00000
WS_FL = 0x1200000
WS_P = 0x1400000
WS_P2 = 0x1E00000
WS_H = 0x3000000
HB = S * F * 2
WS_DBG = 0x8000000
XB = S * D * 2
MTB = 18432


def f32bits(x):
    return struct.unpack("<I", struct.pack("<f", x))[0]


class K:
    def __init__(self, name):
        self.name = name
        self.lines = []
        self.pend = []
        self.vm = []
        self.nlab = 0

    def e(self, s, vtag=None):
        if s.startswith('buffer_store') and ' sc' not in s:
            s += STF
        if s.startswith('buffer_') or s.startswith('global_'):
            self.vm.append(vtag)
        self.lines.append("    " + s)

    def label(self, l):
        self.lines.append(l + ":")

    def newlabel(self, p="L"):
        self.nlab += 1
        return "%s_%s_%d" % (p, self.name[-12:], self.nlab)

    def lds(self, s, tag):
        if OPT.get('nolds') and tag[0] in OPT.get('nolds'):
            return
        if len(self.pend) >= 15:
            self.e("s_waitcnt lgkmcnt(13)")
            self.pend = self.pend[-13:]
        self.e(s)
        self.pend.append(tag)

    def need(self, *tags):
        idx = -1
        for i, p in enumerate(self.pend):
            if p in tags:
                idx = i
        if idx < 0:
            return
        n = min(len(self.pend) - 1 - idx, 14)
        self.e("s_waitcnt lgkmcnt(%d)" % n)
        self.pend = self.pend[len(self.pend) - n:] if n else []

    def vneed(self, tag, lgkm0=False):
        idx = -1
        for i, p in enumerate(self.vm):
            if p == tag:
                idx = i
        extra = " lgkmcnt(0)" if lgkm0 else ""
        if lgkm0:
            self.pend = []
        if idx < 0:
            if lgkm0:
                self.e("s_waitcnt lgkmcnt(0)")
            return
        n = len(self.vm) - 1 - idx
        assert n < 63
        self.e("s_waitcnt vmcnt(%d)%s" % (n, extra))
        self.vm = self.vm[len(self.vm) - n:] if n else []

    def vm0(self):
        self.e("s_waitcnt vmcnt(0)")
        self.vm = []


def vr(b, n=4):
    return "v[%d:%d]" % (b, b + n - 1)


def sr(b, n=4):
    return "s[%d:%d]" % (b, b + n - 1)


def header(k, nwg):
    k.lines.append(".p2align 8")
    k.lines.append(".type %s,@function" % k.name)
    k.label(k.name)
    k.e("s_cmp_ge_u32 s2, %d" % nwg)
    k.e("s_cbranch_scc1 L_end_%s" % k.name)


def footer(k, nvgpr, nsgpr=64):
    k.label("L_end_%s" % k.name)
    k.e("s_endpgm")
    acc = (nvgpr + 3) // 4 * 4
    k.lines.append(""".section .rodata,"a"
.p2align 6
.amdhsa_kernel %s
  .amdhsa_next_free_vgpr %d
  .amdhsa_next_free_sgpr %d
  .amdhsa_accum_offset %d
  .amdhsa_group_segment_fixed_size 0
  .amdhsa_kernarg_size 96
  .amdhsa_user_sgpr_count 2
  .amdhsa_user_sgpr_kernarg_segment_ptr 1
  .amdhsa_system_sgpr_workgroup_id_x 1
.end_amdhsa_kernel
.text""" % (k.name, nvgpr, nsgpr, acc))


def srd(k, d, pbase, off_const, off_sgpr, total):
    k.e("s_add_u32 s%d, s%d, 0x%x" % (d, pbase, off_const))
    k.e("s_addc_u32 s%d, s%d, 0" % (d + 1, pbase + 1))
    if off_sgpr is None:
        k.e("s_mov_b32 s%d, 0x%x" % (d + 2, total - off_const))
    else:
        k.e("s_add_u32 s%d, s%d, s%d" % (d, d, off_sgpr))
        k.e("s_addc_u32 s%d, s%d, 0" % (d + 1, d + 1))
        k.e("s_sub_u32 s%d, 0x%x, s%d" % (d + 2, total - off_const, off_sgpr))
    k.e("s_and_b32 s%d, s%d, 0xffff" % (d + 1, d + 1))
    k.e("s_mov_b32 s%d, 0x20000" % (d + 3))


SB = 76


def stamp(k, idx, real=0):
    if not STAMP:
        return
    k.e("s_memtime s[%d:%d]" % (SB + 2 * idx, SB + 1 + 2 * idx))
    if real:
        k.e("s_memrealtime s[%d:%d]" % (SB + 16 + 2 * real - 2, SB + 17 + 2 * real - 2))
    k.e("s_waitcnt lgkmcnt(0)")
    k.pend = []


def stamp_store(k, kidx):
    if not STAMP:
        return
    k.vm0()
    stamp(k, 7, 2)
    k.e("s_lshl_b32 s44, s2, 7")
    k.e("s_add_u32 s44, s44, 0x%x" % (kidx * 65536))
    srd(k, 24, 4, WS_DBG, 44, WS_DBG + 16 * 65536)
    k.e("v_cmp_eq_u32 vcc, 0, v0")
    k.e("s_and_saveexec_b64 s[46:47], vcc")
    k.e("s_cbranch_execz L_end_%s" % k.name)
    k.e("v_mov_b32 v1, 0")
    for i in range(10):
        k.e("v_mov_b32 v2, s%d" % (SB + 2 * i))
        k.e("v_mov_b32 v3, s%d" % (SB + 1 + 2 * i))
        k.e("buffer_store_dwordx2 v[2:3], v1, s[24:27], 0 offen offset:%d" % (8 * i))
        k.e("s_nop 1")


def code_prefetch(k, sW, vLane, vA_, vD, SR, sTmp):
    if not int(OPT.get('cpf', 1)):
        return
    lab = k.newlabel("LPC")
    k.e("s_getpc_b64 s[%d:%d]" % (SR, SR + 1))
    k.label(lab)
    k.e("s_sub_u32 s%d, s%d, %s-%s" % (SR, SR, lab, k.name))
    k.e("s_subb_u32 s%d, s%d, 0" % (SR + 1, SR + 1))
    k.e("s_and_b32 s%d, s%d, 0xffff" % (SR + 1, SR + 1))
    k.e("s_mov_b32 s%d, L_end_%s-%s" % (SR + 2, k.name, k.name))
    k.e("s_mov_b32 s%d, 0x20000" % (SR + 3))
    k.e("s_lshl_b32 s%d, s%d, 13" % (sTmp, sW))
    k.e("v_lshl_add_u32 v%d, v%d, 7, s%d" % (vA_, vLane, sTmp))
    k.e("buffer_load_dword v%d, v%d, %s, 0 offen" % (vD, vA_, sr(SR)), "C")


def wave_sum(k, v, sbase):
    for ctl in ("quad_perm:[1,0,3,2]", "quad_perm:[2,3,0,1]", "row_half_mirror", "row_mirror"):
        k.e("s_nop 1")
        k.e("v_add_f32_dpp %s, %s, %s %s row_mask:0xf bank_mask:0xf" % (v, v, v, ctl))
    k.e("s_nop 1")
    for i in range(4):
        k.e("v_readlane_b32 s%d, %s, %d" % (sbase + i, v, 16 * i))
    k.e("s_nop 1")
    k.e("v_mov_b32 %s, s%d" % (v, sbase))
    for i in range(1, 4):
        k.e("v_add_f32 %s, s%d, %s" % (v, sbase + i, v))


def r_body(k, vrow, vlane, ysrc, has_xout, ln, SX, SO, SN, hook=None):
    k.e("v_mul_u32_u24 v4, 1152, v%d" % vrow)
    k.e("v_lshl_add_u32 v7, v%d, 3, v4" % vlane)
    k.e("v_lshl_add_u32 v8, v%d, 1, v4" % vlane)
    k.e("buffer_load_dwordx2 v[10:11], v7, %s, 0 offen" % sr(SX), "X")
    k.e("buffer_load_dwordx2 v[12:13], v7, %s, 0 offen offset:512" % sr(SX), "X")
    k.e("buffer_load_ushort v14, v8, %s, 0 offen offset:1024" % sr(SX), "X")
    if hook:
        hook()
    X = 30
    A = 16
    if ysrc:
        ysrc()
    k.vneed("X")
    for i, src in enumerate([10, 11, 12, 13]):
        k.e("v_lshlrev_b32 v%d, 16, v%d" % (X + 2 * i, src))
        k.e("v_and_b32 v%d, 0xffff0000, v%d" % (X + 2 * i + 1, src))
    k.e("v_lshlrev_b32 v%d, 16, v14" % (X + 8))
    if ysrc:
        for e in range(9):
            k.e("v_add_f32 v%d, v%d, v%d" % (X + e, X + e, A + e))
        for i in range(4):
            k.e("v_cvt_pk_bf16_f32 v%d, v%d, v%d" % (10 + i, X + 2 * i, X + 2 * i + 1))
        k.e("v_cvt_pk_bf16_f32 v14, v%d, v%d" % (X + 8, X + 8))
        if has_xout:
            k.e("buffer_store_dwordx2 v[10:11], v7, %s, 0 offen" % sr(SO))
            k.e("buffer_store_dwordx2 v[12:13], v7, %s, 0 offen offset:512" % sr(SO))
            k.e("buffer_store_short v14, v8, %s, 0 offen offset:1024" % sr(SO))
        if ln:
            for i, src in enumerate([10, 11, 12, 13]):
                k.e("v_lshlrev_b32 v%d, 16, v%d" % (X + 2 * i, src))
                k.e("v_and_b32 v%d, 0xffff0000, v%d" % (X + 2 * i + 1, src))
            k.e("v_lshlrev_b32 v%d, 16, v14" % (X + 8))
    if ln:
        k.e("v_add_f32 v20, v%d, v%d" % (X, X + 1))
        k.e("v_add_f32 v21, v%d, v%d" % (X + 2, X + 3))
        k.e("v_add_f32 v22, v%d, v%d" % (X + 4, X + 5))
        k.e("v_add_f32 v23, v%d, v%d" % (X + 6, X + 7))
        k.e("v_add_f32 v20, v20, v21")
        k.e("v_add_f32 v22, v22, v23")
        k.e("v_add_f32 v20, v20, v%d" % (X + 8))
        k.e("v_add_f32 v20, v20, v22")
        wave_sum(k, "v20", 32)
        k.e("v_mul_f32 v20, 0x%08x, v20" % f32bits(1.0 / D))
        for e in range(9):
            k.e("v_sub_f32 v%d, v%d, v20" % (X + e, X + e))
        k.e("v_mul_f32 v21, v%d, v%d" % (X, X))
        k.e("v_mul_f32 v22, v%d, v%d" % (X + 1, X + 1))
        for e in range(2, 9):
            k.e("v_fmac_f32 v%d, v%d, v%d" % (21 + (e & 1), X + e, X + e))
        k.e("v_add_f32 v21, v21, v22")
        wave_sum(k, "v21", 32)
        k.e("v_mov_b32 v22, 0x%08x" % f32bits(1e-5))
        k.e("v_fmac_f32 v22, 0x%08x, v21" % f32bits(1.0 / D))
        k.e("v_rsq_f32 v22, v22")
        k.e("s_nop 0")
        for e in range(9):
            k.e("v_mul_f32 v%d, v%d, v22" % (X + e, X + e))
        for i in range(4):
            k.e("v_cvt_pk_bf16_f32 v%d, v%d, v%d" % (24 + i, X + 2 * i, X + 2 * i + 1))
        k.e("v_cvt_pk_bf16_f32 v28, v%d, v%d" % (X + 8, X + 8))
        k.e("buffer_store_dwordx2 v[24:25], v7, %s, 0 offen" % sr(SN))
        k.e("buffer_store_dwordx2 v[26:27], v7, %s, 0 offen offset:512" % sr(SN))
        k.e("buffer_store_short v28, v8, %s, 0 offen offset:1024" % sr(SN))


def gen_r0(name):
    k = K(name)
    nwg = S // 4
    header(k, nwg)
    k.e("s_load_dwordx2 s[4:5], s[0:1], %d" % KA_WS)
    k.e("s_load_dwordx2 s[6:7], s[0:1], %d" % KA_X)
    pf = [(KA_WR, D * D * 2), (KA_WI, D * D * 2), (KA_CR, S * S * 2), (KA_CI, S * S * 2)] if PF else []
    for n, (ka, nb_) in enumerate(pf):
        k.e("s_load_dwordx2 s[%d:%d], s[0:1], %d" % (40 + 4 * n, 41 + 4 * n, ka))
    k.e("v_lshrrev_b32 v1, 6, v0")
    k.e("v_and_b32 v2, 63, v0")
    k.e("s_lshl_b32 s3, s2, 2")
    k.e("v_add_u32 v1, s3, v1")
    k.e("s_waitcnt lgkmcnt(0)")
    srd(k, 12, 6, 0, None, XB)
    srd(k, 24, 4, WS_XN, None, WS_XN + XB)
    for n, (ka, nb_) in enumerate(pf):
        srd(k, 40 + 4 * n, 40 + 4 * n, 0, None, nb_)
    k.e("s_mul_i32 s3, s2, 18432")
    srd(k, 16, 4, WS_P, 3, WS_P + 4 * XB)
    k.e("s_mov_b32 s18, 18432")
    k.e("v_lshrrev_b32 v3, 6, v0")
    k.e("v_mul_u32_u24 v3, 5120, v3")
    k.e("v_lshl_add_u32 v3, v2, 4, v3")
    for r in range(4):
        k.e("v_mov_b32 v%d, 0" % (36 + r))
    for n in range(4):
        k.e("buffer_store_dwordx4 v[36:39], v3, s[16:19], 0 offen offset:%d" % (n * 1024))
    k.e("s_mov_b32 s3, 4096")
    k.e("buffer_store_dwordx4 v[36:39], v3, s[16:19], s3 offen")

    def hook():
        if pf:
            k.e("v_lshlrev_b32 v42, 12, v1")
            k.e("v_lshl_add_u32 v42, v2, 6, v42")
            for n in range(len(pf)):
                k.e("buffer_load_dword v43, v42, %s, 0 offen" % sr(40 + 4 * n))
    r_body(k, 1, 2, None, False, True, 12, None, 24, hook=hook)
    footer(k, 44, 60)
    return k, nwg, 256, 0


def engine(k, tiles, NFR, KS, NS, NBUF, W, NSET, DELTA, rd_m, rd_n, dma, acc, first, vM, vN, sLoop,
           n_static=False, after_use=None, after_last_dma=None, npre=None, stage_extra=None):
    nt = len(tiles)
    UPS = KS * nt
    total = NS * UPS
    NSL = W
    W = W - int(OPT.get('lag', 2))
    st = {'nrM': 0, 'nrN': 0, 'pub': 0, 'ald': False}
    k.pend = []

    BUD = int(OPT.get('bud', 3))

    def pump(udone, maxm=2):
        bud = BUD if maxm < 50 else 999
        while bud > 0:
            f = st['nrN']
            s_ = f // NFR
            okN = s_ < NS * KS and (n_static or s_ // KS <= st['pub']) and s_ - NSET < udone // nt
            u = st['nrM']
            okM = u < total and u // UPS <= st['pub'] and u - W < udone
            if okN and (not okM or s_ * nt <= u):
                rd_n(s_ // KS, s_ % KS, f % NFR, vN[s_ % NSET][f % NFR], "N%d" % (s_ % NSET))
                st['nrN'] += 1
                bud -= 1
            elif okM:
                stg, rem = divmod(u, UPS)
                ks, ti = divmod(rem, nt)
                rd_m(stg, ks, tiles[ti], vM[u % NSL], "M%d" % (u % NSL))
                st['nrM'] += 1
                bud -= 2
            else:
                break

    pump(0, maxm=99)
    pre = k.lines
    k.lines = []
    blocks = []
    pos = max(1, min(UPS, UPS - W + DELTA))
    for t in range(NS):
        last = (t == NS - 1)
        extras = []
        for r in range(UPS):
            u = t * UPS + r
            ks, ti = divmod(r, nt)
            s = t * KS + ks
            k.need("M%d" % (u % NSL), "N%d" % (s % NSET))
            for i in range(NFR):
                a = acc(t, tiles[ti], i)
                c = "0" if first(t, ks) else vr(a)
                if not (OPT.get('nomfma') and t > 0):
                    k.e("v_mfma_f32_16x16x32_bf16 %s, %s, %s, %s" % (vr(a), vr(vM[u % NSL]), vr(vN[s % NSET][i]), c))
            if not last and r + 1 == pos:
                assert st['nrM'] == (t + 1) * UPS, (st, t)
                assert n_static or st['nrN'] >= (t + 1) * KS * NFR, (st, t)
                k.vneed("D%d" % (t + 1), lgkm0=True)
                k.e("s_barrier")
                st['pub'] = t + 1
                if t + NBUF < NS:
                    extras = dma(t + NBUF)
                    if OPT.get('nodma'):
                        extras = [(tg, [x for x in L if not x.startswith('buffer_load')]) for tg, L in extras]
                    if OPT.get('dropdma'):
                        pat = {'n': 'v8,', 'm': ('v9,', 'v10,', 'v11,'), 'q': 'v11,'}[OPT['dropdma']]
                        pats = pat if isinstance(pat, tuple) else (pat,)
                        extras = [(tg, [x for x in L if not (x.startswith('buffer_load') and any(p in x for p in pats))]) for tg, L in extras]
                elif after_last_dma and not st['ald']:
                    st['ald'] = True
                    extras = after_last_dma()
                if stage_extra:
                    extras = extras + stage_extra(t)
            pump(u + 1)
            if after_use:
                after_use(t, r)
            if extras:
                left = UPS - r
                n = (len(extras) + left - 1) // left
                for _ in range(n):
                    tag, L = extras.pop(0)
                    for x in L:
                        k.e(x, tag)
        assert not extras
        blocks.append(k.lines)
        k.lines = []
    best = None
    for U in (1, 2, 3, 4, 6):
        for a in range(NS):
            bnd = a + U
            while bnd + U <= NS and all(blocks[bnd + x] == blocks[a + x] for x in range(U)):
                bnd += U
            cnt = (bnd - a) // U
            if cnt >= 2 and (best is None or (cnt - 1) * U > (best[2] - 1) * best[3]):
                best = (a, bnd, cnt, U)
    out = pre
    if best is None:
        for bl in blocks:
            out += bl
    else:
        a, bnd, cnt, U = best
        for bl in blocks[:a]:
            out += bl
        lab = k.newlabel("LP")
        out.append("    s_mov_b32 s%d, %d" % (sLoop, cnt))
        out.append(lab + ":")
        for bl in blocks[a:a + U]:
            out += bl
        out.append("    s_sub_u32 s%d, s%d, 1" % (sLoop, sLoop))
        out.append("    s_cmp_lg_u32 s%d, 0" % sLoop)
        out.append("    s_cbranch_scc1 %s" % lab)
        for bl in blocks[bnd:]:
            out += bl
    k.lines = out


def tr_voff(k, vdst, sslot, vLane, T, stride, posmask):
    t0, t1, t2, t3, t4 = T
    k.e("v_add_u32 v%d, s%d, v%d" % (t0, sslot, vLane))
    k.e("v_mul_u32_u24 v%d, 3641, v%d" % (t1, t0))
    k.e("v_lshrrev_b32 v%d, 16, v%d" % (t1, t1))
    k.e("v_mul_u32_u24 v%d, 18, v%d" % (t2, t1))
    k.e("v_sub_u32 v%d, v%d, v%d" % (t2, t0, t2))
    k.e("v_and_b32 v%d, 0x%x, v%d" % (t3, posmask, t1))
    k.e("v_and_b32 v%d, 4, v%d" % (t4, t1))
    k.e("v_lshl_or_b32 v%d, v%d, 1, v%d" % (t3, t4, t3))
    k.e("v_and_b32 v%d, 8, v%d" % (t4, t1))
    k.e("v_lshrrev_b32 v%d, 1, v%d" % (t4, t4))
    k.e("v_or_b32 v%d, v%d, v%d" % (t3, t3, t4))
    k.e("v_mul_u32_u24 v%d, %d, v%d" % (vdst, stride, t3))
    k.e("v_lshl_add_u32 v%d, v%d, 4, v%d" % (vdst, t2, vdst))


def tr_raddr(k, vdst, vLane, t):
    k.e("v_lshrrev_b32 v%d, 5, v%d" % (vdst, vLane))
    k.e("v_lshlrev_b32 v%d, 4, v%d" % (vdst, vdst))
    k.e("v_bfe_u32 v%d, v%d, 4, 1" % (t, vLane))
    k.e("v_lshl_add_u32 v%d, v%d, 2, v%d" % (vdst, t, vdst))
    k.e("v_bfe_u32 v%d, v%d, 2, 2" % (t, vLane))
    k.e("v_add_u32 v%d, v%d, v%d" % (vdst, vdst, t))
    k.e("v_mul_u32_u24 v%d, 288, v%d" % (vdst, vdst))
    k.e("v_and_b32 v%d, 3, v%d" % (t, vLane))
    k.e("v_lshl_add_u32 v%d, v%d, 3, v%d" % (vdst, t, vdst))


def store_tiles_bf16(k, js, accf, vO, vO2, SRO, soff, sfl, TB, neg=None, colbase=0):
    idx = 0
    slot = 0
    while idx < len(js):
        pr = js[idx:idx + 2]
        if len(pr) == 2 and pr[1] != pr[0] + 1:
            pr = pr[:1]
        o = TB + 4 * (slot % 4)
        for n_, j in enumerate(pr):
            a = accf(j)
            k.e("v_cvt_pk_bf16_f32 v%d, v%d, v%d" % (o + 2 * n_, a, a + 1))
            k.e("v_cvt_pk_bf16_f32 v%d, v%d, v%d" % (o + 2 * n_ + 1, a + 2, a + 3))
            if neg is not None:
                k.e("v_xor_b32 v%d, s%d, v%d" % (o + 2 * n_, neg, o + 2 * n_))
                k.e("v_xor_b32 v%d, s%d, v%d" % (o + 2 * n_ + 1, neg, o + 2 * n_ + 1))
        if len(pr) == 2:
            k.e("s_nop 1")
            k.e("v_permlane16_swap_b32 v%d, v%d" % (o, o + 2))
            k.e("v_permlane16_swap_b32 v%d, v%d" % (o + 1, o + 3))
            k.e("s_nop 0")
            k.e("buffer_store_dwordx4 %s, v%d, %s, s%d offen offset:%d%s" % (vr(o), vO, sr(SRO), soff, colbase + pr[0] * 32, sfl))
        else:
            k.e("buffer_store_dwordx2 %s, v%d, %s, s%d offen offset:%d%s" % (vr(o, 2), vO2, sr(SRO), soff, colbase + pr[0] * 32, sfl))
        idx += len(pr)
        slot += 1


PREG = 36864


def store_native(k, tiles, accf, vP, SRO, sTmp, blk0, sblk, TB, par):
    for n, j in enumerate(tiles):
        o = TB + 4 * (n % 4)
        for i in range(2):
            a = accf(j, i)
            if par:
                k.e("v_and_b32 v%d, 0xfffe0000, v%d" % (a, a))
                k.e("v_or_b32 v%d, 0x10000, v%d" % (a, a))
            else:
                k.e("v_add_u32 v%d, 0x10000, v%d" % (a, a))
                k.e("v_and_b32 v%d, 0xfffe0000, v%d" % (a, a))
            k.e("v_cvt_pk_bf16_f32 v%d, v%d, v%d" % (o + 2 * i, a, a + 1))
            k.e("v_cvt_pk_bf16_f32 v%d, v%d, v%d" % (o + 2 * i + 1, a + 2, a + 3))
            k.e(("v_or_b32 v%d, 1, v%d" if par else "v_and_b32 v%d, -2, v%d") % (o + 2 * i, o + 2 * i))
        if n % 4 == 0:
            if sblk is None:
                k.e("s_mov_b32 s%d, %d" % (sTmp, (blk0 + j) * 1024))
            else:
                k.e("s_add_u32 s%d, s%d, %d" % (sTmp, sblk, (blk0 + j) * 1024))
        else:
            k.e("s_nop 0")
        k.e("s_nop 0")
        k.e("v_permlane16_swap_b32 v%d, v%d" % (o, o + 2))
        k.e("v_permlane16_swap_b32 v%d, v%d" % (o + 1, o + 3))
        k.e("s_nop 0")
        k.e("buffer_store_dwordx4 %s, v%d, %s, s%d offen offset:%d%s" % (vr(o), vP, sr(SRO), sTmp, (n % 4) * 1024, XF))


def r_tail(k, rcfg, npart, sW, vLane, sGroup, sMember, XBUF, WSP):
    freg, xin, xout, ln = rcfg
    if xin[0] == 'in':
        srd(k, 12, 48, 0, None, XB)
    else:
        srd(k, 12, 4, xin[1], None, xin[1] + XB)
    k.e("s_lshr_b32 s46, s%d, 2" % sMember)
    k.e("s_lshl_b32 s47, s%d, 2" % sGroup)
    k.e("s_add_u32 s46, s46, s47")
    k.e("s_mul_i32 s46, s46, %d" % PREG)
    srd(k, 20, 4, WSP, 46, WSP + npart * XB)
    if xout[0] == 'out':
        srd(k, 24, 50, 0, None, XB)
    else:
        srd(k, 24, 4, xout[1], None, xout[1] + XB)
    if ln:
        srd(k, 52, 4, WS_XN, None, WS_XN + XB)
    stamp(k, 4)
    k.e("s_lshl_b32 s46, s%d, 7" % sGroup)
    k.e("s_lshl_b32 s47, s%d, 3" % sMember)
    k.e("s_add_u32 s46, s46, s47")
    k.e("s_add_u32 s46, s46, s%d" % sW)
    k.e("v_mov_b32 v2, s46")
    PB0 = 44
    par = (rcfg[0] + 1) & 1

    def ysrc():
        k.e("s_lshr_b32 s46, s%d, 1" % sMember)
        k.e("s_and_b32 s46, s46, 1")
        k.e("s_lshl_b32 s46, s46, 8")
        k.e("s_and_b32 s47, s%d, 1" % sMember)
        k.e("s_lshl_b32 s47, s47, 7")
        k.e("s_add_u32 s46, s46, s47")
        for n, (mul, add) in enumerate(((64, 0), (8, 512))):
            k.e("s_mul_i32 s47, s%d, %d" % (sW, mul))
            k.e("s_add_u32 s47, s47, %d" % add)
            k.e("v_add_u32 v3, s47, v%d" % vLane)
            k.e("v_lshrrev_b32 v5, 4, v3")
            k.e("v_lshlrev_b32 v5, 10, v5")
            k.e("v_bfe_u32 v6, v3, 3, 1")
            k.e("v_lshl_add_u32 v5, v6, 9, v5")
            k.e("v_and_b32 v6, 7, v3")
            k.e("v_lshl_add_u32 v5, v6, 4, v5")
            k.e("v_add_u32 v%d, s46, v5" % (40 + n))
            k.e("v_mul_u32_u24 v5, 2336, v6")
            k.e("v_lshrrev_b32 v6, 3, v3")
            k.e("v_lshl_add_u32 v5, v6, 5, v5")
            k.e("v_add_u32 v%d, 0x%x, v5" % (42 + n, XBUF))
        for z in range(npart):
            for r in range(4):
                k.e("v_mov_b32 v%d, %d" % (PB0 + 8 * z + 4 + r, par))
        AB_ = PB0 + 8 * npart
        lp = k.newlabel("LW")
        ld = k.newlabel("LD")
        k.e("s_mov_b32 s45, 0")
        k.label(lp)
        for z in range(npart):
            k.e("s_mov_b32 s47, 0x%x" % (z * 64 * PREG))
            k.e("buffer_load_dwordx4 %s, v40, s[20:23], s47 offen%s" % (vr(PB0 + 8 * z), XF))
            k.e("s_mov_b64 exec, 0xff")
            k.e("buffer_load_dwordx4 %s, v41, s[20:23], s47 offen%s" % (vr(PB0 + 8 * z + 4), XF))
            k.e("s_mov_b64 exec, -1")
        k.vm0()
        regs = list(range(PB0, PB0 + 8 * npart, 2))
        op3 = "v_and_b32" if par else "v_or_b32"
        k.e("%s v26, v%d, v%d" % (op3, regs[0], regs[1]))
        k.e("%s v27, v%d, v%d" % (op3, regs[2], regs[3]))
        rest = regs[4:]
        n = 0
        while rest:
            d = 26 + (n & 1)
            if par:
                k.e("v_and_b32 v%d, v%d, v%d" % (d, d, rest[0]))
                rest = rest[1:]
            else:
                k.e("v_or3_b32 v%d, v%d, v%d, v%d" % (d, d, rest[0], rest[1]))
                rest = rest[2:]
            n += 1
        k.e("%s v26, v26, v27" % op3)
        k.e("v_and_b32 v26, 1, v26")
        k.e("v_cmp_ne_u32 vcc, %d, v26" % par)
        k.e("s_nop 3")
        k.e("s_cmp_eq_u64 vcc, 0")
        k.e("s_cbranch_scc1 %s" % ld)
        k.e("s_add_u32 s45, s45, 1")
        k.e("s_cmp_lt_u32 s45, 0x100000")
        k.e("s_cbranch_scc1 %s" % lp)
        k.label(ld)
        stamp(k, 5)
        if False:
            for r in range(4):
                k.e("v_mov_b32 v%d, -1" % (AB_ + 16 + r))
            for z in range(npart):
                k.e("s_mov_b32 s47, 0x%x" % (z * 64 * PREG))
                k.e("buffer_store_dwordx4 %s, v40, s[20:23], s47 offen" % vr(AB_ + 16))
                k.e("s_mov_b64 exec, 0xff")
                k.e("buffer_store_dwordx4 %s, v41, s[20:23], s47 offen" % vr(AB_ + 16))
                k.e("s_mov_b64 exec, -1")
        for z in range(npart):
            for h in range(2):
                for r in range(4):
                    src = PB0 + 8 * z + 4 * h + r
                    a = AB_ + 8 * h + 2 * r
                    if z == 0:
                        k.e("v_lshlrev_b32 v%d, 16, v%d" % (a, src))
                        k.e("v_and_b32 v%d, 0xffff0000, v%d" % (a + 1, src))
                    else:
                        k.e("v_lshlrev_b32 v26, 16, v%d" % src)
                        k.e("v_and_b32 v27, 0xffff0000, v%d" % src)
                        k.e("v_add_f32 v%d, v%d, v26" % (a, a))
                        k.e("v_add_f32 v%d, v%d, v27" % (a + 1, a + 1))
        k.e("ds_write_b128 v42, %s" % vr(AB_))
        k.e("ds_write_b128 v42, %s offset:16" % vr(AB_ + 4))
        k.e("s_mov_b64 exec, 0xff")
        k.e("ds_write_b128 v43, %s" % vr(AB_ + 8))
        k.e("ds_write_b128 v43, %s offset:16" % vr(AB_ + 12))
        k.e("s_mov_b64 exec, -1")
        k.e("s_mul_i32 s47, s%d, 2336" % sW)
        k.e("s_add_u32 s47, s47, 0x%x" % XBUF)
        k.e("v_lshl_add_u32 v5, v%d, 4, s47" % vLane)
        k.e("v_lshl_add_u32 v6, v%d, 2, s47" % vLane)
        k.e("s_waitcnt lgkmcnt(0)")
        k.e("s_barrier")
        k.e("ds_read_b128 v[16:19], v5")
        k.e("ds_read_b128 v[20:23], v5 offset:1024")
        k.e("ds_read_b32 v24, v6 offset:2048")
        k.e("s_waitcnt lgkmcnt(0)")
    r_body(k, 2, vLane, ysrc, True, ln, 12, 24, 52)
    return PB0 + 8 * npart + 20


def preset_pieces(k, sW, vLane, vA_, vD4, SR, sTmp, WSP):
    L = ["s_mul_i32 s%d, s2, %d" % (sTmp, PREG),
         "s_add_u32 s%d, s4, 0x%x" % (SR, WSP), "s_addc_u32 s%d, s5, 0" % (SR + 1),
         "s_add_u32 s%d, s%d, s%d" % (SR, SR, sTmp), "s_addc_u32 s%d, s%d, 0" % (SR + 1, SR + 1),
         "s_and_b32 s%d, s%d, 0xffff" % (SR + 1, SR + 1),
         "s_mov_b32 s%d, %d" % (SR + 2, PREG), "s_mov_b32 s%d, 0x20000" % (SR + 3),
         "s_mul_i32 s%d, s%d, 5120" % (sTmp, sW),
         "v_lshl_add_u32 v%d, v%d, 4, s%d" % (vA_, vLane, sTmp)]
    for r in range(4):
        L.append("v_mov_b32 v%d, -1" % (vD4 + r))
    P = [("S", L + ["buffer_store_dwordx4 %s, v%d, %s, 0 offen" % (vr(vD4), vA_, sr(SR))])]
    for n in range(1, 4):
        P.append(("S", ["buffer_store_dwordx4 %s, v%d, %s, 0 offen offset:%d" % (vr(vD4), vA_, sr(SR), n * 1024)]))
    P.append(("S", ["s_mov_b32 s%d, 4096" % sTmp, "buffer_store_dwordx4 %s, v%d, %s, s%d offen" % (vr(vD4), vA_, sr(SR), sTmp)]))
    return P


def gen_gemm(name, kind, rcfg=None, kidx=0, pf=()):
    k = K(name)
    nwg = 256
    LNF = (kind == 'A1L')
    if LNF:
        kind = 'A1'
    if kind == 'A2':
        NFR, NBUF, mmode, NS = 2, 4, 'tr', 16
        strideN, strideM = 4096, 1152
    elif kind == 'B2':
        NFR, NBUF, mmode, NS = 2, 4, 'tr', 18
        strideN, strideM = 0, 1152
    else:
        NFR, NBUF, mmode, NS = 1, 4, 'row', 9
        strideN, strideM = 1152, 1152
    WSP, WSPO = WS_P, WS_P
    groups = [list(range(5)), list(range(5, 9))]
    NSET = 4
    NT = 4 * NFR * 16
    NTB = NT * 128
    STB = NTB + MTB
    NDN = NT // 64
    LDSB = NBUF * STB + (8 * 2336 if rcfg else 0)
    MB0 = NTB
    if LNF:
        STB, NDN, MB0 = MTB, 0, 73728
        LDSB = 73728 + NBUF * MTB
    KS = 2
    Wmul = float(OPT.get('twmul', 2.0))
    Wmax = int(5 * Wmul + 0.5)

    vLane, vT0, vT1, vT2, vT3, vT4 = 1, 2, 3, 4, 5, 6
    vO = 7
    vDN = 8
    vDM = [9, 10, 11]
    nxt = 12
    nrm = KS if mmode == 'row' else 1
    vRN = [[0] * KS for _ in range(NBUF)]
    vRM = [[0] * nrm for _ in range(NBUF)]
    for b in range(NBUF):
        for s_ in range(KS):
            vRN[b][s_] = nxt; nxt += 1
        for s_ in range(nrm):
            vRM[b][s_] = nxt; nxt += 1
    nxt = (nxt + 3) // 4 * 4
    vPA, vPS, vPD = nxt, nxt + 2, nxt + 3
    nxt += 4
    PD = int(OPT.get('pd', 0)) if kind in ('A2', 'B2') else 0
    vM = [nxt + 4 * j for j in range(Wmax)]; nxt += 4 * Wmax
    vN = [[nxt + 4 * (p * NFR + i) for i in range(NFR)] for p in range(NSET)]; nxt += 4 * NSET * NFR
    vAbase = nxt
    nxt += 4 * 5 * NFR
    nxt = max(nxt, 176 if LNF else 96)
    vPF = nxt
    nxt += 1
    nvgpr = nxt
    sW, sW1024, sW256, sKN, sKM, sTmp, sLoop = 28, 29, 30, 31, 32, 33, 40
    SRN, SRM, SRO = 12, 16, 24
    if not PF:
        pf = ()

    header(k, nwg)
    stamp(k, 0, 1)
    k.e("s_load_dwordx2 s[4:5], s[0:1], %d" % KA_WS)
    if kind == 'A2':
        k.e("s_load_dwordx4 s[8:11], s[0:1], %d" % KA_CR)
    elif kind == 'B2':
        k.e("s_load_dwordx2 s[8:9], s[0:1], %d" % KA_WD)
    else:
        k.e("s_load_dwordx2 s[8:9], s[0:1], %d" % KA_WR)
        k.e("s_load_dwordx2 s[10:11], s[0:1], %d" % KA_WI)
    if LNF:
        k.e("s_load_dwordx2 s[48:49], s[0:1], %d" % KA_X)
    if rcfg:
        if rcfg[1][0] == 'in':
            k.e("s_load_dwordx2 s[48:49], s[0:1], %d" % rcfg[1][1])
        if rcfg[2][0] == 'out':
            k.e("s_load_dwordx2 s[50:51], s[0:1], %d" % KA_OUT)
    for n, (ka, nb_) in enumerate(pf):
        k.e("s_load_dwordx2 s[%d:%d], s[0:1], %d" % (56 + 4 * n, 57 + 4 * n, ka))
    k.e("v_and_b32 v%d, 63, v0" % vLane)
    k.e("v_lshrrev_b32 v%d, 6, v0" % vT0)
    k.e("s_nop 0")
    k.e("v_readfirstlane_b32 s%d, v%d" % (sW, vT0))
    k.e("s_and_b32 s34, s2, 7")
    k.e("s_lshr_b32 s35, s2, 3")
    if kind in ('A2', 'B2'):
        k.e("s_and_b32 s36, s34, 3")
        k.e("s_lshr_b32 s37, s34, 2")
        k.e("s_lshl_b32 s37, s37, 3")
        k.e("s_lshr_b32 s38, s35, 2")
        k.e("s_add_u32 s37, s37, s38")
        k.e("s_and_b32 s38, s35, 3")
    else:
        k.e("s_mov_b32 s38, s34")
        k.e("s_mov_b32 s37, s35")
    k.e("s_lshl_b32 s%d, s%d, 10" % (sW1024, sW))
    k.e("s_lshl_b32 s%d, s%d, 8" % (sW256, sW))
    k.e("v_lshrrev_b32 v%d, 3, v%d" % (vT0, vLane))
    k.e("s_lshl_b32 s%d, s%d, 3" % (sTmp, sW))
    k.e("v_add_u32 v%d, s%d, v%d" % (vT0, sTmp, vT0))
    k.e("v_bfe_u32 v%d, v%d, 1, 3" % (vT1, vT0))
    k.e("v_and_b32 v%d, 7, v%d" % (vT2, vLane))
    k.e("v_xor_b32 v%d, v%d, v%d" % (vT1, vT1, vT2))
    if kind == 'B2':
        k.e("s_lshr_b32 s44, s%d, 2" % sW)
        k.e("s_mul_i32 s44, s44, %d" % (288 * 1024))
        k.e("s_and_b32 s45, s%d, 3" % sW)
        k.e("s_lshl_b32 s45, s45, 10")
        k.e("s_add_u32 s44, s44, s45")
        k.e("v_lshl_add_u32 v%d, v%d, 4, s44" % (vDN, vLane))
    else:
        k.e("v_mul_u32_u24 v%d, %d, v%d" % (vDN, strideN, vT0))
        k.e("v_lshl_add_u32 v%d, v%d, 4, v%d" % (vDN, vT1, vDN))
    if mmode == 'row':
        k.e("v_mul_u32_u24 v%d, %d, v%d" % (vDM[0], strideM, vT0))
        k.e("v_lshl_add_u32 v%d, v%d, 4, v%d" % (vDM[0], vT1, vDM[0]))
        k.e("v_lshrrev_b32 v%d, 3, v%d" % (vT0, vLane))
        k.e("s_lshl_b32 s%d, s%d, 1" % (sTmp, sW))
        k.e("s_add_u32 s%d, s%d, 128" % (sTmp, sTmp))
        k.e("v_add_u32 v%d, s%d, v%d" % (vT0, sTmp, vT0))
        k.e("v_bfe_u32 v%d, v%d, 1, 3" % (vT1, vT0))
        k.e("v_xor_b32 v%d, v%d, v%d" % (vT1, vT1, vT2))
        k.e("v_mul_u32_u24 v%d, %d, v%d" % (vDM[2], strideM, vT0))
        k.e("v_lshl_add_u32 v%d, v%d, 4, v%d" % (vDM[2], vT1, vDM[2]))
    else:
        for q in range(3):
            if q < 2:
                k.e("s_lshl_b32 s%d, s%d, 6" % (sTmp, sW))
                k.e("s_add_u32 s%d, s%d, %d" % (sTmp, sTmp, 512 * q))
            else:
                k.e("s_lshl_b32 s%d, s%d, 4" % (sTmp, sW))
                k.e("s_add_u32 s%d, s%d, 1024" % (sTmp, sTmp))
            tr_voff(k, vDM[q], sTmp, vLane, (vT0, vT1, vT2, vT3, vT4), strideM, 0x33)
    k.e("s_mov_b32 s%d, 0" % sKN)
    k.e("s_mov_b32 s%d, 0" % sKM)
    k.e("s_waitcnt lgkmcnt(0)")
    if kind == 'A2':
        k.e("s_cmp_lt_u32 s36, 2")
        k.e("s_cselect_b32 s6, s8, s10")
        k.e("s_cselect_b32 s7, s9, s11")
        k.e("s_mul_i32 s44, s37, %d" % (128 * 4096))
        k.e("s_and_b32 s45, s36, 1")
        k.e("s_lshl_b32 s45, s45, 11")
        k.e("s_add_u32 s44, s44, s45")
        srd(k, SRN, 6, 0, 44, S * S * 2)
        k.e("s_mul_i32 s44, s36, %d" % (1024 * 1152))
        k.e("s_mul_i32 s45, s38, 288")
        k.e("s_add_u32 s44, s44, s45")
        srd(k, SRM, 4, WS_AB, 44, WS_AB + 2 * XB)
    elif kind == 'B2':
        k.e("s_mul_i32 s44, s37, %d" % (4 * 288 * 1024))
        k.e("s_mul_i32 s45, s36, %d" % (72 * 1024))
        k.e("s_add_u32 s44, s44, s45")
        srd(k, SRN, 4, WS_H, 44, WS_H + HB)
        k.e("s_mul_i32 s44, s36, %d" % (1152 * 1152))
        k.e("s_mul_i32 s45, s38, 288")
        k.e("s_add_u32 s44, s44, s45")
        srd(k, SRM, 8, 0, 44, F * D * 2)
    else:
        k.e("s_mul_i32 s44, s37, %d" % (64 * 1152))
        if LNF:
            srd(k, SRN, 48, 0, 44, XB)
            k.e("s_mul_i32 s44, s%d, %d" % (sW, 8 * 1152))
            k.e("v_lshl_add_u32 v%d, v%d, 3, s44" % (vT0, vLane))
            k.e("v_lshl_add_u32 v%d, v%d, 1, s44" % (vT1, vLane))
            for rr in range(8):
                b = 32 + 16 * rr
                k.e("s_mov_b32 s44, %d" % (rr * 1152))
                k.e("buffer_load_dwordx2 %s, v%d, %s, s44 offen" % (vr(b + 10, 2), vT0, sr(SRN)), "X")
                k.e("buffer_load_dwordx2 %s, v%d, %s, s44 offen offset:512" % (vr(b + 12, 2), vT0, sr(SRN)), "X")
                k.e("buffer_load_ushort v%d, v%d, %s, s44 offen offset:1024" % (b + 14, vT1, sr(SRN)), "X")
        else:
            srd(k, SRN, 4, WS_XN, 44, WS_XN + XB)
        k.e("s_cmp_lt_u32 s38, 4")
        k.e("s_cselect_b32 s6, s8, s10")
        k.e("s_cselect_b32 s7, s9, s11")
        k.e("s_and_b32 s45, s38, 3")
        k.e("s_mul_i32 s44, s45, %d" % (144 * 1152))
        srd(k, SRM, 6, 0, 44, D * D * 2)
    if PD:
        k.e("s_mul_i32 s45, s38, 288")
        k.e("s_sub_u32 s44, s%d, s45" % SRM)
        k.e("s_subb_u32 s45, s%d, 0" % (SRM + 1))
        k.e("s_lshl_b32 s46, s38, 5")
        k.e("s_lshl_b32 s47, s%d, 2" % sW)
        k.e("s_add_u32 s46, s46, s47")
        k.e("v_add_u32 v%d, s46, v%d" % (vT0, vLane))
        if kind == 'A2':
            k.e("v_lshlrev_b32 v%d, 12, v%d" % (vT1, vT0))
            SN = 128
        else:
            k.e("v_lshrrev_b32 v%d, 5, v%d" % (vT1, vT0))
            k.e("v_mul_u32_u24 v%d, %d, v%d" % (vT1, 288 * 1024, vT1))
            k.e("v_and_b32 v%d, 31, v%d" % (vT2, vT0))
            k.e("v_lshl_add_u32 v%d, v%d, 7, v%d" % (vT1, vT2, vT1))
            SN = 4096
        k.e("v_add_u32 v%d, 0x%x, v%d" % (vT1, PD * SN, vT1))
        k.e("s_mul_i32 s46, s%d, 3" % sW)
        k.e("s_sub_u32 s46, s46, 4")
        k.e("v_add_u32 v%d, s46, v%d" % (vT0, vLane))
        k.e("v_min_u32 v%d, 17, v%d" % (vT0, vT0))
        k.e("s_mul_i32 s46, s35, 18")
        k.e("v_add_u32 v%d, s46, v%d" % (vT0, vT0))
        k.e("v_mul_u32_u24 v%d, 7282, v%d" % (vT2, vT0))
        k.e("v_lshrrev_b32 v%d, 16, v%d" % (vT2, vT2))
        k.e("v_mul_u32_u24 v%d, 9, v%d" % (vT3, vT2))
        k.e("v_sub_u32 v%d, v%d, v%d" % (vT3, vT0, vT3))
        k.e("v_mul_u32_u24 v%d, 1152, v%d" % (vT2, vT2))
        k.e("v_lshl_add_u32 v%d, v%d, 7, v%d" % (vT2, vT3, vT2))
        k.e("v_add_u32 v%d, 0x%x, v%d" % (vT2, PD * 64 * 1152, vT2))
        k.e("v_cmp_gt_u32 vcc, 4, v%d" % vLane)
        k.e("v_mov_b32 v%d, s44" % vT0)
        k.e("v_mov_b32 v%d, s%d" % (vT3, SRN))
        k.e("v_cndmask_b32 v%d, v%d, v%d, vcc" % (vPA, vT0, vT3))
        k.e("v_mov_b32 v%d, s45" % vT0)
        k.e("v_mov_b32 v%d, s%d" % (vT3, SRN + 1))
        k.e("v_cndmask_b32 v%d, v%d, v%d, vcc" % (vPA + 1, vT0, vT3))
        k.e("v_cndmask_b32 v%d, v%d, v%d, vcc" % (vT1, vT2, vT1))
        k.e("v_mov_b32 v%d, 0x%x" % (vT0, 64 * 1152))
        k.e("v_mov_b32 v%d, %d" % (vT3, SN))
        k.e("v_cndmask_b32 v%d, v%d, v%d, vcc" % (vPS, vT0, vT3))
        k.e("v_add_co_u32 v%d, vcc, v%d, v%d" % (vPA, vT1, vPA))
        k.e("s_nop 1")
        k.e("v_addc_co_u32 v%d, vcc, 0, v%d, vcc" % (vPA + 1, vPA + 1))

    def dma(stage):
        b = stage % NBUF
        tag = "D%d" % stage
        P = []
        if PD and stage + PD < NS:
            P.append(("T", ["s_mov_b64 exec, 0xff",
                            "global_load_dword v%d, %s, off" % (vPD, vr(vPA, 2)),
                            "s_mov_b64 exec, -1",
                            "v_add_co_u32 v%d, vcc, v%d, v%d" % (vPA, vPS, vPA),
                            "s_nop 1",
                            "v_addc_co_u32 v%d, vcc, 0, v%d, vcc" % (vPA + 1, vPA + 1)]))
        for j in range(NDN):
            L = ["s_add_u32 m0, s%d, 0x%x" % (sW1024, b * STB + j * 8192)]
            if j:
                L.append("s_add_u32 s%d, s%d, 0x%x" % (sTmp, sKN, j * (2 * 288 * 1024 if kind == 'B2' else 64 * strideN)))
                L.append("buffer_load_dwordx4 v%d, %s, s%d offen lds" % (vDN, sr(SRN), sTmp))
            else:
                L.append("s_nop 0")
                L.append("buffer_load_dwordx4 v%d, %s, s%d offen lds" % (vDN, sr(SRN), sKN))
            P.append((tag, L))
        mb_ = b * STB + MB0
        for q in range(3):
            L = []
            if q < 2:
                L.append("s_add_u32 m0, s%d, 0x%x" % (sW1024, mb_ + q * 8192))
            else:
                L.append("s_add_u32 m0, s%d, 0x%x" % (sW256, mb_ + 16384))
            if mmode == 'row' and q == 1:
                L.append("s_add_u32 s%d, s%d, 0x%x" % (sTmp, sKM, 64 * strideM))
                so, vo = sTmp, vDM[0]
            else:
                so, vo = sKM, vDM[q]
                L.append("s_nop 0")
            if q == 2:
                L.append("s_mov_b64 exec, 0xffff")
            L.append("buffer_load_dwordx4 v%d, %s, s%d offen lds" % (vo, sr(SRM), so))
            if q == 2:
                L.append("s_mov_b64 exec, -1")
            P.append((tag, L))
        P[-1] = (tag, P[-1][1] + ["s_add_u32 s%d, s%d, %d" % (sKN, sKN, 4096 if kind == 'B2' else 128),
                                  "s_add_u32 s%d, s%d, 0x%x" % (sKM, sKM, 128 if mmode == 'row' else 64 * strideM)])
        return P

    for stg in range(NBUF):
        for tag, L in dma(stg):
            for x in L:
                k.e(x, tag)
        if stg == 0:
            code_prefetch(k, sW, vLane, vT0, vPF, 72, sTmp)
    for n, (ka, nb_) in enumerate(pf):
        srd(k, 56 + 4 * n, 56 + 4 * n, 0, None, nb_)
    k.e("s_and_b32 s%d, s%d, 3" % (sTmp, sW))
    k.e("s_mul_i32 s%d, s%d, %d" % (sTmp, sTmp, NFR * 16 * 128))
    k.e("v_and_b32 v%d, 15, v%d" % (vT0, vLane))
    k.e("v_lshrrev_b32 v%d, 4, v%d" % (vT1, vLane))
    k.e("v_bfe_u32 v%d, v%d, 1, 3" % (vT2, vLane))
    k.e("v_xor_b32 v%d, v%d, v%d" % (vT2, vT1, vT2))
    k.e("v_lshlrev_b32 v%d, 4, v%d" % (vT2, vT2))
    k.e("v_lshl_add_u32 v%d, v%d, 7, v%d" % (vT2, vT0, vT2))
    k.e("v_add_u32 v%d, s%d, v%d" % (vT3, sTmp, vT2))
    if kind == 'B2':
        k.e("v_lshlrev_b32 v%d, 9, v%d" % (vT3, vT1))
        k.e("v_lshl_add_u32 v%d, v%d, 4, v%d" % (vT3, vT0, vT3))
        k.e("v_add_u32 v%d, s%d, v%d" % (vT3, sTmp, vT3))
        for b in range(NBUF):
            k.e("v_add_u32 v%d, 0x%x, v%d" % (vRN[b][0], b * STB, vT3))
            k.e("v_add_u32 v%d, 2048, v%d" % (vRN[b][1], vRN[b][0]))
    else:
        for b in range(NBUF):
            k.e("v_add_u32 v%d, 0x%x, v%d" % (vRN[b][0], (b * 65536 if LNF else b * STB), vT3))
            k.e("v_xor_b32 v%d, 64, v%d" % (vRN[b][1], vRN[b][0]))
    if mmode == 'row':
        for b in range(NBUF):
            k.e("v_add_u32 v%d, 0x%x, v%d" % (vRM[b][0], b * STB + MB0, vT2))
            k.e("v_xor_b32 v%d, 64, v%d" % (vRM[b][1], vRM[b][0]))
    else:
        tr_raddr(k, vT2, vLane, vT3)
        for b in range(NBUF):
            k.e("v_add_u32 v%d, 0x%x, v%d" % (vRM[b][0], b * STB + NTB, vT2))
    k.e("s_and_b32 s%d, s%d, 3" % (sTmp, sW))
    k.e("s_mul_i32 s%d, s%d, %d" % (sTmp, sTmp, NFR * 16))
    k.e("v_and_b32 v%d, 15, v%d" % (vT3, vLane))
    k.e("v_add_u32 v%d, s%d, v%d" % (vT3, sTmp, vT3))
    k.e("v_lshrrev_b32 v%d, 4, v%d" % (vT4, vLane))
    k.e("v_mul_u32_u24 v%d, 1152, v%d" % (vT3, vT3))
    k.e("v_and_b32 v%d, 1, v%d" % (vT0, vT4))
    k.e("v_lshl_add_u32 v%d, v%d, 5, v%d" % (vO, vT0, vT3))
    k.e("v_lshrrev_b32 v%d, 1, v%d" % (vT0, vT4))
    k.e("v_lshl_add_u32 v%d, v%d, 4, v%d" % (vO, vT0, vO))
    k.e("v_lshl_add_u32 v%d, v%d, 3, v%d" % (vT4, vT4, vT3))
    vO2 = vT4
    if kind == 'A1':
        k.e("s_lshr_b32 s45, s38, 2")
        k.e("s_mul_i32 s44, s45, %d" % XB)
        k.e("s_mul_i32 s46, s37, %d" % (64 * 1152))
        k.e("s_add_u32 s44, s44, s46")
        k.e("s_and_b32 s46, s38, 3")
        k.e("s_mul_i32 s46, s46, 288")
        k.e("s_add_u32 s44, s44, s46")
        srd(k, SRO, 4, WS_AB, 44, WS_AB + 2 * XB)
        k.e("s_mul_i32 s47, s45, 0x80008000")
    else:
        k.e("s_lshl_b32 s44, s36, 4")
        k.e("s_add_u32 s44, s44, s37")
        k.e("s_lshl_b32 s44, s44, 2")
        k.e("s_and_b32 s46, s%d, 3" % sW)
        k.e("s_add_u32 s44, s44, s46")
        k.e("s_mul_i32 s44, s44, %d" % PREG)
        k.e("s_mul_i32 s46, s38, 9216")
        k.e("s_add_u32 s44, s44, s46")
        srd(k, SRO, 4, WSP, 44, WSP + 4 * XB)
        k.e("v_lshlrev_b32 v%d, 4, v%d" % (vO, vLane))
    def pf_emit():
        k.e("s_lshl_b32 s%d, s2, 3" % sTmp)
        k.e("s_add_u32 s%d, s%d, s%d" % (sTmp, sTmp, sW))
        k.e("s_lshl_b32 s%d, s%d, 12" % (sTmp, sTmp))
        k.e("v_lshl_add_u32 v%d, v%d, 6, s%d" % (vT0, vLane, sTmp))
        for n in range(len(pf)):
            k.e("buffer_load_dword v%d, v%d, %s, 0 offen" % (vPF, vT0, sr(56 + 4 * n)), "PF")

    stamp(k, 1)
    if LNF:
        for tg, L in preset_pieces(k, sW, vLane, vT2, vPA, 72, sTmp, WS_P):
            for x in L:
                k.e(x.replace(", -1", ", 0") if x.startswith("v_mov") else x, "S")
        if pf and OPT.get('pfpos', 'end') == 'early':
            pf_emit()
        R = range(8)
        B = lambda rr: 32 + 16 * rr
        k.e("v_lshrrev_b32 v%d, 4, v%d" % (vT0, vLane))
        k.e("v_lshlrev_b32 v%d, 13, v%d" % (vT0, vT0))
        k.e("v_bfe_u32 v%d, v%d, 1, 3" % (vT1, vLane))
        k.e("v_lshl_add_u32 v%d, v%d, 4, v%d" % (vT0, vT1, vT0))
        k.e("v_and_b32 v%d, 1, v%d" % (vT1, vLane))
        k.e("v_lshl_add_u32 v%d, v%d, 3, v%d" % (vT0, vT1, vT0))
        k.e("v_add_u32 v%d, s%d, v%d" % (vT0, sW1024, vT0))
        k.e("v_lshrrev_b32 v%d, 3, v%d" % (vT1, vLane))
        k.e("v_lshlrev_b32 v%d, 4, v%d" % (vT1, vT1))
        k.e("v_and_b32 v%d, 7, v%d" % (vT2, vLane))
        k.e("v_lshl_add_u32 v%d, v%d, 1, v%d" % (vT1, vT2, vT1))
        k.e("v_add_u32 v%d, s%d, v%d" % (vT1, sW1024, vT1))
        k.e("v_add_u32 v%d, 0x10000, v%d" % (vT1, vT1))
        for pr in range(4):
            k.e("s_lshl_b32 s44, s%d, 2" % sW)
            k.e("s_add_u32 s44, s44, %d" % pr)
            k.e("s_and_b32 s44, s44, 7")
            k.e("s_lshl_b32 s44, s44, 4")
            k.e("v_xor_b32 v%d, s44, v%d" % (160 + pr, vT0))
            k.e("v_xor_b32 v%d, s44, v%d" % (164 + pr, vT1))
        stamp(k, 5)
        k.vneed("X")
        stamp(k, 4)

        def allrows(fmt, *offs):
            for rr in R:
                k.e(fmt % tuple(B(rr) + o for o in offs))

        def xsum(o, t):
            for ctl in ("quad_perm:[1,0,3,2]", "quad_perm:[2,3,0,1]", "row_half_mirror", "row_mirror"):
                allrows("v_add_f32_dpp v%d, v%d, v%d " + ctl + " row_mask:0xf bank_mask:0xf", o, o, o)
            for sw_ in ("v_permlane16_swap_b32", "v_permlane32_swap_b32"):
                allrows("v_mov_b32 v%d, v%d", t, o)
                allrows(sw_ + " v%d, v%d", o, t)
                allrows("v_add_f32 v%d, v%d, v%d", o, o, t)
        for i in range(4):
            allrows("v_lshlrev_b32 v%d, 16, v%d", 2 * i, 10 + i)
            allrows("v_and_b32 v%d, 0xffff0000, v%d", 2 * i + 1, 10 + i)
        allrows("v_lshlrev_b32 v%d, 16, v%d", 8, 14)
        def pk(op, d, a, b, c=None, mods=""):
            for rr in R:
                x = B(rr)
                ops = [vr(x + d, 2), vr(x + a, 2), vr(x + b, 2)] + ([vr(x + c, 2)] if c is not None else [])
                k.e("%s %s%s" % (op, ", ".join(ops), mods))
        pk("v_pk_add_f32", 10, 0, 2)
        pk("v_pk_add_f32", 12, 4, 6)
        pk("v_pk_add_f32", 10, 10, 12)
        allrows("v_add_f32 v%d, v%d, v%d", 14, 10, 11)
        allrows("v_add_f32 v%d, v%d, v%d", 14, 14, 8)
        xsum(14, 15)
        allrows("v_mul_f32 v%%d, 0x%08x, v%%d" % f32bits(-1.0 / D), 14, 14)
        allrows("v_mov_b32 v%d, v%d", 15, 14)
        for e in range(0, 8, 2):
            pk("v_pk_add_f32", e, e, 14)
        allrows("v_add_f32 v%d, v%d, v%d", 8, 8, 14)
        pk("v_pk_mul_f32", 10, 0, 0)
        pk("v_pk_mul_f32", 12, 2, 2)
        pk("v_pk_fma_f32", 10, 4, 4, 10)
        pk("v_pk_fma_f32", 12, 6, 6, 12)
        pk("v_pk_add_f32", 10, 10, 12)
        allrows("v_add_f32 v%d, v%d, v%d", 14, 10, 11)
        allrows("v_fmac_f32 v%d, v%d, v%d", 14, 8, 8)
        xsum(14, 15)
        allrows("v_mov_b32 v%%d, 0x%08x" % f32bits(1e-5), 15)
        allrows("v_fmac_f32 v%%d, 0x%08x, v%%d" % f32bits(1.0 / D), 15, 14)
        allrows("v_rsq_f32 v%d, v%d", 14, 15)
        allrows("v_mov_b32 v%d, v%d", 15, 14)
        for e in range(0, 8, 2):
            pk("v_pk_mul_f32", e, e, 14)
        allrows("v_mul_f32 v%d, v%d, v%d", 8, 8, 14)
        for i in range(4):
            allrows("v_cvt_pk_bf16_f32 v%d, v%d, v%d", 10 + i, 2 * i, 2 * i + 1)
        allrows("v_cvt_pk_bf16_f32 v%d, v%d, v%d", 14, 8, 8)
        stamp(k, 6)
        for rr in R:
            k.e("ds_write_b64 v%d, %s offset:%d" % (160 + rr // 2, vr(B(rr) + 10, 2), rr * 128))
            k.e("ds_write_b64 v%d, %s offset:%d" % (160 + rr // 2, vr(B(rr) + 12, 2), rr * 128 + 32768))
            k.e("ds_write_b16 v%d, v%d offset:%d" % (164 + rr // 2, B(rr) + 14, rr * 128))
        k.e("s_waitcnt lgkmcnt(0)")
    k.vneed("D0")
    k.e("s_barrier")
    stamp(k, 2)

    ljoin = k.newlabel("LJ")
    lg1 = k.newlabel("LG")
    k.e("s_cmp_ge_u32 s%d, 4" % sW)
    k.e("s_cbranch_scc1 %s" % lg1)
    vm_save = list(k.vm)
    for gi, tiles in enumerate(groups):
        if gi:
            k.label(lg1)
            k.vm = list(vm_save)
        nt = len(tiles)
        W = int(nt * Wmul + 0.5)
        vA = {(j, i): vAbase + 4 * (ti * NFR + i) for ti, j in enumerate(tiles) for i in range(NFR)}

        def rd_m(stg, ks, j, reg, tag):
            b = stg % NBUF
            if mmode == 'row':
                k.lds("ds_read_b128 %s, v%d offset:%d" % (vr(reg), vRM[b][ks], j * 2048), tag)
            else:
                o = ks * 9216 + j * 32
                k.lds("ds_read_b64_tr_b16 %s, v%d offset:%d" % (vr(reg, 2), vRM[b][0], o), tag)
                k.lds("ds_read_b64_tr_b16 %s, v%d offset:%d" % (vr(reg + 2, 2), vRM[b][0], o + 2304), tag)

        def rd_n(stg, ks, i, reg, tag):
            if LNF:
                k.lds("ds_read_b128 %s, v%d offset:%d" % (vr(reg), vRN[stg // 8][ks], (stg % 8) * 8192), tag)
            else:
                k.lds("ds_read_b128 %s, v%d offset:%d" % (vr(reg), vRN[stg % NBUF][ks], i * (256 if kind == 'B2' else 2048)), tag)

        def ald():
            L = ["s_lshl_b32 s%d, s2, 3" % sTmp, "s_add_u32 s%d, s%d, s%d" % (sTmp, sTmp, sW), "s_lshl_b32 s%d, s%d, 12" % (sTmp, sTmp),
                 "v_lshl_add_u32 v%d, v%d, 6, s%d" % (vT0, vLane, sTmp)]
            for n in range(len(pf)):
                L.append("buffer_load_dword v%d, v%d, %s, 0 offen" % (vPF, vT0, sr(56 + 4 * n)))
            P = [("PF", L)] if pf else []
            return P

        pp = preset_pieces(k, sW, vLane, vT2, vPA, 72, sTmp, WSPO)

        def sx(t):
            return [pp[t]] if t < len(pp) else []

        engine(k, tiles, NFR, KS, NS, NBUF, W, NSET, int(OPT.get('tdelta', 1)), rd_m, rd_n, dma,
               lambda t, j, i: vA[(j, i)], lambda t, ks: t == 0 and ks == 0, vM, vN, sLoop,
               after_last_dma=ald if (pf and not (LNF and OPT.get('pfpos', 'end') != 'mid')) else None, stage_extra=None, n_static=LNF)
        k.e("s_nop 7")
        k.e("s_nop 3")
        stamp(k, 3)
        if kind in ('A2', 'B2'):
            store_native(k, tiles, lambda j, i: vA[(j, i)], vO, SRO, sTmp, 0, None, 28, (rcfg[0] + 1) & 1)
        else:
            k.e("s_mov_b32 s%d, 0" % sTmp)
            store_tiles_bf16(k, tiles, lambda j: vA[(j, 0)], vO, vO2, SRO, sTmp, "", 28, neg=47)
        if gi == 0:
            k.e("s_branch %s" % ljoin)
    k.label(ljoin)
    if LNF and pf and OPT.get('pfpos', 'end') == 'end':
        pf_emit()
    if rcfg:
        k.e("s_lshl_b32 s39, s36, 2")
        k.e("s_add_u32 s39, s39, s38")
        nv = r_tail(k, rcfg, 4, sW, vLane, 37, 39, NBUF * STB, WSP)
        nvgpr = max(nvgpr, nv)
    elif not LNF:
        stamp(k, 4)
    if not LNF:
        stamp(k, 6)
    stamp_store(k, kidx)
    footer(k, nvgpr, 100 if STAMP else 76)
    return k, nwg, 512, LDSB


def gen_b1(name, kidx=0, pf=()):
    k = K(name)
    nwg = 256
    NBUF, NS, KS = 2, 9, 2
    NTB = 256 * 128
    STB = NTB + 2 * MTB
    W = int(OPT.get('b1w', 12))
    vLane, vT0, vT1, vT2, vT3, vT4 = 1, 2, 3, 4, 5, 6
    vO = 7
    vDN = 8
    vDM = [9, 10, 11]
    vRN = [[12, 13], [14, 15]]
    vRM = [16, 17]
    nxt = 20
    vM = [nxt + 4 * j for j in range(W)]; nxt += 4 * W
    vN = [[nxt + 4 * (p * 2 + i) for i in range(2)] for p in range(2)]; nxt += 16
    vAbase = nxt
    nxt += 144
    vS4 = nxt
    nxt += 4
    vPF = nxt
    nxt += 1
    nvgpr = nxt
    assert nvgpr <= 256
    sW, sW1024, sW256, sKN, sKM, sTmp, sLoop = 28, 29, 30, 31, 32, 33, 40
    SRN, SRM, SRO = 12, [16, 20], 24
    if not PF:
        pf = ()
    header(k, nwg)
    stamp(k, 0, 1)
    k.e("s_load_dwordx2 s[4:5], s[0:1], %d" % KA_WS)
    k.e("s_load_dwordx4 s[8:11], s[0:1], %d" % KA_WG)
    for n, (ka, nb_) in enumerate(pf):
        k.e("s_load_dwordx2 s[%d:%d], s[0:1], %d" % (56 + 4 * n, 57 + 4 * n, ka))
    k.e("v_and_b32 v%d, 63, v0" % vLane)
    k.e("v_lshrrev_b32 v%d, 6, v0" % vT0)
    k.e("s_nop 0")
    k.e("v_readfirstlane_b32 s%d, v%d" % (sW, vT0))
    k.e("s_and_b32 s34, s2, 7")
    k.e("s_lshr_b32 s35, s2, 3")
    k.e("s_lshl_b32 s38, s34, 2")
    k.e("s_and_b32 s36, s35, 3")
    k.e("s_add_u32 s38, s38, s36")
    k.e("s_lshr_b32 s37, s35, 2")
    k.e("s_lshl_b32 s%d, s%d, 10" % (sW1024, sW))
    k.e("s_lshl_b32 s%d, s%d, 8" % (sW256, sW))
    k.e("v_lshrrev_b32 v%d, 3, v%d" % (vT0, vLane))
    k.e("s_lshl_b32 s%d, s%d, 3" % (sTmp, sW))
    k.e("v_add_u32 v%d, s%d, v%d" % (vT0, sTmp, vT0))
    k.e("v_bfe_u32 v%d, v%d, 1, 3" % (vT1, vT0))
    k.e("v_and_b32 v%d, 7, v%d" % (vT2, vLane))
    k.e("v_xor_b32 v%d, v%d, v%d" % (vT1, vT1, vT2))
    k.e("v_mul_u32_u24 v%d, 1152, v%d" % (vDN, vT0))
    k.e("v_lshl_add_u32 v%d, v%d, 4, v%d" % (vDN, vT1, vDN))
    for q in range(3):
        if q < 2:
            k.e("s_lshl_b32 s%d, s%d, 6" % (sTmp, sW))
            k.e("s_add_u32 s%d, s%d, %d" % (sTmp, sTmp, 512 * q))
        else:
            k.e("s_lshl_b32 s%d, s%d, 4" % (sTmp, sW))
            k.e("s_add_u32 s%d, s%d, 1024" % (sTmp, sTmp))
        tr_voff(k, vDM[q], sTmp, vLane, (vT0, vT1, vT2, vT3, vT4), 9216, 0x33)
    k.e("s_mov_b32 s%d, 0" % sKN)
    k.e("s_mov_b32 s%d, 0" % sKM)
    k.e("s_waitcnt lgkmcnt(0)")
    k.e("s_mul_i32 s44, s37, %d" % (256 * 1152))
    srd(k, SRN, 4, WS_XN, 44, WS_XN + XB)
    k.e("s_mul_i32 s44, s38, 288")
    srd(k, SRM[0], 8, 0, 44, D * F * 2)
    srd(k, SRM[1], 10, 0, 44, D * F * 2)

    def dma(stage):
        b = stage % NBUF
        tag = "D%d" % stage
        P = []
        for j in range(4):
            L = ["s_add_u32 m0, s%d, 0x%x" % (sW1024, b * STB + j * 8192)]
            if j:
                L.append("s_add_u32 s%d, s%d, 0x%x" % (sTmp, sKN, j * 64 * 1152))
                L.append("buffer_load_dwordx4 v%d, %s, s%d offen lds" % (vDN, sr(SRN), sTmp))
            else:
                L.append("s_nop 0")
                L.append("buffer_load_dwordx4 v%d, %s, s%d offen lds" % (vDN, sr(SRN), sKN))
            P.append((tag, L))
        for mat in range(2):
            mb_ = b * STB + NTB + mat * MTB
            for q in range(3):
                if q < 2:
                    L = ["s_add_u32 m0, s%d, 0x%x" % (sW1024, mb_ + q * 8192), "s_nop 0"]
                else:
                    L = ["s_add_u32 m0, s%d, 0x%x" % (sW256, mb_ + 16384), "s_mov_b64 exec, 0xffff"]
                L.append("buffer_load_dwordx4 v%d, %s, s%d offen lds" % (vDM[q], sr(SRM[mat]), sKM))
                if q == 2:
                    L.append("s_mov_b64 exec, -1")
                P.append((tag, L))
        P[-1] = (tag, P[-1][1] + ["s_add_u32 s%d, s%d, 128" % (sKN, sKN), "s_add_u32 s%d, s%d, 0x%x" % (sKM, sKM, 64 * 9216)])
        return P

    for stg in range(NBUF):
        for tag, L in dma(stg):
            for x in L:
                k.e(x, tag)
        if stg == 0:
            code_prefetch(k, sW, vLane, vT0, vPF, 72, sTmp)
    for n, (ka, nb_) in enumerate(pf):
        srd(k, 56 + 4 * n, 56 + 4 * n, 0, None, nb_)
    k.e("s_lshl_b32 s%d, s%d, 12" % (sTmp, sW))
    k.e("v_and_b32 v%d, 15, v%d" % (vT0, vLane))
    k.e("v_lshrrev_b32 v%d, 4, v%d" % (vT1, vLane))
    k.e("v_bfe_u32 v%d, v%d, 1, 3" % (vT2, vLane))
    k.e("v_xor_b32 v%d, v%d, v%d" % (vT2, vT1, vT2))
    k.e("v_lshlrev_b32 v%d, 4, v%d" % (vT2, vT2))
    k.e("v_lshl_add_u32 v%d, v%d, 7, v%d" % (vT2, vT0, vT2))
    k.e("v_add_u32 v%d, s%d, v%d" % (vT3, sTmp, vT2))
    for b in range(NBUF):
        k.e("v_add_u32 v%d, 0x%x, v%d" % (vRN[b][0], b * STB, vT3))
        k.e("v_xor_b32 v%d, 64, v%d" % (vRN[b][1], vRN[b][0]))
    tr_raddr(k, vT2, vLane, vT3)
    for b in range(NBUF):
        k.e("v_add_u32 v%d, 0x%x, v%d" % (vRM[b], b * STB + NTB, vT2))
    k.e("s_lshl_b32 s44, s37, 3")
    k.e("s_add_u32 s44, s44, s%d" % sW)
    k.e("s_mul_i32 s44, s44, 288")
    k.e("s_mul_i32 s46, s38, 9")
    k.e("s_add_u32 s44, s44, s46")
    k.e("s_lshl_b32 s44, s44, 10")
    srd(k, SRO, 4, WS_H, 44, WS_H + HB)
    k.e("v_lshlrev_b32 v%d, 4, v%d" % (vO, vLane))
    k.e("s_mov_b32 s46, 0x%08x" % f32bits(-1.4426950408889634))
    stamp(k, 1)
    k.vneed("D0")
    k.e("s_barrier")
    stamp(k, 2)
    tiles = [(m, j) for j in range(9) for m in range(2)]
    vA = {(t, i): vAbase + 4 * (ti * 2 + i) for ti, t in enumerate(tiles) for i in range(2)}

    def rd_m(stg, ks, t, reg, tag):
        o = t[0] * MTB + ks * 9216 + t[1] * 32
        k.lds("ds_read_b64_tr_b16 %s, v%d offset:%d" % (vr(reg, 2), vRM[stg % NBUF], o), tag)
        k.lds("ds_read_b64_tr_b16 %s, v%d offset:%d" % (vr(reg + 2, 2), vRM[stg % NBUF], o + 2304), tag)

    def rd_n(stg, ks, i, reg, tag):
        k.lds("ds_read_b128 %s, v%d offset:%d" % (vr(reg), vRN[stg % NBUF][ks], i * 2048), tag)

    def ald():
        L = ["s_lshl_b32 s%d, s2, 3" % sTmp, "s_add_u32 s%d, s%d, s%d" % (sTmp, sTmp, sW), "s_lshl_b32 s%d, s%d, 12" % (sTmp, sTmp),
             "v_lshl_add_u32 v%d, v%d, 6, s%d" % (vT0, vLane, sTmp)]
        for n in range(len(pf)):
            L.append("buffer_load_dword v%d, v%d, %s, 0 offen" % (vPF, vT0, sr(56 + 4 * n)))
        return [("PF", L)]

    engine(k, tiles, 2, KS, NS, NBUF, W, 2, int(OPT.get('delta', 3)), rd_m, rd_n, dma,
           lambda t, tl, i: vA[(tl, i)], lambda t, ks: t == 0 and ks == 0, vM, vN, sLoop,
           after_last_dma=ald if pf else None)
    k.e("s_nop 7")
    k.e("s_nop 3")
    stamp(k, 3)
    TB = 20
    for j in range(9):
        o = TB + 4 * (j % 4)
        for i in range(2):
            g = vA[((0, j), i)]
            u_ = vA[((1, j), i)]
            for r in range(4):
                k.e("v_mul_f32 v%d, s46, v%d" % (g + r, g + r))
            for r in range(4):
                k.e("v_exp_f32 v%d, v%d" % (g + r, g + r))
            for r in range(4):
                k.e("v_add_f32 v%d, 1.0, v%d" % (g + r, g + r))
            for r in range(4):
                k.e("v_rcp_f32 v%d, v%d" % (g + r, g + r))
            for r in range(4):
                k.e("v_mul_f32 v%d, v%d, v%d" % (g + r, g + r, u_ + r))
            k.e("v_cvt_pk_bf16_f32 v%d, v%d, v%d" % (o + 2 * i, g, g + 1))
            k.e("v_cvt_pk_bf16_f32 v%d, v%d, v%d" % (o + 2 * i + 1, g + 2, g + 3))
        if j % 4 == 0:
            k.e("s_mov_b32 s%d, %d" % (sTmp, j * 1024))
        else:
            k.e("s_nop 0")
        k.e("s_nop 0")
        k.e("v_permlane16_swap_b32 v%d, v%d" % (o, o + 2))
        k.e("v_permlane16_swap_b32 v%d, v%d" % (o + 1, o + 3))
        k.e("s_nop 0")
        k.e("buffer_store_dwordx4 %s, v%d, %s, s%d offen offset:%d" % (vr(o), vO, sr(SRO), sTmp, (j % 4) * 1024))
    stamp(k, 4)
    stamp_store(k, kidx)
    footer(k, nvgpr, 100 if STAMP else 76)
    return k, nwg, 512, NBUF * STB


def main():
    ks = {}
    ks['a1'] = gen_gemm(MAIN + "_kernel", 'A1L', None, 0, pf=((KA_CR, S * S * 2), (KA_CI, S * S * 2), (KA_WG, D * F * 2), (KA_WU, D * F * 2)))
    ks['a2r1'] = gen_gemm("a2r1_kernel", 'A2', (0, ('in', KA_X), ('ws', WS_X1), True), 1, pf=((KA_WD, D * F * 2),))
    ks['b1'] = gen_b1("b1n_kernel", 2)
    ks['b2r1'] = gen_gemm("b2n1_kernel", 'B2', (1, ('ws', WS_X1), ('ws', WS_X2), True), 3)
    ks['a1b'] = gen_gemm("a1b_kernel", 'A1', None, 4)
    ks['a2r2'] = gen_gemm("a2r2_kernel", 'A2', (2, ('ws', WS_X2), ('ws', WS_X1), True), 5)
    ks['b2r2'] = gen_gemm("b2n2_kernel", 'B2', (3, ('ws', WS_X1), ('out', 0), False), 7)
    order = ['a1', 'a2r1', 'b1', 'b2r1', 'a1b', 'a2r2', 'b1', 'b2r2']
    if STAMP:
        ks['b1b'] = gen_b1("b1nb_kernel", 6)
        order[6] = 'b1b'
    out = ["; FNet (DFT matmul) + GLU interleaved layers; generated by gen3.py"]
    for n in order:
        kk, nwg, blk, lds = ks[n]
        out.append("; @launch kernel=%s grid=(%d,1,1) block=(%d,1,1) lds=%d" % (kk.name, nwg, blk, lds))
    out.append('.amdgcn_target "amdgcn-amd-amdhsa--gfx950"')
    out.append(".text")
    for n, (kk, nwg, blk, lds) in ks.items():
        out.append(".globl %s" % kk.name)
        out += kk.lines
    open(sys.argv[1] if len(sys.argv) > 1 else "cdna_kernels/%s.s" % MAIN, "w").write("\n".join(out) + "\n")


if __name__ == "__main__":
    main()
```

```python
import sys, os, struct
OPT = dict(x.split('=') for x in os.environ.get('GENOPT', '').split(',') if x)
STAMP = int(OPT.get('stamp', 0))
PF = int(OPT.get('pf', 1))
STF = {'': '', 'sc1': ' sc1', 'nt': ' nt', 'sc01': ' sc0 sc1'}[OPT.get('stf', 'sc01')]
XF = {'sc1': ' sc1', 'sc01': ' sc0 sc1'}[OPT.get('xf', 'sc01')]

LF = {'x': XF, 'p': '', 'sc1': ' sc1', 'nt': ' nt'}[OPT.get('lf', 'x')]
MAIN = "interleave_layers__spectral_fnet__glu_gated_glu__prompt"
S, D, F = 2048, 576, 4608
KA_X, KA_CR, KA_CI, KA_WR, KA_WI, KA_BX, KA_WG, KA_WU, KA_WD, KA_OUT, KA_DBG, KA_WS = [8 * i for i in range(12)]
WS_XN = 0x0000000
WS_X1 = 0x0400000
WS_X2 = 0x0800000
WS_AB = 0x0C00000
WS_FL = 0x1200000
WS_P = 0x1400000
WS_P2 = 0x1E00000
WS_H = 0x3000000
HB = S * F * 2
WS_DBG = 0x8000000
XB = S * D * 2
MTB = 18432


def f32bits(x):
    return struct.unpack("<I", struct.pack("<f", x))[0]


class K:
    def __init__(self, name):
        self.name = name
        self.lines = []
        self.pend = []
        self.vm = []
        self.nlab = 0

    def e(self, s, vtag=None):
        if s.startswith('buffer_store') and ' sc' not in s:
            s += STF
        if s.startswith('buffer_') or s.startswith('global_'):
            self.vm.append(vtag)
        self.lines.append("    " + s)

    def label(self, l):
        self.lines.append(l + ":")

    def newlabel(self, p="L"):
        self.nlab += 1
        return "%s_%s_%d" % (p, self.name[-12:], self.nlab)

    def lds(self, s, tag):
        if OPT.get('nolds') and tag[0] in OPT.get('nolds'):
            return
        if len(self.pend) >= 15:
            self.e("s_waitcnt lgkmcnt(13)")
            self.pend = self.pend[-13:]
        self.e(s)
        self.pend.append(tag)

    def need(self, *tags):
        idx = -1
        for i, p in enumerate(self.pend):
            if p in tags:
                idx = i
        if idx < 0:
            return
        n = min(len(self.pend) - 1 - idx, 14)
        self.e("s_waitcnt lgkmcnt(%d)" % n)
        self.pend = self.pend[len(self.pend) - n:] if n else []

    def vneed(self, tag, lgkm0=False):
        idx = -1
        for i, p in enumerate(self.vm):
            if p == tag:
                idx = i
        extra = " lgkmcnt(0)" if lgkm0 else ""
        if lgkm0:
            self.pend = []
        if idx < 0:
            if lgkm0:
                self.e("s_waitcnt lgkmcnt(0)")
            return
        n = len(self.vm) - 1 - idx
        assert n < 63
        self.e("s_waitcnt vmcnt(%d)%s" % (n, extra))
        self.vm = self.vm[len(self.vm) - n:] if n else []

    def vm0(self):
        self.e("s_waitcnt vmcnt(0)")
        self.vm = []


def vr(b, n=4):
    return "v[%d:%d]" % (b, b + n - 1)


def sr(b, n=4):
    return "s[%d:%d]" % (b, b + n - 1)


def header(k, nwg):
    k.lines.append(".p2align 8")
    k.lines.append(".type %s,@function" % k.name)
    k.label(k.name)
    k.e("s_cmp_ge_u32 s2, %d" % nwg)
    k.e("s_cbranch_scc1 L_end_%s" % k.name)


def footer(k, nvgpr, nsgpr=64):
    k.label("L_end_%s" % k.name)
    k.e("s_endpgm")
    acc = (nvgpr + 3) // 4 * 4
    k.lines.append(""".section .rodata,"a"
.p2align 6
.amdhsa_kernel %s
  .amdhsa_next_free_vgpr %d
  .amdhsa_next_free_sgpr %d
  .amdhsa_accum_offset %d
  .amdhsa_group_segment_fixed_size 0
  .amdhsa_kernarg_size 96
  .amdhsa_user_sgpr_count 2
  .amdhsa_user_sgpr_kernarg_segment_ptr 1
  .amdhsa_system_sgpr_workgroup_id_x 1
.end_amdhsa_kernel
.text""" % (k.name, nvgpr, nsgpr, acc))


def srd(k, d, pbase, off_const, off_sgpr, total):
    k.e("s_add_u32 s%d, s%d, 0x%x" % (d, pbase, off_const))
    k.e("s_addc_u32 s%d, s%d, 0" % (d + 1, pbase + 1))
    if off_sgpr is None:
        k.e("s_mov_b32 s%d, 0x%x" % (d + 2, total - off_const))
    else:
        k.e("s_add_u32 s%d, s%d, s%d" % (d, d, off_sgpr))
        k.e("s_addc_u32 s%d, s%d, 0" % (d + 1, d + 1))
        k.e("s_sub_u32 s%d, 0x%x, s%d" % (d + 2, total - off_const, off_sgpr))
    k.e("s_and_b32 s%d, s%d, 0xffff" % (d + 1, d + 1))
    k.e("s_mov_b32 s%d, 0x20000" % (d + 3))


SB = 76


def stamp(k, idx, real=0):
    if not STAMP or (STAMP == 2 and not real):
        return
    k.e("s_memtime s[%d:%d]" % (SB + 2 * idx, SB + 1 + 2 * idx))
    if real:
        k.e("s_memrealtime s[%d:%d]" % (SB + 16 + 2 * real - 2, SB + 17 + 2 * real - 2))
    k.e("s_waitcnt lgkmcnt(0)")
    k.pend = []


def stamp_store(k, kidx):
    if not STAMP:
        return
    k.vm0()
    stamp(k, 7, 2)
    if STAMP == 2:
        k.e("s_cmp_lg_u32 s2, 100")
        k.e("s_cbranch_scc1 L_end_%s" % k.name)
        k.e("s_load_dwordx2 s[24:25], s[0:1], %d" % KA_DBG)
        k.e("s_waitcnt lgkmcnt(0)")
        k.e("s_add_u32 s24, s24, %d" % ((7 - kidx) * 512 + kidx * 8))
        k.e("s_addc_u32 s25, s25, 0")
        k.e("s_and_b32 s25, s25, 0xffff")
        k.e("s_mov_b32 s26, 8")
        k.e("s_mov_b32 s27, 0x20000")
        k.e("v_cmp_eq_u32 vcc, 0, v0")
        k.e("s_and_saveexec_b64 s[46:47], vcc")
        k.e("s_cbranch_execz L_end_%s" % k.name)
        k.e("v_mov_b32 v1, 0")
        k.e("v_mov_b32 v2, s%d" % (SB + 16))
        k.e("v_mov_b32 v3, s%d" % (SB + 18))
        k.e("buffer_store_dwordx2 v[2:3], v1, s[24:27], 0 offen")
        return
    k.e("s_lshl_b32 s44, s2, 7")
    k.e("s_add_u32 s44, s44, 0x%x" % (kidx * 65536))
    srd(k, 24, 4, WS_DBG, 44, WS_DBG + 16 * 65536)
    k.e("v_cmp_eq_u32 vcc, 0, v0")
    k.e("s_and_saveexec_b64 s[46:47], vcc")
    k.e("s_cbranch_execz L_end_%s" % k.name)
    k.e("v_mov_b32 v1, 0")
    for i in range(10):
        k.e("v_mov_b32 v2, s%d" % (SB + 2 * i))
        k.e("v_mov_b32 v3, s%d" % (SB + 1 + 2 * i))
        k.e("buffer_store_dwordx2 v[2:3], v1, s[24:27], 0 offen offset:%d" % (8 * i))
        k.e("s_nop 1")


def code_prefetch(k, sW, vLane, vA_, vD, SR, sTmp):
    if not int(OPT.get('cpf', 1)):
        return
    lab = k.newlabel("LPC")
    k.e("s_getpc_b64 s[%d:%d]" % (SR, SR + 1))
    k.label(lab)
    k.e("s_sub_u32 s%d, s%d, %s-%s" % (SR, SR, lab, k.name))
    k.e("s_subb_u32 s%d, s%d, 0" % (SR + 1, SR + 1))
    k.e("s_and_b32 s%d, s%d, 0xffff" % (SR + 1, SR + 1))
    k.e("s_mov_b32 s%d, L_end_%s-%s" % (SR + 2, k.name, k.name))
    k.e("s_mov_b32 s%d, 0x20000" % (SR + 3))
    k.e("s_lshl_b32 s%d, s%d, 13" % (sTmp, sW))
    k.e("v_lshl_add_u32 v%d, v%d, 7, s%d" % (vA_, vLane, sTmp))
    k.e("buffer_load_dword v%d, v%d, %s, 0 offen" % (vD, vA_, sr(SR)), "C")


def wave_sum(k, v, sbase):
    for ctl in ("quad_perm:[1,0,3,2]", "quad_perm:[2,3,0,1]", "row_half_mirror", "row_mirror"):
        k.e("s_nop 1")
        k.e("v_add_f32_dpp %s, %s, %s %s row_mask:0xf bank_mask:0xf" % (v, v, v, ctl))
    k.e("s_nop 1")
    for i in range(4):
        k.e("v_readlane_b32 s%d, %s, %d" % (sbase + i, v, 16 * i))
    k.e("s_nop 1")
    k.e("v_mov_b32 %s, s%d" % (v, sbase))
    for i in range(1, 4):
        k.e("v_add_f32 %s, s%d, %s" % (v, sbase + i, v))


def r_body(k, vrow, vlane, ysrc, has_xout, ln, SX, SO, SN, hook=None):
    k.e("v_mul_u32_u24 v4, 1152, v%d" % vrow)
    k.e("v_lshl_add_u32 v7, v%d, 3, v4" % vlane)
    k.e("v_lshl_add_u32 v8, v%d, 1, v4" % vlane)
    k.e("buffer_load_dwordx2 v[10:11], v7, %s, 0 offen" % sr(SX), "X")
    k.e("buffer_load_dwordx2 v[12:13], v7, %s, 0 offen offset:512" % sr(SX), "X")
    k.e("buffer_load_ushort v14, v8, %s, 0 offen offset:1024" % sr(SX), "X")
    if hook:
        hook()
    X = 30
    A = 16
    if ysrc:
        ysrc()
    k.vneed("X")
    for i, src in enumerate([10, 11, 12, 13]):
        k.e("v_lshlrev_b32 v%d, 16, v%d" % (X + 2 * i, src))
        k.e("v_and_b32 v%d, 0xffff0000, v%d" % (X + 2 * i + 1, src))
    k.e("v_lshlrev_b32 v%d, 16, v14" % (X + 8))
    if ysrc:
        for e in range(9):
            k.e("v_add_f32 v%d, v%d, v%d" % (X + e, X + e, A + e))
        for i in range(4):
            k.e("v_cvt_pk_bf16_f32 v%d, v%d, v%d" % (10 + i, X + 2 * i, X + 2 * i + 1))
        k.e("v_cvt_pk_bf16_f32 v14, v%d, v%d" % (X + 8, X + 8))
        if has_xout:
            k.e("buffer_store_dwordx2 v[10:11], v7, %s, 0 offen" % sr(SO))
            k.e("buffer_store_dwordx2 v[12:13], v7, %s, 0 offen offset:512" % sr(SO))
            k.e("buffer_store_short v14, v8, %s, 0 offen offset:1024" % sr(SO))
        if ln:
            for i, src in enumerate([10, 11, 12, 13]):
                k.e("v_lshlrev_b32 v%d, 16, v%d" % (X + 2 * i, src))
                k.e("v_and_b32 v%d, 0xffff0000, v%d" % (X + 2 * i + 1, src))
            k.e("v_lshlrev_b32 v%d, 16, v14" % (X + 8))
    if ln:
        k.e("v_add_f32 v20, v%d, v%d" % (X, X + 1))
        k.e("v_add_f32 v21, v%d, v%d" % (X + 2, X + 3))
        k.e("v_add_f32 v22, v%d, v%d" % (X + 4, X + 5))
        k.e("v_add_f32 v23, v%d, v%d" % (X + 6, X + 7))
        k.e("v_add_f32 v20, v20, v21")
        k.e("v_add_f32 v22, v22, v23")
        k.e("v_add_f32 v20, v20, v%d" % (X + 8))
        k.e("v_add_f32 v20, v20, v22")
        wave_sum(k, "v20", 32)
        k.e("v_mul_f32 v20, 0x%08x, v20" % f32bits(1.0 / D))
        for e in range(9):
            k.e("v_sub_f32 v%d, v%d, v20" % (X + e, X + e))
        k.e("v_mul_f32 v21, v%d, v%d" % (X, X))
        k.e("v_mul_f32 v22, v%d, v%d" % (X + 1, X + 1))
        for e in range(2, 9):
            k.e("v_fmac_f32 v%d, v%d, v%d" % (21 + (e & 1), X + e, X + e))
        k.e("v_add_f32 v21, v21, v22")
        wave_sum(k, "v21", 32)
        k.e("v_mov_b32 v22, 0x%08x" % f32bits(1e-5))
        k.e("v_fmac_f32 v22, 0x%08x, v21" % f32bits(1.0 / D))
        k.e("v_rsq_f32 v22, v22")
        k.e("s_nop 0")
        for e in range(9):
            k.e("v_mul_f32 v%d, v%d, v22" % (X + e, X + e))
        for i in range(4):
            k.e("v_cvt_pk_bf16_f32 v%d, v%d, v%d" % (24 + i, X + 2 * i, X + 2 * i + 1))
        k.e("v_cvt_pk_bf16_f32 v28, v%d, v%d" % (X + 8, X + 8))
        k.e("buffer_store_dwordx2 v[24:25], v7, %s, 0 offen" % sr(SN))
        k.e("buffer_store_dwordx2 v[26:27], v7, %s, 0 offen offset:512" % sr(SN))
        k.e("buffer_store_short v28, v8, %s, 0 offen offset:1024" % sr(SN))


def gen_r0(name):
    k = K(name)
    nwg = S // 4
    header(k, nwg)
    k.e("s_load_dwordx2 s[4:5], s[0:1], %d" % KA_WS)
    k.e("s_load_dwordx2 s[6:7], s[0:1], %d" % KA_X)
    pf = [(KA_WR, D * D * 2), (KA_WI, D * D * 2), (KA_CR, S * S * 2), (KA_CI, S * S * 2)] if PF else []
    for n, (ka, nb_) in enumerate(pf):
        k.e("s_load_dwordx2 s[%d:%d], s[0:1], %d" % (40 + 4 * n, 41 + 4 * n, ka))
    k.e("v_lshrrev_b32 v1, 6, v0")
    k.e("v_and_b32 v2, 63, v0")
    k.e("s_lshl_b32 s3, s2, 2")
    k.e("v_add_u32 v1, s3, v1")
    k.e("s_waitcnt lgkmcnt(0)")
    srd(k, 12, 6, 0, None, XB)
    srd(k, 24, 4, WS_XN, None, WS_XN + XB)
    for n, (ka, nb_) in enumerate(pf):
        srd(k, 40 + 4 * n, 40 + 4 * n, 0, None, nb_)
    k.e("s_mul_i32 s3, s2, 18432")
    srd(k, 16, 4, WS_P, 3, WS_P + 4 * XB)
    k.e("s_mov_b32 s18, 18432")
    k.e("v_lshrrev_b32 v3, 6, v0")
    k.e("v_mul_u32_u24 v3, 5120, v3")
    k.e("v_lshl_add_u32 v3, v2, 4, v3")
    for r in range(4):
        k.e("v_mov_b32 v%d, 0" % (36 + r))
    for n in range(4):
        k.e("buffer_store_dwordx4 v[36:39], v3, s[16:19], 0 offen offset:%d" % (n * 1024))
    k.e("s_mov_b32 s3, 4096")
    k.e("buffer_store_dwordx4 v[36:39], v3, s[16:19], s3 offen")

    def hook():
        if pf:
            k.e("v_lshlrev_b32 v42, 12, v1")
            k.e("v_lshl_add_u32 v42, v2, 6, v42")
            for n in range(len(pf)):
                k.e("buffer_load_dword v43, v42, %s, 0 offen" % sr(40 + 4 * n))
    r_body(k, 1, 2, None, False, True, 12, None, 24, hook=hook)
    footer(k, 44, 60)
    return k, nwg, 256, 0


def engine(k, tiles, NFR, KS, NS, NBUF, W, NSET, DELTA, rd_m, rd_n, dma, acc, first, vM, vN, sLoop,
           n_static=False, after_use=None, after_last_dma=None, npre=None, stage_extra=None):
    nt = len(tiles)
    UPS = KS * nt
    total = NS * UPS
    NSL = W
    W = W - int(OPT.get('lag', 2))
    st = {'nrM': 0, 'nrN': 0, 'pub': 0, 'ald': False}
    k.pend = []

    BUD = int(OPT.get('bud', 3))

    def pump(udone, maxm=2):
        bud = BUD if maxm < 50 else 999
        while bud > 0:
            f = st['nrN']
            s_ = f // NFR
            okN = s_ < NS * KS and (n_static or s_ // KS <= st['pub']) and s_ - NSET < udone // nt
            u = st['nrM']
            okM = u < total and u // UPS <= st['pub'] and u - W < udone
            if okN and (not okM or s_ * nt <= u):
                rd_n(s_ // KS, s_ % KS, f % NFR, vN[s_ % NSET][f % NFR], "N%d" % (s_ % NSET))
                st['nrN'] += 1
                bud -= 1
            elif okM:
                stg, rem = divmod(u, UPS)
                ks, ti = divmod(rem, nt)
                rd_m(stg, ks, tiles[ti], vM[u % NSL], "M%d" % (u % NSL))
                st['nrM'] += 1
                bud -= 2
            else:
                break

    pump(0, maxm=99)
    pre = k.lines
    k.lines = []
    blocks = []
    pos = max(1, min(UPS, UPS - W + DELTA))
    for t in range(NS):
        last = (t == NS - 1)
        extras = []
        for r in range(UPS):
            u = t * UPS + r
            ks, ti = divmod(r, nt)
            s = t * KS + ks
            k.need("M%d" % (u % NSL), "N%d" % (s % NSET))
            for i in range(NFR):
                a = acc(t, tiles[ti], i)
                c = "0" if first(t, ks) else vr(a)
                if not (OPT.get('nomfma') and t > 0):
                    k.e("v_mfma_f32_16x16x32_bf16 %s, %s, %s, %s" % (vr(a), vr(vM[u % NSL]), vr(vN[s % NSET][i]), c))
            if not last and r + 1 == pos:
                assert st['nrM'] == (t + 1) * UPS, (st, t)
                assert n_static or st['nrN'] >= (t + 1) * KS * NFR, (st, t)
                k.vneed("D%d" % (t + 1), lgkm0=True)
                k.e("s_barrier")
                st['pub'] = t + 1
                if t + NBUF < NS:
                    extras = dma(t + NBUF)
                    if OPT.get('nodma'):
                        extras = [(tg, [x for x in L if not x.startswith('buffer_load')]) for tg, L in extras]
                    if OPT.get('dropdma'):
                        pat = {'n': 'v8,', 'm': ('v9,', 'v10,', 'v11,'), 'q': 'v11,'}[OPT['dropdma']]
                        pats = pat if isinstance(pat, tuple) else (pat,)
                        extras = [(tg, [x for x in L if not (x.startswith('buffer_load') and any(p in x for p in pats))]) for tg, L in extras]
                elif after_last_dma and not st['ald']:
                    st['ald'] = True
                    extras = after_last_dma()
                if stage_extra:
                    extras = extras + stage_extra(t)
            pump(u + 1)
            if after_use:
                after_use(t, r)
            if extras:
                left = UPS - r
                n = (len(extras) + left - 1) // left
                for _ in range(n):
                    tag, L = extras.pop(0)
                    for x in L:
                        k.e(x, tag)
        assert not extras
        blocks.append(k.lines)
        k.lines = []
    best = None
    for U in (1, 2, 3, 4, 6):
        for a in range(NS):
            bnd = a + U
            while bnd + U <= NS and all(blocks[bnd + x] == blocks[a + x] for x in range(U)):
                bnd += U
            cnt = (bnd - a) // U
            if cnt >= 2 and (best is None or (cnt - 1) * U > (best[2] - 1) * best[3]):
                best = (a, bnd, cnt, U)
    out = pre
    if best is None:
        for bl in blocks:
            out += bl
    else:
        a, bnd, cnt, U = best
        for bl in blocks[:a]:
            out += bl
        lab = k.newlabel("LP")
        out.append("    s_mov_b32 s%d, %d" % (sLoop, cnt))
        out.append(lab + ":")
        for bl in blocks[a:a + U]:
            out += bl
        out.append("    s_sub_u32 s%d, s%d, 1" % (sLoop, sLoop))
        out.append("    s_cmp_lg_u32 s%d, 0" % sLoop)
        out.append("    s_cbranch_scc1 %s" % lab)
        for bl in blocks[bnd:]:
            out += bl
    k.lines = out


def tr_voff(k, vdst, sslot, vLane, T, stride, posmask):
    t0, t1, t2, t3, t4 = T
    k.e("v_add_u32 v%d, s%d, v%d" % (t0, sslot, vLane))
    k.e("v_mul_u32_u24 v%d, 3641, v%d" % (t1, t0))
    k.e("v_lshrrev_b32 v%d, 16, v%d" % (t1, t1))
    k.e("v_mul_u32_u24 v%d, 18, v%d" % (t2, t1))
    k.e("v_sub_u32 v%d, v%d, v%d" % (t2, t0, t2))
    k.e("v_and_b32 v%d, 0x%x, v%d" % (t3, posmask, t1))
    k.e("v_and_b32 v%d, 4, v%d" % (t4, t1))
    k.e("v_lshl_or_b32 v%d, v%d, 1, v%d" % (t3, t4, t3))
    k.e("v_and_b32 v%d, 8, v%d" % (t4, t1))
    k.e("v_lshrrev_b32 v%d, 1, v%d" % (t4, t4))
    k.e("v_or_b32 v%d, v%d, v%d" % (t3, t3, t4))
    k.e("v_mul_u32_u24 v%d, %d, v%d" % (vdst, stride, t3))
    k.e("v_lshl_add_u32 v%d, v%d, 4, v%d" % (vdst, t2, vdst))


def tr_raddr(k, vdst, vLane, t):
    k.e("v_lshrrev_b32 v%d, 5, v%d" % (vdst, vLane))
    k.e("v_lshlrev_b32 v%d, 4, v%d" % (vdst, vdst))
    k.e("v_bfe_u32 v%d, v%d, 4, 1" % (t, vLane))
    k.e("v_lshl_add_u32 v%d, v%d, 2, v%d" % (vdst, t, vdst))
    k.e("v_bfe_u32 v%d, v%d, 2, 2" % (t, vLane))
    k.e("v_add_u32 v%d, v%d, v%d" % (vdst, vdst, t))
    k.e("v_mul_u32_u24 v%d, 288, v%d" % (vdst, vdst))
    k.e("v_and_b32 v%d, 3, v%d" % (t, vLane))
    k.e("v_lshl_add_u32 v%d, v%d, 3, v%d" % (vdst, t, vdst))


def store_tiles_bf16(k, js, accf, vO, vO2, SRO, soff, sfl, TB, neg=None, colbase=0):
    idx = 0
    slot = 0
    while idx < len(js):
        pr = js[idx:idx + 2]
        if len(pr) == 2 and pr[1] != pr[0] + 1:
            pr = pr[:1]
        o = TB + 4 * (slot % 4)
        for n_, j in enumerate(pr):
            a = accf(j)
            k.e("v_cvt_pk_bf16_f32 v%d, v%d, v%d" % (o + 2 * n_, a, a + 1))
            k.e("v_cvt_pk_bf16_f32 v%d, v%d, v%d" % (o + 2 * n_ + 1, a + 2, a + 3))
            if neg is not None:
                k.e("v_xor_b32 v%d, s%d, v%d" % (o + 2 * n_, neg, o + 2 * n_))
                k.e("v_xor_b32 v%d, s%d, v%d" % (o + 2 * n_ + 1, neg, o + 2 * n_ + 1))
        if len(pr) == 2:
            k.e("s_nop 1")
            k.e("v_permlane16_swap_b32 v%d, v%d" % (o, o + 2))
            k.e("v_permlane16_swap_b32 v%d, v%d" % (o + 1, o + 3))
            k.e("s_nop 0")
            k.e("buffer_store_dwordx4 %s, v%d, %s, s%d offen offset:%d%s" % (vr(o), vO, sr(SRO), soff, colbase + pr[0] * 32, sfl))
        else:
            k.e("buffer_store_dwordx2 %s, v%d, %s, s%d offen offset:%d%s" % (vr(o, 2), vO2, sr(SRO), soff, colbase + pr[0] * 32, sfl))
        idx += len(pr)
        slot += 1


PREG = 36864


def store_native(k, tiles, accf, vP, SRO, sTmp, blk0, sblk, TB, par):
    for n, j in enumerate(tiles):
        o = TB + 4 * (n % 4)
        for i in range(2):
            a = accf(j, i)
            if par:
                k.e("v_and_b32 v%d, 0xfffe0000, v%d" % (a, a))
                k.e("v_or_b32 v%d, 0x10000, v%d" % (a, a))
            else:
                k.e("v_add_u32 v%d, 0x10000, v%d" % (a, a))
                k.e("v_and_b32 v%d, 0xfffe0000, v%d" % (a, a))
            k.e("v_cvt_pk_bf16_f32 v%d, v%d, v%d" % (o + 2 * i, a, a + 1))
            k.e("v_cvt_pk_bf16_f32 v%d, v%d, v%d" % (o + 2 * i + 1, a + 2, a + 3))
            k.e(("v_or_b32 v%d, 1, v%d" if par else "v_and_b32 v%d, -2, v%d") % (o + 2 * i, o + 2 * i))
        if n % 4 == 0:
            if sblk is None:
                k.e("s_mov_b32 s%d, %d" % (sTmp, (blk0 + j) * 1024))
            else:
                k.e("s_add_u32 s%d, s%d, %d" % (sTmp, sblk, (blk0 + j) * 1024))
        else:
            k.e("s_nop 0")
        k.e("s_nop 0")
        k.e("v_permlane16_swap_b32 v%d, v%d" % (o, o + 2))
        k.e("v_permlane16_swap_b32 v%d, v%d" % (o + 1, o + 3))
        k.e("s_nop 0")
        k.e("buffer_store_dwordx4 %s, v%d, %s, s%d offen offset:%d%s" % (vr(o), vP, sr(SRO), sTmp, (n % 4) * 1024, XF))


def r_tail(k, rcfg, npart, sW, vLane, sGroup, sMember, XBUF, WSP):
    freg, xin, xout, ln = rcfg
    if xin[0] == 'in':
        srd(k, 12, 48, 0, None, XB)
    else:
        srd(k, 12, 4, xin[1], None, xin[1] + XB)
    k.e("s_lshr_b32 s46, s%d, 2" % sMember)
    k.e("s_lshl_b32 s47, s%d, 2" % sGroup)
    k.e("s_add_u32 s46, s46, s47")
    k.e("s_mul_i32 s46, s46, %d" % PREG)
    srd(k, 20, 4, WSP, 46, WSP + npart * XB)
    if xout[0] == 'out':
        srd(k, 24, 50, 0, None, XB)
    else:
        srd(k, 24, 4, xout[1], None, xout[1] + XB)
    if ln:
        srd(k, 52, 4, WS_XN, None, WS_XN + XB)
    stamp(k, 4)
    k.e("s_lshl_b32 s46, s%d, 7" % sGroup)
    k.e("s_lshl_b32 s47, s%d, 3" % sMember)
    k.e("s_add_u32 s46, s46, s47")
    k.e("s_add_u32 s46, s46, s%d" % sW)
    k.e("v_mov_b32 v2, s46")
    PB0 = 44
    par = (rcfg[0] + 1) & 1

    def ysrc():
        k.e("s_lshr_b32 s46, s%d, 1" % sMember)
        k.e("s_and_b32 s46, s46, 1")
        k.e("s_lshl_b32 s46, s46, 8")
        k.e("s_and_b32 s47, s%d, 1" % sMember)
        k.e("s_lshl_b32 s47, s47, 7")
        k.e("s_add_u32 s46, s46, s47")
        for n, (mul, add) in enumerate(((64, 0), (8, 512))):
            k.e("s_mul_i32 s47, s%d, %d" % (sW, mul))
            k.e("s_add_u32 s47, s47, %d" % add)
            k.e("v_add_u32 v3, s47, v%d" % vLane)
            k.e("v_lshrrev_b32 v5, 4, v3")
            k.e("v_lshlrev_b32 v5, 10, v5")
            k.e("v_bfe_u32 v6, v3, 3, 1")
            k.e("v_lshl_add_u32 v5, v6, 9, v5")
            k.e("v_and_b32 v6, 7, v3")
            k.e("v_lshl_add_u32 v5, v6, 4, v5")
            k.e("v_add_u32 v%d, s46, v5" % (40 + n))
            k.e("v_mul_u32_u24 v5, 2336, v6")
            k.e("v_lshrrev_b32 v6, 3, v3")
            k.e("v_lshl_add_u32 v5, v6, 5, v5")
            k.e("v_add_u32 v%d, 0x%x, v5" % (42 + n, XBUF))
        for z in range(npart):
            for r in range(4):
                k.e("v_mov_b32 v%d, %d" % (PB0 + 8 * z + 4 + r, par))
        AB_ = PB0 + 8 * npart
        lp = k.newlabel("LW")
        ld = k.newlabel("LD")
        k.e("s_mov_b32 s45, 0")
        k.label(lp)
        for z in range(npart):
            k.e("s_mov_b32 s47, 0x%x" % (z * 64 * PREG))
            k.e("buffer_load_dwordx4 %s, v40, s[20:23], s47 offen%s" % (vr(PB0 + 8 * z), XF))
            k.e("s_mov_b64 exec, 0xff")
            k.e("buffer_load_dwordx4 %s, v41, s[20:23], s47 offen%s" % (vr(PB0 + 8 * z + 4), XF))
            k.e("s_mov_b64 exec, -1")
        k.vm0()
        regs = list(range(PB0, PB0 + 8 * npart, 2))
        op3 = "v_and_b32" if par else "v_or_b32"
        k.e("%s v26, v%d, v%d" % (op3, regs[0], regs[1]))
        k.e("%s v27, v%d, v%d" % (op3, regs[2], regs[3]))
        rest = regs[4:]
        n = 0
        while rest:
            d = 26 + (n & 1)
            if par:
                k.e("v_and_b32 v%d, v%d, v%d" % (d, d, rest[0]))
                rest = rest[1:]
            else:
                k.e("v_or3_b32 v%d, v%d, v%d, v%d" % (d, d, rest[0], rest[1]))
                rest = rest[2:]
            n += 1
        k.e("%s v26, v26, v27" % op3)
        k.e("v_and_b32 v26, 1, v26")
        k.e("v_cmp_ne_u32 vcc, %d, v26" % par)
        k.e("s_nop 3")
        k.e("s_cmp_eq_u64 vcc, 0")
        k.e("s_cbranch_scc1 %s" % ld)
        k.e("s_add_u32 s45, s45, 1")
        k.e("s_cmp_lt_u32 s45, 0x100000")
        k.e("s_cbranch_scc1 %s" % lp)
        k.label(ld)
        stamp(k, 5)
        if False:
            for r in range(4):
                k.e("v_mov_b32 v%d, -1" % (AB_ + 16 + r))
            for z in range(npart):
                k.e("s_mov_b32 s47, 0x%x" % (z * 64 * PREG))
                k.e("buffer_store_dwordx4 %s, v40, s[20:23], s47 offen" % vr(AB_ + 16))
                k.e("s_mov_b64 exec, 0xff")
                k.e("buffer_store_dwordx4 %s, v41, s[20:23], s47 offen" % vr(AB_ + 16))
                k.e("s_mov_b64 exec, -1")
        for z in range(npart):
            for h in range(2):
                for r in range(4):
                    src = PB0 + 8 * z + 4 * h + r
                    a = AB_ + 8 * h + 2 * r
                    if z == 0:
                        k.e("v_lshlrev_b32 v%d, 16, v%d" % (a, src))
                        k.e("v_and_b32 v%d, 0xffff0000, v%d" % (a + 1, src))
                    else:
                        k.e("v_lshlrev_b32 v26, 16, v%d" % src)
                        k.e("v_and_b32 v27, 0xffff0000, v%d" % src)
                        k.e("v_add_f32 v%d, v%d, v26" % (a, a))
                        k.e("v_add_f32 v%d, v%d, v27" % (a + 1, a + 1))
        k.e("ds_write_b128 v42, %s" % vr(AB_))
        k.e("ds_write_b128 v42, %s offset:16" % vr(AB_ + 4))
        k.e("s_mov_b64 exec, 0xff")
        k.e("ds_write_b128 v43, %s" % vr(AB_ + 8))
        k.e("ds_write_b128 v43, %s offset:16" % vr(AB_ + 12))
        k.e("s_mov_b64 exec, -1")
        k.e("s_mul_i32 s47, s%d, 2336" % sW)
        k.e("s_add_u32 s47, s47, 0x%x" % XBUF)
        k.e("v_lshl_add_u32 v5, v%d, 4, s47" % vLane)
        k.e("v_lshl_add_u32 v6, v%d, 2, s47" % vLane)
        k.e("s_waitcnt lgkmcnt(0)")
        k.e("s_barrier")
        k.e("ds_read_b128 v[16:19], v5")
        k.e("ds_read_b128 v[20:23], v5 offset:1024")
        k.e("ds_read_b32 v24, v6 offset:2048")
        k.e("s_waitcnt lgkmcnt(0)")
    r_body(k, 2, vLane, ysrc, True, ln, 12, 24, 52)
    return PB0 + 8 * npart + 20


def preset_pieces(k, sW, vLane, vA_, vD4, SR, sTmp, WSP):
    L = ["s_mul_i32 s%d, s2, %d" % (sTmp, PREG),
         "s_add_u32 s%d, s4, 0x%x" % (SR, WSP), "s_addc_u32 s%d, s5, 0" % (SR + 1),
         "s_add_u32 s%d, s%d, s%d" % (SR, SR, sTmp), "s_addc_u32 s%d, s%d, 0" % (SR + 1, SR + 1),
         "s_and_b32 s%d, s%d, 0xffff" % (SR + 1, SR + 1),
         "s_mov_b32 s%d, %d" % (SR + 2, PREG), "s_mov_b32 s%d, 0x20000" % (SR + 3),
         "s_mul_i32 s%d, s%d, 5120" % (sTmp, sW),
         "v_lshl_add_u32 v%d, v%d, 4, s%d" % (vA_, vLane, sTmp)]
    for r in range(4):
        L.append("v_mov_b32 v%d, -1" % (vD4 + r))
    P = [("S", L + ["buffer_store_dwordx4 %s, v%d, %s, 0 offen" % (vr(vD4), vA_, sr(SR))])]
    for n in range(1, 4):
        P.append(("S", ["buffer_store_dwordx4 %s, v%d, %s, 0 offen offset:%d" % (vr(vD4), vA_, sr(SR), n * 1024)]))
    P.append(("S", ["s_mov_b32 s%d, 4096" % sTmp, "buffer_store_dwordx4 %s, v%d, %s, s%d offen" % (vr(vD4), vA_, sr(SR), sTmp)]))
    return P


def gen_gemm(name, kind, rcfg=None, kidx=0, pf=()):
    k = K(name)
    nwg = 256
    LNF = (kind == 'A1L')
    if LNF:
        kind = 'A1'
    if kind == 'A2':
        NFR, NBUF, mmode, NS = 2, 4, 'tr', 16
        strideN, strideM = 4096, 1152
    elif kind == 'B2':
        NFR, NBUF, mmode, NS = 2, 4, 'tr', 18
        strideN, strideM = 0, 1152
    else:
        NFR, NBUF, mmode, NS = 1, 4, 'row', 9
        strideN, strideM = 1152, 1152
    WSP, WSPO = WS_P, WS_P
    groups = [list(range(5)), list(range(5, 9))]
    NSET = 4
    NT = 4 * NFR * 16
    NTB = NT * 128
    STB = NTB + MTB
    NDN = NT // 64
    LDSB = NBUF * STB + (8 * 2336 if rcfg else 0)
    MB0 = NTB
    if LNF:
        STB, NDN, MB0 = MTB, 0, 73728
        LDSB = 73728 + NBUF * MTB
    KS = 2
    Wmul = float(OPT.get('twmul', 2.0))
    Wmax = int(5 * Wmul + 0.5)

    vLane, vT0, vT1, vT2, vT3, vT4 = 1, 2, 3, 4, 5, 6
    vO = 7
    vDN = 8
    vDM = [9, 10, 11]
    nxt = 12
    nrm = KS if mmode == 'row' else 1
    vRN = [[0] * KS for _ in range(NBUF)]
    vRM = [[0] * nrm for _ in range(NBUF)]
    for b in range(NBUF):
        for s_ in range(KS):
            vRN[b][s_] = nxt; nxt += 1
        for s_ in range(nrm):
            vRM[b][s_] = nxt; nxt += 1
    nxt = (nxt + 3) // 4 * 4
    vPA, vPS, vPD = nxt, nxt + 2, nxt + 3
    nxt += 4
    PD = int(OPT.get('pd', 0)) if kind in ('A2', 'B2') else 0
    vM = [nxt + 4 * j for j in range(Wmax)]; nxt += 4 * Wmax
    vN = [[nxt + 4 * (p * NFR + i) for i in range(NFR)] for p in range(NSET)]; nxt += 4 * NSET * NFR
    vAbase = nxt
    nxt += 4 * 5 * NFR
    nxt = max(nxt, 176 if LNF else 96)
    vPF = nxt
    nxt += 1
    nvgpr = nxt
    sW, sW1024, sW256, sKN, sKM, sTmp, sLoop = 28, 29, 30, 31, 32, 33, 40
    SRN, SRM, SRO = 12, 16, 24
    if not PF:
        pf = ()

    header(k, nwg)
    stamp(k, 0, 1)
    k.e("s_load_dwordx2 s[4:5], s[0:1], %d" % KA_WS)
    if kind == 'A2':
        k.e("s_load_dwordx4 s[8:11], s[0:1], %d" % KA_CR)
    elif kind == 'B2':
        k.e("s_load_dwordx2 s[8:9], s[0:1], %d" % KA_WD)
    else:
        k.e("s_load_dwordx2 s[8:9], s[0:1], %d" % KA_WR)
        k.e("s_load_dwordx2 s[10:11], s[0:1], %d" % KA_WI)
    if LNF:
        k.e("s_load_dwordx2 s[48:49], s[0:1], %d" % KA_X)
    if rcfg:
        if rcfg[1][0] == 'in':
            k.e("s_load_dwordx2 s[48:49], s[0:1], %d" % rcfg[1][1])
        if rcfg[2][0] == 'out':
            k.e("s_load_dwordx2 s[50:51], s[0:1], %d" % KA_OUT)
    for n, (ka, nb_) in enumerate(pf):
        k.e("s_load_dwordx2 s[%d:%d], s[0:1], %d" % (56 + 4 * n, 57 + 4 * n, ka))
    k.e("v_and_b32 v%d, 63, v0" % vLane)
    k.e("v_lshrrev_b32 v%d, 6, v0" % vT0)
    k.e("s_nop 0")
    k.e("v_readfirstlane_b32 s%d, v%d" % (sW, vT0))
    k.e("s_and_b32 s34, s2, 7")
    k.e("s_lshr_b32 s35, s2, 3")
    if kind in ('A2', 'B2'):
        k.e("s_and_b32 s36, s34, 3")
        k.e("s_lshr_b32 s37, s34, 2")
        k.e("s_lshl_b32 s37, s37, 3")
        k.e("s_lshr_b32 s38, s35, 2")
        k.e("s_add_u32 s37, s37, s38")
        k.e("s_and_b32 s38, s35, 3")
    else:
        k.e("s_mov_b32 s38, s34")
        k.e("s_mov_b32 s37, s35")
    k.e("s_lshl_b32 s%d, s%d, 10" % (sW1024, sW))
    k.e("s_lshl_b32 s%d, s%d, 8" % (sW256, sW))
    k.e("v_lshrrev_b32 v%d, 3, v%d" % (vT0, vLane))
    k.e("s_lshl_b32 s%d, s%d, 3" % (sTmp, sW))
    k.e("v_add_u32 v%d, s%d, v%d" % (vT0, sTmp, vT0))
    k.e("v_bfe_u32 v%d, v%d, 1, 3" % (vT1, vT0))
    k.e("v_and_b32 v%d, 7, v%d" % (vT2, vLane))
    k.e("v_xor_b32 v%d, v%d, v%d" % (vT1, vT1, vT2))
    if kind == 'B2':
        k.e("s_lshr_b32 s44, s%d, 2" % sW)
        k.e("s_mul_i32 s44, s44, %d" % (288 * 1024))
        k.e("s_and_b32 s45, s%d, 3" % sW)
        k.e("s_lshl_b32 s45, s45, 10")
        k.e("s_add_u32 s44, s44, s45")
        k.e("v_lshl_add_u32 v%d, v%d, 4, s44" % (vDN, vLane))
    else:
        k.e("v_mul_u32_u24 v%d, %d, v%d" % (vDN, strideN, vT0))
        k.e("v_lshl_add_u32 v%d, v%d, 4, v%d" % (vDN, vT1, vDN))
    if mmode == 'row':
        k.e("v_mul_u32_u24 v%d, %d, v%d" % (vDM[0], strideM, vT0))
        k.e("v_lshl_add_u32 v%d, v%d, 4, v%d" % (vDM[0], vT1, vDM[0]))
        k.e("v_lshrrev_b32 v%d, 3, v%d" % (vT0, vLane))
        k.e("s_lshl_b32 s%d, s%d, 1" % (sTmp, sW))
        k.e("s_add_u32 s%d, s%d, 128" % (sTmp, sTmp))
        k.e("v_add_u32 v%d, s%d, v%d" % (vT0, sTmp, vT0))
        k.e("v_bfe_u32 v%d, v%d, 1, 3" % (vT1, vT0))
        k.e("v_xor_b32 v%d, v%d, v%d" % (vT1, vT1, vT2))
        k.e("v_mul_u32_u24 v%d, %d, v%d" % (vDM[2], strideM, vT0))
        k.e("v_lshl_add_u32 v%d, v%d, 4, v%d" % (vDM[2], vT1, vDM[2]))
    else:
        for q in range(3):
            if q < 2:
                k.e("s_lshl_b32 s%d, s%d, 6" % (sTmp, sW))
                k.e("s_add_u32 s%d, s%d, %d" % (sTmp, sTmp, 512 * q))
            else:
                k.e("s_lshl_b32 s%d, s%d, 4" % (sTmp, sW))
                k.e("s_add_u32 s%d, s%d, 1024" % (sTmp, sTmp))
            tr_voff(k, vDM[q], sTmp, vLane, (vT0, vT1, vT2, vT3, vT4), strideM, 0x33)
    k.e("s_mov_b32 s%d, 0" % sKN)
    k.e("s_mov_b32 s%d, 0" % sKM)
    k.e("s_waitcnt lgkmcnt(0)")
    if kind == 'A2':
        k.e("s_cmp_lt_u32 s36, 2")
        k.e("s_cselect_b32 s6, s8, s10")
        k.e("s_cselect_b32 s7, s9, s11")
        k.e("s_mul_i32 s44, s37, %d" % (128 * 4096))
        k.e("s_and_b32 s45, s36, 1")
        k.e("s_lshl_b32 s45, s45, 11")
        k.e("s_add_u32 s44, s44, s45")
        srd(k, SRN, 6, 0, 44, S * S * 2)
        k.e("s_mul_i32 s44, s36, %d" % (1024 * 1152))
        k.e("s_mul_i32 s45, s38, 288")
        k.e("s_add_u32 s44, s44, s45")
        srd(k, SRM, 4, WS_AB, 44, WS_AB + 2 * XB)
    elif kind == 'B2':
        k.e("s_mul_i32 s44, s37, %d" % (4 * 288 * 1024))
        k.e("s_mul_i32 s45, s36, %d" % (72 * 1024))
        k.e("s_add_u32 s44, s44, s45")
        srd(k, SRN, 4, WS_H, 44, WS_H + HB)
        k.e("s_mul_i32 s44, s36, %d" % (1152 * 1152))
        k.e("s_mul_i32 s45, s38, 288")
        k.e("s_add_u32 s44, s44, s45")
        srd(k, SRM, 8, 0, 44, F * D * 2)
    else:
        k.e("s_mul_i32 s44, s37, %d" % (64 * 1152))
        if LNF:
            srd(k, SRN, 48, 0, 44, XB)
            k.e("s_mul_i32 s44, s%d, %d" % (sW, 8 * 1152))
            k.e("v_lshl_add_u32 v%d, v%d, 3, s44" % (vT0, vLane))
            k.e("v_lshl_add_u32 v%d, v%d, 1, s44" % (vT1, vLane))
            for rr in range(8):
                b = 32 + 16 * rr
                k.e("s_mov_b32 s44, %d" % (rr * 1152))
                k.e("buffer_load_dwordx2 %s, v%d, %s, s44 offen" % (vr(b + 10, 2), vT0, sr(SRN)), "X")
                k.e("buffer_load_dwordx2 %s, v%d, %s, s44 offen offset:512" % (vr(b + 12, 2), vT0, sr(SRN)), "X")
                k.e("buffer_load_ushort v%d, v%d, %s, s44 offen offset:1024" % (b + 14, vT1, sr(SRN)), "X")
        else:
            srd(k, SRN, 4, WS_XN, 44, WS_XN + XB)
        k.e("s_cmp_lt_u32 s38, 4")
        k.e("s_cselect_b32 s6, s8, s10")
        k.e("s_cselect_b32 s7, s9, s11")
        k.e("s_and_b32 s45, s38, 3")
        k.e("s_mul_i32 s44, s45, %d" % (144 * 1152))
        srd(k, SRM, 6, 0, 44, D * D * 2)
    if PD:
        k.e("s_mul_i32 s45, s38, 288")
        k.e("s_sub_u32 s44, s%d, s45" % SRM)
        k.e("s_subb_u32 s45, s%d, 0" % (SRM + 1))
        k.e("s_lshl_b32 s46, s38, 5")
        k.e("s_lshl_b32 s47, s%d, 2" % sW)
        k.e("s_add_u32 s46, s46, s47")
        k.e("v_add_u32 v%d, s46, v%d" % (vT0, vLane))
        if kind == 'A2':
            k.e("v_lshlrev_b32 v%d, 12, v%d" % (vT1, vT0))
            SN = 128
        else:
            k.e("v_lshrrev_b32 v%d, 5, v%d" % (vT1, vT0))
            k.e("v_mul_u32_u24 v%d, %d, v%d" % (vT1, 288 * 1024, vT1))
            k.e("v_and_b32 v%d, 31, v%d" % (vT2, vT0))
            k.e("v_lshl_add_u32 v%d, v%d, 7, v%d" % (vT1, vT2, vT1))
            SN = 4096
        k.e("v_add_u32 v%d, 0x%x, v%d" % (vT1, PD * SN, vT1))
        k.e("s_mul_i32 s46, s%d, 3" % sW)
        k.e("s_sub_u32 s46, s46, 4")
        k.e("v_add_u32 v%d, s46, v%d" % (vT0, vLane))
        k.e("v_min_u32 v%d, 17, v%d" % (vT0, vT0))
        k.e("s_mul_i32 s46, s35, 18")
        k.e("v_add_u32 v%d, s46, v%d" % (vT0, vT0))
        k.e("v_mul_u32_u24 v%d, 7282, v%d" % (vT2, vT0))
        k.e("v_lshrrev_b32 v%d, 16, v%d" % (vT2, vT2))
        k.e("v_mul_u32_u24 v%d, 9, v%d" % (vT3, vT2))
        k.e("v_sub_u32 v%d, v%d, v%d" % (vT3, vT0, vT3))
        k.e("v_mul_u32_u24 v%d, 1152, v%d" % (vT2, vT2))
        k.e("v_lshl_add_u32 v%d, v%d, 7, v%d" % (vT2, vT3, vT2))
        k.e("v_add_u32 v%d, 0x%x, v%d" % (vT2, PD * 64 * 1152, vT2))
        k.e("v_cmp_gt_u32 vcc, 4, v%d" % vLane)
        k.e("v_mov_b32 v%d, s44" % vT0)
        k.e("v_mov_b32 v%d, s%d" % (vT3, SRN))
        k.e("v_cndmask_b32 v%d, v%d, v%d, vcc" % (vPA, vT0, vT3))
        k.e("v_mov_b32 v%d, s45" % vT0)
        k.e("v_mov_b32 v%d, s%d" % (vT3, SRN + 1))
        k.e("v_cndmask_b32 v%d, v%d, v%d, vcc" % (vPA + 1, vT0, vT3))
        k.e("v_cndmask_b32 v%d, v%d, v%d, vcc" % (vT1, vT2, vT1))
        k.e("v_mov_b32 v%d, 0x%x" % (vT0, 64 * 1152))
        k.e("v_mov_b32 v%d, %d" % (vT3, SN))
        k.e("v_cndmask_b32 v%d, v%d, v%d, vcc" % (vPS, vT0, vT3))
        k.e("v_add_co_u32 v%d, vcc, v%d, v%d" % (vPA, vT1, vPA))
        k.e("s_nop 1")
        k.e("v_addc_co_u32 v%d, vcc, 0, v%d, vcc" % (vPA + 1, vPA + 1))

    def dma(stage):
        b = stage % NBUF
        tag = "D%d" % stage
        P = []
        if PD and stage + PD < NS:
            P.append(("T", ["s_mov_b64 exec, 0xff",
                            "global_load_dword v%d, %s, off" % (vPD, vr(vPA, 2)),
                            "s_mov_b64 exec, -1",
                            "v_add_co_u32 v%d, vcc, v%d, v%d" % (vPA, vPS, vPA),
                            "s_nop 1",
                            "v_addc_co_u32 v%d, vcc, 0, v%d, vcc" % (vPA + 1, vPA + 1)]))
        for j in range(NDN):
            L = ["s_add_u32 m0, s%d, 0x%x" % (sW1024, b * STB + j * 8192)]
            if j:
                L.append("s_add_u32 s%d, s%d, 0x%x" % (sTmp, sKN, j * (2 * 288 * 1024 if kind == 'B2' else 64 * strideN)))
                L.append("buffer_load_dwordx4 v%d, %s, s%d offen lds" % (vDN, sr(SRN), sTmp))
            else:
                L.append("s_nop 0")
                L.append("buffer_load_dwordx4 v%d, %s, s%d offen lds" % (vDN, sr(SRN), sKN))
            P.append((tag, L))
        mb_ = b * STB + MB0
        for q in range(3):
            L = []
            if q < 2:
                L.append("s_add_u32 m0, s%d, 0x%x" % (sW1024, mb_ + q * 8192))
            else:
                L.append("s_add_u32 m0, s%d, 0x%x" % (sW256, mb_ + 16384))
            if mmode == 'row' and q == 1:
                L.append("s_add_u32 s%d, s%d, 0x%x" % (sTmp, sKM, 64 * strideM))
                so, vo = sTmp, vDM[0]
            else:
                so, vo = sKM, vDM[q]
                L.append("s_nop 0")
            if q == 2:
                L.append("s_mov_b64 exec, 0xffff")
            L.append("buffer_load_dwordx4 v%d, %s, s%d offen lds" % (vo, sr(SRM), so))
            if q == 2:
                L.append("s_mov_b64 exec, -1")
            P.append((tag, L))
        P[-1] = (tag, P[-1][1] + ["s_add_u32 s%d, s%d, %d" % (sKN, sKN, 4096 if kind == 'B2' else 128),
                                  "s_add_u32 s%d, s%d, 0x%x" % (sKM, sKM, 128 if mmode == 'row' else 64 * strideM)])
        return P

    for stg in range(NBUF):
        for tag, L in dma(stg):
            for x in L:
                k.e(x, tag)
        if stg == 0:
            code_prefetch(k, sW, vLane, vT0, vPF, 72, sTmp)
    for n, (ka, nb_) in enumerate(pf):
        srd(k, 56 + 4 * n, 56 + 4 * n, 0, None, nb_)
    k.e("s_and_b32 s%d, s%d, 3" % (sTmp, sW))
    k.e("s_mul_i32 s%d, s%d, %d" % (sTmp, sTmp, NFR * 16 * 128))
    k.e("v_and_b32 v%d, 15, v%d" % (vT0, vLane))
    k.e("v_lshrrev_b32 v%d, 4, v%d" % (vT1, vLane))
    k.e("v_bfe_u32 v%d, v%d, 1, 3" % (vT2, vLane))
    k.e("v_xor_b32 v%d, v%d, v%d" % (vT2, vT1, vT2))
    k.e("v_lshlrev_b32 v%d, 4, v%d" % (vT2, vT2))
    k.e("v_lshl_add_u32 v%d, v%d, 7, v%d" % (vT2, vT0, vT2))
    k.e("v_add_u32 v%d, s%d, v%d" % (vT3, sTmp, vT2))
    if kind == 'B2':
        k.e("v_lshlrev_b32 v%d, 9, v%d" % (vT3, vT1))
        k.e("v_lshl_add_u32 v%d, v%d, 4, v%d" % (vT3, vT0, vT3))
        k.e("v_add_u32 v%d, s%d, v%d" % (vT3, sTmp, vT3))
        for b in range(NBUF):
            k.e("v_add_u32 v%d, 0x%x, v%d" % (vRN[b][0], b * STB, vT3))
            k.e("v_add_u32 v%d, 2048, v%d" % (vRN[b][1], vRN[b][0]))
    else:
        for b in range(NBUF):
            k.e("v_add_u32 v%d, 0x%x, v%d" % (vRN[b][0], (b * 65536 if LNF else b * STB), vT3))
            k.e("v_xor_b32 v%d, 64, v%d" % (vRN[b][1], vRN[b][0]))
    if mmode == 'row':
        for b in range(NBUF):
            k.e("v_add_u32 v%d, 0x%x, v%d" % (vRM[b][0], b * STB + MB0, vT2))
            k.e("v_xor_b32 v%d, 64, v%d" % (vRM[b][1], vRM[b][0]))
    else:
        tr_raddr(k, vT2, vLane, vT3)
        for b in range(NBUF):
            k.e("v_add_u32 v%d, 0x%x, v%d" % (vRM[b][0], b * STB + NTB, vT2))
    k.e("s_and_b32 s%d, s%d, 3" % (sTmp, sW))
    k.e("s_mul_i32 s%d, s%d, %d" % (sTmp, sTmp, NFR * 16))
    k.e("v_and_b32 v%d, 15, v%d" % (vT3, vLane))
    k.e("v_add_u32 v%d, s%d, v%d" % (vT3, sTmp, vT3))
    k.e("v_lshrrev_b32 v%d, 4, v%d" % (vT4, vLane))
    k.e("v_mul_u32_u24 v%d, 1152, v%d" % (vT3, vT3))
    k.e("v_and_b32 v%d, 1, v%d" % (vT0, vT4))
    k.e("v_lshl_add_u32 v%d, v%d, 5, v%d" % (vO, vT0, vT3))
    k.e("v_lshrrev_b32 v%d, 1, v%d" % (vT0, vT4))
    k.e("v_lshl_add_u32 v%d, v%d, 4, v%d" % (vO, vT0, vO))
    k.e("v_lshl_add_u32 v%d, v%d, 3, v%d" % (vT4, vT4, vT3))
    vO2 = vT4
    if kind == 'A1':
        k.e("s_lshr_b32 s45, s38, 2")
        k.e("s_mul_i32 s44, s45, %d" % XB)
        k.e("s_mul_i32 s46, s37, %d" % (64 * 1152))
        k.e("s_add_u32 s44, s44, s46")
        k.e("s_and_b32 s46, s38, 3")
        k.e("s_mul_i32 s46, s46, 288")
        k.e("s_add_u32 s44, s44, s46")
        srd(k, SRO, 4, WS_AB, 44, WS_AB + 2 * XB)
        k.e("s_mul_i32 s47, s45, 0x80008000")
    else:
        k.e("s_lshl_b32 s44, s36, 4")
        k.e("s_add_u32 s44, s44, s37")
        k.e("s_lshl_b32 s44, s44, 2")
        k.e("s_and_b32 s46, s%d, 3" % sW)
        k.e("s_add_u32 s44, s44, s46")
        k.e("s_mul_i32 s44, s44, %d" % PREG)
        k.e("s_mul_i32 s46, s38, 9216")
        k.e("s_add_u32 s44, s44, s46")
        srd(k, SRO, 4, WSP, 44, WSP + 4 * XB)
        k.e("v_lshlrev_b32 v%d, 4, v%d" % (vO, vLane))
    def pf_emit():
        k.e("s_lshl_b32 s%d, s2, 3" % sTmp)
        k.e("s_add_u32 s%d, s%d, s%d" % (sTmp, sTmp, sW))
        k.e("s_lshl_b32 s%d, s%d, 12" % (sTmp, sTmp))
        k.e("v_lshl_add_u32 v%d, v%d, 6, s%d" % (vT0, vLane, sTmp))
        for n in range(len(pf)):
            k.e("buffer_load_dword v%d, v%d, %s, 0 offen" % (vPF, vT0, sr(56 + 4 * n)), "PF")

    stamp(k, 1)
    if LNF:
        for tg, L in preset_pieces(k, sW, vLane, vT2, vPA, 72, sTmp, WS_P):
            for x in L:
                k.e(x.replace(", -1", ", 0") if x.startswith("v_mov") else x, "S")
        if pf and OPT.get('pfpos', 'end') == 'early':
            pf_emit()
        R = range(8)
        B = lambda rr: 32 + 16 * rr
        k.e("v_lshrrev_b32 v%d, 4, v%d" % (vT0, vLane))
        k.e("v_lshlrev_b32 v%d, 13, v%d" % (vT0, vT0))
        k.e("v_bfe_u32 v%d, v%d, 1, 3" % (vT1, vLane))
        k.e("v_lshl_add_u32 v%d, v%d, 4, v%d" % (vT0, vT1, vT0))
        k.e("v_and_b32 v%d, 1, v%d" % (vT1, vLane))
        k.e("v_lshl_add_u32 v%d, v%d, 3, v%d" % (vT0, vT1, vT0))
        k.e("v_add_u32 v%d, s%d, v%d" % (vT0, sW1024, vT0))
        k.e("v_lshrrev_b32 v%d, 3, v%d" % (vT1, vLane))
        k.e("v_lshlrev_b32 v%d, 4, v%d" % (vT1, vT1))
        k.e("v_and_b32 v%d, 7, v%d" % (vT2, vLane))
        k.e("v_lshl_add_u32 v%d, v%d, 1, v%d" % (vT1, vT2, vT1))
        k.e("v_add_u32 v%d, s%d, v%d" % (vT1, sW1024, vT1))
        k.e("v_add_u32 v%d, 0x10000, v%d" % (vT1, vT1))
        for pr in range(4):
            k.e("s_lshl_b32 s44, s%d, 2" % sW)
            k.e("s_add_u32 s44, s44, %d" % pr)
            k.e("s_and_b32 s44, s44, 7")
            k.e("s_lshl_b32 s44, s44, 4")
            k.e("v_xor_b32 v%d, s44, v%d" % (160 + pr, vT0))
            k.e("v_xor_b32 v%d, s44, v%d" % (164 + pr, vT1))
        stamp(k, 5)
        k.vneed("X")
        stamp(k, 4)

        def allrows(fmt, *offs):
            for rr in R:
                k.e(fmt % tuple(B(rr) + o for o in offs))

        def xsum(o, t):
            for ctl in ("quad_perm:[1,0,3,2]", "quad_perm:[2,3,0,1]", "row_half_mirror", "row_mirror"):
                allrows("v_add_f32_dpp v%d, v%d, v%d " + ctl + " row_mask:0xf bank_mask:0xf", o, o, o)
            for sw_ in ("v_permlane16_swap_b32", "v_permlane32_swap_b32"):
                allrows("v_mov_b32 v%d, v%d", t, o)
                allrows(sw_ + " v%d, v%d", o, t)
                allrows("v_add_f32 v%d, v%d, v%d", o, o, t)
        for i in range(4):
            allrows("v_lshlrev_b32 v%d, 16, v%d", 2 * i, 10 + i)
            allrows("v_and_b32 v%d, 0xffff0000, v%d", 2 * i + 1, 10 + i)
        allrows("v_lshlrev_b32 v%d, 16, v%d", 8, 14)
        def pk(op, d, a, b, c=None, mods=""):
            for rr in R:
                x = B(rr)
                ops = [vr(x + d, 2), vr(x + a, 2), vr(x + b, 2)] + ([vr(x + c, 2)] if c is not None else [])
                k.e("%s %s%s" % (op, ", ".join(ops), mods))
        pk("v_pk_add_f32", 10, 0, 2)
        pk("v_pk_add_f32", 12, 4, 6)
        pk("v_pk_add_f32", 10, 10, 12)
        allrows("v_add_f32 v%d, v%d, v%d", 14, 10, 11)
        allrows("v_add_f32 v%d, v%d, v%d", 14, 14, 8)
        xsum(14, 15)
        allrows("v_mul_f32 v%%d, 0x%08x, v%%d" % f32bits(-1.0 / D), 14, 14)
        allrows("v_mov_b32 v%d, v%d", 15, 14)
        for e in range(0, 8, 2):
            pk("v_pk_add_f32", e, e, 14)
        allrows("v_add_f32 v%d, v%d, v%d", 8, 8, 14)
        pk("v_pk_mul_f32", 10, 0, 0)
        pk("v_pk_mul_f32", 12, 2, 2)
        pk("v_pk_fma_f32", 10, 4, 4, 10)
        pk("v_pk_fma_f32", 12, 6, 6, 12)
        pk("v_pk_add_f32", 10, 10, 12)
        allrows("v_add_f32 v%d, v%d, v%d", 14, 10, 11)
        allrows("v_fmac_f32 v%d, v%d, v%d", 14, 8, 8)
        xsum(14, 15)
        allrows("v_mov_b32 v%%d, 0x%08x" % f32bits(1e-5), 15)
        allrows("v_fmac_f32 v%%d, 0x%08x, v%%d" % f32bits(1.0 / D), 15, 14)
        allrows("v_rsq_f32 v%d, v%d", 14, 15)
        allrows("v_mov_b32 v%d, v%d", 15, 14)
        for e in range(0, 8, 2):
            pk("v_pk_mul_f32", e, e, 14)
        allrows("v_mul_f32 v%d, v%d, v%d", 8, 8, 14)
        for i in range(4):
            allrows("v_cvt_pk_bf16_f32 v%d, v%d, v%d", 10 + i, 2 * i, 2 * i + 1)
        allrows("v_cvt_pk_bf16_f32 v%d, v%d, v%d", 14, 8, 8)
        stamp(k, 6)
        for rr in R:
            k.e("ds_write_b64 v%d, %s offset:%d" % (160 + rr // 2, vr(B(rr) + 10, 2), rr * 128))
            k.e("ds_write_b64 v%d, %s offset:%d" % (160 + rr // 2, vr(B(rr) + 12, 2), rr * 128 + 32768))
            k.e("ds_write_b16 v%d, v%d offset:%d" % (164 + rr // 2, B(rr) + 14, rr * 128))
        k.e("s_waitcnt lgkmcnt(0)")
    k.vneed("D0")
    k.e("s_barrier")
    stamp(k, 2)

    ljoin = k.newlabel("LJ")
    lg1 = k.newlabel("LG")
    k.e("s_cmp_ge_u32 s%d, 4" % sW)
    k.e("s_cbranch_scc1 %s" % lg1)
    vm_save = list(k.vm)
    for gi, tiles in enumerate(groups):
        if gi:
            k.label(lg1)
            k.vm = list(vm_save)
        nt = len(tiles)
        W = int(nt * Wmul + 0.5)
        vA = {(j, i): vAbase + 4 * (ti * NFR + i) for ti, j in enumerate(tiles) for i in range(NFR)}

        def rd_m(stg, ks, j, reg, tag):
            b = stg % NBUF
            if mmode == 'row':
                k.lds("ds_read_b128 %s, v%d offset:%d" % (vr(reg), vRM[b][ks], j * 2048), tag)
            else:
                o = ks * 9216 + j * 32
                k.lds("ds_read_b64_tr_b16 %s, v%d offset:%d" % (vr(reg, 2), vRM[b][0], o), tag)
                k.lds("ds_read_b64_tr_b16 %s, v%d offset:%d" % (vr(reg + 2, 2), vRM[b][0], o + 2304), tag)

        def rd_n(stg, ks, i, reg, tag):
            if LNF:
                k.lds("ds_read_b128 %s, v%d offset:%d" % (vr(reg), vRN[stg // 8][ks], (stg % 8) * 8192), tag)
            else:
                k.lds("ds_read_b128 %s, v%d offset:%d" % (vr(reg), vRN[stg % NBUF][ks], i * (256 if kind == 'B2' else 2048)), tag)

        def ald():
            L = ["s_lshl_b32 s%d, s2, 3" % sTmp, "s_add_u32 s%d, s%d, s%d" % (sTmp, sTmp, sW), "s_lshl_b32 s%d, s%d, 12" % (sTmp, sTmp),
                 "v_lshl_add_u32 v%d, v%d, 6, s%d" % (vT0, vLane, sTmp)]
            for n in range(len(pf)):
                L.append("buffer_load_dword v%d, v%d, %s, 0 offen" % (vPF, vT0, sr(56 + 4 * n)))
            P = [("PF", L)] if pf else []
            return P

        pp = preset_pieces(k, sW, vLane, vT2, vPA, 72, sTmp, WSPO)

        def sx(t):
            return [pp[t]] if t < len(pp) else []

        engine(k, tiles, NFR, KS, NS, NBUF, W, NSET, int(OPT.get('tdelta', 1)), rd_m, rd_n, dma,
               lambda t, j, i: vA[(j, i)], lambda t, ks: t == 0 and ks == 0, vM, vN, sLoop,
               after_last_dma=ald if (pf and not (LNF and OPT.get('pfpos', 'end') != 'mid')) else None, stage_extra=None, n_static=LNF)
        k.e("s_nop 7")
        k.e("s_nop 3")
        stamp(k, 3)
        if kind in ('A2', 'B2'):
            store_native(k, tiles, lambda j, i: vA[(j, i)], vO, SRO, sTmp, 0, None, 28, (rcfg[0] + 1) & 1)
        else:
            k.e("s_mov_b32 s%d, 0" % sTmp)
            store_tiles_bf16(k, tiles, lambda j: vA[(j, 0)], vO, vO2, SRO, sTmp, "", 28, neg=47)
        if gi == 0:
            k.e("s_branch %s" % ljoin)
    k.label(ljoin)
    if LNF and pf and OPT.get('pfpos', 'end') == 'end':
        pf_emit()
    if rcfg:
        k.e("s_lshl_b32 s39, s36, 2")
        k.e("s_add_u32 s39, s39, s38")
        nv = r_tail(k, rcfg, 4, sW, vLane, 37, 39, NBUF * STB, WSP)
        nvgpr = max(nvgpr, nv)
    elif not LNF:
        stamp(k, 4)
    if not LNF:
        stamp(k, 6)
    stamp_store(k, kidx)
    footer(k, nvgpr, 100 if STAMP else 76)
    return k, nwg, 512, LDSB


def gen_b1(name, kidx=0, pf=()):
    k = K(name)
    nwg = 256
    NBUF, NS, KS = 2, 9, 2
    NTB = 256 * 128
    STB = NTB + 2 * MTB
    W = int(OPT.get('b1w', 12))
    vLane, vT0, vT1, vT2, vT3, vT4 = 1, 2, 3, 4, 5, 6
    vO = 7
    vDN = 8
    vDM = [9, 10, 11]
    vRN = [[12, 13], [14, 15]]
    vRM = [16, 17]
    nxt = 20
    vM = [nxt + 4 * j for j in range(W)]; nxt += 4 * W
    vN = [[nxt + 4 * (p * 2 + i) for i in range(2)] for p in range(2)]; nxt += 16
    vAbase = nxt
    nxt += 144
    vS4 = nxt
    nxt += 4
    vPF = nxt
    nxt += 1
    nvgpr = nxt
    assert nvgpr <= 256
    sW, sW1024, sW256, sKN, sKM, sTmp, sLoop = 28, 29, 30, 31, 32, 33, 40
    SRN, SRM, SRO = 12, [16, 20], 24
    if not PF:
        pf = ()
    header(k, nwg)
    stamp(k, 0, 1)
    k.e("s_load_dwordx2 s[4:5], s[0:1], %d" % KA_WS)
    k.e("s_load_dwordx4 s[8:11], s[0:1], %d" % KA_WG)
    for n, (ka, nb_) in enumerate(pf):
        k.e("s_load_dwordx2 s[%d:%d], s[0:1], %d" % (56 + 4 * n, 57 + 4 * n, ka))
    k.e("v_and_b32 v%d, 63, v0" % vLane)
    k.e("v_lshrrev_b32 v%d, 6, v0" % vT0)
    k.e("s_nop 0")
    k.e("v_readfirstlane_b32 s%d, v%d" % (sW, vT0))
    k.e("s_and_b32 s34, s2, 7")
    k.e("s_lshr_b32 s35, s2, 3")
    k.e("s_lshl_b32 s38, s34, 2")
    k.e("s_and_b32 s36, s35, 3")
    k.e("s_add_u32 s38, s38, s36")
    k.e("s_lshr_b32 s37, s35, 2")
    k.e("s_lshl_b32 s%d, s%d, 10" % (sW1024, sW))
    k.e("s_lshl_b32 s%d, s%d, 8" % (sW256, sW))
    k.e("v_lshrrev_b32 v%d, 3, v%d" % (vT0, vLane))
    k.e("s_lshl_b32 s%d, s%d, 3" % (sTmp, sW))
    k.e("v_add_u32 v%d, s%d, v%d" % (vT0, sTmp, vT0))
    k.e("v_bfe_u32 v%d, v%d, 1, 3" % (vT1, vT0))
    k.e("v_and_b32 v%d, 7, v%d" % (vT2, vLane))
    k.e("v_xor_b32 v%d, v%d, v%d" % (vT1, vT1, vT2))
    k.e("v_mul_u32_u24 v%d, 1152, v%d" % (vDN, vT0))
    k.e("v_lshl_add_u32 v%d, v%d, 4, v%d" % (vDN, vT1, vDN))
    for q in range(3):
        if q < 2:
            k.e("s_lshl_b32 s%d, s%d, 6" % (sTmp, sW))
            k.e("s_add_u32 s%d, s%d, %d" % (sTmp, sTmp, 512 * q))
        else:
            k.e("s_lshl_b32 s%d, s%d, 4" % (sTmp, sW))
            k.e("s_add_u32 s%d, s%d, 1024" % (sTmp, sTmp))
        tr_voff(k, vDM[q], sTmp, vLane, (vT0, vT1, vT2, vT3, vT4), 9216, 0x33)
    k.e("s_mov_b32 s%d, 0" % sKN)
    k.e("s_mov_b32 s%d, 0" % sKM)
    k.e("s_waitcnt lgkmcnt(0)")
    k.e("s_mul_i32 s44, s37, %d" % (256 * 1152))
    srd(k, SRN, 4, WS_XN, 44, WS_XN + XB)
    k.e("s_mul_i32 s44, s38, 288")
    srd(k, SRM[0], 8, 0, 44, D * F * 2)
    srd(k, SRM[1], 10, 0, 44, D * F * 2)

    def dma(stage):
        b = stage % NBUF
        tag = "D%d" % stage
        P = []
        for j in range(4):
            L = ["s_add_u32 m0, s%d, 0x%x" % (sW1024, b * STB + j * 8192)]
            if j:
                L.append("s_add_u32 s%d, s%d, 0x%x" % (sTmp, sKN, j * 64 * 1152))
                L.append("buffer_load_dwordx4 v%d, %s, s%d offen lds" % (vDN, sr(SRN), sTmp))
            else:
                L.append("s_nop 0")
                L.append("buffer_load_dwordx4 v%d, %s, s%d offen lds" % (vDN, sr(SRN), sKN))
            P.append((tag, L))
        for mat in range(2):
            mb_ = b * STB + NTB + mat * MTB
            for q in range(3):
                if q < 2:
                    L = ["s_add_u32 m0, s%d, 0x%x" % (sW1024, mb_ + q * 8192), "s_nop 0"]
                else:
                    L = ["s_add_u32 m0, s%d, 0x%x" % (sW256, mb_ + 16384), "s_mov_b64 exec, 0xffff"]
                L.append("buffer_load_dwordx4 v%d, %s, s%d offen lds" % (vDM[q], sr(SRM[mat]), sKM))
                if q == 2:
                    L.append("s_mov_b64 exec, -1")
                P.append((tag, L))
        P[-1] = (tag, P[-1][1] + ["s_add_u32 s%d, s%d, 128" % (sKN, sKN), "s_add_u32 s%d, s%d, 0x%x" % (sKM, sKM, 64 * 9216)])
        return P

    for stg in range(NBUF):
        for tag, L in dma(stg):
            for x in L:
                k.e(x, tag)
        if stg == 0:
            code_prefetch(k, sW, vLane, vT0, vPF, 72, sTmp)
    for n, (ka, nb_) in enumerate(pf):
        srd(k, 56 + 4 * n, 56 + 4 * n, 0, None, nb_)
    k.e("s_lshl_b32 s%d, s%d, 12" % (sTmp, sW))
    k.e("v_and_b32 v%d, 15, v%d" % (vT0, vLane))
    k.e("v_lshrrev_b32 v%d, 4, v%d" % (vT1, vLane))
    k.e("v_bfe_u32 v%d, v%d, 1, 3" % (vT2, vLane))
    k.e("v_xor_b32 v%d, v%d, v%d" % (vT2, vT1, vT2))
    k.e("v_lshlrev_b32 v%d, 4, v%d" % (vT2, vT2))
    k.e("v_lshl_add_u32 v%d, v%d, 7, v%d" % (vT2, vT0, vT2))
    k.e("v_add_u32 v%d, s%d, v%d" % (vT3, sTmp, vT2))
    for b in range(NBUF):
        k.e("v_add_u32 v%d, 0x%x, v%d" % (vRN[b][0], b * STB, vT3))
        k.e("v_xor_b32 v%d, 64, v%d" % (vRN[b][1], vRN[b][0]))
    tr_raddr(k, vT2, vLane, vT3)
    for b in range(NBUF):
        k.e("v_add_u32 v%d, 0x%x, v%d" % (vRM[b], b * STB + NTB, vT2))
    k.e("s_lshl_b32 s44, s37, 3")
    k.e("s_add_u32 s44, s44, s%d" % sW)
    k.e("s_mul_i32 s44, s44, 288")
    k.e("s_mul_i32 s46, s38, 9")
    k.e("s_add_u32 s44, s44, s46")
    k.e("s_lshl_b32 s44, s44, 10")
    srd(k, SRO, 4, WS_H, 44, WS_H + HB)
    k.e("v_lshlrev_b32 v%d, 4, v%d" % (vO, vLane))
    k.e("s_mov_b32 s46, 0x%08x" % f32bits(-1.4426950408889634))
    stamp(k, 1)
    k.vneed("D0")
    k.e("s_barrier")
    stamp(k, 2)
    tiles = [(m, j) for j in range(9) for m in range(2)]
    vA = {(t, i): vAbase + 4 * (ti * 2 + i) for ti, t in enumerate(tiles) for i in range(2)}

    def rd_m(stg, ks, t, reg, tag):
        o = t[0] * MTB + ks * 9216 + t[1] * 32
        k.lds("ds_read_b64_tr_b16 %s, v%d offset:%d" % (vr(reg, 2), vRM[stg % NBUF], o), tag)
        k.lds("ds_read_b64_tr_b16 %s, v%d offset:%d" % (vr(reg + 2, 2), vRM[stg % NBUF], o + 2304), tag)

    def rd_n(stg, ks, i, reg, tag):
        k.lds("ds_read_b128 %s, v%d offset:%d" % (vr(reg), vRN[stg % NBUF][ks], i * 2048), tag)

    def ald():
        L = ["s_lshl_b32 s%d, s2, 3" % sTmp, "s_add_u32 s%d, s%d, s%d" % (sTmp, sTmp, sW), "s_lshl_b32 s%d, s%d, 12" % (sTmp, sTmp),
             "v_lshl_add_u32 v%d, v%d, 6, s%d" % (vT0, vLane, sTmp)]
        for n in range(len(pf)):
            L.append("buffer_load_dword v%d, v%d, %s, 0 offen" % (vPF, vT0, sr(56 + 4 * n)))
        return [("PF", L)]

    engine(k, tiles, 2, KS, NS, NBUF, W, 2, int(OPT.get('delta', 3)), rd_m, rd_n, dma,
           lambda t, tl, i: vA[(tl, i)], lambda t, ks: t == 0 and ks == 0, vM, vN, sLoop,
           after_last_dma=ald if pf else None)
    k.e("s_nop 7")
    k.e("s_nop 3")
    stamp(k, 3)
    TB = 20
    for j in range(9):
        o = TB + 4 * (j % 4)
        for i in range(2):
            g = vA[((0, j), i)]
            u_ = vA[((1, j), i)]
            for r in range(4):
                k.e("v_mul_f32 v%d, s46, v%d" % (g + r, g + r))
            for r in range(4):
                k.e("v_exp_f32 v%d, v%d" % (g + r, g + r))
            for r in range(4):
                k.e("v_add_f32 v%d, 1.0, v%d" % (g + r, g + r))
            for r in range(4):
                k.e("v_rcp_f32 v%d, v%d" % (g + r, g + r))
            for r in range(4):
                k.e("v_mul_f32 v%d, v%d, v%d" % (g + r, g + r, u_ + r))
            k.e("v_cvt_pk_bf16_f32 v%d, v%d, v%d" % (o + 2 * i, g, g + 1))
            k.e("v_cvt_pk_bf16_f32 v%d, v%d, v%d" % (o + 2 * i + 1, g + 2, g + 3))
        if j % 4 == 0:
            k.e("s_mov_b32 s%d, %d" % (sTmp, j * 1024))
        else:
            k.e("s_nop 0")
        k.e("s_nop 0")
        k.e("v_permlane16_swap_b32 v%d, v%d" % (o, o + 2))
        k.e("v_permlane16_swap_b32 v%d, v%d" % (o + 1, o + 3))
        k.e("s_nop 0")
        k.e("buffer_store_dwordx4 %s, v%d, %s, s%d offen offset:%d" % (vr(o), vO, sr(SRO), sTmp, (j % 4) * 1024))
    stamp(k, 4)
    stamp_store(k, kidx)
    footer(k, nvgpr, 100 if STAMP else 76)
    return k, nwg, 512, NBUF * STB


def main():
    ks = {}
    ks['a1'] = gen_gemm(MAIN + "_kernel", 'A1L', None, 0, pf=((KA_CR, S * S * 2), (KA_CI, S * S * 2), (KA_WG, D * F * 2), (KA_WU, D * F * 2)))
    ks['a2r1'] = gen_gemm("a2r1_kernel", 'A2', (0, ('in', KA_X), ('ws', WS_X1), True), 1, pf=((KA_WD, D * F * 2),))
    ks['b1'] = gen_b1("b1n_kernel", 2)
    ks['b2r1'] = gen_gemm("b2n1_kernel", 'B2', (1, ('ws', WS_X1), ('ws', WS_X2), True), 3)
    ks['a1b'] = gen_gemm("a1b_kernel", 'A1', None, 4)
    ks['a2r2'] = gen_gemm("a2r2_kernel", 'A2', (2, ('ws', WS_X2), ('ws', WS_X1), True), 5)
    ks['b2r2'] = gen_gemm("b2n2_kernel", 'B2', (3, ('ws', WS_X1), ('out', 0), False), 7)
    order = ['a1', 'a2r1', 'b1', 'b2r1', 'a1b', 'a2r2', 'b1', 'b2r2']
    if STAMP:
        ks['b1b'] = gen_b1("b1nb_kernel", 6)
        order[6] = 'b1b'
    out = ["; FNet (DFT matmul) + GLU interleaved layers; generated by gen3.py"]
    for n in order:
        kk, nwg, blk, lds = ks[n]
        out.append("; @launch kernel=%s grid=(%d,1,1) block=(%d,1,1) lds=%d" % (kk.name, nwg, blk, lds))
    out.append('.amdgcn_target "amdgcn-amd-amdhsa--gfx950"')
    out.append(".text")
    for n, (kk, nwg, blk, lds) in ks.items():
        out.append(".globl %s" % kk.name)
        out += kk.lines
    open(sys.argv[1] if len(sys.argv) > 1 else "cdna_kernels/%s.s" % MAIN, "w").write("\n".join(out) + "\n")


if __name__ == "__main__":
    main()
```

```python
import sys, os, struct
OPT = dict(x.split('=') for x in os.environ.get('GENOPT', '').split(',') if x)
STAMP = int(OPT.get('stamp', 0))
PF = int(OPT.get('pf', 0))
STF = {'': '', 'sc1': ' sc1', 'nt': ' nt', 'sc01': ' sc0 sc1'}[OPT.get('stf', 'sc01')]
XF = {'sc1': ' sc1', 'sc01': ' sc0 sc1'}[OPT.get('xf', 'sc01')]

LF = {'x': XF, 'p': '', 'sc1': ' sc1', 'nt': ' nt'}[OPT.get('lf', 'x')]
MAIN = "interleave_layers__spectral_fnet__glu_gated_glu__prompt"
S, D, F = 2048, 576, 4608
KA_X, KA_CR, KA_CI, KA_WR, KA_WI, KA_BX, KA_WG, KA_WU, KA_WD, KA_OUT, KA_DBG, KA_WS = [8 * i for i in range(12)]
WS_XN = 0x0000000
WS_X1 = 0x0400000
WS_X2 = 0x0800000
WS_AB = 0x0C00000
WS_XNB = 0x2000000
WS_XNC = 0x2400000
WS_X3 = 0x2800000
WS_AB2 = 0x5800000
WS_H2 = 0x4400000
WS_FL = 0x1200000
WS_P = 0x1400000
WS_P2 = 0x1E00000
WS_H = 0x3000000
HB = S * F * 2
WS_DBG = 0x8000000
XB = S * D * 2
MTB = 18432


def f32bits(x):
    return struct.unpack("<I", struct.pack("<f", x))[0]


class K:
    def __init__(self, name):
        self.name = name
        self.lines = []
        self.pend = []
        self.vm = []
        self.nlab = 0

    def e(self, s, vtag=None):
        if s.startswith('buffer_store') and ' sc' not in s:
            s += STF
        if s.startswith('buffer_') or s.startswith('global_'):
            self.vm.append(vtag)
        self.lines.append("    " + s)

    def label(self, l):
        self.lines.append(l + ":")

    def newlabel(self, p="L"):
        self.nlab += 1
        return "%s_%s_%d" % (p, self.name[-12:], self.nlab)

    def lds(self, s, tag):
        if OPT.get('nolds') and tag[0] in OPT.get('nolds'):
            return
        if len(self.pend) >= 15:
            self.e("s_waitcnt lgkmcnt(13)")
            self.pend = self.pend[-13:]
        self.e(s)
        self.pend.append(tag)

    def need(self, *tags):
        idx = -1
        for i, p in enumerate(self.pend):
            if p in tags:
                idx = i
        if idx < 0:
            return
        n = min(len(self.pend) - 1 - idx, 14)
        self.e("s_waitcnt lgkmcnt(%d)" % n)
        self.pend = self.pend[len(self.pend) - n:] if n else []

    def vneed(self, tag, lgkm0=False):
        idx = -1
        for i, p in enumerate(self.vm):
            if p == tag:
                idx = i
        extra = " lgkmcnt(0)" if lgkm0 else ""
        if lgkm0:
            self.pend = []
        if idx < 0:
            if lgkm0:
                self.e("s_waitcnt lgkmcnt(0)")
            return
        n = len(self.vm) - 1 - idx
        assert n < 63
        self.e("s_waitcnt vmcnt(%d)%s" % (n, extra))
        self.vm = self.vm[len(self.vm) - n:] if n else []

    def vm0(self):
        self.e("s_waitcnt vmcnt(0)")
        self.vm = []


def vr(b, n=4):
    return "v[%d:%d]" % (b, b + n - 1)


def sr(b, n=4):
    return "s[%d:%d]" % (b, b + n - 1)


def header(k, nwg):
    k.lines.append(".p2align 8")
    k.lines.append(".type %s,@function" % k.name)
    k.label(k.name)
    k.e("s_cmp_ge_u32 s2, %d" % nwg)
    k.e("s_cbranch_scc1 L_end_%s" % k.name)


def footer(k, nvgpr, nsgpr=64):
    k.label("L_end_%s" % k.name)
    k.e("s_endpgm")
    acc = (nvgpr + 3) // 4 * 4
    k.lines.append(""".section .rodata,"a"
.p2align 6
.amdhsa_kernel %s
  .amdhsa_next_free_vgpr %d
  .amdhsa_next_free_sgpr %d
  .amdhsa_accum_offset %d
  .amdhsa_group_segment_fixed_size 0
  .amdhsa_kernarg_size 96
  .amdhsa_user_sgpr_count 2
  .amdhsa_user_sgpr_kernarg_segment_ptr 1
  .amdhsa_system_sgpr_workgroup_id_x 1
.end_amdhsa_kernel
.text""" % (k.name, nvgpr, nsgpr, acc))


def srd(k, d, pbase, off_const, off_sgpr, total):
    k.e("s_add_u32 s%d, s%d, 0x%x" % (d, pbase, off_const))
    k.e("s_addc_u32 s%d, s%d, 0" % (d + 1, pbase + 1))
    if off_sgpr is None:
        k.e("s_mov_b32 s%d, 0x%x" % (d + 2, total - off_const))
    else:
        k.e("s_add_u32 s%d, s%d, s%d" % (d, d, off_sgpr))
        k.e("s_addc_u32 s%d, s%d, 0" % (d + 1, d + 1))
        k.e("s_sub_u32 s%d, 0x%x, s%d" % (d + 2, total - off_const, off_sgpr))
    k.e("s_and_b32 s%d, s%d, 0xffff" % (d + 1, d + 1))
    k.e("s_mov_b32 s%d, 0x20000" % (d + 3))


SB = 76


def stamp(k, idx, real=0):
    if not STAMP or (STAMP == 2 and not real):
        return
    if OPT.get('pst') and idx in (4, 5, 6) and getattr(k, 'st%d' % idx, False):
        return
    if OPT.get('pst') and idx == 4:
        return
    setattr(k, 'st%d' % idx, True)
    k.e("s_memtime s[%d:%d]" % (SB + 2 * idx, SB + 1 + 2 * idx))
    if real:
        k.e("s_memrealtime s[%d:%d]" % (SB + 16 + 2 * real - 2, SB + 17 + 2 * real - 2))
    k.e("s_waitcnt lgkmcnt(0)")
    k.pend = []


def stamp_store(k, kidx):
    if not STAMP:
        return
    k.vm0()
    stamp(k, 7, 2)
    if STAMP == 2:
        k.e("s_cmp_lg_u32 s2, 100")
        k.e("s_cbranch_scc1 L_end_%s" % k.name)
        k.e("s_load_dwordx2 s[24:25], s[0:1], %d" % KA_DBG)
        k.e("s_waitcnt lgkmcnt(0)")
        k.e("s_add_u32 s24, s24, %d" % ((7 - kidx) * 512 + kidx * 8))
        k.e("s_addc_u32 s25, s25, 0")
        k.e("s_and_b32 s25, s25, 0xffff")
        k.e("s_mov_b32 s26, 8")
        k.e("s_mov_b32 s27, 0x20000")
        k.e("v_cmp_eq_u32 vcc, 0, v0")
        k.e("s_and_saveexec_b64 s[46:47], vcc")
        k.e("s_cbranch_execz L_end_%s" % k.name)
        k.e("v_mov_b32 v1, 0")
        k.e("v_mov_b32 v2, s%d" % (SB + 16))
        k.e("v_mov_b32 v3, s%d" % (SB + 18))
        k.e("buffer_store_dwordx2 v[2:3], v1, s[24:27], 0 offen")
        return
    k.e("s_lshl_b32 s44, s2, 7")
    k.e("s_add_u32 s44, s44, 0x%x" % (kidx * 65536))
    srd(k, 24, 4, WS_DBG, 44, WS_DBG + 16 * 65536)
    lsk = k.newlabel("LSS")
    k.e("v_cmp_eq_u32 vcc, 0, v0")
    k.e("s_and_saveexec_b64 s[46:47], vcc")
    k.e("s_cbranch_execz %s" % lsk)
    k.e("v_mov_b32 v1, 0")
    for i in range(10):
        k.e("v_mov_b32 v2, s%d" % (SB + 2 * i))
        k.e("v_mov_b32 v3, s%d" % (SB + 1 + 2 * i))
        k.e("buffer_store_dwordx2 v[2:3], v1, s[24:27], 0 offen offset:%d" % (8 * i))
        k.e("s_nop 1")
    k.label(lsk)
    k.e("s_mov_b64 exec, -1")
    k.vm0()


def publish(k, farr, sIdx, sW):
    k.vm0()
    k.e("s_barrier")
    lsk = k.newlabel("LPB")
    k.e("s_cmp_lg_u32 s%d, 0" % sW)
    k.e("s_cbranch_scc1 %s" % lsk)
    srd(k, 72, 4, WS_FL + farr * 1024, None, WS_FL + 8192)
    k.e("s_mov_b64 exec, 1")
    k.e("s_lshl_b32 s46, s%d, 2" % sIdx)
    k.e("v_mov_b32 v2, s46")
    k.e("v_mov_b32 v3, 1")
    k.e("buffer_store_dword v3, v2, s[72:75], 0 offen" + XF)
    k.e("s_mov_b64 exec, -1")
    k.label(lsk)
    k.vm = ["F"]


def wait_flags(k, farr, nl, vIdx, vT):
    srd(k, 72, 4, WS_FL + farr * 1024, None, WS_FL + 8192)
    lp = k.newlabel("LFW")
    ld = k.newlabel("LFD")
    k.e("v_lshlrev_b32 v%d, 2, v%d" % (vIdx, vIdx))
    if nl < 64:
        k.e("s_mov_b64 exec, 0x%x" % ((1 << nl) - 1))
    k.e("s_mov_b32 s45, 0")
    k.label(lp)
    k.e("buffer_load_dword v%d, v%d, s[72:75], 0 offen%s" % (vT, vIdx, XF))
    k.vm0()
    k.e("v_cmp_ne_u32 vcc, 1, v%d" % vT)
    k.e("s_nop 3")
    k.e("s_cmp_eq_u64 vcc, 0")
    k.e("s_cbranch_scc1 %s" % ld)
    k.e("s_add_u32 s45, s45, 1")
    k.e("s_cmp_lt_u32 s45, 0x100000")
    k.e("s_cbranch_scc1 %s" % lp)
    k.label(ld)
    k.e("s_mov_b64 exec, -1")


def code_prefetch(k, sW, vLane, vA_, vD, SR, sTmp):
    if not int(OPT.get('cpf', 0)):
        return
    lab = k.newlabel("LPC")
    k.e("s_getpc_b64 s[%d:%d]" % (SR, SR + 1))
    k.label(lab)
    k.e("s_sub_u32 s%d, s%d, %s-%s" % (SR, SR, lab, k.name))
    k.e("s_subb_u32 s%d, s%d, 0" % (SR + 1, SR + 1))
    k.e("s_and_b32 s%d, s%d, 0xffff" % (SR + 1, SR + 1))
    k.e("s_mov_b32 s%d, L_end_%s-%s" % (SR + 2, k.name, k.name))
    k.e("s_mov_b32 s%d, 0x20000" % (SR + 3))
    k.e("s_lshl_b32 s%d, s%d, 13" % (sTmp, sW))
    k.e("v_lshl_add_u32 v%d, v%d, 7, s%d" % (vA_, vLane, sTmp))
    k.e("buffer_load_dword v%d, v%d, %s, 0 offen" % (vD, vA_, sr(SR)), "C")


def wave_sum(k, v, sbase):
    for ctl in ("quad_perm:[1,0,3,2]", "quad_perm:[2,3,0,1]", "row_half_mirror", "row_mirror"):
        k.e("s_nop 1")
        k.e("v_add_f32_dpp %s, %s, %s %s row_mask:0xf bank_mask:0xf" % (v, v, v, ctl))
    k.e("s_nop 1")
    for i in range(4):
        k.e("v_readlane_b32 s%d, %s, %d" % (sbase + i, v, 16 * i))
    k.e("s_nop 1")
    k.e("v_mov_b32 %s, s%d" % (v, sbase))
    for i in range(1, 4):
        k.e("v_add_f32 %s, s%d, %s" % (v, sbase + i, v))


def r_body(k, vrow, vlane, ysrc, has_xout, ln, SX, SO, SN, hook=None):
    k.e("v_mul_u32_u24 v4, 1152, v%d" % vrow)
    k.e("v_lshl_add_u32 v7, v%d, 3, v4" % vlane)
    k.e("v_lshl_add_u32 v8, v%d, 1, v4" % vlane)
    k.e("buffer_load_dwordx2 v[10:11], v7, %s, 0 offen" % sr(SX), "X")
    k.e("buffer_load_dwordx2 v[12:13], v7, %s, 0 offen offset:512" % sr(SX), "X")
    k.e("buffer_load_ushort v14, v8, %s, 0 offen offset:1024" % sr(SX), "X")
    if hook:
        hook()
    X = 30
    A = 16
    if ysrc:
        ysrc()
    k.vneed("X")
    for i, src in enumerate([10, 11, 12, 13]):
        k.e("v_lshlrev_b32 v%d, 16, v%d" % (X + 2 * i, src))
        k.e("v_and_b32 v%d, 0xffff0000, v%d" % (X + 2 * i + 1, src))
    k.e("v_lshlrev_b32 v%d, 16, v14" % (X + 8))
    if ysrc:
        for e in range(9):
            k.e("v_add_f32 v%d, v%d, v%d" % (X + e, X + e, A + e))
        for i in range(4):
            k.e("v_cvt_pk_bf16_f32 v%d, v%d, v%d" % (10 + i, X + 2 * i, X + 2 * i + 1))
        k.e("v_cvt_pk_bf16_f32 v14, v%d, v%d" % (X + 8, X + 8))
        if has_xout:
            k.e("buffer_store_dwordx2 v[10:11], v7, %s, 0 offen" % sr(SO))
            k.e("buffer_store_dwordx2 v[12:13], v7, %s, 0 offen offset:512" % sr(SO))
            k.e("buffer_store_short v14, v8, %s, 0 offen offset:1024" % sr(SO))
        if ln:
            for i, src in enumerate([10, 11, 12, 13]):
                k.e("v_lshlrev_b32 v%d, 16, v%d" % (X + 2 * i, src))
                k.e("v_and_b32 v%d, 0xffff0000, v%d" % (X + 2 * i + 1, src))
            k.e("v_lshlrev_b32 v%d, 16, v14" % (X + 8))
    if ln:
        k.e("v_add_f32 v20, v%d, v%d" % (X, X + 1))
        k.e("v_add_f32 v21, v%d, v%d" % (X + 2, X + 3))
        k.e("v_add_f32 v22, v%d, v%d" % (X + 4, X + 5))
        k.e("v_add_f32 v23, v%d, v%d" % (X + 6, X + 7))
        k.e("v_add_f32 v20, v20, v21")
        k.e("v_add_f32 v22, v22, v23")
        k.e("v_add_f32 v20, v20, v%d" % (X + 8))
        k.e("v_add_f32 v20, v20, v22")
        wave_sum(k, "v20", 32)
        k.e("v_mul_f32 v20, 0x%08x, v20" % f32bits(1.0 / D))
        for e in range(9):
            k.e("v_sub_f32 v%d, v%d, v20" % (X + e, X + e))
        k.e("v_mul_f32 v21, v%d, v%d" % (X, X))
        k.e("v_mul_f32 v22, v%d, v%d" % (X + 1, X + 1))
        for e in range(2, 9):
            k.e("v_fmac_f32 v%d, v%d, v%d" % (21 + (e & 1), X + e, X + e))
        k.e("v_add_f32 v21, v21, v22")
        wave_sum(k, "v21", 32)
        k.e("v_mov_b32 v22, 0x%08x" % f32bits(1e-5))
        k.e("v_fmac_f32 v22, 0x%08x, v21" % f32bits(1.0 / D))
        k.e("v_rsq_f32 v22, v22")
        k.e("s_nop 0")
        for e in range(9):
            k.e("v_mul_f32 v%d, v%d, v22" % (X + e, X + e))
        for i in range(4):
            k.e("v_cvt_pk_bf16_f32 v%d, v%d, v%d" % (24 + i, X + 2 * i, X + 2 * i + 1))
        k.e("v_cvt_pk_bf16_f32 v28, v%d, v%d" % (X + 8, X + 8))
        k.e("buffer_store_dwordx2 v[24:25], v7, %s, 0 offen" % sr(SN))
        k.e("buffer_store_dwordx2 v[26:27], v7, %s, 0 offen offset:512" % sr(SN))
        k.e("buffer_store_short v28, v8, %s, 0 offen offset:1024" % sr(SN))


def gen_r0(name):
    k = K(name)
    nwg = S // 4
    header(k, nwg)
    k.e("s_load_dwordx2 s[4:5], s[0:1], %d" % KA_WS)
    k.e("s_load_dwordx2 s[6:7], s[0:1], %d" % KA_X)
    pf = [(KA_WR, D * D * 2), (KA_WI, D * D * 2), (KA_CR, S * S * 2), (KA_CI, S * S * 2)] if PF else []
    for n, (ka, nb_) in enumerate(pf):
        k.e("s_load_dwordx2 s[%d:%d], s[0:1], %d" % (40 + 4 * n, 41 + 4 * n, ka))
    k.e("v_lshrrev_b32 v1, 6, v0")
    k.e("v_and_b32 v2, 63, v0")
    k.e("s_lshl_b32 s3, s2, 2")
    k.e("v_add_u32 v1, s3, v1")
    k.e("s_waitcnt lgkmcnt(0)")
    srd(k, 12, 6, 0, None, XB)
    srd(k, 24, 4, WS_XN, None, WS_XN + XB)
    for n, (ka, nb_) in enumerate(pf):
        srd(k, 40 + 4 * n, 40 + 4 * n, 0, None, nb_)
    k.e("s_mul_i32 s3, s2, 18432")
    srd(k, 16, 4, WS_P, 3, WS_P + 4 * XB)
    k.e("s_mov_b32 s18, 18432")
    k.e("v_lshrrev_b32 v3, 6, v0")
    k.e("v_mul_u32_u24 v3, 5120, v3")
    k.e("v_lshl_add_u32 v3, v2, 4, v3")
    for r in range(4):
        k.e("v_mov_b32 v%d, 0" % (36 + r))
    for n in range(4):
        k.e("buffer_store_dwordx4 v[36:39], v3, s[16:19], 0 offen offset:%d" % (n * 1024))
    k.e("s_mov_b32 s3, 4096")
    k.e("buffer_store_dwordx4 v[36:39], v3, s[16:19], s3 offen")

    def hook():
        if pf:
            k.e("v_lshlrev_b32 v42, 12, v1")
            k.e("v_lshl_add_u32 v42, v2, 6, v42")
            for n in range(len(pf)):
                k.e("buffer_load_dword v43, v42, %s, 0 offen" % sr(40 + 4 * n))
    r_body(k, 1, 2, None, False, True, 12, None, 24, hook=hook)
    footer(k, 44, 60)
    return k, nwg, 256, 0


def engine(k, tiles, NFR, KS, NS, NBUF, W, NSET, DELTA, rd_m, rd_n, dma, acc, first, vM, vN, sLoop,
           n_static=False, after_use=None, after_last_dma=None, npre=None, stage_extra=None):
    nt = len(tiles)
    UPS = KS * nt
    total = NS * UPS
    NSL = W
    W = W - int(OPT.get('lag', 2))
    st = {'nrM': 0, 'nrN': 0, 'pub': 0, 'ald': False}
    k.pend = []

    BUD = int(OPT.get('bud', 3))

    def pump(udone, maxm=2):
        bud = BUD if maxm < 50 else 999
        while bud > 0:
            f = st['nrN']
            s_ = f // NFR
            okN = s_ < NS * KS and (n_static or s_ // KS <= st['pub']) and s_ - NSET < udone // nt
            u = st['nrM']
            okM = u < total and u // UPS <= st['pub'] and u - W < udone
            if okN and (not okM or s_ * nt <= u):
                rd_n(s_ // KS, s_ % KS, f % NFR, vN[s_ % NSET][f % NFR], "N%d" % (s_ % NSET))
                st['nrN'] += 1
                bud -= 1
            elif okM:
                stg, rem = divmod(u, UPS)
                ks, ti = divmod(rem, nt)
                rd_m(stg, ks, tiles[ti], vM[u % NSL], "M%d" % (u % NSL))
                st['nrM'] += 1
                bud -= 2
            else:
                break

    pump(0, maxm=99)
    pre = k.lines
    k.lines = []
    blocks = []
    pos = max(1, min(UPS, UPS - W + DELTA))
    for t in range(NS):
        last = (t == NS - 1)
        extras = []
        for r in range(UPS):
            u = t * UPS + r
            ks, ti = divmod(r, nt)
            s = t * KS + ks
            k.need("M%d" % (u % NSL), "N%d" % (s % NSET))
            for i in range(NFR):
                a = acc(t, tiles[ti], i)
                c = "0" if first(t, ks) else vr(a)
                if not (OPT.get('nomfma') and t > 0):
                    k.e("v_mfma_f32_16x16x32_bf16 %s, %s, %s, %s" % (vr(a), vr(vM[u % NSL]), vr(vN[s % NSET][i]), c))
            if not last and r + 1 == pos:
                assert st['nrM'] == (t + 1) * UPS, (st, t)
                assert n_static or st['nrN'] >= (t + 1) * KS * NFR, (st, t)
                k.vneed("D%d" % (t + 1), lgkm0=True)
                k.e("s_barrier")
                st['pub'] = t + 1
                if t + NBUF < NS:
                    extras = dma(t + NBUF)
                    if OPT.get('nodma'):
                        extras = [(tg, [x for x in L if not x.startswith('buffer_load')]) for tg, L in extras]
                    if OPT.get('dropdma'):
                        pat = {'n': 'v8,', 'm': ('v9,', 'v10,', 'v11,'), 'q': 'v11,'}[OPT['dropdma']]
                        pats = pat if isinstance(pat, tuple) else (pat,)
                        extras = [(tg, [x for x in L if not (x.startswith('buffer_load') and any(p in x for p in pats))]) for tg, L in extras]
                elif after_last_dma and not st['ald']:
                    st['ald'] = True
                    extras = after_last_dma()
                if stage_extra:
                    extras = extras + stage_extra(t)
            pump(u + 1)
            if after_use:
                after_use(t, r)
            if extras:
                left = UPS - r
                n = (len(extras) + left - 1) // left
                for _ in range(n):
                    tag, L = extras.pop(0)
                    for x in L:
                        k.e(x, tag)
        assert not extras
        blocks.append(k.lines)
        k.lines = []
    best = None
    for U in (1, 2, 3, 4, 6):
        for a in range(NS):
            bnd = a + U
            while bnd + U <= NS and all(blocks[bnd + x] == blocks[a + x] for x in range(U)):
                bnd += U
            cnt = (bnd - a) // U
            if cnt >= 2 and (best is None or (cnt - 1) * U > (best[2] - 1) * best[3]):
                best = (a, bnd, cnt, U)
    out = pre
    if best is None:
        for bl in blocks:
            out += bl
    else:
        a, bnd, cnt, U = best
        for bl in blocks[:a]:
            out += bl
        lab = k.newlabel("LP")
        out.append("    s_mov_b32 s%d, %d" % (sLoop, cnt))
        out.append(lab + ":")
        for bl in blocks[a:a + U]:
            out += bl
        out.append("    s_sub_u32 s%d, s%d, 1" % (sLoop, sLoop))
        out.append("    s_cmp_lg_u32 s%d, 0" % sLoop)
        out.append("    s_cbranch_scc1 %s" % lab)
        for bl in blocks[bnd:]:
            out += bl
    k.lines = out


def tr_voff(k, vdst, sslot, vLane, T, stride, posmask):
    t0, t1, t2, t3, t4 = T
    k.e("v_add_u32 v%d, s%d, v%d" % (t0, sslot, vLane))
    k.e("v_mul_u32_u24 v%d, 3641, v%d" % (t1, t0))
    k.e("v_lshrrev_b32 v%d, 16, v%d" % (t1, t1))
    k.e("v_mul_u32_u24 v%d, 18, v%d" % (t2, t1))
    k.e("v_sub_u32 v%d, v%d, v%d" % (t2, t0, t2))
    k.e("v_and_b32 v%d, 0x%x, v%d" % (t3, posmask, t1))
    k.e("v_and_b32 v%d, 4, v%d" % (t4, t1))
    k.e("v_lshl_or_b32 v%d, v%d, 1, v%d" % (t3, t4, t3))
    k.e("v_and_b32 v%d, 8, v%d" % (t4, t1))
    k.e("v_lshrrev_b32 v%d, 1, v%d" % (t4, t4))
    k.e("v_or_b32 v%d, v%d, v%d" % (t3, t3, t4))
    k.e("v_mul_u32_u24 v%d, %d, v%d" % (vdst, stride, t3))
    k.e("v_lshl_add_u32 v%d, v%d, 4, v%d" % (vdst, t2, vdst))


def tr_raddr(k, vdst, vLane, t):
    k.e("v_lshrrev_b32 v%d, 5, v%d" % (vdst, vLane))
    k.e("v_lshlrev_b32 v%d, 4, v%d" % (vdst, vdst))
    k.e("v_bfe_u32 v%d, v%d, 4, 1" % (t, vLane))
    k.e("v_lshl_add_u32 v%d, v%d, 2, v%d" % (vdst, t, vdst))
    k.e("v_bfe_u32 v%d, v%d, 2, 2" % (t, vLane))
    k.e("v_add_u32 v%d, v%d, v%d" % (vdst, vdst, t))
    k.e("v_mul_u32_u24 v%d, 288, v%d" % (vdst, vdst))
    k.e("v_and_b32 v%d, 3, v%d" % (t, vLane))
    k.e("v_lshl_add_u32 v%d, v%d, 3, v%d" % (vdst, t, vdst))


def store_tiles_bf16(k, js, accf, vO, vO2, SRO, soff, sfl, TB, neg=None, colbase=0):
    idx = 0
    slot = 0
    while idx < len(js):
        pr = js[idx:idx + 2]
        if len(pr) == 2 and pr[1] != pr[0] + 1:
            pr = pr[:1]
        o = TB + 4 * (slot % 4)
        for n_, j in enumerate(pr):
            a = accf(j)
            k.e("v_cvt_pk_bf16_f32 v%d, v%d, v%d" % (o + 2 * n_, a, a + 1))
            k.e("v_cvt_pk_bf16_f32 v%d, v%d, v%d" % (o + 2 * n_ + 1, a + 2, a + 3))
            if neg is not None:
                k.e("v_xor_b32 v%d, s%d, v%d" % (o + 2 * n_, neg, o + 2 * n_))
                k.e("v_xor_b32 v%d, s%d, v%d" % (o + 2 * n_ + 1, neg, o + 2 * n_ + 1))
        if len(pr) == 2:
            k.e("s_nop 1")
            k.e("v_permlane16_swap_b32 v%d, v%d" % (o, o + 2))
            k.e("v_permlane16_swap_b32 v%d, v%d" % (o + 1, o + 3))
            k.e("s_nop 0")
            k.e("buffer_store_dwordx4 %s, v%d, %s, s%d offen offset:%d%s" % (vr(o), vO, sr(SRO), soff, colbase + pr[0] * 32, sfl))
        else:
            k.e("buffer_store_dwordx2 %s, v%d, %s, s%d offen offset:%d%s" % (vr(o, 2), vO2, sr(SRO), soff, colbase + pr[0] * 32, sfl))
        idx += len(pr)
        slot += 1


PREG = 36864


def store_native(k, tiles, accf, vP, SRO, sTmp, blk0, sblk, TB, par):
    for n, j in enumerate(tiles):
        o = TB + 4 * (n % 4)
        for i in range(2):
            a = accf(j, i)
            if par:
                k.e("v_and_b32 v%d, 0xfffe0000, v%d" % (a, a))
                k.e("v_or_b32 v%d, 0x10000, v%d" % (a, a))
            else:
                k.e("v_add_u32 v%d, 0x10000, v%d" % (a, a))
                k.e("v_and_b32 v%d, 0xfffe0000, v%d" % (a, a))
            k.e("v_cvt_pk_bf16_f32 v%d, v%d, v%d" % (o + 2 * i, a, a + 1))
            k.e("v_cvt_pk_bf16_f32 v%d, v%d, v%d" % (o + 2 * i + 1, a + 2, a + 3))
            k.e(("v_or_b32 v%d, 1, v%d" if par else "v_and_b32 v%d, -2, v%d") % (o + 2 * i, o + 2 * i))
        if n % 4 == 0:
            if sblk is None:
                k.e("s_mov_b32 s%d, %d" % (sTmp, (blk0 + j) * 1024))
            else:
                k.e("s_add_u32 s%d, s%d, %d" % (sTmp, sblk, (blk0 + j) * 1024))
        else:
            k.e("s_nop 0")
        k.e("s_nop 0")
        k.e("v_permlane16_swap_b32 v%d, v%d" % (o, o + 2))
        k.e("v_permlane16_swap_b32 v%d, v%d" % (o + 1, o + 3))
        k.e("s_nop 0")
        k.e("buffer_store_dwordx4 %s, v%d, %s, s%d offen offset:%d%s" % (vr(o), vP, sr(SRO), sTmp, (n % 4) * 1024, XF))


def r_tail(k, rcfg, npart, sW, vLane, sGroup, sMember, XBUF, WSP, XNO):
    freg, xin, xout, ln = rcfg
    if xin[0] == 'in':
        srd(k, 12, 48, 0, None, XB)
    else:
        srd(k, 12, 4, xin[1], None, xin[1] + XB)
    k.e("s_lshr_b32 s46, s%d, 2" % sMember)
    k.e("s_lshl_b32 s47, s%d, 2" % sGroup)
    k.e("s_add_u32 s46, s46, s47")
    k.e("s_mul_i32 s46, s46, %d" % PREG)
    srd(k, 20, 4, WSP, 46, WSP + npart * XB)
    if xout[0] == 'out':
        srd(k, 24, 50, 0, None, XB)
    else:
        srd(k, 24, 4, xout[1], None, xout[1] + XB)
    if ln:
        srd(k, 52, 4, XNO, None, XNO + XB)
    stamp(k, 4)
    k.e("s_lshl_b32 s46, s%d, 7" % sGroup)
    k.e("s_lshl_b32 s47, s%d, 3" % sMember)
    k.e("s_add_u32 s46, s46, s47")
    k.e("s_add_u32 s46, s46, s%d" % sW)
    k.e("v_mov_b32 v2, s46")
    PB0 = 44
    par = (rcfg[0] + 1) & 1

    def ysrc():
        k.e("s_lshr_b32 s46, s%d, 1" % sMember)
        k.e("s_and_b32 s46, s46, 1")
        k.e("s_lshl_b32 s46, s46, 8")
        k.e("s_and_b32 s47, s%d, 1" % sMember)
        k.e("s_lshl_b32 s47, s47, 7")
        k.e("s_add_u32 s46, s46, s47")
        for n, (mul, add) in enumerate(((64, 0), (8, 512))):
            k.e("s_mul_i32 s47, s%d, %d" % (sW, mul))
            k.e("s_add_u32 s47, s47, %d" % add)
            k.e("v_add_u32 v3, s47, v%d" % vLane)
            k.e("v_lshrrev_b32 v5, 4, v3")
            k.e("v_lshlrev_b32 v5, 10, v5")
            k.e("v_bfe_u32 v6, v3, 3, 1")
            k.e("v_lshl_add_u32 v5, v6, 9, v5")
            k.e("v_and_b32 v6, 7, v3")
            k.e("v_lshl_add_u32 v5, v6, 4, v5")
            k.e("v_add_u32 v%d, s46, v5" % (40 + n))
            k.e("v_mul_u32_u24 v5, 2336, v6")
            k.e("v_lshrrev_b32 v6, 3, v3")
            k.e("v_lshl_add_u32 v5, v6, 5, v5")
            k.e("v_add_u32 v%d, 0x%x, v5" % (42 + n, XBUF))
        for z in range(npart):
            for r in range(4):
                k.e("v_mov_b32 v%d, %d" % (PB0 + 8 * z + 4 + r, par))
        AB_ = PB0 + 8 * npart
        lp = k.newlabel("LW")
        ld = k.newlabel("LD")
        k.e("s_mov_b32 s45, 0")
        k.label(lp)
        for z in range(npart):
            k.e("s_mov_b32 s47, 0x%x" % (z * 64 * PREG))
            k.e("buffer_load_dwordx4 %s, v40, s[20:23], s47 offen%s" % (vr(PB0 + 8 * z), XF))
            k.e("s_mov_b64 exec, 0xff")
            k.e("buffer_load_dwordx4 %s, v41, s[20:23], s47 offen%s" % (vr(PB0 + 8 * z + 4), XF))
            k.e("s_mov_b64 exec, -1")
        k.vm0()
        regs = list(range(PB0, PB0 + 8 * npart, 2))
        op3 = "v_and_b32" if par else "v_or_b32"
        k.e("%s v26, v%d, v%d" % (op3, regs[0], regs[1]))
        k.e("%s v27, v%d, v%d" % (op3, regs[2], regs[3]))
        rest = regs[4:]
        n = 0
        while rest:
            d = 26 + (n & 1)
            if par:
                k.e("v_and_b32 v%d, v%d, v%d" % (d, d, rest[0]))
                rest = rest[1:]
            else:
                k.e("v_or3_b32 v%d, v%d, v%d, v%d" % (d, d, rest[0], rest[1]))
                rest = rest[2:]
            n += 1
        k.e("%s v26, v26, v27" % op3)
        k.e("v_and_b32 v26, 1, v26")
        k.e("v_cmp_ne_u32 vcc, %d, v26" % par)
        k.e("s_nop 3")
        k.e("s_cmp_eq_u64 vcc, 0")
        k.e("s_cbranch_scc1 %s" % ld)
        k.e("s_add_u32 s45, s45, 1")
        k.e("s_cmp_lt_u32 s45, 0x100000")
        k.e("s_cbranch_scc1 %s" % lp)
        k.label(ld)
        stamp(k, 5)
        if False:
            for r in range(4):
                k.e("v_mov_b32 v%d, -1" % (AB_ + 16 + r))
            for z in range(npart):
                k.e("s_mov_b32 s47, 0x%x" % (z * 64 * PREG))
                k.e("buffer_store_dwordx4 %s, v40, s[20:23], s47 offen" % vr(AB_ + 16))
                k.e("s_mov_b64 exec, 0xff")
                k.e("buffer_store_dwordx4 %s, v41, s[20:23], s47 offen" % vr(AB_ + 16))
                k.e("s_mov_b64 exec, -1")
        for z in range(npart):
            for h in range(2):
                for r in range(4):
                    src = PB0 + 8 * z + 4 * h + r
                    a = AB_ + 8 * h + 2 * r
                    if z == 0:
                        k.e("v_lshlrev_b32 v%d, 16, v%d" % (a, src))
                        k.e("v_and_b32 v%d, 0xffff0000, v%d" % (a + 1, src))
                    else:
                        k.e("v_lshlrev_b32 v26, 16, v%d" % src)
                        k.e("v_and_b32 v27, 0xffff0000, v%d" % src)
                        k.e("v_add_f32 v%d, v%d, v26" % (a, a))
                        k.e("v_add_f32 v%d, v%d, v27" % (a + 1, a + 1))
        k.e("ds_write_b128 v42, %s" % vr(AB_))
        k.e("ds_write_b128 v42, %s offset:16" % vr(AB_ + 4))
        k.e("s_mov_b64 exec, 0xff")
        k.e("ds_write_b128 v43, %s" % vr(AB_ + 8))
        k.e("ds_write_b128 v43, %s offset:16" % vr(AB_ + 12))
        k.e("s_mov_b64 exec, -1")
        k.e("s_mul_i32 s47, s%d, 2336" % sW)
        k.e("s_add_u32 s47, s47, 0x%x" % XBUF)
        k.e("v_lshl_add_u32 v5, v%d, 4, s47" % vLane)
        k.e("v_lshl_add_u32 v6, v%d, 2, s47" % vLane)
        k.e("s_waitcnt lgkmcnt(0)")
        k.e("s_barrier")
        k.e("ds_read_b128 v[16:19], v5")
        k.e("ds_read_b128 v[20:23], v5 offset:1024")
        k.e("ds_read_b32 v24, v6 offset:2048")
        k.e("s_waitcnt lgkmcnt(0)")
    r_body(k, 2, vLane, ysrc, True, ln, 12, 24, 52)
    return PB0 + 8 * npart + 20


def preset_pieces(k, sW, vLane, vA_, vD4, SR, sTmp, WSP):
    L = ["s_mul_i32 s%d, s2, %d" % (sTmp, PREG),
         "s_add_u32 s%d, s4, 0x%x" % (SR, WSP), "s_addc_u32 s%d, s5, 0" % (SR + 1),
         "s_add_u32 s%d, s%d, s%d" % (SR, SR, sTmp), "s_addc_u32 s%d, s%d, 0" % (SR + 1, SR + 1),
         "s_and_b32 s%d, s%d, 0xffff" % (SR + 1, SR + 1),
         "s_mov_b32 s%d, %d" % (SR + 2, PREG), "s_mov_b32 s%d, 0x20000" % (SR + 3),
         "s_mul_i32 s%d, s%d, 5120" % (sTmp, sW),
         "v_lshl_add_u32 v%d, v%d, 4, s%d" % (vA_, vLane, sTmp)]
    for r in range(4):
        L.append("v_mov_b32 v%d, -1" % (vD4 + r))
    P = [("S", L + ["buffer_store_dwordx4 %s, v%d, %s, 0 offen" % (vr(vD4), vA_, sr(SR))])]
    for n in range(1, 4):
        P.append(("S", ["buffer_store_dwordx4 %s, v%d, %s, 0 offen offset:%d" % (vr(vD4), vA_, sr(SR), n * 1024)]))
    P.append(("S", ["s_mov_b32 s%d, 4096" % sTmp, "buffer_store_dwordx4 %s, v%d, %s, s%d offen" % (vr(vD4), vA_, sr(SR), sTmp)]))
    return P


def gen_gemm(k, kind, rcfg=None, kidx=0, pf=(), xn=None, ab=None, h=None, dep=None, pub=None):
    nwg = 256
    k.pend = []
    LNF = (kind == 'A1L')
    if LNF:
        kind = 'A1'
    if kind == 'A2':
        NFR, NBUF, mmode, NS = 2, 4, 'tr', 16
        strideN, strideM = 4096, 1152
    elif kind == 'B2':
        NFR, NBUF, mmode, NS = 2, 4, 'tr', 18
        strideN, strideM = 0, 1152
    else:
        NFR, NBUF, mmode, NS = 1, 4, 'row', 9
        strideN, strideM = 1152, 1152
    WSP, WSPO = WS_P, WS_P
    groups = [list(range(5)), list(range(5, 9))]
    NSET = 4
    NT = 4 * NFR * 16
    NTB = NT * 128
    STB = NTB + MTB
    NDN = NT // 64
    LDSB = NBUF * STB + (8 * 2336 if rcfg else 0)
    MB0 = NTB
    if LNF:
        STB, NDN, MB0 = MTB, 0, 73728
        LDSB = 73728 + NBUF * MTB
    KS = 2
    Wmul = float(OPT.get('twmul', 2.0))
    Wmax = int(5 * Wmul + 0.5)

    vLane, vT0, vT1, vT2, vT3, vT4 = 1, 2, 3, 4, 5, 6
    vO = 7
    vDN = 8
    vDM = [9, 10, 11]
    nxt = 12
    nrm = KS if mmode == 'row' else 1
    vRN = [[0] * KS for _ in range(NBUF)]
    vRM = [[0] * nrm for _ in range(NBUF)]
    for b in range(NBUF):
        for s_ in range(KS):
            vRN[b][s_] = nxt; nxt += 1
        for s_ in range(nrm):
            vRM[b][s_] = nxt; nxt += 1
    nxt = (nxt + 3) // 4 * 4
    vPA, vPS, vPD = nxt, nxt + 2, nxt + 3
    nxt += 4
    PD = int(OPT.get('pd', 0)) if kind in ('A2', 'B2') else 0
    vM = [nxt + 4 * j for j in range(Wmax)]; nxt += 4 * Wmax
    vN = [[nxt + 4 * (p * NFR + i) for i in range(NFR)] for p in range(NSET)]; nxt += 4 * NSET * NFR
    vAbase = nxt
    nxt += 4 * 5 * NFR
    nxt = max(nxt, 176 if LNF else 96)
    vPF = nxt
    nxt += 1
    nvgpr = nxt
    sW, sW1024, sW256, sKN, sKM, sTmp, sLoop = 28, 29, 30, 31, 32, 33, 40
    SRN, SRM, SRO = 12, 16, 24
    if not PF:
        pf = ()

    stamp(k, 0, 1)
    k.e("s_load_dwordx2 s[4:5], s[0:1], %d" % KA_WS)
    if kind == 'A2':
        k.e("s_load_dwordx4 s[8:11], s[0:1], %d" % KA_CR)
    elif kind == 'B2':
        k.e("s_load_dwordx2 s[8:9], s[0:1], %d" % KA_WD)
    else:
        k.e("s_load_dwordx2 s[8:9], s[0:1], %d" % KA_WR)
        k.e("s_load_dwordx2 s[10:11], s[0:1], %d" % KA_WI)
    if LNF:
        k.e("s_load_dwordx2 s[48:49], s[0:1], %d" % KA_X)
    if rcfg:
        if rcfg[1][0] == 'in':
            k.e("s_load_dwordx2 s[48:49], s[0:1], %d" % rcfg[1][1])
        if rcfg[2][0] == 'out':
            k.e("s_load_dwordx2 s[50:51], s[0:1], %d" % KA_OUT)
    for n, (ka, nb_) in enumerate(pf):
        k.e("s_load_dwordx2 s[%d:%d], s[0:1], %d" % (56 + 4 * n, 57 + 4 * n, ka))
    k.e("v_and_b32 v%d, 63, v0" % vLane)
    k.e("v_lshrrev_b32 v%d, 6, v0" % vT0)
    k.e("s_nop 0")
    k.e("v_readfirstlane_b32 s%d, v%d" % (sW, vT0))
    k.e("s_and_b32 s34, s2, 7")
    k.e("s_lshr_b32 s35, s2, 3")
    if kind in ('A2', 'B2'):
        k.e("s_and_b32 s36, s34, 3")
        k.e("s_lshr_b32 s37, s34, 2")
        k.e("s_lshl_b32 s37, s37, 3")
        k.e("s_lshr_b32 s38, s35, 2")
        k.e("s_add_u32 s37, s37, s38")
        k.e("s_and_b32 s38, s35, 3")
    else:
        k.e("s_mov_b32 s38, s34")
        k.e("s_mov_b32 s37, s35")
    k.e("s_lshl_b32 s%d, s%d, 10" % (sW1024, sW))
    k.e("s_lshl_b32 s%d, s%d, 8" % (sW256, sW))
    k.e("v_lshrrev_b32 v%d, 3, v%d" % (vT0, vLane))
    k.e("s_lshl_b32 s%d, s%d, 3" % (sTmp, sW))
    k.e("v_add_u32 v%d, s%d, v%d" % (vT0, sTmp, vT0))
    k.e("v_bfe_u32 v%d, v%d, 1, 3" % (vT1, vT0))
    k.e("v_and_b32 v%d, 7, v%d" % (vT2, vLane))
    k.e("v_xor_b32 v%d, v%d, v%d" % (vT1, vT1, vT2))
    if kind == 'B2':
        k.e("s_lshr_b32 s44, s%d, 2" % sW)
        k.e("s_mul_i32 s44, s44, %d" % (288 * 1024))
        k.e("s_and_b32 s45, s%d, 3" % sW)
        k.e("s_lshl_b32 s45, s45, 10")
        k.e("s_add_u32 s44, s44, s45")
        k.e("v_lshl_add_u32 v%d, v%d, 4, s44" % (vDN, vLane))
    else:
        k.e("v_mul_u32_u24 v%d, %d, v%d" % (vDN, strideN, vT0))
        k.e("v_lshl_add_u32 v%d, v%d, 4, v%d" % (vDN, vT1, vDN))
    if mmode == 'row':
        k.e("v_mul_u32_u24 v%d, %d, v%d" % (vDM[0], strideM, vT0))
        k.e("v_lshl_add_u32 v%d, v%d, 4, v%d" % (vDM[0], vT1, vDM[0]))
        k.e("v_lshrrev_b32 v%d, 3, v%d" % (vT0, vLane))
        k.e("s_lshl_b32 s%d, s%d, 1" % (sTmp, sW))
        k.e("s_add_u32 s%d, s%d, 128" % (sTmp, sTmp))
        k.e("v_add_u32 v%d, s%d, v%d" % (vT0, sTmp, vT0))
        k.e("v_bfe_u32 v%d, v%d, 1, 3" % (vT1, vT0))
        k.e("v_xor_b32 v%d, v%d, v%d" % (vT1, vT1, vT2))
        k.e("v_mul_u32_u24 v%d, %d, v%d" % (vDM[2], strideM, vT0))
        k.e("v_lshl_add_u32 v%d, v%d, 4, v%d" % (vDM[2], vT1, vDM[2]))
    else:
        for q in range(3):
            if q < 2:
                k.e("s_lshl_b32 s%d, s%d, 6" % (sTmp, sW))
                k.e("s_add_u32 s%d, s%d, %d" % (sTmp, sTmp, 512 * q))
            else:
                k.e("s_lshl_b32 s%d, s%d, 4" % (sTmp, sW))
                k.e("s_add_u32 s%d, s%d, 1024" % (sTmp, sTmp))
            tr_voff(k, vDM[q], sTmp, vLane, (vT0, vT1, vT2, vT3, vT4), strideM, 0x33)
    k.e("s_mov_b32 s%d, 0" % sKN)
    k.e("s_mov_b32 s%d, 0" % sKM)
    if OPT.get('pst'):
        k.e("s_memtime s[%d:%d]" % (SB + 8, SB + 9))
    k.e("s_waitcnt lgkmcnt(0)")
    if OPT.get('pst'):
        stamp(k, 5)
    if kind == 'A2':
        k.e("s_cmp_lt_u32 s36, 2")
        k.e("s_cselect_b32 s6, s8, s10")
        k.e("s_cselect_b32 s7, s9, s11")
        k.e("s_mul_i32 s44, s37, %d" % (128 * 4096))
        k.e("s_and_b32 s45, s36, 1")
        k.e("s_lshl_b32 s45, s45, 11")
        k.e("s_add_u32 s44, s44, s45")
        srd(k, SRN, 6, 0, 44, S * S * 2)
        k.e("s_mul_i32 s44, s36, %d" % (1024 * 1152))
        k.e("s_mul_i32 s45, s38, 288")
        k.e("s_add_u32 s44, s44, s45")
        srd(k, SRM, 4, ab, 44, ab + 2 * XB)
    elif kind == 'B2':
        k.e("s_mul_i32 s44, s37, %d" % (4 * 288 * 1024))
        k.e("s_mul_i32 s45, s36, %d" % (72 * 1024))
        k.e("s_add_u32 s44, s44, s45")
        srd(k, SRN, 4, h, 44, h + HB)
        k.e("s_mul_i32 s44, s36, %d" % (1152 * 1152))
        k.e("s_mul_i32 s45, s38, 288")
        k.e("s_add_u32 s44, s44, s45")
        srd(k, SRM, 8, 0, 44, F * D * 2)
    else:
        k.e("s_mul_i32 s44, s37, %d" % (64 * 1152))
        if LNF:
            srd(k, SRN, 48, 0, 44, XB)
            k.e("s_mul_i32 s44, s%d, %d" % (sW, 8 * 1152))
            k.e("v_lshl_add_u32 v%d, v%d, 3, s44" % (vT0, vLane))
            k.e("v_lshl_add_u32 v%d, v%d, 1, s44" % (vT1, vLane))
            for rr in range(8):
                b = 32 + 16 * rr
                k.e("s_mov_b32 s44, %d" % (rr * 1152))
                k.e("buffer_load_dwordx2 %s, v%d, %s, s44 offen" % (vr(b + 10, 2), vT0, sr(SRN)), "X")
                k.e("buffer_load_dwordx2 %s, v%d, %s, s44 offen offset:512" % (vr(b + 12, 2), vT0, sr(SRN)), "X")
                k.e("buffer_load_ushort v%d, v%d, %s, s44 offen offset:1024" % (b + 14, vT1, sr(SRN)), "X")
        else:
            srd(k, SRN, 4, xn, 44, xn + XB)
        k.e("s_cmp_lt_u32 s38, 4")
        k.e("s_cselect_b32 s6, s8, s10")
        k.e("s_cselect_b32 s7, s9, s11")
        k.e("s_and_b32 s45, s38, 3")
        k.e("s_mul_i32 s44, s45, %d" % (144 * 1152))
        srd(k, SRM, 6, 0, 44, D * D * 2)
    if PD:
        k.e("s_mul_i32 s45, s38, 288")
        k.e("s_sub_u32 s44, s%d, s45" % SRM)
        k.e("s_subb_u32 s45, s%d, 0" % (SRM + 1))
        k.e("s_lshl_b32 s46, s38, 5")
        k.e("s_lshl_b32 s47, s%d, 2" % sW)
        k.e("s_add_u32 s46, s46, s47")
        k.e("v_add_u32 v%d, s46, v%d" % (vT0, vLane))
        if kind == 'A2':
            k.e("v_lshlrev_b32 v%d, 12, v%d" % (vT1, vT0))
            SN = 128
        else:
            k.e("v_lshrrev_b32 v%d, 5, v%d" % (vT1, vT0))
            k.e("v_mul_u32_u24 v%d, %d, v%d" % (vT1, 288 * 1024, vT1))
            k.e("v_and_b32 v%d, 31, v%d" % (vT2, vT0))
            k.e("v_lshl_add_u32 v%d, v%d, 7, v%d" % (vT1, vT2, vT1))
            SN = 4096
        k.e("v_add_u32 v%d, 0x%x, v%d" % (vT1, PD * SN, vT1))
        k.e("s_mul_i32 s46, s%d, 3" % sW)
        k.e("s_sub_u32 s46, s46, 4")
        k.e("v_add_u32 v%d, s46, v%d" % (vT0, vLane))
        k.e("v_min_u32 v%d, 17, v%d" % (vT0, vT0))
        k.e("s_mul_i32 s46, s35, 18")
        k.e("v_add_u32 v%d, s46, v%d" % (vT0, vT0))
        k.e("v_mul_u32_u24 v%d, 7282, v%d" % (vT2, vT0))
        k.e("v_lshrrev_b32 v%d, 16, v%d" % (vT2, vT2))
        k.e("v_mul_u32_u24 v%d, 9, v%d" % (vT3, vT2))
        k.e("v_sub_u32 v%d, v%d, v%d" % (vT3, vT0, vT3))
        k.e("v_mul_u32_u24 v%d, 1152, v%d" % (vT2, vT2))
        k.e("v_lshl_add_u32 v%d, v%d, 7, v%d" % (vT2, vT3, vT2))
        k.e("v_add_u32 v%d, 0x%x, v%d" % (vT2, PD * 64 * 1152, vT2))
        k.e("v_cmp_gt_u32 vcc, 4, v%d" % vLane)
        k.e("v_mov_b32 v%d, s44" % vT0)
        k.e("v_mov_b32 v%d, s%d" % (vT3, SRN))
        k.e("v_cndmask_b32 v%d, v%d, v%d, vcc" % (vPA, vT0, vT3))
        k.e("v_mov_b32 v%d, s45" % vT0)
        k.e("v_mov_b32 v%d, s%d" % (vT3, SRN + 1))
        k.e("v_cndmask_b32 v%d, v%d, v%d, vcc" % (vPA + 1, vT0, vT3))
        k.e("v_cndmask_b32 v%d, v%d, v%d, vcc" % (vT1, vT2, vT1))
        k.e("v_mov_b32 v%d, 0x%x" % (vT0, 64 * 1152))
        k.e("v_mov_b32 v%d, %d" % (vT3, SN))
        k.e("v_cndmask_b32 v%d, v%d, v%d, vcc" % (vPS, vT0, vT3))
        k.e("v_add_co_u32 v%d, vcc, v%d, v%d" % (vPA, vT1, vPA))
        k.e("s_nop 1")
        k.e("v_addc_co_u32 v%d, vcc, 0, v%d, vcc" % (vPA + 1, vPA + 1))

    def dma_n(stage):
        b = stage % NBUF
        tag = "D%d" % stage
        P = []
        for j in range(NDN):
            L = ["s_add_u32 m0, s%d, 0x%x" % (sW1024, b * STB + j * 8192)]
            if j:
                L.append("s_add_u32 s%d, s%d, 0x%x" % (sTmp, sKN, j * (2 * 288 * 1024 if kind == 'B2' else 64 * strideN)))
                L.append("buffer_load_dwordx4 v%d, %s, s%d offen lds" % (vDN, sr(SRN), sTmp))
            else:
                L.append("s_nop 0")
                L.append("buffer_load_dwordx4 v%d, %s, s%d offen lds" % (vDN, sr(SRN), sKN))
            P.append((tag, L))
        if P:
            P[-1] = (tag, P[-1][1] + ["s_add_u32 s%d, s%d, %d" % (sKN, sKN, 4096 if kind == 'B2' else 128)])
        return P

    def dma_m(stage):
        b = stage % NBUF
        tag = "D%d" % stage
        P = []
        mb_ = b * STB + MB0
        for q in range(3):
            L = []
            if q < 2:
                L.append("s_add_u32 m0, s%d, 0x%x" % (sW1024, mb_ + q * 8192))
            else:
                L.append("s_add_u32 m0, s%d, 0x%x" % (sW256, mb_ + 16384))
            if mmode == 'row' and q == 1:
                L.append("s_add_u32 s%d, s%d, 0x%x" % (sTmp, sKM, 64 * strideM))
                so, vo = sTmp, vDM[0]
            else:
                so, vo = sKM, vDM[q]
                L.append("s_nop 0")
            if q == 2:
                L.append("s_mov_b64 exec, 0xffff")
            L.append("buffer_load_dwordx4 v%d, %s, s%d offen lds" % (vo, sr(SRM), so))
            if q == 2:
                L.append("s_mov_b64 exec, -1")
            P.append((tag, L))
        P[-1] = (tag, P[-1][1] + ["s_add_u32 s%d, s%d, 0x%x" % (sKM, sKM, 128 if mmode == 'row' else 64 * strideM)])
        return P

    def dma(stage):
        return dma_n(stage) + dma_m(stage)

    def emit(P):
        for tag, L in P:
            for x in L:
                k.e(x, tag)

    if dep is None:
        for stg in range(NBUF):
            emit(dma(stg))
    else:
        first, second = (dma_n, dma_m) if kind == 'A2' else (dma_m, dma_n)
        for stg in range(NBUF):
            emit(first(stg))
        if kind == 'A2':
            k.e("s_and_b32 s44, s36, 1")
            k.e("s_lshl_b32 s44, s44, 7")
            k.e("s_lshr_b32 s45, s36, 1")
            k.e("s_lshl_b32 s45, s45, 2")
            k.e("s_add_u32 s44, s44, s45")
            k.e("v_lshrrev_b32 v%d, 2, v%d" % (vT0, vLane))
            k.e("v_and_b32 v%d, 3, v%d" % (vT1, vLane))
            k.e("v_lshl_add_u32 v%d, v%d, 3, v%d" % (vT0, vT0, vT1))
            k.e("v_add_u32 v%d, s44, v%d" % (vT0, vT0))
            nl = 64
        elif kind == 'B2':
            k.e("s_lshr_b32 s44, s37, 1")
            k.e("s_lshl_b32 s44, s44, 5")
            k.e("s_lshl_b32 s45, s36, 3")
            k.e("s_add_u32 s44, s44, s45")
            k.e("v_add_u32 v%d, s44, v%d" % (vT0, vLane))
            nl = 8
        else:
            k.e("s_lshl_b32 s44, s37, 3")
            k.e("v_add_u32 v%d, s44, v%d" % (vT0, vLane))
            nl = 8
        wait_flags(k, dep, nl, vT0, vT1)
        for stg in range(NBUF):
            emit(second(stg))
    for n, (ka, nb_) in enumerate(pf):
        srd(k, 56 + 4 * n, 56 + 4 * n, 0, None, nb_)
    k.e("s_and_b32 s%d, s%d, 3" % (sTmp, sW))
    k.e("s_mul_i32 s%d, s%d, %d" % (sTmp, sTmp, NFR * 16 * 128))
    k.e("v_and_b32 v%d, 15, v%d" % (vT0, vLane))
    k.e("v_lshrrev_b32 v%d, 4, v%d" % (vT1, vLane))
    k.e("v_bfe_u32 v%d, v%d, 1, 3" % (vT2, vLane))
    k.e("v_xor_b32 v%d, v%d, v%d" % (vT2, vT1, vT2))
    k.e("v_lshlrev_b32 v%d, 4, v%d" % (vT2, vT2))
    k.e("v_lshl_add_u32 v%d, v%d, 7, v%d" % (vT2, vT0, vT2))
    k.e("v_add_u32 v%d, s%d, v%d" % (vT3, sTmp, vT2))
    if kind == 'B2':
        k.e("v_lshlrev_b32 v%d, 9, v%d" % (vT3, vT1))
        k.e("v_lshl_add_u32 v%d, v%d, 4, v%d" % (vT3, vT0, vT3))
        k.e("v_add_u32 v%d, s%d, v%d" % (vT3, sTmp, vT3))
        for b in range(NBUF):
            k.e("v_add_u32 v%d, 0x%x, v%d" % (vRN[b][0], b * STB, vT3))
            k.e("v_add_u32 v%d, 2048, v%d" % (vRN[b][1], vRN[b][0]))
    else:
        for b in range(NBUF):
            k.e("v_add_u32 v%d, 0x%x, v%d" % (vRN[b][0], (b * 65536 if LNF else b * STB), vT3))
            k.e("v_xor_b32 v%d, 64, v%d" % (vRN[b][1], vRN[b][0]))
    if mmode == 'row':
        for b in range(NBUF):
            k.e("v_add_u32 v%d, 0x%x, v%d" % (vRM[b][0], b * STB + MB0, vT2))
            k.e("v_xor_b32 v%d, 64, v%d" % (vRM[b][1], vRM[b][0]))
    else:
        tr_raddr(k, vT2, vLane, vT3)
        for b in range(NBUF):
            k.e("v_add_u32 v%d, 0x%x, v%d" % (vRM[b][0], b * STB + NTB, vT2))
    k.e("s_and_b32 s%d, s%d, 3" % (sTmp, sW))
    k.e("s_mul_i32 s%d, s%d, %d" % (sTmp, sTmp, NFR * 16))
    k.e("v_and_b32 v%d, 15, v%d" % (vT3, vLane))
    k.e("v_add_u32 v%d, s%d, v%d" % (vT3, sTmp, vT3))
    k.e("v_lshrrev_b32 v%d, 4, v%d" % (vT4, vLane))
    k.e("v_mul_u32_u24 v%d, 1152, v%d" % (vT3, vT3))
    k.e("v_and_b32 v%d, 1, v%d" % (vT0, vT4))
    k.e("v_lshl_add_u32 v%d, v%d, 5, v%d" % (vO, vT0, vT3))
    k.e("v_lshrrev_b32 v%d, 1, v%d" % (vT0, vT4))
    k.e("v_lshl_add_u32 v%d, v%d, 4, v%d" % (vO, vT0, vO))
    k.e("v_lshl_add_u32 v%d, v%d, 3, v%d" % (vT4, vT4, vT3))
    vO2 = vT4
    if kind == 'A1':
        k.e("s_lshr_b32 s45, s38, 2")
        k.e("s_mul_i32 s44, s45, %d" % XB)
        k.e("s_mul_i32 s46, s37, %d" % (64 * 1152))
        k.e("s_add_u32 s44, s44, s46")
        k.e("s_and_b32 s46, s38, 3")
        k.e("s_mul_i32 s46, s46, 288")
        k.e("s_add_u32 s44, s44, s46")
        srd(k, SRO, 4, ab, 44, ab + 2 * XB)
        k.e("s_mul_i32 s47, s45, 0x80008000")
    else:
        k.e("s_lshl_b32 s44, s36, 4")
        k.e("s_add_u32 s44, s44, s37")
        k.e("s_lshl_b32 s44, s44, 2")
        k.e("s_and_b32 s46, s%d, 3" % sW)
        k.e("s_add_u32 s44, s44, s46")
        k.e("s_mul_i32 s44, s44, %d" % PREG)
        k.e("s_mul_i32 s46, s38, 9216")
        k.e("s_add_u32 s44, s44, s46")
        srd(k, SRO, 4, WSP, 44, WSP + 4 * XB)
        k.e("v_lshlrev_b32 v%d, 4, v%d" % (vO, vLane))
    def pf_emit():
        k.e("s_lshl_b32 s%d, s2, 3" % sTmp)
        k.e("s_add_u32 s%d, s%d, s%d" % (sTmp, sTmp, sW))
        k.e("s_lshl_b32 s%d, s%d, 12" % (sTmp, sTmp))
        k.e("v_lshl_add_u32 v%d, v%d, 6, s%d" % (vT0, vLane, sTmp))
        for n in range(len(pf)):
            k.e("buffer_load_dword v%d, v%d, %s, 0 offen" % (vPF, vT0, sr(56 + 4 * n)), "PF")

    stamp(k, 1)
    if LNF:
        for tg, L in preset_pieces(k, sW, vLane, vT2, vPA, 72, sTmp, WS_P):
            for x in L:
                k.e(x.replace(", -1", ", 0") if x.startswith("v_mov") else x, "S")
        lz = k.newlabel("LZ")
        k.e("s_cmp_ge_u32 s2, 1")
        k.e("s_cbranch_scc1 %s" % lz)
        srd(k, 72, 4, WS_FL, None, WS_FL + 8192)
        k.e("v_lshlrev_b32 v%d, 4, v0" % vT2)
        k.e("buffer_store_dwordx4 %s, v%d, s[72:75], 0 offen" % (vr(vPA), vT2))
        k.vm.pop()
        k.label(lz)
        if pf and OPT.get('pfpos', 'end') == 'early':
            pf_emit()
        R = range(8)
        B = lambda rr: 32 + 16 * rr
        k.e("v_lshrrev_b32 v%d, 4, v%d" % (vT0, vLane))
        k.e("v_lshlrev_b32 v%d, 13, v%d" % (vT0, vT0))
        k.e("v_bfe_u32 v%d, v%d, 1, 3" % (vT1, vLane))
        k.e("v_lshl_add_u32 v%d, v%d, 4, v%d" % (vT0, vT1, vT0))
        k.e("v_and_b32 v%d, 1, v%d" % (vT1, vLane))
        k.e("v_lshl_add_u32 v%d, v%d, 3, v%d" % (vT0, vT1, vT0))
        k.e("v_add_u32 v%d, s%d, v%d" % (vT0, sW1024, vT0))
        k.e("v_lshrrev_b32 v%d, 3, v%d" % (vT1, vLane))
        k.e("v_lshlrev_b32 v%d, 4, v%d" % (vT1, vT1))
        k.e("v_and_b32 v%d, 7, v%d" % (vT2, vLane))
        k.e("v_lshl_add_u32 v%d, v%d, 1, v%d" % (vT1, vT2, vT1))
        k.e("v_add_u32 v%d, s%d, v%d" % (vT1, sW1024, vT1))
        k.e("v_add_u32 v%d, 0x10000, v%d" % (vT1, vT1))
        for pr in range(4):
            k.e("s_lshl_b32 s44, s%d, 2" % sW)
            k.e("s_add_u32 s44, s44, %d" % pr)
            k.e("s_and_b32 s44, s44, 7")
            k.e("s_lshl_b32 s44, s44, 4")
            k.e("v_xor_b32 v%d, s44, v%d" % (160 + pr, vT0))
            k.e("v_xor_b32 v%d, s44, v%d" % (164 + pr, vT1))
        stamp(k, 5)
        k.vneed("X")
        stamp(k, 4)

        def allrows(fmt, *offs):
            for rr in R:
                k.e(fmt % tuple(B(rr) + o for o in offs))

        def xsum(o, t):
            for ctl in ("quad_perm:[1,0,3,2]", "quad_perm:[2,3,0,1]", "row_half_mirror", "row_mirror"):
                allrows("v_add_f32_dpp v%d, v%d, v%d " + ctl + " row_mask:0xf bank_mask:0xf", o, o, o)
            for sw_ in ("v_permlane16_swap_b32", "v_permlane32_swap_b32"):
                allrows("v_mov_b32 v%d, v%d", t, o)
                allrows(sw_ + " v%d, v%d", o, t)
                allrows("v_add_f32 v%d, v%d, v%d", o, o, t)
        for i in range(4):
            allrows("v_lshlrev_b32 v%d, 16, v%d", 2 * i, 10 + i)
            allrows("v_and_b32 v%d, 0xffff0000, v%d", 2 * i + 1, 10 + i)
        allrows("v_lshlrev_b32 v%d, 16, v%d", 8, 14)
        def pk(op, d, a, b, c=None, mods=""):
            for rr in R:
                x = B(rr)
                ops = [vr(x + d, 2), vr(x + a, 2), vr(x + b, 2)] + ([vr(x + c, 2)] if c is not None else [])
                k.e("%s %s%s" % (op, ", ".join(ops), mods))
        pk("v_pk_add_f32", 10, 0, 2)
        pk("v_pk_add_f32", 12, 4, 6)
        pk("v_pk_add_f32", 10, 10, 12)
        allrows("v_add_f32 v%d, v%d, v%d", 14, 10, 11)
        allrows("v_add_f32 v%d, v%d, v%d", 14, 14, 8)
        xsum(14, 15)
        allrows("v_mul_f32 v%%d, 0x%08x, v%%d" % f32bits(-1.0 / D), 14, 14)
        allrows("v_mov_b32 v%d, v%d", 15, 14)
        for e in range(0, 8, 2):
            pk("v_pk_add_f32", e, e, 14)
        allrows("v_add_f32 v%d, v%d, v%d", 8, 8, 14)
        pk("v_pk_mul_f32", 10, 0, 0)
        pk("v_pk_mul_f32", 12, 2, 2)
        pk("v_pk_fma_f32", 10, 4, 4, 10)
        pk("v_pk_fma_f32", 12, 6, 6, 12)
        pk("v_pk_add_f32", 10, 10, 12)
        allrows("v_add_f32 v%d, v%d, v%d", 14, 10, 11)
        allrows("v_fmac_f32 v%d, v%d, v%d", 14, 8, 8)
        xsum(14, 15)
        allrows("v_mov_b32 v%%d, 0x%08x" % f32bits(1e-5), 15)
        allrows("v_fmac_f32 v%%d, 0x%08x, v%%d" % f32bits(1.0 / D), 15, 14)
        allrows("v_rsq_f32 v%d, v%d", 14, 15)
        allrows("v_mov_b32 v%d, v%d", 15, 14)
        for e in range(0, 8, 2):
            pk("v_pk_mul_f32", e, e, 14)
        allrows("v_mul_f32 v%d, v%d, v%d", 8, 8, 14)
        for i in range(4):
            allrows("v_cvt_pk_bf16_f32 v%d, v%d, v%d", 10 + i, 2 * i, 2 * i + 1)
        allrows("v_cvt_pk_bf16_f32 v%d, v%d, v%d", 14, 8, 8)
        stamp(k, 6)
        for rr in R:
            k.e("ds_write_b64 v%d, %s offset:%d" % (160 + rr // 2, vr(B(rr) + 10, 2), rr * 128))
            k.e("ds_write_b64 v%d, %s offset:%d" % (160 + rr // 2, vr(B(rr) + 12, 2), rr * 128 + 32768))
            k.e("ds_write_b16 v%d, v%d offset:%d" % (164 + rr // 2, B(rr) + 14, rr * 128))
        k.e("s_waitcnt lgkmcnt(0)")
    k.vneed("D0")
    k.e("s_barrier")
    stamp(k, 2)

    ljoin = k.newlabel("LJ")
    lg1 = k.newlabel("LG")
    k.e("s_cmp_ge_u32 s%d, 4" % sW)
    k.e("s_cbranch_scc1 %s" % lg1)
    vm_save = list(k.vm)
    for gi, tiles in enumerate(groups):
        if gi:
            k.label(lg1)
            k.vm = list(vm_save)
        nt = len(tiles)
        W = int(nt * Wmul + 0.5)
        vA = {(j, i): vAbase + 4 * (ti * NFR + i) for ti, j in enumerate(tiles) for i in range(NFR)}

        def rd_m(stg, ks, j, reg, tag):
            b = stg % NBUF
            if mmode == 'row':
                k.lds("ds_read_b128 %s, v%d offset:%d" % (vr(reg), vRM[b][ks], j * 2048), tag)
            else:
                o = ks * 9216 + j * 32
                k.lds("ds_read_b64_tr_b16 %s, v%d offset:%d" % (vr(reg, 2), vRM[b][0], o), tag)
                k.lds("ds_read_b64_tr_b16 %s, v%d offset:%d" % (vr(reg + 2, 2), vRM[b][0], o + 2304), tag)

        def rd_n(stg, ks, i, reg, tag):
            if LNF:
                k.lds("ds_read_b128 %s, v%d offset:%d" % (vr(reg), vRN[stg // 8][ks], (stg % 8) * 8192), tag)
            else:
                k.lds("ds_read_b128 %s, v%d offset:%d" % (vr(reg), vRN[stg % NBUF][ks], i * (256 if kind == 'B2' else 2048)), tag)

        def ald():
            L = ["s_lshl_b32 s%d, s2, 3" % sTmp, "s_add_u32 s%d, s%d, s%d" % (sTmp, sTmp, sW), "s_lshl_b32 s%d, s%d, 12" % (sTmp, sTmp),
                 "v_lshl_add_u32 v%d, v%d, 6, s%d" % (vT0, vLane, sTmp)]
            for n in range(len(pf)):
                L.append("buffer_load_dword v%d, v%d, %s, 0 offen" % (vPF, vT0, sr(56 + 4 * n)))
            P = [("PF", L)] if pf else []
            return P

        pp = preset_pieces(k, sW, vLane, vT2, vPA, 72, sTmp, WSPO)

        def sx(t):
            return [pp[t]] if t < len(pp) else []

        engine(k, tiles, NFR, KS, NS, NBUF, W, NSET, int(OPT.get('tdelta', 1)), rd_m, rd_n, dma,
               lambda t, j, i: vA[(j, i)], lambda t, ks: t == 0 and ks == 0, vM, vN, sLoop,
               after_last_dma=ald if (pf and not (LNF and OPT.get('pfpos', 'end') != 'mid')) else None, stage_extra=None, n_static=LNF)
        k.e("s_nop 7")
        k.e("s_nop 3")
        stamp(k, 3)
        if kind in ('A2', 'B2'):
            store_native(k, tiles, lambda j, i: vA[(j, i)], vO, SRO, sTmp, 0, None, 28, (rcfg[0] + 1) & 1)
        else:
            k.e("s_mov_b32 s%d, 0" % sTmp)
            store_tiles_bf16(k, tiles, lambda j: vA[(j, 0)], vO, vO2, SRO, sTmp, "", 28, neg=47)
        if gi == 0:
            k.e("s_branch %s" % ljoin)
    k.label(ljoin)
    if LNF and pf and OPT.get('pfpos', 'end') == 'end':
        pf_emit()
    if rcfg:
        k.e("s_lshl_b32 s39, s36, 2")
        k.e("s_add_u32 s39, s39, s38")
        nv = r_tail(k, rcfg, 4, sW, vLane, 37, 39, NBUF * STB, WSP, xn)
        nvgpr = max(nvgpr, nv)
    elif not LNF:
        stamp(k, 4)
    if not LNF:
        stamp(k, 6)
    stamp_store(k, kidx)
    if pub is not None:
        if rcfg:
            k.e("s_lshl_b32 s44, s37, 4")
            k.e("s_add_u32 s44, s44, s39")
        else:
            k.e("s_mov_b32 s44, s2")
        publish(k, pub, 44, sW)
    return nvgpr, LDSB


def gen_b1(k, kidx=0, pf=(), xn=None, h=None, dep=None, pub=None):
    nwg = 256
    k.pend = []
    NBUF, NS, KS = int(OPT.get('b1nb', 3)), 18, 1
    NTB = 256 * 64
    STB = NTB + 2 * 9216
    W = int(OPT.get('b1w', 10))
    NFR = 4
    vLane, vT0, vT1, vT2, vT3, vT4 = 1, 2, 3, 4, 5, 6
    vO = 7
    vDN = 8
    vDM = [9, 10]
    vRN = [12 + b for b in range(NBUF)]
    vRM = [16 + b for b in range(NBUF)]
    nxt = 20
    vM = [nxt + 4 * j for j in range(W)]; nxt += 4 * W
    vN = [[nxt + 4 * (p * NFR + i) for i in range(NFR)] for p in range(2)]; nxt += 8 * NFR
    vAbase = nxt
    nxt += 160
    vPF = nxt
    nxt += 1
    nvgpr = nxt
    assert nvgpr <= 256
    sW, sW1024, sW256, sKN, sKM, sTmp, sLoop = 28, 29, 30, 31, 32, 33, 40
    SRN, SRM, SRO, SRQ = 12, [16, 20], 24, 64
    if not PF:
        pf = ()
    stamp(k, 0, 1)
    k.e("s_load_dwordx2 s[4:5], s[0:1], %d" % KA_WS)
    k.e("s_load_dwordx4 s[8:11], s[0:1], %d" % KA_WG)
    for n, (ka, nb_) in enumerate(pf):
        k.e("s_load_dwordx2 s[%d:%d], s[0:1], %d" % (56 + 4 * n, 57 + 4 * n, ka))
    k.e("v_and_b32 v%d, 63, v0" % vLane)
    k.e("v_lshrrev_b32 v%d, 6, v0" % vT0)
    k.e("s_nop 0")
    k.e("v_readfirstlane_b32 s%d, v%d" % (sW, vT0))
    k.e("s_and_b32 s34, s2, 7")
    k.e("s_lshr_b32 s35, s2, 3")
    k.e("s_lshl_b32 s38, s34, 2")
    k.e("s_and_b32 s36, s35, 3")
    k.e("s_add_u32 s38, s38, s36")
    k.e("s_lshr_b32 s37, s35, 2")
    k.e("s_lshl_b32 s%d, s%d, 10" % (sW1024, sW))
    k.e("s_and_b32 s44, s%d, 3" % sW)
    k.e("s_lshl_b32 s%d, s44, 8" % sW256)
    k.e("s_lshr_b32 s45, s%d, 2" % sW)
    k.e("s_mul_i32 s45, s45, 9216")
    k.e("s_add_u32 s%d, s%d, s45" % (sW256, sW256))
    k.e("v_lshrrev_b32 v%d, 2, v%d" % (vT0, vLane))
    k.e("s_lshl_b32 s%d, s%d, 4" % (sTmp, sW))
    k.e("v_add_u32 v%d, s%d, v%d" % (vT0, sTmp, vT0))
    k.e("v_lshrrev_b32 v%d, 2, v%d" % (vT1, vT0))
    k.e("v_sub_u32 v%d, 0, v%d" % (vT1, vT1))
    k.e("v_xor_b32 v%d, v%d, v%d" % (vT1, vT1, vLane))
    k.e("v_and_b32 v%d, 3, v%d" % (vT1, vT1))
    k.e("v_mul_u32_u24 v%d, 1152, v%d" % (vDN, vT0))
    k.e("v_lshl_add_u32 v%d, v%d, 4, v%d" % (vDN, vT1, vDN))
    T5 = (vT0, vT1, vT2, vT3, vT4)
    k.e("s_lshl_b32 s%d, s%d, 6" % (sTmp, sW))
    tr_voff(k, vDM[0], sTmp, vLane, T5, 9216, 0x13)
    k.e("s_lshl_b32 s%d, s44, 4" % sTmp)
    k.e("s_add_u32 s%d, s%d, 512" % (sTmp, sTmp))
    tr_voff(k, vDM[1], sTmp, vLane, T5, 9216, 0x13)
    k.e("s_mov_b32 s%d, 0" % sKN)
    k.e("s_mov_b32 s%d, 0" % sKM)
    k.e("s_waitcnt lgkmcnt(0)")
    k.e("s_mul_i32 s44, s37, %d" % (256 * 1152))
    srd(k, SRN, 4, xn, 44, xn + XB)
    k.e("s_mul_i32 s44, s38, 288")
    srd(k, SRM[0], 8, 0, 44, D * F * 2)
    srd(k, SRM[1], 10, 0, 44, D * F * 2)
    k.e("s_cmp_lt_u32 s%d, 4" % sW)
    for x in range(3):
        k.e("s_cselect_b32 s%d, s%d, s%d" % (SRQ + x, SRM[0] + x, SRM[1] + x))
    k.e("s_mov_b32 s%d, 0x20000" % (SRQ + 3))

    def dma_n(stage):
        tag = "D%d" % stage
        base = (stage % NBUF) * STB
        return [(tag, ["s_add_u32 m0, s%d, 0x%x" % (sW1024, base), "s_nop 0",
                       "buffer_load_dwordx4 v%d, %s, s%d offen lds" % (vDN, sr(SRN), sKN)]),
                (tag, ["s_add_u32 m0, s%d, 0x%x" % (sW1024, base + 8192), "s_add_u32 s%d, s%d, 0x%x" % (sTmp, sKN, 128 * 1152),
                       "buffer_load_dwordx4 v%d, %s, s%d offen lds" % (vDN, sr(SRN), sTmp),
                       "s_add_u32 s%d, s%d, 64" % (sKN, sKN)])]

    def dma_m(stage):
        tag = "D%d" % stage
        base = (stage % NBUF) * STB
        P = []
        for mat in range(2):
            P.append((tag, ["s_add_u32 m0, s%d, 0x%x" % (sW1024, base + NTB + mat * 9216), "s_nop 0",
                            "buffer_load_dwordx4 v%d, %s, s%d offen lds" % (vDM[0], sr(SRM[mat]), sKM)]))
        P.append((tag, ["s_add_u32 m0, s%d, 0x%x" % (sW256, base + NTB + 8192), "s_mov_b64 exec, 0xffff",
                        "buffer_load_dwordx4 v%d, %s, s%d offen lds" % (vDM[1], sr(SRQ), sKM),
                        "s_mov_b64 exec, -1",
                        "s_add_u32 s%d, s%d, 0x%x" % (sKM, sKM, 32 * 9216)]))
        return P

    def dma(stage):
        return dma_n(stage) + dma_m(stage)

    def emit(P):
        for tag, L in P:
            for x in L:
                k.e(x, tag)

    if dep is None:
        for stg in range(NBUF):
            emit(dma(stg))
    else:
        for stg in range(NBUF):
            emit(dma_m(stg))
        k.e("s_lshl_b32 s44, s37, 5")
        k.e("v_add_u32 v%d, s44, v%d" % (vT0, vLane))
        wait_flags(k, dep, 32, vT0, vT1)
        for stg in range(NBUF):
            emit(dma_n(stg))
    for n, (ka, nb_) in enumerate(pf):
        srd(k, 56 + 4 * n, 56 + 4 * n, 0, None, nb_)
    k.e("v_and_b32 v%d, 15, v%d" % (vT0, vLane))
    k.e("v_lshrrev_b32 v%d, 4, v%d" % (vT1, vLane))
    k.e("v_lshrrev_b32 v%d, 2, v%d" % (vT2, vT0))
    k.e("v_sub_u32 v%d, 0, v%d" % (vT2, vT2))
    k.e("v_xor_b32 v%d, v%d, v%d" % (vT2, vT2, vT1))
    k.e("v_and_b32 v%d, 3, v%d" % (vT2, vT2))
    k.e("v_lshlrev_b32 v%d, 4, v%d" % (vT2, vT2))
    k.e("v_lshl_add_u32 v%d, v%d, 6, v%d" % (vT2, vT0, vT2))
    k.e("s_and_b32 s%d, s%d, 3" % (sTmp, sW))
    k.e("s_lshl_b32 s%d, s%d, 12" % (sTmp, sTmp))
    k.e("v_add_u32 v%d, s%d, v%d" % (vT3, sTmp, vT2))
    for b in range(NBUF):
        k.e("v_add_u32 v%d, 0x%x, v%d" % (vRN[b], b * STB, vT3))
    tr_raddr(k, vT2, vLane, vT3)
    for b in range(NBUF):
        k.e("v_add_u32 v%d, 0x%x, v%d" % (vRM[b], b * STB + NTB, vT2))
    k.e("s_lshl_b32 s44, s37, 3")
    k.e("s_and_b32 s46, s%d, 3" % sW)
    k.e("s_lshl_b32 s46, s46, 1")
    k.e("s_add_u32 s44, s44, s46")
    k.e("s_mul_i32 s44, s44, 288")
    k.e("s_mul_i32 s46, s38, 9")
    k.e("s_add_u32 s44, s44, s46")
    k.e("s_lshl_b32 s44, s44, 10")
    srd(k, SRO, 4, h, 44, h + HB)
    k.e("v_lshlrev_b32 v%d, 4, v%d" % (vO, vLane))
    k.e("s_mov_b32 s46, 0x%08x" % f32bits(-1.4426950408889634))
    stamp(k, 1)
    k.vneed("D0")
    k.e("s_barrier")
    stamp(k, 2)
    ljoin = k.newlabel("LJ")
    lg1 = k.newlabel("LG")
    k.e("s_cmp_ge_u32 s%d, 4" % sW)
    k.e("s_cbranch_scc1 %s" % lg1)
    vm_save = list(k.vm)
    for gi, js in enumerate((list(range(5)), list(range(5, 9)))):
        if gi:
            k.label(lg1)
            k.vm = list(vm_save)
        tiles = [(m, j) for j in js for m in range(2)]
        vA = {(t, i): vAbase + 4 * (ti * NFR + i) for ti, t in enumerate(tiles) for i in range(NFR)}

        def rd_m(stg, ks, t, reg, tag):
            o = t[0] * 9216 + t[1] * 32
            k.lds("ds_read_b64_tr_b16 %s, v%d offset:%d" % (vr(reg, 2), vRM[stg % NBUF], o), tag)
            k.lds("ds_read_b64_tr_b16 %s, v%d offset:%d" % (vr(reg + 2, 2), vRM[stg % NBUF], o + 2304), tag)

        def rd_n(stg, ks, i, reg, tag):
            k.lds("ds_read_b128 %s, v%d offset:%d" % (vr(reg), vRN[stg % NBUF], i * 1024), tag)

        Wg = min(W, len(tiles))
        engine(k, tiles, NFR, KS, NS, NBUF, Wg, 2, int(OPT.get('delta', 2)), rd_m, rd_n, dma,
               lambda t, tl, i: vA[(tl, i)], lambda t, ks: t == 0, vM, vN, sLoop)
        k.e("s_nop 7")
        k.e("s_nop 3")
        stamp(k, 3)
        TB = 20
        n = 0
        for pr in range(2):
            for jn, j in enumerate(js):
                o = TB + 4 * (n % 4)
                n += 1
                for i in range(2):
                    g = vA[((0, j), 2 * pr + i)]
                    u_ = vA[((1, j), 2 * pr + i)]
                    for r in range(4):
                        k.e("v_mul_f32 v%d, s46, v%d" % (g + r, g + r))
                    for r in range(4):
                        k.e("v_exp_f32 v%d, v%d" % (g + r, g + r))
                    for r in range(4):
                        k.e("v_add_f32 v%d, 1.0, v%d" % (g + r, g + r))
                    for r in range(4):
                        k.e("v_rcp_f32 v%d, v%d" % (g + r, g + r))
                    for r in range(4):
                        k.e("v_mul_f32 v%d, v%d, v%d" % (g + r, g + r, u_ + r))
                    k.e("v_cvt_pk_bf16_f32 v%d, v%d, v%d" % (o + 2 * i, g, g + 1))
                    k.e("v_cvt_pk_bf16_f32 v%d, v%d, v%d" % (o + 2 * i + 1, g + 2, g + 3))
                if jn % 4 == 0:
                    k.e("s_mov_b32 s%d, %d" % (sTmp, (pr * 288 + j) * 1024))
                else:
                    k.e("s_nop 0")
                k.e("s_nop 0")
                k.e("v_permlane16_swap_b32 v%d, v%d" % (o, o + 2))
                k.e("v_permlane16_swap_b32 v%d, v%d" % (o + 1, o + 3))
                k.e("s_nop 0")
                k.e("buffer_store_dwordx4 %s, v%d, %s, s%d offen offset:%d" % (vr(o), vO, sr(SRO), sTmp, (jn % 4) * 1024))
        if gi == 0:
            k.e("s_branch %s" % ljoin)
    k.label(ljoin)
    stamp(k, 4)
    stamp_store(k, kidx)
    if pub is not None:
        k.e("s_lshl_b32 s44, s37, 5")
        k.e("s_add_u32 s44, s44, s38")
        publish(k, pub, 44, sW)
    return nvgpr, NBUF * STB


def main():
    phases = [
        lambda k, d, p: gen_gemm(k, 'A1L', None, 0, ab=WS_AB, dep=d, pub=p),
        lambda k, d, p: gen_gemm(k, 'A2', (0, ('in', KA_X), ('ws', WS_X1), True), 1, xn=WS_XN, ab=WS_AB, dep=d, pub=p),
        lambda k, d, p: gen_b1(k, 2, xn=WS_XN, h=WS_H, dep=d, pub=p),
        lambda k, d, p: gen_gemm(k, 'B2', (1, ('ws', WS_X1), ('ws', WS_X2), True), 3, xn=WS_XNB, h=WS_H, dep=d, pub=p),
        lambda k, d, p: gen_gemm(k, 'A1', None, 4, xn=WS_XNB, ab=WS_AB2, dep=d, pub=p),
        lambda k, d, p: gen_gemm(k, 'A2', (2, ('ws', WS_X2), ('ws', WS_X3), True), 5, xn=WS_XNC, ab=WS_AB2, dep=d, pub=p),
        lambda k, d, p: gen_b1(k, 6, xn=WS_XNC, h=WS_H2, dep=d, pub=p),
        lambda k, d, p: gen_gemm(k, 'B2', (3, ('ws', WS_X3), ('out', 0), False), 7, h=WS_H2, dep=d, pub=p),
    ]
    grouping = [[int(c) for c in g] for g in OPT.get('merge', '0-1-2-3-4-5-6-7').split('-')]
    ks = {}
    order = []
    for gi, g in enumerate(grouping):
        name = MAIN + "_kernel" if gi == 0 else "p%s_kernel" % "".join(str(x) for x in g)
        k = K(name)
        header(k, 256)
        nv, lds = 0, 0
        for n, ph in enumerate(g):
            a, b = phases[ph](k, (ph - 1) if n else None, ph if n + 1 < len(g) else None)
            nv, lds = max(nv, a), max(lds, b)
        footer(k, nv, 100 if STAMP else 76)
        ks[name] = (k, 256, 512, lds)
        order.append(name)
    out = ["; FNet (DFT matmul) + GLU interleaved layers; generated by gen3.py"]
    for n in order:
        kk, nwg, blk, lds = ks[n]
        out.append("; @launch kernel=%s grid=(%d,1,1) block=(%d,1,1) lds=%d" % (kk.name, nwg, blk, lds))
    out.append('.amdgcn_target "amdgcn-amd-amdhsa--gfx950"')
    out.append(".text")
    for n, (kk, nwg, blk, lds) in ks.items():
        out.append(".globl %s" % kk.name)
        out += kk.lines
    open(sys.argv[1] if len(sys.argv) > 1 else "cdna_kernels/%s.s" % MAIN, "w").write("\n".join(out) + "\n")


if __name__ == "__main__":
    main()
```

```python
import sys, os, struct
OPT = dict(x.split('=') for x in os.environ.get('GENOPT', '').split(',') if x)
STAMP = int(OPT.get('stamp', 0))
PF = int(OPT.get('pf', 0))
STF = {'': '', 'sc1': ' sc1', 'nt': ' nt', 'sc01': ' sc0 sc1'}[OPT.get('stf', 'sc01')]
XF = {'sc1': ' sc1', 'sc01': ' sc0 sc1'}[OPT.get('xf', 'sc01')]

LF = {'x': XF, 'p': '', 'sc1': ' sc1', 'nt': ' nt'}[OPT.get('lf', 'x')]
PRE = int(OPT.get('pre', 0))
POLLF = int(OPT.get('pollf', 0))
MAIN = "interleave_layers__spectral_fnet__glu_gated_glu__prompt"
S, D, F = 2048, 576, 4608
KA_X, KA_CR, KA_CI, KA_WR, KA_WI, KA_BX, KA_WG, KA_WU, KA_WD, KA_OUT, KA_DBG, KA_WS = [8 * i for i in range(12)]
WS_XN = 0x0000000
WS_X1 = 0x0400000
WS_X2 = 0x0800000
WS_AB = 0x0C00000
WS_XNB = 0x2000000
WS_XNC = 0x2400000
WS_X3 = 0x2800000
WS_AB2 = 0x5800000
WS_H2 = 0x4400000
WS_FL = 0x1200000
WS_P = 0x1400000
WS_P2 = 0x1E00000
WS_H = 0x3000000
HB = S * F * 2
WS_DBG = 0x8000000
XB = S * D * 2
MTB = 18432


def f32bits(x):
    return struct.unpack("<I", struct.pack("<f", x))[0]


class K:
    def __init__(self, name):
        self.name = name
        self.lines = []
        self.pend = []
        self.vm = []
        self.nlab = 0

    def e(self, s, vtag=None):
        if s.startswith('buffer_store') and ' sc' not in s:
            s += STF
        if s.startswith('buffer_') or s.startswith('global_'):
            self.vm.append(vtag)
        self.lines.append("    " + s)

    def label(self, l):
        self.lines.append(l + ":")

    def newlabel(self, p="L"):
        self.nlab += 1
        return "%s_%s_%d" % (p, self.name[-12:], self.nlab)

    def lds(self, s, tag):
        if OPT.get('nolds') and tag[0] in OPT.get('nolds'):
            return
        if len(self.pend) >= 15:
            self.e("s_waitcnt lgkmcnt(13)")
            self.pend = self.pend[-13:]
        self.e(s)
        self.pend.append(tag)

    def need(self, *tags):
        idx = -1
        for i, p in enumerate(self.pend):
            if p in tags:
                idx = i
        if idx < 0:
            return
        n = min(len(self.pend) - 1 - idx, 14)
        self.e("s_waitcnt lgkmcnt(%d)" % n)
        self.pend = self.pend[len(self.pend) - n:] if n else []

    def vneed(self, tag, lgkm0=False):
        idx = -1
        for i, p in enumerate(self.vm):
            if p == tag:
                idx = i
        extra = " lgkmcnt(0)" if lgkm0 else ""
        if lgkm0:
            self.pend = []
        if idx < 0:
            if lgkm0:
                self.e("s_waitcnt lgkmcnt(0)")
            return
        n = len(self.vm) - 1 - idx
        assert n < 63
        self.e("s_waitcnt vmcnt(%d)%s" % (n, extra))
        self.vm = self.vm[len(self.vm) - n:] if n else []

    def vm0(self):
        self.e("s_waitcnt vmcnt(0)")
        self.vm = []


def vr(b, n=4):
    return "v[%d:%d]" % (b, b + n - 1)


def sr(b, n=4):
    return "s[%d:%d]" % (b, b + n - 1)


def header(k, nwg):
    k.lines.append(".p2align 8")
    k.lines.append(".type %s,@function" % k.name)
    k.label(k.name)
    k.e("s_cmp_ge_u32 s2, %d" % nwg)
    k.e("s_cbranch_scc1 L_end_%s" % k.name)


def footer(k, nvgpr, nsgpr=64):
    k.label("L_end_%s" % k.name)
    k.e("s_endpgm")
    acc = (nvgpr + 3) // 4 * 4
    k.lines.append(""".section .rodata,"a"
.p2align 6
.amdhsa_kernel %s
  .amdhsa_next_free_vgpr %d
  .amdhsa_next_free_sgpr %d
  .amdhsa_accum_offset %d
  .amdhsa_group_segment_fixed_size 0
  .amdhsa_kernarg_size 96
  .amdhsa_user_sgpr_count 2
  .amdhsa_user_sgpr_kernarg_segment_ptr 1
  .amdhsa_system_sgpr_workgroup_id_x 1
.end_amdhsa_kernel
.text""" % (k.name, nvgpr, nsgpr, acc))


def srd(k, d, pbase, off_const, off_sgpr, total):
    k.e("s_add_u32 s%d, s%d, 0x%x" % (d, pbase, off_const))
    k.e("s_addc_u32 s%d, s%d, 0" % (d + 1, pbase + 1))
    if off_sgpr is None:
        k.e("s_mov_b32 s%d, 0x%x" % (d + 2, total - off_const))
    else:
        k.e("s_add_u32 s%d, s%d, s%d" % (d, d, off_sgpr))
        k.e("s_addc_u32 s%d, s%d, 0" % (d + 1, d + 1))
        k.e("s_sub_u32 s%d, 0x%x, s%d" % (d + 2, total - off_const, off_sgpr))
    k.e("s_and_b32 s%d, s%d, 0xffff" % (d + 1, d + 1))
    k.e("s_mov_b32 s%d, 0x20000" % (d + 3))


SB = 76


def stamp(k, idx, real=0):
    if not STAMP or (STAMP == 2 and not real):
        return
    if OPT.get('pst') and idx in (4, 5, 6) and getattr(k, 'st%d' % idx, False):
        return
    if OPT.get('pst') and idx == 4:
        return
    setattr(k, 'st%d' % idx, True)
    k.e("s_memtime s[%d:%d]" % (SB + 2 * idx, SB + 1 + 2 * idx))
    if real:
        k.e("s_memrealtime s[%d:%d]" % (SB + 16 + 2 * real - 2, SB + 17 + 2 * real - 2))
    k.e("s_waitcnt lgkmcnt(0)")
    k.pend = []


def stamp_store(k, kidx):
    if not STAMP:
        return
    k.vm0()
    stamp(k, 7, 2)
    if STAMP == 2:
        k.e("s_cmp_lg_u32 s2, 100")
        k.e("s_cbranch_scc1 L_end_%s" % k.name)
        k.e("s_load_dwordx2 s[24:25], s[0:1], %d" % KA_DBG)
        k.e("s_waitcnt lgkmcnt(0)")
        k.e("s_add_u32 s24, s24, %d" % ((7 - kidx) * 512 + kidx * 8))
        k.e("s_addc_u32 s25, s25, 0")
        k.e("s_and_b32 s25, s25, 0xffff")
        k.e("s_mov_b32 s26, 8")
        k.e("s_mov_b32 s27, 0x20000")
        k.e("v_cmp_eq_u32 vcc, 0, v0")
        k.e("s_and_saveexec_b64 s[46:47], vcc")
        k.e("s_cbranch_execz L_end_%s" % k.name)
        k.e("v_mov_b32 v1, 0")
        k.e("v_mov_b32 v2, s%d" % (SB + 16))
        k.e("v_mov_b32 v3, s%d" % (SB + 18))
        k.e("buffer_store_dwordx2 v[2:3], v1, s[24:27], 0 offen")
        return
    k.e("s_lshl_b32 s44, s2, 7")
    k.e("s_add_u32 s44, s44, 0x%x" % (kidx * 65536))
    srd(k, 24, 4, WS_DBG, 44, WS_DBG + 16 * 65536)
    lsk = k.newlabel("LSS")
    k.e("v_cmp_eq_u32 vcc, 0, v0")
    k.e("s_and_saveexec_b64 s[46:47], vcc")
    k.e("s_cbranch_execz %s" % lsk)
    k.e("v_mov_b32 v1, 0")
    for i in range(10):
        k.e("v_mov_b32 v2, s%d" % (SB + 2 * i))
        k.e("v_mov_b32 v3, s%d" % (SB + 1 + 2 * i))
        k.e("buffer_store_dwordx2 v[2:3], v1, s[24:27], 0 offen offset:%d" % (8 * i))
        k.e("s_nop 1")
    k.label(lsk)
    k.e("s_mov_b64 exec, -1")
    k.vm0()


import re as _re


def remap_line(line, vb, sb=52):
    def rv(m):
        n = int(m.group(1))
        return "v%d" % (n + vb if n else 0)

    def rvr(m):
        return "v[%d:%d]" % (int(m.group(1)) + vb, int(m.group(2)) + vb)

    def rs(m):
        n = int(m.group(1))
        return "s%d" % (n + sb if n >= 6 else n)

    def rsr(m):
        a, b = int(m.group(1)), int(m.group(2))
        return "s[%d:%d]" % ((a + sb, b + sb) if a >= 6 else (a, b))
    line = _re.sub(r"\bv\[(\d+):(\d+)\]", rvr, line)
    line = _re.sub(r"\bv(\d+)\b", rv, line)
    line = _re.sub(r"\bs\[(\d+):(\d+)\]", rsr, line)
    line = _re.sub(r"\bs(\d+)\b", rs, line)
    return line


class PreDone(Exception):
    pass


def pre_issue(k, phase, vb):
    t = K(k.name)
    t.nlab = k.nlab + 1000
    try:
        phase(t, 'pre', None, None)
    except PreDone:
        pass
    k.nlab = t.nlab
    for l in t.lines:
        if l.strip().startswith(("s_load_dwordx2 s[4:5]", "s_load_dwordx2 s[48:49]", "s_load_dwordx2 s[50:51]")):
            continue
        k.lines.append(remap_line(l, vb))
    k.vm += ["PRE"] * len(t.vm)
    k.pend = []


def publish(k, farr, sIdx, sW):
    k.vm0()
    k.e("s_barrier")
    lsk = k.newlabel("LPB")
    k.e("s_cmp_lg_u32 s%d, 0" % sW)
    k.e("s_cbranch_scc1 %s" % lsk)
    if farr == 0:
        k.e("s_load_dwordx2 s[72:73], s[0:1], %d" % KA_DBG)
        k.e("s_waitcnt lgkmcnt(0)")
        srd(k, 72, 72, 0, None, 256)
        k.e("s_mov_b64 exec, 1")
        k.e("s_and_b32 s46, s2, 7")
        k.e("s_lshl_b32 s46, s46, 5")
        k.e("v_mov_b32 v2, s46")
        k.e("v_mov_b32 v3, 1")
        k.e("buffer_atomic_add v3, v2, s[72:75], 0 offen sc1")
    else:
        srd(k, 72, 4, WS_FL + farr * 1024, None, WS_FL + 8192)
        k.e("s_mov_b64 exec, 1")
        k.e("s_lshl_b32 s46, s%d, 2" % sIdx)
        k.e("v_mov_b32 v2, s46")
        k.e("v_mov_b32 v3, 1")
        k.e("buffer_store_dword v3, v2, s[72:75], 0 offen" + XF)
    k.e("s_mov_b64 exec, -1")
    k.label(lsk)
    k.vm = ["F"]


def wait_flags(k, farr, nl, vIdx, vT, sW=28):
    one = int(OPT.get('w1poll', 1))
    slp = int(OPT.get('fsleep', 0))
    lsk = k.newlabel("LFS")
    if one:
        k.e("s_cmp_lg_u32 s%d, 0" % sW)
        k.e("s_cbranch_scc1 %s" % lsk)
    vm_keep = list(k.vm)
    want = 1
    if farr == 0:
        k.e("s_load_dwordx2 s[72:73], s[0:1], %d" % KA_DBG)
        k.e("s_waitcnt lgkmcnt(0)")
        srd(k, 72, 72, 0, None, 256)
        k.e("v_and_b32 v%d, 63, v0" % vIdx)
        k.e("v_lshlrev_b32 v%d, 3, v%d" % (vIdx, vIdx))
        nl, want = 8, 32
    else:
        srd(k, 72, 4, WS_FL + farr * 1024, None, WS_FL + 8192)
    lp = k.newlabel("LFW")
    ld = k.newlabel("LFD")
    k.e("v_lshlrev_b32 v%d, 2, v%d" % (vIdx, vIdx))
    if nl < 64:
        k.e("s_mov_b64 exec, 0x%x" % ((1 << nl) - 1))
    k.e("s_mov_b32 s45, 0")
    k.label(lp)
    if slp:
        k.e("s_sleep %d" % slp)
    k.e("buffer_load_dword v%d, v%d, s[72:75], 0 offen%s" % (vT, vIdx, XF))
    k.vm0()
    k.e("v_cmp_ne_u32 vcc, %d, v%d" % (want, vT))
    k.e("s_nop 3")
    k.e("s_cmp_eq_u64 vcc, 0")
    k.e("s_cbranch_scc1 %s" % ld)
    k.e("s_add_u32 s45, s45, 1")
    k.e("s_cmp_lt_u32 s45, 0x100000")
    k.e("s_cbranch_scc1 %s" % lp)
    k.label(ld)
    k.e("s_mov_b64 exec, -1")
    if one:
        k.label(lsk)
        k.e("s_barrier")
        k.vm = vm_keep


def code_prefetch(k, sW, vLane, vA_, vD, SR, sTmp):
    if not int(OPT.get('cpf', 0)):
        return
    lab = k.newlabel("LPC")
    k.e("s_getpc_b64 s[%d:%d]" % (SR, SR + 1))
    k.label(lab)
    k.e("s_sub_u32 s%d, s%d, %s-%s" % (SR, SR, lab, k.name))
    k.e("s_subb_u32 s%d, s%d, 0" % (SR + 1, SR + 1))
    k.e("s_and_b32 s%d, s%d, 0xffff" % (SR + 1, SR + 1))
    k.e("s_mov_b32 s%d, L_end_%s-%s" % (SR + 2, k.name, k.name))
    k.e("s_mov_b32 s%d, 0x20000" % (SR + 3))
    k.e("s_lshl_b32 s%d, s%d, 13" % (sTmp, sW))
    k.e("v_lshl_add_u32 v%d, v%d, 7, s%d" % (vA_, vLane, sTmp))
    k.e("buffer_load_dword v%d, v%d, %s, 0 offen" % (vD, vA_, sr(SR)), "C")


def wave_sum(k, v, sbase):
    for ctl in ("quad_perm:[1,0,3,2]", "quad_perm:[2,3,0,1]", "row_half_mirror", "row_mirror"):
        k.e("s_nop 1")
        k.e("v_add_f32_dpp %s, %s, %s %s row_mask:0xf bank_mask:0xf" % (v, v, v, ctl))
    k.e("s_nop 1")
    for i in range(4):
        k.e("v_readlane_b32 s%d, %s, %d" % (sbase + i, v, 16 * i))
    k.e("s_nop 1")
    k.e("v_mov_b32 %s, s%d" % (v, sbase))
    for i in range(1, 4):
        k.e("v_add_f32 %s, s%d, %s" % (v, sbase + i, v))


def r_body(k, vrow, vlane, ysrc, has_xout, ln, SX, SO, SN, hook=None):
    k.e("v_mul_u32_u24 v4, 1152, v%d" % vrow)
    k.e("v_lshl_add_u32 v7, v%d, 3, v4" % vlane)
    k.e("v_lshl_add_u32 v8, v%d, 1, v4" % vlane)
    k.e("buffer_load_dwordx2 v[10:11], v7, %s, 0 offen" % sr(SX), "X")
    k.e("buffer_load_dwordx2 v[12:13], v7, %s, 0 offen offset:512" % sr(SX), "X")
    k.e("buffer_load_ushort v14, v8, %s, 0 offen offset:1024" % sr(SX), "X")
    if hook:
        hook()
    X = 30
    A = 16
    if ysrc:
        ysrc()
    k.vneed("X")
    for i, src in enumerate([10, 11, 12, 13]):
        k.e("v_lshlrev_b32 v%d, 16, v%d" % (X + 2 * i, src))
        k.e("v_and_b32 v%d, 0xffff0000, v%d" % (X + 2 * i + 1, src))
    k.e("v_lshlrev_b32 v%d, 16, v14" % (X + 8))
    if ysrc:
        for e in range(9):
            k.e("v_add_f32 v%d, v%d, v%d" % (X + e, X + e, A + e))
        for i in range(4):
            k.e("v_cvt_pk_bf16_f32 v%d, v%d, v%d" % (10 + i, X + 2 * i, X + 2 * i + 1))
        k.e("v_cvt_pk_bf16_f32 v14, v%d, v%d" % (X + 8, X + 8))
        if has_xout:
            k.e("buffer_store_dwordx2 v[10:11], v7, %s, 0 offen" % sr(SO))
            k.e("buffer_store_dwordx2 v[12:13], v7, %s, 0 offen offset:512" % sr(SO))
            k.e("buffer_store_short v14, v8, %s, 0 offen offset:1024" % sr(SO))
        if ln:
            for i, src in enumerate([10, 11, 12, 13]):
                k.e("v_lshlrev_b32 v%d, 16, v%d" % (X + 2 * i, src))
                k.e("v_and_b32 v%d, 0xffff0000, v%d" % (X + 2 * i + 1, src))
            k.e("v_lshlrev_b32 v%d, 16, v14" % (X + 8))
    if ln:
        k.e("v_add_f32 v20, v%d, v%d" % (X, X + 1))
        k.e("v_add_f32 v21, v%d, v%d" % (X + 2, X + 3))
        k.e("v_add_f32 v22, v%d, v%d" % (X + 4, X + 5))
        k.e("v_add_f32 v23, v%d, v%d" % (X + 6, X + 7))
        k.e("v_add_f32 v20, v20, v21")
        k.e("v_add_f32 v22, v22, v23")
        k.e("v_add_f32 v20, v20, v%d" % (X + 8))
        k.e("v_add_f32 v20, v20, v22")
        wave_sum(k, "v20", 32)
        k.e("v_mul_f32 v20, 0x%08x, v20" % f32bits(1.0 / D))
        for e in range(9):
            k.e("v_sub_f32 v%d, v%d, v20" % (X + e, X + e))
        k.e("v_mul_f32 v21, v%d, v%d" % (X, X))
        k.e("v_mul_f32 v22, v%d, v%d" % (X + 1, X + 1))
        for e in range(2, 9):
            k.e("v_fmac_f32 v%d, v%d, v%d" % (21 + (e & 1), X + e, X + e))
        k.e("v_add_f32 v21, v21, v22")
        wave_sum(k, "v21", 32)
        k.e("v_mov_b32 v22, 0x%08x" % f32bits(1e-5))
        k.e("v_fmac_f32 v22, 0x%08x, v21" % f32bits(1.0 / D))
        k.e("v_rsq_f32 v22, v22")
        k.e("s_nop 0")
        for e in range(9):
            k.e("v_mul_f32 v%d, v%d, v22" % (X + e, X + e))
        for i in range(4):
            k.e("v_cvt_pk_bf16_f32 v%d, v%d, v%d" % (24 + i, X + 2 * i, X + 2 * i + 1))
        k.e("v_cvt_pk_bf16_f32 v28, v%d, v%d" % (X + 8, X + 8))
        k.e("buffer_store_dwordx2 v[24:25], v7, %s, 0 offen" % sr(SN))
        k.e("buffer_store_dwordx2 v[26:27], v7, %s, 0 offen offset:512" % sr(SN))
        k.e("buffer_store_short v28, v8, %s, 0 offen offset:1024" % sr(SN))


def gen_r0(name):
    k = K(name)
    nwg = S // 4
    header(k, nwg)
    k.e("s_load_dwordx2 s[4:5], s[0:1], %d" % KA_WS)
    k.e("s_load_dwordx2 s[6:7], s[0:1], %d" % KA_X)
    pf = [(KA_WR, D * D * 2), (KA_WI, D * D * 2), (KA_CR, S * S * 2), (KA_CI, S * S * 2)] if PF else []
    for n, (ka, nb_) in enumerate(pf):
        k.e("s_load_dwordx2 s[%d:%d], s[0:1], %d" % (40 + 4 * n, 41 + 4 * n, ka))
    k.e("v_lshrrev_b32 v1, 6, v0")
    k.e("v_and_b32 v2, 63, v0")
    k.e("s_lshl_b32 s3, s2, 2")
    k.e("v_add_u32 v1, s3, v1")
    k.e("s_waitcnt lgkmcnt(0)")
    srd(k, 12, 6, 0, None, XB)
    srd(k, 24, 4, WS_XN, None, WS_XN + XB)
    for n, (ka, nb_) in enumerate(pf):
        srd(k, 40 + 4 * n, 40 + 4 * n, 0, None, nb_)
    k.e("s_mul_i32 s3, s2, 18432")
    srd(k, 16, 4, WS_P, 3, WS_P + 4 * XB)
    k.e("s_mov_b32 s18, 18432")
    k.e("v_lshrrev_b32 v3, 6, v0")
    k.e("v_mul_u32_u24 v3, 5120, v3")
    k.e("v_lshl_add_u32 v3, v2, 4, v3")
    for r in range(4):
        k.e("v_mov_b32 v%d, 0" % (36 + r))
    for n in range(4):
        k.e("buffer_store_dwordx4 v[36:39], v3, s[16:19], 0 offen offset:%d" % (n * 1024))
    k.e("s_mov_b32 s3, 4096")
    k.e("buffer_store_dwordx4 v[36:39], v3, s[16:19], s3 offen")

    def hook():
        if pf:
            k.e("v_lshlrev_b32 v42, 12, v1")
            k.e("v_lshl_add_u32 v42, v2, 6, v42")
            for n in range(len(pf)):
                k.e("buffer_load_dword v43, v42, %s, 0 offen" % sr(40 + 4 * n))
    r_body(k, 1, 2, None, False, True, 12, None, 24, hook=hook)
    footer(k, 44, 60)
    return k, nwg, 256, 0


def engine(k, tiles, NFR, KS, NS, NBUF, W, NSET, DELTA, rd_m, rd_n, dma, acc, first, vM, vN, sLoop,
           n_static=False, after_use=None, after_last_dma=None, npre=None, stage_extra=None):
    nt = len(tiles)
    UPS = KS * nt
    total = NS * UPS
    NSL = W
    W = W - int(OPT.get('lag', 2))
    st = {'nrM': 0, 'nrN': 0, 'pub': 0, 'ald': False}
    k.pend = []

    BUD = int(OPT.get('bud', 3))

    def pump(udone, maxm=2):
        bud = BUD if maxm < 50 else 999
        while bud > 0:
            f = st['nrN']
            s_ = f // NFR
            okN = s_ < NS * KS and (n_static or s_ // KS <= st['pub']) and s_ - NSET < udone // nt
            u = st['nrM']
            okM = u < total and u // UPS <= st['pub'] and u - W < udone
            if okN and (not okM or s_ * nt <= u):
                rd_n(s_ // KS, s_ % KS, f % NFR, vN[s_ % NSET][f % NFR], "N%d" % (s_ % NSET))
                st['nrN'] += 1
                bud -= 1
            elif okM:
                stg, rem = divmod(u, UPS)
                ks, ti = divmod(rem, nt)
                rd_m(stg, ks, tiles[ti], vM[u % NSL], "M%d" % (u % NSL))
                st['nrM'] += 1
                bud -= 2
            else:
                break

    pump(0, maxm=99)
    pre = k.lines
    k.lines = []
    blocks = []
    pos = max(1, min(UPS, UPS - W + DELTA))
    for t in range(NS):
        last = (t == NS - 1)
        extras = []
        for r in range(UPS):
            u = t * UPS + r
            ks, ti = divmod(r, nt)
            s = t * KS + ks
            k.need("M%d" % (u % NSL), "N%d" % (s % NSET))
            for i in range(NFR):
                a = acc(t, tiles[ti], i)
                c = "0" if first(t, ks) else vr(a)
                if not (OPT.get('nomfma') and t > 0):
                    k.e("v_mfma_f32_16x16x32_bf16 %s, %s, %s, %s" % (vr(a), vr(vM[u % NSL]), vr(vN[s % NSET][i]), c))
            if not last and r + 1 == pos:
                assert st['nrM'] == (t + 1) * UPS, (st, t)
                assert n_static or st['nrN'] >= (t + 1) * KS * NFR, (st, t)
                k.vneed("D%d" % (t + 1), lgkm0=True)
                k.e("s_barrier")
                st['pub'] = t + 1
                if t + NBUF < NS:
                    extras = dma(t + NBUF)
                    if OPT.get('nodma'):
                        extras = [(tg, [x for x in L if not x.startswith('buffer_load')]) for tg, L in extras]
                    if OPT.get('dropdma'):
                        pat = {'n': 'v8,', 'm': ('v9,', 'v10,', 'v11,'), 'q': 'v11,'}[OPT['dropdma']]
                        pats = pat if isinstance(pat, tuple) else (pat,)
                        extras = [(tg, [x for x in L if not (x.startswith('buffer_load') and any(p in x for p in pats))]) for tg, L in extras]
                elif after_last_dma and not st['ald']:
                    st['ald'] = True
                    extras = after_last_dma()
                if stage_extra:
                    extras = extras + stage_extra(t)
            pump(u + 1)
            if after_use:
                after_use(t, r)
            if extras:
                left = UPS - r
                n = (len(extras) + left - 1) // left
                for _ in range(n):
                    tag, L = extras.pop(0)
                    for x in L:
                        k.e(x, tag)
        assert not extras
        blocks.append(k.lines)
        k.lines = []
    best = None
    for U in (1, 2, 3, 4, 6):
        for a in range(NS):
            bnd = a + U
            while bnd + U <= NS and all(blocks[bnd + x] == blocks[a + x] for x in range(U)):
                bnd += U
            cnt = (bnd - a) // U
            if cnt >= 2 and (best is None or (cnt - 1) * U > (best[2] - 1) * best[3]):
                best = (a, bnd, cnt, U)
    out = pre
    if best is None:
        for bl in blocks:
            out += bl
    else:
        a, bnd, cnt, U = best
        for bl in blocks[:a]:
            out += bl
        lab = k.newlabel("LP")
        out.append("    s_mov_b32 s%d, %d" % (sLoop, cnt))
        out.append(lab + ":")
        for bl in blocks[a:a + U]:
            out += bl
        out.append("    s_sub_u32 s%d, s%d, 1" % (sLoop, sLoop))
        out.append("    s_cmp_lg_u32 s%d, 0" % sLoop)
        out.append("    s_cbranch_scc1 %s" % lab)
        for bl in blocks[bnd:]:
            out += bl
    k.lines = out


def tr_voff(k, vdst, sslot, vLane, T, stride, posmask):
    t0, t1, t2, t3, t4 = T
    k.e("v_add_u32 v%d, s%d, v%d" % (t0, sslot, vLane))
    k.e("v_mul_u32_u24 v%d, 3641, v%d" % (t1, t0))
    k.e("v_lshrrev_b32 v%d, 16, v%d" % (t1, t1))
    k.e("v_mul_u32_u24 v%d, 18, v%d" % (t2, t1))
    k.e("v_sub_u32 v%d, v%d, v%d" % (t2, t0, t2))
    k.e("v_and_b32 v%d, 0x%x, v%d" % (t3, posmask, t1))
    k.e("v_and_b32 v%d, 4, v%d" % (t4, t1))
    k.e("v_lshl_or_b32 v%d, v%d, 1, v%d" % (t3, t4, t3))
    k.e("v_and_b32 v%d, 8, v%d" % (t4, t1))
    k.e("v_lshrrev_b32 v%d, 1, v%d" % (t4, t4))
    k.e("v_or_b32 v%d, v%d, v%d" % (t3, t3, t4))
    k.e("v_mul_u32_u24 v%d, %d, v%d" % (vdst, stride, t3))
    k.e("v_lshl_add_u32 v%d, v%d, 4, v%d" % (vdst, t2, vdst))


def tr_raddr(k, vdst, vLane, t):
    k.e("v_lshrrev_b32 v%d, 5, v%d" % (vdst, vLane))
    k.e("v_lshlrev_b32 v%d, 4, v%d" % (vdst, vdst))
    k.e("v_bfe_u32 v%d, v%d, 4, 1" % (t, vLane))
    k.e("v_lshl_add_u32 v%d, v%d, 2, v%d" % (vdst, t, vdst))
    k.e("v_bfe_u32 v%d, v%d, 2, 2" % (t, vLane))
    k.e("v_add_u32 v%d, v%d, v%d" % (vdst, vdst, t))
    k.e("v_mul_u32_u24 v%d, 288, v%d" % (vdst, vdst))
    k.e("v_and_b32 v%d, 3, v%d" % (t, vLane))
    k.e("v_lshl_add_u32 v%d, v%d, 3, v%d" % (vdst, t, vdst))


def store_tiles_bf16(k, js, accf, vO, vO2, SRO, soff, sfl, TB, neg=None, colbase=0):
    idx = 0
    slot = 0
    while idx < len(js):
        pr = js[idx:idx + 2]
        if len(pr) == 2 and pr[1] != pr[0] + 1:
            pr = pr[:1]
        o = TB + 4 * (slot % 4)
        for n_, j in enumerate(pr):
            a = accf(j)
            k.e("v_cvt_pk_bf16_f32 v%d, v%d, v%d" % (o + 2 * n_, a, a + 1))
            k.e("v_cvt_pk_bf16_f32 v%d, v%d, v%d" % (o + 2 * n_ + 1, a + 2, a + 3))
            if neg is not None:
                k.e("v_xor_b32 v%d, s%d, v%d" % (o + 2 * n_, neg, o + 2 * n_))
                k.e("v_xor_b32 v%d, s%d, v%d" % (o + 2 * n_ + 1, neg, o + 2 * n_ + 1))
        if len(pr) == 2:
            k.e("s_nop 1")
            k.e("v_permlane16_swap_b32 v%d, v%d" % (o, o + 2))
            k.e("v_permlane16_swap_b32 v%d, v%d" % (o + 1, o + 3))
            k.e("s_nop 0")
            k.e("buffer_store_dwordx4 %s, v%d, %s, s%d offen offset:%d%s" % (vr(o), vO, sr(SRO), soff, colbase + pr[0] * 32, sfl))
        else:
            k.e("buffer_store_dwordx2 %s, v%d, %s, s%d offen offset:%d%s" % (vr(o, 2), vO2, sr(SRO), soff, colbase + pr[0] * 32, sfl))
        idx += len(pr)
        slot += 1


PREG = 36864


def store_native(k, tiles, accf, vP, SRO, sTmp, blk0, sblk, TB, par):
    for n, j in enumerate(tiles):
        o = TB + 4 * (n % 4)
        for i in range(2):
            a = accf(j, i)
            if par:
                k.e("v_and_b32 v%d, 0xfffe0000, v%d" % (a, a))
                k.e("v_or_b32 v%d, 0x10000, v%d" % (a, a))
            else:
                k.e("v_add_u32 v%d, 0x10000, v%d" % (a, a))
                k.e("v_and_b32 v%d, 0xfffe0000, v%d" % (a, a))
            k.e("v_cvt_pk_bf16_f32 v%d, v%d, v%d" % (o + 2 * i, a, a + 1))
            k.e("v_cvt_pk_bf16_f32 v%d, v%d, v%d" % (o + 2 * i + 1, a + 2, a + 3))
            k.e(("v_or_b32 v%d, 1, v%d" if par else "v_and_b32 v%d, -2, v%d") % (o + 2 * i, o + 2 * i))
        if n % 4 == 0:
            if sblk is None:
                k.e("s_mov_b32 s%d, %d" % (sTmp, (blk0 + j) * 1024))
            else:
                k.e("s_add_u32 s%d, s%d, %d" % (sTmp, sblk, (blk0 + j) * 1024))
        else:
            k.e("s_nop 0")
        k.e("s_nop 0")
        k.e("v_permlane16_swap_b32 v%d, v%d" % (o, o + 2))
        k.e("v_permlane16_swap_b32 v%d, v%d" % (o + 1, o + 3))
        k.e("s_nop 0")
        k.e("buffer_store_dwordx4 %s, v%d, %s, s%d offen offset:%d%s" % (vr(o), vP, sr(SRO), sTmp, (n % 4) * 1024, XF))


def r_tail(k, rcfg, npart, sW, vLane, sGroup, sMember, XBUF, WSP, XNO, nxt_phase=None):
    freg, xin, xout, ln = rcfg
    if xin[0] == 'in':
        srd(k, 12, 48, 0, None, XB)
    else:
        srd(k, 12, 4, xin[1], None, xin[1] + XB)
    k.e("s_lshr_b32 s46, s%d, 2" % sMember)
    k.e("s_lshl_b32 s47, s%d, 2" % sGroup)
    k.e("s_add_u32 s46, s46, s47")
    k.e("s_mul_i32 s46, s46, %d" % PREG)
    srd(k, 20, 4, WSP, 46, WSP + npart * XB)
    if xout[0] == 'out':
        srd(k, 24, 50, 0, None, XB)
    else:
        srd(k, 24, 4, xout[1], None, xout[1] + XB)
    if ln:
        srd(k, 52, 4, XNO, None, XNO + XB)
    stamp(k, 4)
    k.e("s_lshl_b32 s46, s%d, 7" % sGroup)
    k.e("s_lshl_b32 s47, s%d, 3" % sMember)
    k.e("s_add_u32 s46, s46, s47")
    k.e("s_add_u32 s46, s46, s%d" % sW)
    k.e("v_mov_b32 v2, s46")
    PB0 = 44
    par = (rcfg[0] + 1) & 1

    def ysrc():
        k.e("s_lshr_b32 s46, s%d, 1" % sMember)
        k.e("s_and_b32 s46, s46, 1")
        k.e("s_lshl_b32 s46, s46, 8")
        k.e("s_and_b32 s47, s%d, 1" % sMember)
        k.e("s_lshl_b32 s47, s47, 7")
        k.e("s_add_u32 s46, s46, s47")
        for n, (mul, add) in enumerate(((64, 0), (8, 512))):
            k.e("s_mul_i32 s47, s%d, %d" % (sW, mul))
            k.e("s_add_u32 s47, s47, %d" % add)
            k.e("v_add_u32 v3, s47, v%d" % vLane)
            k.e("v_lshrrev_b32 v5, 4, v3")
            k.e("v_lshlrev_b32 v5, 10, v5")
            k.e("v_bfe_u32 v6, v3, 3, 1")
            k.e("v_lshl_add_u32 v5, v6, 9, v5")
            k.e("v_and_b32 v6, 7, v3")
            k.e("v_lshl_add_u32 v5, v6, 4, v5")
            k.e("v_add_u32 v%d, s46, v5" % (40 + n))
            k.e("v_mul_u32_u24 v5, 2336, v6")
            k.e("v_lshrrev_b32 v6, 3, v3")
            k.e("v_lshl_add_u32 v5, v6, 5, v5")
            k.e("v_add_u32 v%d, 0x%x, v5" % (42 + n, XBUF))
        for z in range(npart):
            for r in range(4):
                k.e("v_mov_b32 v%d, %d" % (PB0 + 8 * z + 4 + r, par))
        AB_ = PB0 + 8 * npart
        lp = k.newlabel("LW")
        ld = k.newlabel("LD")
        k.e("s_mov_b32 s45, 0")
        k.label(lp)
        if int(OPT.get('psleep', 0)):
            k.e("s_sleep %d" % int(OPT.get('psleep', 0)))
        for z in range(npart):
            k.e("s_mov_b32 s47, 0x%x" % (z * 64 * PREG))
            k.e("buffer_load_dwordx4 %s, v40, s[20:23], s47 offen%s" % (vr(PB0 + 8 * z), XF))
            k.e("s_mov_b64 exec, 0xff")
            k.e("buffer_load_dwordx4 %s, v41, s[20:23], s47 offen%s" % (vr(PB0 + 8 * z + 4), XF))
            k.e("s_mov_b64 exec, -1")
        k.vm0()
        regs = list(range(PB0, PB0 + 8 * npart, 2))
        op3 = "v_and_b32" if par else "v_or_b32"
        k.e("%s v26, v%d, v%d" % (op3, regs[0], regs[1]))
        k.e("%s v27, v%d, v%d" % (op3, regs[2], regs[3]))
        rest = regs[4:]
        n = 0
        while rest:
            d = 26 + (n & 1)
            if par:
                k.e("v_and_b32 v%d, v%d, v%d" % (d, d, rest[0]))
                rest = rest[1:]
            else:
                k.e("v_or3_b32 v%d, v%d, v%d, v%d" % (d, d, rest[0], rest[1]))
                rest = rest[2:]
            n += 1
        k.e("%s v26, v26, v27" % op3)
        k.e("v_and_b32 v26, 1, v26")
        k.e("v_cmp_ne_u32 vcc, %d, v26" % par)
        k.e("s_nop 3")
        k.e("s_cmp_eq_u64 vcc, 0")
        k.e("s_cbranch_scc1 %s" % ld)
        k.e("s_add_u32 s45, s45, 1")
        k.e("s_cmp_lt_u32 s45, 0x100000")
        k.e("s_cbranch_scc1 %s" % lp)
        k.label(ld)
        stamp(k, 5)
        if False:
            for r in range(4):
                k.e("v_mov_b32 v%d, -1" % (AB_ + 16 + r))
            for z in range(npart):
                k.e("s_mov_b32 s47, 0x%x" % (z * 64 * PREG))
                k.e("buffer_store_dwordx4 %s, v40, s[20:23], s47 offen" % vr(AB_ + 16))
                k.e("s_mov_b64 exec, 0xff")
                k.e("buffer_store_dwordx4 %s, v41, s[20:23], s47 offen" % vr(AB_ + 16))
                k.e("s_mov_b64 exec, -1")
        for z in range(npart):
            for h in range(2):
                for r in range(4):
                    src = PB0 + 8 * z + 4 * h + r
                    a = AB_ + 8 * h + 2 * r
                    if z == 0:
                        k.e("v_lshlrev_b32 v%d, 16, v%d" % (a, src))
                        k.e("v_and_b32 v%d, 0xffff0000, v%d" % (a + 1, src))
                    else:
                        k.e("v_lshlrev_b32 v26, 16, v%d" % src)
                        k.e("v_and_b32 v27, 0xffff0000, v%d" % src)
                        k.e("v_add_f32 v%d, v%d, v26" % (a, a))
                        k.e("v_add_f32 v%d, v%d, v27" % (a + 1, a + 1))
        k.e("ds_write_b128 v42, %s" % vr(AB_))
        k.e("ds_write_b128 v42, %s offset:16" % vr(AB_ + 4))
        k.e("s_mov_b64 exec, 0xff")
        k.e("ds_write_b128 v43, %s" % vr(AB_ + 8))
        k.e("ds_write_b128 v43, %s offset:16" % vr(AB_ + 12))
        k.e("s_mov_b64 exec, -1")
        k.e("s_mul_i32 s47, s%d, 2336" % sW)
        k.e("s_add_u32 s47, s47, 0x%x" % XBUF)
        k.e("v_lshl_add_u32 v5, v%d, 4, s47" % vLane)
        k.e("v_lshl_add_u32 v6, v%d, 2, s47" % vLane)
        k.e("s_waitcnt lgkmcnt(0)")
        k.e("s_barrier")
        k.e("ds_read_b128 v[16:19], v5")
        k.e("ds_read_b128 v[20:23], v5 offset:1024")
        k.e("ds_read_b32 v24, v6 offset:2048")
        if nxt_phase and PRE:
            pre_issue(k, nxt_phase, 180)
        k.e("s_waitcnt lgkmcnt(0)")
    r_body(k, 2, vLane, ysrc, True, ln, 12, 24, 52)
    return PB0 + 8 * npart + 20


def preset_pieces(k, sW, vLane, vA_, vD4, SR, sTmp, WSP):
    L = ["s_mul_i32 s%d, s2, %d" % (sTmp, PREG),
         "s_add_u32 s%d, s4, 0x%x" % (SR, WSP), "s_addc_u32 s%d, s5, 0" % (SR + 1),
         "s_add_u32 s%d, s%d, s%d" % (SR, SR, sTmp), "s_addc_u32 s%d, s%d, 0" % (SR + 1, SR + 1),
         "s_and_b32 s%d, s%d, 0xffff" % (SR + 1, SR + 1),
         "s_mov_b32 s%d, %d" % (SR + 2, PREG), "s_mov_b32 s%d, 0x20000" % (SR + 3),
         "s_mul_i32 s%d, s%d, 5120" % (sTmp, sW),
         "v_lshl_add_u32 v%d, v%d, 4, s%d" % (vA_, vLane, sTmp)]
    for r in range(4):
        L.append("v_mov_b32 v%d, -1" % (vD4 + r))
    P = [("S", L + ["buffer_store_dwordx4 %s, v%d, %s, 0 offen" % (vr(vD4), vA_, sr(SR))])]
    for n in range(1, 4):
        P.append(("S", ["buffer_store_dwordx4 %s, v%d, %s, 0 offen offset:%d" % (vr(vD4), vA_, sr(SR), n * 1024)]))
    P.append(("S", ["s_mov_b32 s%d, 4096" % sTmp, "buffer_store_dwordx4 %s, v%d, %s, s%d offen" % (vr(vD4), vA_, sr(SR), sTmp)]))
    return P


def gen_gemm(k, kind, rcfg=None, kidx=0, pf=(), xn=None, ab=None, h=None, dep=None, pub=None, nxt_phase=None):
    nwg = 256
    k.pend = []
    LNF = (kind == 'A1L')
    if LNF:
        kind = 'A1'
    if kind == 'A2':
        NFR, NBUF, mmode, NS = 2, 4, 'tr', 16
        strideN, strideM = 4096, 1152
    elif kind == 'B2':
        NFR, NBUF, mmode, NS = 2, 4, 'tr', 18
        strideN, strideM = 0, 1152
    else:
        NFR, NBUF, mmode, NS = 1, 4, 'row', 9
        strideN, strideM = 1152, 1152
    WSP, WSPO = WS_P, WS_P
    groups = [list(range(5)), list(range(5, 9))]
    NSET = 4
    NT = 4 * NFR * 16
    NTB = NT * 128
    STB = NTB + MTB
    NDN = NT // 64
    LDSB = NBUF * STB + (8 * 2336 if rcfg else 0)
    MB0 = NTB
    if LNF:
        STB, NDN, MB0 = MTB, 0, 73728
        LDSB = 73728 + NBUF * MTB
    KS = 2
    Wmul = float(OPT.get('twmul', 2.0))
    Wmax = int(5 * Wmul + 0.5)

    vLane, vT0, vT1, vT2, vT3, vT4 = 1, 2, 3, 4, 5, 6
    vO = 7
    vDN = 8
    vDM = [9, 10, 11]
    nxt = 12
    nrm = KS if mmode == 'row' else 1
    vRN = [[0] * KS for _ in range(NBUF)]
    vRM = [[0] * nrm for _ in range(NBUF)]
    for b in range(NBUF):
        for s_ in range(KS):
            vRN[b][s_] = nxt; nxt += 1
        for s_ in range(nrm):
            vRM[b][s_] = nxt; nxt += 1
    nxt = (nxt + 3) // 4 * 4
    vPA, vPS, vPD = nxt, nxt + 2, nxt + 3
    nxt += 4
    PD = int(OPT.get('pd', 0)) if kind in ('A2', 'B2') else 0
    vM = [nxt + 4 * j for j in range(Wmax)]; nxt += 4 * Wmax
    vN = [[nxt + 4 * (p * NFR + i) for i in range(NFR)] for p in range(NSET)]; nxt += 4 * NSET * NFR
    vAbase = nxt
    nxt += 4 * 5 * NFR
    nxt = max(nxt, 176 if LNF else 96, 196 if nxt_phase else 0)
    vPF = nxt
    nxt += 1
    nvgpr = nxt
    sW, sW1024, sW256, sKN, sKM, sTmp, sLoop = 28, 29, 30, 31, 32, 33, 40
    SRN, SRM, SRO = 12, 16, 24
    if not PF:
        pf = ()

    stamp(k, 0, 1)
    k.e("s_load_dwordx2 s[4:5], s[0:1], %d" % KA_WS)
    if kind == 'A2':
        k.e("s_load_dwordx4 s[8:11], s[0:1], %d" % KA_CR)
    elif kind == 'B2':
        k.e("s_load_dwordx2 s[8:9], s[0:1], %d" % KA_WD)
    else:
        k.e("s_load_dwordx2 s[8:9], s[0:1], %d" % KA_WR)
        k.e("s_load_dwordx2 s[10:11], s[0:1], %d" % KA_WI)
    if LNF:
        k.e("s_load_dwordx2 s[48:49], s[0:1], %d" % KA_X)
    if rcfg:
        if rcfg[1][0] == 'in':
            k.e("s_load_dwordx2 s[48:49], s[0:1], %d" % rcfg[1][1])
        if rcfg[2][0] == 'out':
            k.e("s_load_dwordx2 s[50:51], s[0:1], %d" % KA_OUT)
    for n, (ka, nb_) in enumerate(pf):
        k.e("s_load_dwordx2 s[%d:%d], s[0:1], %d" % (56 + 4 * n, 57 + 4 * n, ka))
    k.e("v_and_b32 v%d, 63, v0" % vLane)
    k.e("v_lshrrev_b32 v%d, 6, v0" % vT0)
    k.e("s_nop 0")
    k.e("v_readfirstlane_b32 s%d, v%d" % (sW, vT0))
    k.e("s_and_b32 s34, s2, 7")
    k.e("s_lshr_b32 s35, s2, 3")
    if kind in ('A2', 'B2'):
        k.e("s_and_b32 s36, s34, 3")
        k.e("s_lshr_b32 s37, s34, 2")
        k.e("s_lshl_b32 s37, s37, 3")
        k.e("s_lshr_b32 s38, s35, 2")
        k.e("s_add_u32 s37, s37, s38")
        k.e("s_and_b32 s38, s35, 3")
    else:
        k.e("s_mov_b32 s38, s34")
        k.e("s_mov_b32 s37, s35")
    k.e("s_lshl_b32 s%d, s%d, 10" % (sW1024, sW))
    k.e("s_lshl_b32 s%d, s%d, 8" % (sW256, sW))
    k.e("v_lshrrev_b32 v%d, 3, v%d" % (vT0, vLane))
    k.e("s_lshl_b32 s%d, s%d, 3" % (sTmp, sW))
    k.e("v_add_u32 v%d, s%d, v%d" % (vT0, sTmp, vT0))
    k.e("v_bfe_u32 v%d, v%d, 1, 3" % (vT1, vT0))
    k.e("v_and_b32 v%d, 7, v%d" % (vT2, vLane))
    k.e("v_xor_b32 v%d, v%d, v%d" % (vT1, vT1, vT2))
    if kind == 'B2':
        k.e("s_lshr_b32 s44, s%d, 2" % sW)
        k.e("s_mul_i32 s44, s44, %d" % (288 * 1024))
        k.e("s_and_b32 s45, s%d, 3" % sW)
        k.e("s_lshl_b32 s45, s45, 10")
        k.e("s_add_u32 s44, s44, s45")
        k.e("v_lshl_add_u32 v%d, v%d, 4, s44" % (vDN, vLane))
    else:
        k.e("v_mul_u32_u24 v%d, %d, v%d" % (vDN, strideN, vT0))
        k.e("v_lshl_add_u32 v%d, v%d, 4, v%d" % (vDN, vT1, vDN))
    if mmode == 'row':
        k.e("v_mul_u32_u24 v%d, %d, v%d" % (vDM[0], strideM, vT0))
        k.e("v_lshl_add_u32 v%d, v%d, 4, v%d" % (vDM[0], vT1, vDM[0]))
        k.e("v_lshrrev_b32 v%d, 3, v%d" % (vT0, vLane))
        k.e("s_lshl_b32 s%d, s%d, 1" % (sTmp, sW))
        k.e("s_add_u32 s%d, s%d, 128" % (sTmp, sTmp))
        k.e("v_add_u32 v%d, s%d, v%d" % (vT0, sTmp, vT0))
        k.e("v_bfe_u32 v%d, v%d, 1, 3" % (vT1, vT0))
        k.e("v_xor_b32 v%d, v%d, v%d" % (vT1, vT1, vT2))
        k.e("v_mul_u32_u24 v%d, %d, v%d" % (vDM[2], strideM, vT0))
        k.e("v_lshl_add_u32 v%d, v%d, 4, v%d" % (vDM[2], vT1, vDM[2]))
    else:
        for q in range(3):
            if q < 2:
                k.e("s_lshl_b32 s%d, s%d, 6" % (sTmp, sW))
                k.e("s_add_u32 s%d, s%d, %d" % (sTmp, sTmp, 512 * q))
            else:
                k.e("s_lshl_b32 s%d, s%d, 4" % (sTmp, sW))
                k.e("s_add_u32 s%d, s%d, 1024" % (sTmp, sTmp))
            tr_voff(k, vDM[q], sTmp, vLane, (vT0, vT1, vT2, vT3, vT4), strideM, 0x33)
    k.e("s_mov_b32 s%d, 0" % sKN)
    k.e("s_mov_b32 s%d, 0" % sKM)
    if OPT.get('pst'):
        k.e("s_memtime s[%d:%d]" % (SB + 8, SB + 9))
    k.e("s_waitcnt lgkmcnt(0)")
    if OPT.get('pst'):
        stamp(k, 5)
    if kind == 'A2':
        k.e("s_cmp_lt_u32 s36, 2")
        k.e("s_cselect_b32 s6, s8, s10")
        k.e("s_cselect_b32 s7, s9, s11")
        k.e("s_mul_i32 s44, s37, %d" % (128 * 4096))
        k.e("s_and_b32 s45, s36, 1")
        k.e("s_lshl_b32 s45, s45, 11")
        k.e("s_add_u32 s44, s44, s45")
        srd(k, SRN, 6, 0, 44, S * S * 2)
        k.e("s_mul_i32 s44, s36, %d" % (1024 * 1152))
        k.e("s_mul_i32 s45, s38, 288")
        k.e("s_add_u32 s44, s44, s45")
        srd(k, SRM, 4, ab, 44, ab + 2 * XB)
    elif kind == 'B2':
        k.e("s_mul_i32 s44, s37, %d" % (4 * 288 * 1024))
        k.e("s_mul_i32 s45, s36, %d" % (72 * 1024))
        k.e("s_add_u32 s44, s44, s45")
        srd(k, SRN, 4, h, 44, h + HB)
        k.e("s_mul_i32 s44, s36, %d" % (1152 * 1152))
        k.e("s_mul_i32 s45, s38, 288")
        k.e("s_add_u32 s44, s44, s45")
        srd(k, SRM, 8, 0, 44, F * D * 2)
    else:
        k.e("s_mul_i32 s44, s37, %d" % (64 * 1152))
        if LNF:
            srd(k, SRN, 48, 0, 44, XB)
            k.e("s_mul_i32 s44, s%d, %d" % (sW, 8 * 1152))
            k.e("v_lshl_add_u32 v%d, v%d, 3, s44" % (vT0, vLane))
            k.e("v_lshl_add_u32 v%d, v%d, 1, s44" % (vT1, vLane))
            for rr in range(8):
                b = 32 + 16 * rr
                k.e("s_mov_b32 s44, %d" % (rr * 1152))
                k.e("buffer_load_dwordx2 %s, v%d, %s, s44 offen" % (vr(b + 10, 2), vT0, sr(SRN)), "X")
                k.e("buffer_load_dwordx2 %s, v%d, %s, s44 offen offset:512" % (vr(b + 12, 2), vT0, sr(SRN)), "X")
                k.e("buffer_load_ushort v%d, v%d, %s, s44 offen offset:1024" % (b + 14, vT1, sr(SRN)), "X")
        else:
            srd(k, SRN, 4, xn, 44, xn + XB)
        k.e("s_cmp_lt_u32 s38, 4")
        k.e("s_cselect_b32 s6, s8, s10")
        k.e("s_cselect_b32 s7, s9, s11")
        k.e("s_and_b32 s45, s38, 3")
        k.e("s_mul_i32 s44, s45, %d" % (144 * 1152))
        srd(k, SRM, 6, 0, 44, D * D * 2)
    if PD:
        k.e("s_mul_i32 s45, s38, 288")
        k.e("s_sub_u32 s44, s%d, s45" % SRM)
        k.e("s_subb_u32 s45, s%d, 0" % (SRM + 1))
        k.e("s_lshl_b32 s46, s38, 5")
        k.e("s_lshl_b32 s47, s%d, 2" % sW)
        k.e("s_add_u32 s46, s46, s47")
        k.e("v_add_u32 v%d, s46, v%d" % (vT0, vLane))
        if kind == 'A2':
            k.e("v_lshlrev_b32 v%d, 12, v%d" % (vT1, vT0))
            SN = 128
        else:
            k.e("v_lshrrev_b32 v%d, 5, v%d" % (vT1, vT0))
            k.e("v_mul_u32_u24 v%d, %d, v%d" % (vT1, 288 * 1024, vT1))
            k.e("v_and_b32 v%d, 31, v%d" % (vT2, vT0))
            k.e("v_lshl_add_u32 v%d, v%d, 7, v%d" % (vT1, vT2, vT1))
            SN = 4096
        k.e("v_add_u32 v%d, 0x%x, v%d" % (vT1, PD * SN, vT1))
        k.e("s_mul_i32 s46, s%d, 3" % sW)
        k.e("s_sub_u32 s46, s46, 4")
        k.e("v_add_u32 v%d, s46, v%d" % (vT0, vLane))
        k.e("v_min_u32 v%d, 17, v%d" % (vT0, vT0))
        k.e("s_mul_i32 s46, s35, 18")
        k.e("v_add_u32 v%d, s46, v%d" % (vT0, vT0))
        k.e("v_mul_u32_u24 v%d, 7282, v%d" % (vT2, vT0))
        k.e("v_lshrrev_b32 v%d, 16, v%d" % (vT2, vT2))
        k.e("v_mul_u32_u24 v%d, 9, v%d" % (vT3, vT2))
        k.e("v_sub_u32 v%d, v%d, v%d" % (vT3, vT0, vT3))
        k.e("v_mul_u32_u24 v%d, 1152, v%d" % (vT2, vT2))
        k.e("v_lshl_add_u32 v%d, v%d, 7, v%d" % (vT2, vT3, vT2))
        k.e("v_add_u32 v%d, 0x%x, v%d" % (vT2, PD * 64 * 1152, vT2))
        k.e("v_cmp_gt_u32 vcc, 4, v%d" % vLane)
        k.e("v_mov_b32 v%d, s44" % vT0)
        k.e("v_mov_b32 v%d, s%d" % (vT3, SRN))
        k.e("v_cndmask_b32 v%d, v%d, v%d, vcc" % (vPA, vT0, vT3))
        k.e("v_mov_b32 v%d, s45" % vT0)
        k.e("v_mov_b32 v%d, s%d" % (vT3, SRN + 1))
        k.e("v_cndmask_b32 v%d, v%d, v%d, vcc" % (vPA + 1, vT0, vT3))
        k.e("v_cndmask_b32 v%d, v%d, v%d, vcc" % (vT1, vT2, vT1))
        k.e("v_mov_b32 v%d, 0x%x" % (vT0, 64 * 1152))
        k.e("v_mov_b32 v%d, %d" % (vT3, SN))
        k.e("v_cndmask_b32 v%d, v%d, v%d, vcc" % (vPS, vT0, vT3))
        k.e("v_add_co_u32 v%d, vcc, v%d, v%d" % (vPA, vT1, vPA))
        k.e("s_nop 1")
        k.e("v_addc_co_u32 v%d, vcc, 0, v%d, vcc" % (vPA + 1, vPA + 1))

    def dma_n(stage):
        b = stage % NBUF
        tag = "D%d" % stage
        P = []
        for j in range(NDN):
            L = ["s_add_u32 m0, s%d, 0x%x" % (sW1024, b * STB + j * 8192)]
            if j:
                L.append("s_add_u32 s%d, s%d, 0x%x" % (sTmp, sKN, j * (2 * 288 * 1024 if kind == 'B2' else 64 * strideN)))
                L.append("buffer_load_dwordx4 v%d, %s, s%d offen lds" % (vDN, sr(SRN), sTmp))
            else:
                L.append("s_nop 0")
                L.append("buffer_load_dwordx4 v%d, %s, s%d offen lds" % (vDN, sr(SRN), sKN))
            P.append((tag, L))
        if P:
            P[-1] = (tag, P[-1][1] + ["s_add_u32 s%d, s%d, %d" % (sKN, sKN, 4096 if kind == 'B2' else 128)])
        return P

    def dma_m(stage):
        b = stage % NBUF
        tag = "D%d" % stage
        P = []
        mb_ = b * STB + MB0
        for q in range(3):
            L = []
            if q < 2:
                L.append("s_add_u32 m0, s%d, 0x%x" % (sW1024, mb_ + q * 8192))
            else:
                L.append("s_add_u32 m0, s%d, 0x%x" % (sW256, mb_ + 16384))
            if mmode == 'row' and q == 1:
                L.append("s_add_u32 s%d, s%d, 0x%x" % (sTmp, sKM, 64 * strideM))
                so, vo = sTmp, vDM[0]
            else:
                so, vo = sKM, vDM[q]
                L.append("s_nop 0")
            if q == 2:
                L.append("s_mov_b64 exec, 0xffff")
            L.append("buffer_load_dwordx4 v%d, %s, s%d offen lds" % (vo, sr(SRM), so))
            if q == 2:
                L.append("s_mov_b64 exec, -1")
            P.append((tag, L))
        P[-1] = (tag, P[-1][1] + ["s_add_u32 s%d, s%d, 0x%x" % (sKM, sKM, 128 if mmode == 'row' else 64 * strideM)])
        return P

    def dma(stage):
        return dma_n(stage) + dma_m(stage)

    def emit(P):
        for tag, L in P:
            for x in L:
                k.e(x, tag)

    if dep is None:
        for stg in range(NBUF):
            emit(dma(stg))
    else:
        first, second = (dma_n, dma_m) if kind == 'A2' else (dma_m, dma_n)
        if dep == 'pre':
            for stg in range(NBUF):
                emit(first(stg))
            raise PreDone()
        if PRE:
            if kind == 'A2':
                k.e("s_mov_b32 s%d, %d" % (sKN, NBUF * 128))
            else:
                k.e("s_mov_b32 s%d, 0x%x" % (sKM, NBUF * (128 if mmode == 'row' else 64 * strideM)))
        elif not POLLF:
            for stg in range(NBUF):
                emit(first(stg))
        elif POLLF == 2:
            emit(first(0))
        if kind == 'A2':
            k.e("s_and_b32 s44, s36, 1")
            k.e("s_lshl_b32 s44, s44, 7")
            k.e("s_lshr_b32 s45, s36, 1")
            k.e("s_lshl_b32 s45, s45, 2")
            k.e("s_add_u32 s44, s44, s45")
            k.e("v_lshrrev_b32 v%d, 2, v%d" % (vT0, vLane))
            k.e("v_and_b32 v%d, 3, v%d" % (vT1, vLane))
            k.e("v_lshl_add_u32 v%d, v%d, 3, v%d" % (vT0, vT0, vT1))
            k.e("v_add_u32 v%d, s44, v%d" % (vT0, vT0))
            nl = 64
        elif kind == 'B2':
            k.e("s_lshr_b32 s44, s37, 1")
            k.e("s_lshl_b32 s44, s44, 5")
            k.e("s_lshl_b32 s45, s36, 3")
            k.e("s_add_u32 s44, s44, s45")
            k.e("v_add_u32 v%d, s44, v%d" % (vT0, vLane))
            nl = 8
        else:
            k.e("s_lshl_b32 s44, s37, 3")
            k.e("v_add_u32 v%d, s44, v%d" % (vT0, vLane))
            nl = 8
        wait_flags(k, dep, nl, vT0, vT1)
        for stg in range(NBUF):
            emit(second(stg))
            if POLLF and not PRE and not (POLLF == 2 and stg == 0):
                emit(first(stg))
    for n, (ka, nb_) in enumerate(pf):
        srd(k, 56 + 4 * n, 56 + 4 * n, 0, None, nb_)
    k.e("s_and_b32 s%d, s%d, 3" % (sTmp, sW))
    k.e("s_mul_i32 s%d, s%d, %d" % (sTmp, sTmp, NFR * 16 * 128))
    k.e("v_and_b32 v%d, 15, v%d" % (vT0, vLane))
    k.e("v_lshrrev_b32 v%d, 4, v%d" % (vT1, vLane))
    k.e("v_bfe_u32 v%d, v%d, 1, 3" % (vT2, vLane))
    k.e("v_xor_b32 v%d, v%d, v%d" % (vT2, vT1, vT2))
    k.e("v_lshlrev_b32 v%d, 4, v%d" % (vT2, vT2))
    k.e("v_lshl_add_u32 v%d, v%d, 7, v%d" % (vT2, vT0, vT2))
    k.e("v_add_u32 v%d, s%d, v%d" % (vT3, sTmp, vT2))
    if kind == 'B2':
        k.e("v_lshlrev_b32 v%d, 9, v%d" % (vT3, vT1))
        k.e("v_lshl_add_u32 v%d, v%d, 4, v%d" % (vT3, vT0, vT3))
        k.e("v_add_u32 v%d, s%d, v%d" % (vT3, sTmp, vT3))
        for b in range(NBUF):
            k.e("v_add_u32 v%d, 0x%x, v%d" % (vRN[b][0], b * STB, vT3))
            k.e("v_add_u32 v%d, 2048, v%d" % (vRN[b][1], vRN[b][0]))
    else:
        for b in range(NBUF):
            k.e("v_add_u32 v%d, 0x%x, v%d" % (vRN[b][0], (b * 65536 if LNF else b * STB), vT3))
            k.e("v_xor_b32 v%d, 64, v%d" % (vRN[b][1], vRN[b][0]))
    if mmode == 'row':
        for b in range(NBUF):
            k.e("v_add_u32 v%d, 0x%x, v%d" % (vRM[b][0], b * STB + MB0, vT2))
            k.e("v_xor_b32 v%d, 64, v%d" % (vRM[b][1], vRM[b][0]))
    else:
        tr_raddr(k, vT2, vLane, vT3)
        for b in range(NBUF):
            k.e("v_add_u32 v%d, 0x%x, v%d" % (vRM[b][0], b * STB + NTB, vT2))
    k.e("s_and_b32 s%d, s%d, 3" % (sTmp, sW))
    k.e("s_mul_i32 s%d, s%d, %d" % (sTmp, sTmp, NFR * 16))
    k.e("v_and_b32 v%d, 15, v%d" % (vT3, vLane))
    k.e("v_add_u32 v%d, s%d, v%d" % (vT3, sTmp, vT3))
    k.e("v_lshrrev_b32 v%d, 4, v%d" % (vT4, vLane))
    k.e("v_mul_u32_u24 v%d, 1152, v%d" % (vT3, vT3))
    k.e("v_and_b32 v%d, 1, v%d" % (vT0, vT4))
    k.e("v_lshl_add_u32 v%d, v%d, 5, v%d" % (vO, vT0, vT3))
    k.e("v_lshrrev_b32 v%d, 1, v%d" % (vT0, vT4))
    k.e("v_lshl_add_u32 v%d, v%d, 4, v%d" % (vO, vT0, vO))
    k.e("v_lshl_add_u32 v%d, v%d, 3, v%d" % (vT4, vT4, vT3))
    vO2 = vT4
    if kind == 'A1':
        k.e("s_lshr_b32 s45, s38, 2")
        k.e("s_mul_i32 s44, s45, %d" % XB)
        k.e("s_mul_i32 s46, s37, %d" % (64 * 1152))
        k.e("s_add_u32 s44, s44, s46")
        k.e("s_and_b32 s46, s38, 3")
        k.e("s_mul_i32 s46, s46, 288")
        k.e("s_add_u32 s44, s44, s46")
        srd(k, SRO, 4, ab, 44, ab + 2 * XB)
        k.e("s_mul_i32 s47, s45, 0x80008000")
    else:
        k.e("s_lshl_b32 s44, s36, 4")
        k.e("s_add_u32 s44, s44, s37")
        k.e("s_lshl_b32 s44, s44, 2")
        k.e("s_and_b32 s46, s%d, 3" % sW)
        k.e("s_add_u32 s44, s44, s46")
        k.e("s_mul_i32 s44, s44, %d" % PREG)
        k.e("s_mul_i32 s46, s38, 9216")
        k.e("s_add_u32 s44, s44, s46")
        srd(k, SRO, 4, WSP, 44, WSP + 4 * XB)
        k.e("v_lshlrev_b32 v%d, 4, v%d" % (vO, vLane))
    def pf_emit():
        k.e("s_lshl_b32 s%d, s2, 3" % sTmp)
        k.e("s_add_u32 s%d, s%d, s%d" % (sTmp, sTmp, sW))
        k.e("s_lshl_b32 s%d, s%d, 12" % (sTmp, sTmp))
        k.e("v_lshl_add_u32 v%d, v%d, 6, s%d" % (vT0, vLane, sTmp))
        for n in range(len(pf)):
            k.e("buffer_load_dword v%d, v%d, %s, 0 offen" % (vPF, vT0, sr(56 + 4 * n)), "PF")

    stamp(k, 1)
    if LNF:
        for tg, L in preset_pieces(k, sW, vLane, vT2, vPA, 72, sTmp, WS_P):
            for x in L:
                k.e(x.replace(", -1", ", 0") if x.startswith("v_mov") else x, "S")
        lz = k.newlabel("LZ")
        k.e("s_cmp_ge_u32 s2, 1")
        k.e("s_cbranch_scc1 %s" % lz)
        srd(k, 72, 4, WS_FL, None, WS_FL + 8192)
        k.e("v_lshlrev_b32 v%d, 4, v0" % vT2)
        k.e("buffer_store_dwordx4 %s, v%d, s[72:75], 0 offen" % (vr(vPA), vT2))
        k.vm.pop()
        k.label(lz)
        if pf and OPT.get('pfpos', 'end') == 'early':
            pf_emit()
        R = range(8)
        B = lambda rr: 32 + 16 * rr
        k.e("v_lshrrev_b32 v%d, 4, v%d" % (vT0, vLane))
        k.e("v_lshlrev_b32 v%d, 13, v%d" % (vT0, vT0))
        k.e("v_bfe_u32 v%d, v%d, 1, 3" % (vT1, vLane))
        k.e("v_lshl_add_u32 v%d, v%d, 4, v%d" % (vT0, vT1, vT0))
        k.e("v_and_b32 v%d, 1, v%d" % (vT1, vLane))
        k.e("v_lshl_add_u32 v%d, v%d, 3, v%d" % (vT0, vT1, vT0))
        k.e("v_add_u32 v%d, s%d, v%d" % (vT0, sW1024, vT0))
        k.e("v_lshrrev_b32 v%d, 3, v%d" % (vT1, vLane))
        k.e("v_lshlrev_b32 v%d, 4, v%d" % (vT1, vT1))
        k.e("v_and_b32 v%d, 7, v%d" % (vT2, vLane))
        k.e("v_lshl_add_u32 v%d, v%d, 1, v%d" % (vT1, vT2, vT1))
        k.e("v_add_u32 v%d, s%d, v%d" % (vT1, sW1024, vT1))
        k.e("v_add_u32 v%d, 0x10000, v%d" % (vT1, vT1))
        for pr in range(4):
            k.e("s_lshl_b32 s44, s%d, 2" % sW)
            k.e("s_add_u32 s44, s44, %d" % pr)
            k.e("s_and_b32 s44, s44, 7")
            k.e("s_lshl_b32 s44, s44, 4")
            k.e("v_xor_b32 v%d, s44, v%d" % (160 + pr, vT0))
            k.e("v_xor_b32 v%d, s44, v%d" % (164 + pr, vT1))
        stamp(k, 5)
        k.vneed("X")
        stamp(k, 4)

        def allrows(fmt, *offs):
            for rr in R:
                k.e(fmt % tuple(B(rr) + o for o in offs))

        def xsum(o, t):
            for ctl in ("quad_perm:[1,0,3,2]", "quad_perm:[2,3,0,1]", "row_half_mirror", "row_mirror"):
                allrows("v_add_f32_dpp v%d, v%d, v%d " + ctl + " row_mask:0xf bank_mask:0xf", o, o, o)
            for sw_ in ("v_permlane16_swap_b32", "v_permlane32_swap_b32"):
                allrows("v_mov_b32 v%d, v%d", t, o)
                allrows(sw_ + " v%d, v%d", o, t)
                allrows("v_add_f32 v%d, v%d, v%d", o, o, t)
        for i in range(4):
            allrows("v_lshlrev_b32 v%d, 16, v%d", 2 * i, 10 + i)
            allrows("v_and_b32 v%d, 0xffff0000, v%d", 2 * i + 1, 10 + i)
        allrows("v_lshlrev_b32 v%d, 16, v%d", 8, 14)
        def pk(op, d, a, b, c=None, mods=""):
            for rr in R:
                x = B(rr)
                ops = [vr(x + d, 2), vr(x + a, 2), vr(x + b, 2)] + ([vr(x + c, 2)] if c is not None else [])
                k.e("%s %s%s" % (op, ", ".join(ops), mods))
        pk("v_pk_add_f32", 10, 0, 2)
        pk("v_pk_add_f32", 12, 4, 6)
        pk("v_pk_add_f32", 10, 10, 12)
        allrows("v_add_f32 v%d, v%d, v%d", 14, 10, 11)
        allrows("v_add_f32 v%d, v%d, v%d", 14, 14, 8)
        xsum(14, 15)
        allrows("v_mul_f32 v%%d, 0x%08x, v%%d" % f32bits(-1.0 / D), 14, 14)
        allrows("v_mov_b32 v%d, v%d", 15, 14)
        for e in range(0, 8, 2):
            pk("v_pk_add_f32", e, e, 14)
        allrows("v_add_f32 v%d, v%d, v%d", 8, 8, 14)
        pk("v_pk_mul_f32", 10, 0, 0)
        pk("v_pk_mul_f32", 12, 2, 2)
        pk("v_pk_fma_f32", 10, 4, 4, 10)
        pk("v_pk_fma_f32", 12, 6, 6, 12)
        pk("v_pk_add_f32", 10, 10, 12)
        allrows("v_add_f32 v%d, v%d, v%d", 14, 10, 11)
        allrows("v_fmac_f32 v%d, v%d, v%d", 14, 8, 8)
        xsum(14, 15)
        allrows("v_mov_b32 v%%d, 0x%08x" % f32bits(1e-5), 15)
        allrows("v_fmac_f32 v%%d, 0x%08x, v%%d" % f32bits(1.0 / D), 15, 14)
        allrows("v_rsq_f32 v%d, v%d", 14, 15)
        allrows("v_mov_b32 v%d, v%d", 15, 14)
        for e in range(0, 8, 2):
            pk("v_pk_mul_f32", e, e, 14)
        allrows("v_mul_f32 v%d, v%d, v%d", 8, 8, 14)
        for i in range(4):
            allrows("v_cvt_pk_bf16_f32 v%d, v%d, v%d", 10 + i, 2 * i, 2 * i + 1)
        allrows("v_cvt_pk_bf16_f32 v%d, v%d, v%d", 14, 8, 8)
        stamp(k, 6)
        for rr in R:
            k.e("ds_write_b64 v%d, %s offset:%d" % (160 + rr // 2, vr(B(rr) + 10, 2), rr * 128))
            k.e("ds_write_b64 v%d, %s offset:%d" % (160 + rr // 2, vr(B(rr) + 12, 2), rr * 128 + 32768))
            k.e("ds_write_b16 v%d, v%d offset:%d" % (164 + rr // 2, B(rr) + 14, rr * 128))
        k.e("s_waitcnt lgkmcnt(0)")
    k.vneed("D0")
    k.e("s_barrier")
    stamp(k, 2)

    ljoin = k.newlabel("LJ")
    lg1 = k.newlabel("LG")
    k.e("s_cmp_ge_u32 s%d, 4" % sW)
    k.e("s_cbranch_scc1 %s" % lg1)
    vm_save = list(k.vm)
    for gi, tiles in enumerate(groups):
        if gi:
            k.label(lg1)
            k.vm = list(vm_save)
        nt = len(tiles)
        W = int(nt * Wmul + 0.5)
        vA = {(j, i): vAbase + 4 * (ti * NFR + i) for ti, j in enumerate(tiles) for i in range(NFR)}

        def rd_m(stg, ks, j, reg, tag):
            b = stg % NBUF
            if mmode == 'row':
                k.lds("ds_read_b128 %s, v%d offset:%d" % (vr(reg), vRM[b][ks], j * 2048), tag)
            else:
                o = ks * 9216 + j * 32
                k.lds("ds_read_b64_tr_b16 %s, v%d offset:%d" % (vr(reg, 2), vRM[b][0], o), tag)
                k.lds("ds_read_b64_tr_b16 %s, v%d offset:%d" % (vr(reg + 2, 2), vRM[b][0], o + 2304), tag)

        def rd_n(stg, ks, i, reg, tag):
            if LNF:
                k.lds("ds_read_b128 %s, v%d offset:%d" % (vr(reg), vRN[stg // 8][ks], (stg % 8) * 8192), tag)
            else:
                k.lds("ds_read_b128 %s, v%d offset:%d" % (vr(reg), vRN[stg % NBUF][ks], i * (256 if kind == 'B2' else 2048)), tag)

        def ald():
            L = ["s_lshl_b32 s%d, s2, 3" % sTmp, "s_add_u32 s%d, s%d, s%d" % (sTmp, sTmp, sW), "s_lshl_b32 s%d, s%d, 12" % (sTmp, sTmp),
                 "v_lshl_add_u32 v%d, v%d, 6, s%d" % (vT0, vLane, sTmp)]
            for n in range(len(pf)):
                L.append("buffer_load_dword v%d, v%d, %s, 0 offen" % (vPF, vT0, sr(56 + 4 * n)))
            P = [("PF", L)] if pf else []
            return P

        pp = preset_pieces(k, sW, vLane, vT2, vPA, 72, sTmp, WSPO)

        def sx(t):
            return [pp[t]] if t < len(pp) else []

        engine(k, tiles, NFR, KS, NS, NBUF, W, NSET, int(OPT.get('tdelta', 1)), rd_m, rd_n, dma,
               lambda t, j, i: vA[(j, i)], lambda t, ks: t == 0 and ks == 0, vM, vN, sLoop,
               after_last_dma=ald if (pf and not (LNF and OPT.get('pfpos', 'end') != 'mid')) else None, stage_extra=None, n_static=LNF)
        k.e("s_nop 7")
        k.e("s_nop 3")
        stamp(k, 3)
        if kind == 'A1' and nxt_phase and PRE:
            k.e("s_barrier")
            pre_issue(k, nxt_phase, 180)
        if kind in ('A2', 'B2'):
            store_native(k, tiles, lambda j, i: vA[(j, i)], vO, SRO, sTmp, 0, None, 28, (rcfg[0] + 1) & 1)
        else:
            k.e("s_mov_b32 s%d, 0" % sTmp)
            store_tiles_bf16(k, tiles, lambda j: vA[(j, 0)], vO, vO2, SRO, sTmp, "", 28, neg=47)
        if gi == 0:
            k.e("s_branch %s" % ljoin)
    k.label(ljoin)
    if LNF and pf and OPT.get('pfpos', 'end') == 'end':
        pf_emit()
    if rcfg:
        k.e("s_lshl_b32 s39, s36, 2")
        k.e("s_add_u32 s39, s39, s38")
        nv = r_tail(k, rcfg, 4, sW, vLane, 37, 39, NBUF * STB, WSP, xn, nxt_phase)
        nvgpr = max(nvgpr, nv)
    elif not LNF:
        stamp(k, 4)
    if not LNF:
        stamp(k, 6)
    stamp_store(k, kidx)
    if pub is not None:
        if rcfg:
            k.e("s_lshl_b32 s44, s37, 4")
            k.e("s_add_u32 s44, s44, s39")
        else:
            k.e("s_mov_b32 s44, s2")
        publish(k, pub, 44, sW)
    return nvgpr, LDSB


def gen_b1(k, kidx=0, pf=(), xn=None, h=None, dep=None, pub=None, nxt_phase=None):
    nwg = 256
    k.pend = []
    NBUF, NS, KS = int(OPT.get('b1nb', 3)), 18, 1
    NTB = 256 * 64
    STB = NTB + 2 * 9216
    W = int(OPT.get('b1w', 10))
    NFR = 4
    vLane, vT0, vT1, vT2, vT3, vT4 = 1, 2, 3, 4, 5, 6
    vO = 7
    vDN = 8
    vDM = [9, 10]
    vRN = [12 + b for b in range(NBUF)]
    vRM = [16 + b for b in range(NBUF)]
    nxt = 20
    vM = [nxt + 4 * j for j in range(W)]; nxt += 4 * W
    vN = [[nxt + 4 * (p * NFR + i) for i in range(NFR)] for p in range(2)]; nxt += 8 * NFR
    vAbase = nxt
    nxt += 160
    vPF = nxt
    nxt += 1
    nvgpr = nxt
    assert nvgpr <= 256
    sW, sW1024, sW256, sKN, sKM, sTmp, sLoop = 28, 29, 30, 31, 32, 33, 39
    SRN, SRM, SRO, SRQ = 12, [16, 20], 24, 40
    if not PF:
        pf = ()
    stamp(k, 0, 1)
    k.e("s_load_dwordx2 s[4:5], s[0:1], %d" % KA_WS)
    k.e("s_load_dwordx4 s[8:11], s[0:1], %d" % KA_WG)
    for n, (ka, nb_) in enumerate(pf):
        k.e("s_load_dwordx2 s[%d:%d], s[0:1], %d" % (56 + 4 * n, 57 + 4 * n, ka))
    k.e("v_and_b32 v%d, 63, v0" % vLane)
    k.e("v_lshrrev_b32 v%d, 6, v0" % vT0)
    k.e("s_nop 0")
    k.e("v_readfirstlane_b32 s%d, v%d" % (sW, vT0))
    k.e("s_and_b32 s34, s2, 7")
    k.e("s_lshr_b32 s35, s2, 3")
    k.e("s_lshl_b32 s38, s34, 2")
    k.e("s_and_b32 s36, s35, 3")
    k.e("s_add_u32 s38, s38, s36")
    k.e("s_lshr_b32 s37, s35, 2")
    k.e("s_lshl_b32 s%d, s%d, 10" % (sW1024, sW))
    k.e("s_and_b32 s44, s%d, 3" % sW)
    k.e("s_lshl_b32 s%d, s44, 8" % sW256)
    k.e("s_lshr_b32 s45, s%d, 2" % sW)
    k.e("s_mul_i32 s45, s45, 9216")
    k.e("s_add_u32 s%d, s%d, s45" % (sW256, sW256))
    k.e("v_lshrrev_b32 v%d, 2, v%d" % (vT0, vLane))
    k.e("s_lshl_b32 s%d, s%d, 4" % (sTmp, sW))
    k.e("v_add_u32 v%d, s%d, v%d" % (vT0, sTmp, vT0))
    k.e("v_lshrrev_b32 v%d, 2, v%d" % (vT1, vT0))
    k.e("v_sub_u32 v%d, 0, v%d" % (vT1, vT1))
    k.e("v_xor_b32 v%d, v%d, v%d" % (vT1, vT1, vLane))
    k.e("v_and_b32 v%d, 3, v%d" % (vT1, vT1))
    k.e("v_mul_u32_u24 v%d, 1152, v%d" % (vDN, vT0))
    k.e("v_lshl_add_u32 v%d, v%d, 4, v%d" % (vDN, vT1, vDN))
    T5 = (vT0, vT1, vT2, vT3, vT4)
    k.e("s_lshl_b32 s%d, s%d, 6" % (sTmp, sW))
    tr_voff(k, vDM[0], sTmp, vLane, T5, 9216, 0x13)
    k.e("s_lshl_b32 s%d, s44, 4" % sTmp)
    k.e("s_add_u32 s%d, s%d, 512" % (sTmp, sTmp))
    tr_voff(k, vDM[1], sTmp, vLane, T5, 9216, 0x13)
    k.e("s_mov_b32 s%d, 0" % sKN)
    k.e("s_mov_b32 s%d, 0" % sKM)
    k.e("s_waitcnt lgkmcnt(0)")
    k.e("s_mul_i32 s44, s37, %d" % (256 * 1152))
    srd(k, SRN, 4, xn, 44, xn + XB)
    k.e("s_mul_i32 s44, s38, 288")
    srd(k, SRM[0], 8, 0, 44, D * F * 2)
    srd(k, SRM[1], 10, 0, 44, D * F * 2)
    k.e("s_cmp_lt_u32 s%d, 4" % sW)
    for x in range(3):
        k.e("s_cselect_b32 s%d, s%d, s%d" % (SRQ + x, SRM[0] + x, SRM[1] + x))
    k.e("s_mov_b32 s%d, 0x20000" % (SRQ + 3))

    def dma_n(stage):
        tag = "D%d" % stage
        base = (stage % NBUF) * STB
        return [(tag, ["s_add_u32 m0, s%d, 0x%x" % (sW1024, base), "s_nop 0",
                       "buffer_load_dwordx4 v%d, %s, s%d offen lds" % (vDN, sr(SRN), sKN)]),
                (tag, ["s_add_u32 m0, s%d, 0x%x" % (sW1024, base + 8192), "s_add_u32 s%d, s%d, 0x%x" % (sTmp, sKN, 128 * 1152),
                       "buffer_load_dwordx4 v%d, %s, s%d offen lds" % (vDN, sr(SRN), sTmp),
                       "s_add_u32 s%d, s%d, 64" % (sKN, sKN)])]

    def dma_m(stage):
        tag = "D%d" % stage
        base = (stage % NBUF) * STB
        P = []
        for mat in range(2):
            P.append((tag, ["s_add_u32 m0, s%d, 0x%x" % (sW1024, base + NTB + mat * 9216), "s_nop 0",
                            "buffer_load_dwordx4 v%d, %s, s%d offen lds" % (vDM[0], sr(SRM[mat]), sKM)]))
        P.append((tag, ["s_add_u32 m0, s%d, 0x%x" % (sW256, base + NTB + 8192), "s_mov_b64 exec, 0xffff",
                        "buffer_load_dwordx4 v%d, %s, s%d offen lds" % (vDM[1], sr(SRQ), sKM),
                        "s_mov_b64 exec, -1",
                        "s_add_u32 s%d, s%d, 0x%x" % (sKM, sKM, 32 * 9216)]))
        return P

    def dma(stage):
        return dma_n(stage) + dma_m(stage)

    def emit(P):
        for tag, L in P:
            for x in L:
                k.e(x, tag)

    if dep is None:
        for stg in range(NBUF):
            emit(dma(stg))
    else:
        if dep == 'pre':
            for stg in range(NBUF):
                emit(dma_m(stg))
            raise PreDone()
        if PRE:
            k.e("s_mov_b32 s%d, 0x%x" % (sKM, NBUF * 32 * 9216))
        elif not POLLF:
            for stg in range(NBUF):
                emit(dma_m(stg))
        elif POLLF == 2:
            emit(dma_m(0))
        k.e("s_lshl_b32 s44, s37, 5")
        k.e("v_add_u32 v%d, s44, v%d" % (vT0, vLane))
        wait_flags(k, dep, 32, vT0, vT1)
        for stg in range(NBUF):
            emit(dma_n(stg))
            if POLLF and not PRE and not (POLLF == 2 and stg == 0):
                emit(dma_m(stg))
    for n, (ka, nb_) in enumerate(pf):
        srd(k, 56 + 4 * n, 56 + 4 * n, 0, None, nb_)
    k.e("v_and_b32 v%d, 15, v%d" % (vT0, vLane))
    k.e("v_lshrrev_b32 v%d, 4, v%d" % (vT1, vLane))
    k.e("v_lshrrev_b32 v%d, 2, v%d" % (vT2, vT0))
    k.e("v_sub_u32 v%d, 0, v%d" % (vT2, vT2))
    k.e("v_xor_b32 v%d, v%d, v%d" % (vT2, vT2, vT1))
    k.e("v_and_b32 v%d, 3, v%d" % (vT2, vT2))
    k.e("v_lshlrev_b32 v%d, 4, v%d" % (vT2, vT2))
    k.e("v_lshl_add_u32 v%d, v%d, 6, v%d" % (vT2, vT0, vT2))
    k.e("s_and_b32 s%d, s%d, 3" % (sTmp, sW))
    k.e("s_lshl_b32 s%d, s%d, 12" % (sTmp, sTmp))
    k.e("v_add_u32 v%d, s%d, v%d" % (vT3, sTmp, vT2))
    for b in range(NBUF):
        k.e("v_add_u32 v%d, 0x%x, v%d" % (vRN[b], b * STB, vT3))
    tr_raddr(k, vT2, vLane, vT3)
    for b in range(NBUF):
        k.e("v_add_u32 v%d, 0x%x, v%d" % (vRM[b], b * STB + NTB, vT2))
    k.e("s_lshl_b32 s44, s37, 3")
    k.e("s_and_b32 s46, s%d, 3" % sW)
    k.e("s_lshl_b32 s46, s46, 1")
    k.e("s_add_u32 s44, s44, s46")
    k.e("s_mul_i32 s44, s44, 288")
    k.e("s_mul_i32 s46, s38, 9")
    k.e("s_add_u32 s44, s44, s46")
    k.e("s_lshl_b32 s44, s44, 10")
    srd(k, SRO, 4, h, 44, h + HB)
    k.e("v_lshlrev_b32 v%d, 4, v%d" % (vO, vLane))
    k.e("s_mov_b32 s46, 0x%08x" % f32bits(-1.4426950408889634))
    stamp(k, 1)
    k.vneed("D0")
    k.e("s_barrier")
    stamp(k, 2)
    ljoin = k.newlabel("LJ")
    lg1 = k.newlabel("LG")
    k.e("s_cmp_ge_u32 s%d, 4" % sW)
    k.e("s_cbranch_scc1 %s" % lg1)
    vm_save = list(k.vm)
    for gi, js in enumerate((list(range(5)), list(range(5, 9)))):
        if gi:
            k.label(lg1)
            k.vm = list(vm_save)
        tiles = [(m, j) for j in js for m in range(2)]
        vA = {(t, i): vAbase + 4 * (ti * NFR + i) for ti, t in enumerate(tiles) for i in range(NFR)}

        def rd_m(stg, ks, t, reg, tag):
            o = t[0] * 9216 + t[1] * 32
            k.lds("ds_read_b64_tr_b16 %s, v%d offset:%d" % (vr(reg, 2), vRM[stg % NBUF], o), tag)
            k.lds("ds_read_b64_tr_b16 %s, v%d offset:%d" % (vr(reg + 2, 2), vRM[stg % NBUF], o + 2304), tag)

        def rd_n(stg, ks, i, reg, tag):
            k.lds("ds_read_b128 %s, v%d offset:%d" % (vr(reg), vRN[stg % NBUF], i * 1024), tag)

        Wg = min(W, len(tiles))
        engine(k, tiles, NFR, KS, NS, NBUF, Wg, 2, int(OPT.get('delta', 2)), rd_m, rd_n, dma,
               lambda t, tl, i: vA[(tl, i)], lambda t, ks: t == 0, vM, vN, sLoop)
        k.e("s_nop 7")
        k.e("s_nop 3")
        stamp(k, 3)
        if nxt_phase and PRE:
            k.e("s_barrier")
            pre_issue(k, nxt_phase, 40)
        TB = 20
        n = 0
        for pr in range(2):
            for jn, j in enumerate(js):
                o = TB + 4 * (n % 4)
                n += 1
                for i in range(2):
                    g = vA[((0, j), 2 * pr + i)]
                    u_ = vA[((1, j), 2 * pr + i)]
                    for r in range(4):
                        k.e("v_mul_f32 v%d, s46, v%d" % (g + r, g + r))
                    for r in range(4):
                        k.e("v_exp_f32 v%d, v%d" % (g + r, g + r))
                    for r in range(4):
                        k.e("v_add_f32 v%d, 1.0, v%d" % (g + r, g + r))
                    for r in range(4):
                        k.e("v_rcp_f32 v%d, v%d" % (g + r, g + r))
                    for r in range(4):
                        k.e("v_mul_f32 v%d, v%d, v%d" % (g + r, g + r, u_ + r))
                    k.e("v_cvt_pk_bf16_f32 v%d, v%d, v%d" % (o + 2 * i, g, g + 1))
                    k.e("v_cvt_pk_bf16_f32 v%d, v%d, v%d" % (o + 2 * i + 1, g + 2, g + 3))
                if jn % 4 == 0:
                    k.e("s_mov_b32 s%d, %d" % (sTmp, (pr * 288 + j) * 1024))
                else:
                    k.e("s_nop 0")
                k.e("s_nop 0")
                k.e("v_permlane16_swap_b32 v%d, v%d" % (o, o + 2))
                k.e("v_permlane16_swap_b32 v%d, v%d" % (o + 1, o + 3))
                k.e("s_nop 0")
                k.e("buffer_store_dwordx4 %s, v%d, %s, s%d offen offset:%d" % (vr(o), vO, sr(SRO), sTmp, (jn % 4) * 1024))
        if gi == 0:
            k.e("s_branch %s" % ljoin)
    k.label(ljoin)
    stamp(k, 4)
    stamp_store(k, kidx)
    if pub is not None:
        k.e("s_lshl_b32 s44, s37, 5")
        k.e("s_add_u32 s44, s44, s38")
        publish(k, pub, 44, sW)
    return nvgpr, NBUF * STB


def main():
    phases = [
        lambda k, d, p, nx: gen_gemm(k, 'A1L', None, 0, ab=WS_AB, dep=d, pub=p, nxt_phase=nx),
        lambda k, d, p, nx: gen_gemm(k, 'A2', (0, ('in', KA_X), ('ws', WS_X1), True), 1, xn=WS_XN, ab=WS_AB, dep=d, pub=p, nxt_phase=nx),
        lambda k, d, p, nx: gen_b1(k, 2, xn=WS_XN, h=WS_H, dep=d, pub=p, nxt_phase=nx),
        lambda k, d, p, nx: gen_gemm(k, 'B2', (1, ('ws', WS_X1), ('ws', WS_X2), True), 3, xn=WS_XNB, h=WS_H, dep=d, pub=p, nxt_phase=nx),
        lambda k, d, p, nx: gen_gemm(k, 'A1', None, 4, xn=WS_XNB, ab=WS_AB2, dep=d, pub=p, nxt_phase=nx),
        lambda k, d, p, nx: gen_gemm(k, 'A2', (2, ('ws', WS_X2), ('ws', WS_X3), True), 5, xn=WS_XNC, ab=WS_AB2, dep=d, pub=p, nxt_phase=nx),
        lambda k, d, p, nx: gen_b1(k, 6, xn=WS_XNC, h=WS_H2, dep=d, pub=p, nxt_phase=nx),
        lambda k, d, p, nx: gen_gemm(k, 'B2', (3, ('ws', WS_X3), ('out', 0), False), 7, h=WS_H2, dep=d, pub=p, nxt_phase=nx),
    ]
    grouping = [[int(c) for c in g] for g in OPT.get('merge', '0-1234567').split('-')]
    ks = {}
    order = []
    for gi, g in enumerate(grouping):
        name = MAIN + "_kernel" if gi == 0 else "p%s_kernel" % "".join(str(x) for x in g)
        k = K(name)
        header(k, 256)
        nv, lds = 0, 0
        for n, ph in enumerate(g):
            a, b = phases[ph](k, (ph - 1) if n else None, ph if n + 1 < len(g) else None, phases[ph + 1] if n + 1 < len(g) else None)
            nv, lds = max(nv, a), max(lds, b)
        footer(k, nv, 102)
        ks[name] = (k, 256, 512, lds)
        order.append(name)
    out = ["; FNet (DFT matmul) + GLU interleaved layers; generated by gen3.py"]
    for n in order:
        kk, nwg, blk, lds = ks[n]
        out.append("; @launch kernel=%s grid=(%d,1,1) block=(%d,1,1) lds=%d" % (kk.name, nwg, blk, lds))
    out.append('.amdgcn_target "amdgcn-amd-amdhsa--gfx950"')
    out.append(".text")
    for n, (kk, nwg, blk, lds) in ks.items():
        out.append(".globl %s" % kk.name)
        out += kk.lines
    open(sys.argv[1] if len(sys.argv) > 1 else "cdna_kernels/%s.s" % MAIN, "w").write("\n".join(out) + "\n")


if __name__ == "__main__":
    main()
```

```python
import sys, os, struct
OPT = dict(x.split('=') for x in os.environ.get('GENOPT', '').split(',') if x)
STAMP = int(OPT.get('stamp', 0))
PF = int(OPT.get('pf', 0))
STF = {'': '', 'sc1': ' sc1', 'nt': ' nt', 'sc01': ' sc0 sc1'}[OPT.get('stf', 'sc01')]
XF = {'sc1': ' sc1', 'sc01': ' sc0 sc1'}[OPT.get('xf', 'sc01')]

LF = {'x': XF, 'p': '', 'sc1': ' sc1', 'nt': ' nt'}[OPT.get('lf', 'x')]
PRE = int(OPT.get('pre', 0))
POLLF = int(OPT.get('pollf', 0))
MAIN = "interleave_layers__spectral_fnet__glu_gated_glu__prompt"
S, D, F = 2048, 576, 4608
KA_X, KA_CR, KA_CI, KA_WR, KA_WI, KA_BX, KA_WG, KA_WU, KA_WD, KA_OUT, KA_DBG, KA_WS = [8 * i for i in range(12)]
WS_XN = 0x0000000
WS_X1 = 0x0400000
WS_X2 = 0x0800000
WS_AB = 0x0C00000
WS_XNB = 0x2000000
WS_XNC = 0x2400000
WS_X3 = 0x2800000
WS_AB2 = 0x5800000
WS_H2 = 0x4400000
WS_FL = 0x1200000
WS_P = 0x1400000
WS_P2 = 0x1E00000
WS_H = 0x3000000
HB = S * F * 2
WS_DBG = 0x8000000
XB = S * D * 2
MTB = 18432


def f32bits(x):
    return struct.unpack("<I", struct.pack("<f", x))[0]


class K:
    def __init__(self, name):
        self.name = name
        self.lines = []
        self.pend = []
        self.vm = []
        self.nlab = 0

    def e(self, s, vtag=None):
        if s.startswith('buffer_store') and ' sc' not in s:
            s += STF
        if s.startswith('buffer_') or s.startswith('global_'):
            self.vm.append(vtag)
        self.lines.append("    " + s)

    def label(self, l):
        self.lines.append(l + ":")

    def newlabel(self, p="L"):
        self.nlab += 1
        return "%s_%s_%d" % (p, self.name[-12:], self.nlab)

    def lds(self, s, tag):
        if OPT.get('nolds') and tag[0] in OPT.get('nolds'):
            return
        if len(self.pend) >= 15:
            self.e("s_waitcnt lgkmcnt(13)")
            self.pend = self.pend[-13:]
        self.e(s)
        self.pend.append(tag)

    def need(self, *tags):
        idx = -1
        for i, p in enumerate(self.pend):
            if p in tags:
                idx = i
        if idx < 0:
            return
        n = min(len(self.pend) - 1 - idx, 14)
        self.e("s_waitcnt lgkmcnt(%d)" % n)
        self.pend = self.pend[len(self.pend) - n:] if n else []

    def vneed(self, tag, lgkm0=False):
        idx = -1
        for i, p in enumerate(self.vm):
            if p == tag:
                idx = i
        extra = " lgkmcnt(0)" if lgkm0 else ""
        if lgkm0:
            self.pend = []
        if idx < 0:
            if lgkm0:
                self.e("s_waitcnt lgkmcnt(0)")
            return
        n = len(self.vm) - 1 - idx
        assert n < 63
        self.e("s_waitcnt vmcnt(%d)%s" % (n, extra))
        self.vm = self.vm[len(self.vm) - n:] if n else []

    def vm0(self):
        self.e("s_waitcnt vmcnt(0)")
        self.vm = []


def vr(b, n=4):
    return "v[%d:%d]" % (b, b + n - 1)


def sr(b, n=4):
    return "s[%d:%d]" % (b, b + n - 1)


def header(k, nwg):
    k.lines.append(".p2align 8")
    k.lines.append(".type %s,@function" % k.name)
    k.label(k.name)
    k.e("s_cmp_ge_u32 s2, %d" % nwg)
    k.e("s_cbranch_scc1 L_end_%s" % k.name)


def footer(k, nvgpr, nsgpr=64):
    k.label("L_end_%s" % k.name)
    k.e("s_endpgm")
    acc = (nvgpr + 3) // 4 * 4
    k.lines.append(""".section .rodata,"a"
.p2align 6
.amdhsa_kernel %s
  .amdhsa_next_free_vgpr %d
  .amdhsa_next_free_sgpr %d
  .amdhsa_accum_offset %d
  .amdhsa_group_segment_fixed_size 0
  .amdhsa_kernarg_size 96
  .amdhsa_user_sgpr_count 2
  .amdhsa_user_sgpr_kernarg_segment_ptr 1
  .amdhsa_system_sgpr_workgroup_id_x 1
.end_amdhsa_kernel
.text""" % (k.name, nvgpr, nsgpr, acc))


def srd(k, d, pbase, off_const, off_sgpr, total):
    k.e("s_add_u32 s%d, s%d, 0x%x" % (d, pbase, off_const))
    k.e("s_addc_u32 s%d, s%d, 0" % (d + 1, pbase + 1))
    if off_sgpr is None:
        k.e("s_mov_b32 s%d, 0x%x" % (d + 2, total - off_const))
    else:
        k.e("s_add_u32 s%d, s%d, s%d" % (d, d, off_sgpr))
        k.e("s_addc_u32 s%d, s%d, 0" % (d + 1, d + 1))
        k.e("s_sub_u32 s%d, 0x%x, s%d" % (d + 2, total - off_const, off_sgpr))
    k.e("s_and_b32 s%d, s%d, 0xffff" % (d + 1, d + 1))
    k.e("s_mov_b32 s%d, 0x20000" % (d + 3))


SB = 76


def stamp(k, idx, real=0):
    if not STAMP or (STAMP == 2 and not real):
        return
    if OPT.get('pst') and idx in (4, 5, 6) and getattr(k, 'st%d' % idx, False):
        return
    if OPT.get('pst') and idx == 4:
        return
    setattr(k, 'st%d' % idx, True)
    k.e("s_memtime s[%d:%d]" % (SB + 2 * idx, SB + 1 + 2 * idx))
    if real:
        k.e("s_memrealtime s[%d:%d]" % (SB + 16 + 2 * real - 2, SB + 17 + 2 * real - 2))
    k.e("s_waitcnt lgkmcnt(0)")
    k.pend = []


def stamp_store(k, kidx):
    if not STAMP:
        return
    k.vm0()
    stamp(k, 7, 2)
    if STAMP == 2:
        k.e("s_cmp_lg_u32 s2, 100")
        k.e("s_cbranch_scc1 L_end_%s" % k.name)
        k.e("s_load_dwordx2 s[24:25], s[0:1], %d" % KA_DBG)
        k.e("s_waitcnt lgkmcnt(0)")
        k.e("s_add_u32 s24, s24, %d" % ((7 - kidx) * 512 + kidx * 8))
        k.e("s_addc_u32 s25, s25, 0")
        k.e("s_and_b32 s25, s25, 0xffff")
        k.e("s_mov_b32 s26, 8")
        k.e("s_mov_b32 s27, 0x20000")
        k.e("v_cmp_eq_u32 vcc, 0, v0")
        k.e("s_and_saveexec_b64 s[46:47], vcc")
        k.e("s_cbranch_execz L_end_%s" % k.name)
        k.e("v_mov_b32 v1, 0")
        k.e("v_mov_b32 v2, s%d" % (SB + 16))
        k.e("v_mov_b32 v3, s%d" % (SB + 18))
        k.e("buffer_store_dwordx2 v[2:3], v1, s[24:27], 0 offen")
        return
    k.e("s_lshl_b32 s44, s2, 7")
    k.e("s_add_u32 s44, s44, 0x%x" % (kidx * 65536))
    srd(k, 24, 4, WS_DBG, 44, WS_DBG + 16 * 65536)
    lsk = k.newlabel("LSS")
    k.e("v_cmp_eq_u32 vcc, 0, v0")
    k.e("s_and_saveexec_b64 s[46:47], vcc")
    k.e("s_cbranch_execz %s" % lsk)
    k.e("v_mov_b32 v1, 0")
    for i in range(10):
        k.e("v_mov_b32 v2, s%d" % (SB + 2 * i))
        k.e("v_mov_b32 v3, s%d" % (SB + 1 + 2 * i))
        k.e("buffer_store_dwordx2 v[2:3], v1, s[24:27], 0 offen offset:%d" % (8 * i))
        k.e("s_nop 1")
    k.label(lsk)
    k.e("s_mov_b64 exec, -1")
    k.vm0()


import re as _re


def remap_line(line, vb, sb=52):
    def rv(m):
        n = int(m.group(1))
        return "v%d" % (n + vb if n else 0)

    def rvr(m):
        return "v[%d:%d]" % (int(m.group(1)) + vb, int(m.group(2)) + vb)

    def rs(m):
        n = int(m.group(1))
        return "s%d" % (n + sb if n >= 6 else n)

    def rsr(m):
        a, b = int(m.group(1)), int(m.group(2))
        return "s[%d:%d]" % ((a + sb, b + sb) if a >= 6 else (a, b))
    line = _re.sub(r"\bv\[(\d+):(\d+)\]", rvr, line)
    line = _re.sub(r"\bv(\d+)\b", rv, line)
    line = _re.sub(r"\bs\[(\d+):(\d+)\]", rsr, line)
    line = _re.sub(r"\bs(\d+)\b", rs, line)
    return line


class PreDone(Exception):
    pass


def pre_issue(k, phase, vb):
    t = K(k.name)
    t.nlab = k.nlab + 1000
    try:
        phase(t, 'pre', None, None)
    except PreDone:
        pass
    k.nlab = t.nlab
    for l in t.lines:
        if l.strip().startswith(("s_load_dwordx2 s[4:5]", "s_load_dwordx2 s[48:49]", "s_load_dwordx2 s[50:51]")):
            continue
        k.lines.append(remap_line(l, vb))
    k.vm += ["PRE"] * len(t.vm)
    k.pend = []


def publish(k, farr, sIdx, sW):
    k.vm0()
    k.e("s_barrier")
    lsk = k.newlabel("LPB")
    k.e("s_cmp_lg_u32 s%d, 0" % sW)
    k.e("s_cbranch_scc1 %s" % lsk)
    if farr == 0:
        k.e("s_load_dwordx2 s[72:73], s[0:1], %d" % KA_DBG)
        k.e("s_waitcnt lgkmcnt(0)")
        srd(k, 72, 72, 0, None, 256)
        k.e("s_mov_b64 exec, 1")
        k.e("s_and_b32 s46, s2, 7")
        k.e("s_lshl_b32 s46, s46, 5")
        k.e("v_mov_b32 v2, s46")
        k.e("v_mov_b32 v3, 1")
        k.e("buffer_atomic_add v3, v2, s[72:75], 0 offen sc1")
    else:
        srd(k, 72, 4, WS_FL + farr * 1024, None, WS_FL + 8192)
        k.e("s_mov_b64 exec, 1")
        k.e("s_lshl_b32 s46, s%d, 2" % sIdx)
        k.e("v_mov_b32 v2, s46")
        k.e("v_mov_b32 v3, 1")
        k.e("buffer_store_dword v3, v2, s[72:75], 0 offen" + XF)
    k.e("s_mov_b64 exec, -1")
    k.label(lsk)
    k.vm = ["F"]


def wait_flags(k, farr, nl, vIdx, vT, sW=28):
    one = int(OPT.get('w1poll', 1))
    slp = int(OPT.get('fsleep', 0))
    lsk = k.newlabel("LFS")
    if one:
        k.e("s_cmp_lg_u32 s%d, 0" % sW)
        k.e("s_cbranch_scc1 %s" % lsk)
    vm_keep = list(k.vm)
    want = 1
    if farr == 0:
        k.e("s_load_dwordx2 s[72:73], s[0:1], %d" % KA_DBG)
        k.e("s_waitcnt lgkmcnt(0)")
        srd(k, 72, 72, 0, None, 256)
        k.e("v_and_b32 v%d, 63, v0" % vIdx)
        k.e("v_lshlrev_b32 v%d, 3, v%d" % (vIdx, vIdx))
        nl, want = 8, 32
    else:
        srd(k, 72, 4, WS_FL + farr * 1024, None, WS_FL + 8192)
    lp = k.newlabel("LFW")
    ld = k.newlabel("LFD")
    k.e("v_lshlrev_b32 v%d, 2, v%d" % (vIdx, vIdx))
    if nl < 64:
        k.e("s_mov_b64 exec, 0x%x" % ((1 << nl) - 1))
    k.e("s_mov_b32 s45, 0")
    k.label(lp)
    if slp:
        k.e("s_sleep %d" % slp)
    k.e("buffer_load_dword v%d, v%d, s[72:75], 0 offen%s" % (vT, vIdx, XF))
    k.vm0()
    k.e("v_cmp_ne_u32 vcc, %d, v%d" % (want, vT))
    k.e("s_nop 3")
    k.e("s_cmp_eq_u64 vcc, 0")
    k.e("s_cbranch_scc1 %s" % ld)
    k.e("s_add_u32 s45, s45, 1")
    k.e("s_cmp_lt_u32 s45, 0x100000")
    k.e("s_cbranch_scc1 %s" % lp)
    k.label(ld)
    k.e("s_mov_b64 exec, -1")
    if one:
        k.label(lsk)
        k.e("s_barrier")
        k.vm = vm_keep


def code_prefetch(k, sW, vLane, vA_, vD, SR, sTmp):
    if not int(OPT.get('cpf', 0)):
        return
    lab = k.newlabel("LPC")
    k.e("s_getpc_b64 s[%d:%d]" % (SR, SR + 1))
    k.label(lab)
    k.e("s_sub_u32 s%d, s%d, %s-%s" % (SR, SR, lab, k.name))
    k.e("s_subb_u32 s%d, s%d, 0" % (SR + 1, SR + 1))
    k.e("s_and_b32 s%d, s%d, 0xffff" % (SR + 1, SR + 1))
    k.e("s_mov_b32 s%d, L_end_%s-%s" % (SR + 2, k.name, k.name))
    k.e("s_mov_b32 s%d, 0x20000" % (SR + 3))
    k.e("s_lshl_b32 s%d, s%d, 13" % (sTmp, sW))
    k.e("v_lshl_add_u32 v%d, v%d, 7, s%d" % (vA_, vLane, sTmp))
    k.e("buffer_load_dword v%d, v%d, %s, 0 offen" % (vD, vA_, sr(SR)), "C")


def wave_sum(k, v, sbase):
    for ctl in ("quad_perm:[1,0,3,2]", "quad_perm:[2,3,0,1]", "row_half_mirror", "row_mirror"):
        k.e("s_nop 1")
        k.e("v_add_f32_dpp %s, %s, %s %s row_mask:0xf bank_mask:0xf" % (v, v, v, ctl))
    k.e("s_nop 1")
    for i in range(4):
        k.e("v_readlane_b32 s%d, %s, %d" % (sbase + i, v, 16 * i))
    k.e("s_nop 1")
    k.e("v_mov_b32 %s, s%d" % (v, sbase))
    for i in range(1, 4):
        k.e("v_add_f32 %s, s%d, %s" % (v, sbase + i, v))


def r_body(k, vrow, vlane, ysrc, has_xout, ln, SX, SO, SN, hook=None):
    k.e("v_mul_u32_u24 v4, 1152, v%d" % vrow)
    k.e("v_lshl_add_u32 v7, v%d, 3, v4" % vlane)
    k.e("v_lshl_add_u32 v8, v%d, 1, v4" % vlane)
    k.e("buffer_load_dwordx2 v[10:11], v7, %s, 0 offen" % sr(SX), "X")
    k.e("buffer_load_dwordx2 v[12:13], v7, %s, 0 offen offset:512" % sr(SX), "X")
    k.e("buffer_load_ushort v14, v8, %s, 0 offen offset:1024" % sr(SX), "X")
    if hook:
        hook()
    X = 30
    A = 16
    if ysrc:
        ysrc()
    k.vneed("X")
    for i, src in enumerate([10, 11, 12, 13]):
        k.e("v_lshlrev_b32 v%d, 16, v%d" % (X + 2 * i, src))
        k.e("v_and_b32 v%d, 0xffff0000, v%d" % (X + 2 * i + 1, src))
    k.e("v_lshlrev_b32 v%d, 16, v14" % (X + 8))
    if ysrc:
        for e in range(9):
            k.e("v_add_f32 v%d, v%d, v%d" % (X + e, X + e, A + e))
        for i in range(4):
            k.e("v_cvt_pk_bf16_f32 v%d, v%d, v%d" % (10 + i, X + 2 * i, X + 2 * i + 1))
        k.e("v_cvt_pk_bf16_f32 v14, v%d, v%d" % (X + 8, X + 8))
        if has_xout:
            k.e("buffer_store_dwordx2 v[10:11], v7, %s, 0 offen" % sr(SO))
            k.e("buffer_store_dwordx2 v[12:13], v7, %s, 0 offen offset:512" % sr(SO))
            k.e("buffer_store_short v14, v8, %s, 0 offen offset:1024" % sr(SO))
        if ln:
            for i, src in enumerate([10, 11, 12, 13]):
                k.e("v_lshlrev_b32 v%d, 16, v%d" % (X + 2 * i, src))
                k.e("v_and_b32 v%d, 0xffff0000, v%d" % (X + 2 * i + 1, src))
            k.e("v_lshlrev_b32 v%d, 16, v14" % (X + 8))
    if ln:
        k.e("v_add_f32 v20, v%d, v%d" % (X, X + 1))
        k.e("v_add_f32 v21, v%d, v%d" % (X + 2, X + 3))
        k.e("v_add_f32 v22, v%d, v%d" % (X + 4, X + 5))
        k.e("v_add_f32 v23, v%d, v%d" % (X + 6, X + 7))
        k.e("v_add_f32 v20, v20, v21")
        k.e("v_add_f32 v22, v22, v23")
        k.e("v_add_f32 v20, v20, v%d" % (X + 8))
        k.e("v_add_f32 v20, v20, v22")
        wave_sum(k, "v20", 32)
        k.e("v_mul_f32 v20, 0x%08x, v20" % f32bits(1.0 / D))
        for e in range(9):
            k.e("v_sub_f32 v%d, v%d, v20" % (X + e, X + e))
        k.e("v_mul_f32 v21, v%d, v%d" % (X, X))
        k.e("v_mul_f32 v22, v%d, v%d" % (X + 1, X + 1))
        for e in range(2, 9):
            k.e("v_fmac_f32 v%d, v%d, v%d" % (21 + (e & 1), X + e, X + e))
        k.e("v_add_f32 v21, v21, v22")
        wave_sum(k, "v21", 32)
        k.e("v_mov_b32 v22, 0x%08x" % f32bits(1e-5))
        k.e("v_fmac_f32 v22, 0x%08x, v21" % f32bits(1.0 / D))
        k.e("v_rsq_f32 v22, v22")
        k.e("s_nop 0")
        for e in range(9):
            k.e("v_mul_f32 v%d, v%d, v22" % (X + e, X + e))
        for i in range(4):
            k.e("v_cvt_pk_bf16_f32 v%d, v%d, v%d" % (24 + i, X + 2 * i, X + 2 * i + 1))
        k.e("v_cvt_pk_bf16_f32 v28, v%d, v%d" % (X + 8, X + 8))
        k.e("buffer_store_dwordx2 v[24:25], v7, %s, 0 offen" % sr(SN))
        k.e("buffer_store_dwordx2 v[26:27], v7, %s, 0 offen offset:512" % sr(SN))
        k.e("buffer_store_short v28, v8, %s, 0 offen offset:1024" % sr(SN))


def gen_r0(name):
    k = K(name)
    nwg = S // 4
    header(k, nwg)
    k.e("s_load_dwordx2 s[4:5], s[0:1], %d" % KA_WS)
    k.e("s_load_dwordx2 s[6:7], s[0:1], %d" % KA_X)
    pf = [(KA_WR, D * D * 2), (KA_WI, D * D * 2), (KA_CR, S * S * 2), (KA_CI, S * S * 2)] if PF else []
    for n, (ka, nb_) in enumerate(pf):
        k.e("s_load_dwordx2 s[%d:%d], s[0:1], %d" % (40 + 4 * n, 41 + 4 * n, ka))
    k.e("v_lshrrev_b32 v1, 6, v0")
    k.e("v_and_b32 v2, 63, v0")
    k.e("s_lshl_b32 s3, s2, 2")
    k.e("v_add_u32 v1, s3, v1")
    k.e("s_waitcnt lgkmcnt(0)")
    srd(k, 12, 6, 0, None, XB)
    srd(k, 24, 4, WS_XN, None, WS_XN + XB)
    for n, (ka, nb_) in enumerate(pf):
        srd(k, 40 + 4 * n, 40 + 4 * n, 0, None, nb_)
    k.e("s_mul_i32 s3, s2, 18432")
    srd(k, 16, 4, WS_P, 3, WS_P + 4 * XB)
    k.e("s_mov_b32 s18, 18432")
    k.e("v_lshrrev_b32 v3, 6, v0")
    k.e("v_mul_u32_u24 v3, 5120, v3")
    k.e("v_lshl_add_u32 v3, v2, 4, v3")
    for r in range(4):
        k.e("v_mov_b32 v%d, 0" % (36 + r))
    for n in range(4):
        k.e("buffer_store_dwordx4 v[36:39], v3, s[16:19], 0 offen offset:%d" % (n * 1024))
    k.e("s_mov_b32 s3, 4096")
    k.e("buffer_store_dwordx4 v[36:39], v3, s[16:19], s3 offen")

    def hook():
        if pf:
            k.e("v_lshlrev_b32 v42, 12, v1")
            k.e("v_lshl_add_u32 v42, v2, 6, v42")
            for n in range(len(pf)):
                k.e("buffer_load_dword v43, v42, %s, 0 offen" % sr(40 + 4 * n))
    r_body(k, 1, 2, None, False, True, 12, None, 24, hook=hook)
    footer(k, 44, 60)
    return k, nwg, 256, 0


def engine(k, tiles, NFR, KS, NS, NBUF, W, NSET, DELTA, rd_m, rd_n, dma, acc, first, vM, vN, sLoop,
           n_static=False, after_use=None, after_last_dma=None, npre=None, stage_extra=None):
    nt = len(tiles)
    UPS = KS * nt
    total = NS * UPS
    NSL = W
    W = W - int(OPT.get('lag', 2))
    st = {'nrM': 0, 'nrN': 0, 'pub': 0, 'ald': False}
    k.pend = []

    BUD = int(OPT.get('bud', 3))

    def pump(udone, maxm=2):
        bud = BUD if maxm < 50 else 999
        while bud > 0:
            f = st['nrN']
            s_ = f // NFR
            okN = s_ < NS * KS and (n_static or s_ // KS <= st['pub']) and s_ - NSET < udone // nt
            u = st['nrM']
            okM = u < total and u // UPS <= st['pub'] and u - W < udone
            if okN and (not okM or s_ * nt <= u):
                rd_n(s_ // KS, s_ % KS, f % NFR, vN[s_ % NSET][f % NFR], "N%d" % (s_ % NSET))
                st['nrN'] += 1
                bud -= 1
            elif okM:
                stg, rem = divmod(u, UPS)
                ks, ti = divmod(rem, nt)
                rd_m(stg, ks, tiles[ti], vM[u % NSL], "M%d" % (u % NSL))
                st['nrM'] += 1
                bud -= 2
            else:
                break

    pump(0, maxm=99)
    pre = k.lines
    k.lines = []
    blocks = []
    pos = max(1, min(UPS, UPS - W + DELTA))
    for t in range(NS):
        last = (t == NS - 1)
        extras = []
        for r in range(UPS):
            u = t * UPS + r
            ks, ti = divmod(r, nt)
            s = t * KS + ks
            k.need("M%d" % (u % NSL), "N%d" % (s % NSET))
            for i in range(NFR):
                a = acc(t, tiles[ti], i)
                c = "0" if first(t, ks) else vr(a)
                if not (OPT.get('nomfma') and t > 0):
                    k.e("v_mfma_f32_16x16x32_bf16 %s, %s, %s, %s" % (vr(a), vr(vM[u % NSL]), vr(vN[s % NSET][i]), c))
            if not last and r + 1 == pos:
                assert st['nrM'] == (t + 1) * UPS, (st, t)
                assert n_static or st['nrN'] >= (t + 1) * KS * NFR, (st, t)
                k.vneed("D%d" % (t + 1), lgkm0=True)
                k.e("s_barrier")
                st['pub'] = t + 1
                if t + NBUF < NS:
                    extras = dma(t + NBUF)
                    if OPT.get('nodma'):
                        extras = [(tg, [x for x in L if not x.startswith('buffer_load')]) for tg, L in extras]
                    if OPT.get('dropdma'):
                        pat = {'n': 'v8,', 'm': ('v9,', 'v10,', 'v11,'), 'q': 'v11,'}[OPT['dropdma']]
                        pats = pat if isinstance(pat, tuple) else (pat,)
                        extras = [(tg, [x for x in L if not (x.startswith('buffer_load') and any(p in x for p in pats))]) for tg, L in extras]
                elif after_last_dma and not st['ald']:
                    st['ald'] = True
                    extras = after_last_dma()
                if stage_extra:
                    extras = extras + stage_extra(t)
            pump(u + 1)
            if after_use:
                after_use(t, r)
            if extras:
                left = UPS - r
                n = (len(extras) + left - 1) // left
                for _ in range(n):
                    tag, L = extras.pop(0)
                    for x in L:
                        k.e(x, tag)
        assert not extras
        blocks.append(k.lines)
        k.lines = []
    best = None
    for U in (1, 2, 3, 4, 6):
        for a in range(NS):
            bnd = a + U
            while bnd + U <= NS and all(blocks[bnd + x] == blocks[a + x] for x in range(U)):
                bnd += U
            cnt = (bnd - a) // U
            if cnt >= 2 and (best is None or (cnt - 1) * U > (best[2] - 1) * best[3]):
                best = (a, bnd, cnt, U)
    out = pre
    if best is None:
        for bl in blocks:
            out += bl
    else:
        a, bnd, cnt, U = best
        for bl in blocks[:a]:
            out += bl
        lab = k.newlabel("LP")
        out.append("    s_mov_b32 s%d, %d" % (sLoop, cnt))
        out.append(lab + ":")
        for bl in blocks[a:a + U]:
            out += bl
        out.append("    s_sub_u32 s%d, s%d, 1" % (sLoop, sLoop))
        out.append("    s_cmp_lg_u32 s%d, 0" % sLoop)
        out.append("    s_cbranch_scc1 %s" % lab)
        for bl in blocks[bnd:]:
            out += bl
    k.lines = out


def tr_voff(k, vdst, sslot, vLane, T, stride, posmask):
    t0, t1, t2, t3, t4 = T
    k.e("v_add_u32 v%d, s%d, v%d" % (t0, sslot, vLane))
    k.e("v_mul_u32_u24 v%d, 3641, v%d" % (t1, t0))
    k.e("v_lshrrev_b32 v%d, 16, v%d" % (t1, t1))
    k.e("v_mul_u32_u24 v%d, 18, v%d" % (t2, t1))
    k.e("v_sub_u32 v%d, v%d, v%d" % (t2, t0, t2))
    k.e("v_and_b32 v%d, 0x%x, v%d" % (t3, posmask, t1))
    k.e("v_and_b32 v%d, 4, v%d" % (t4, t1))
    k.e("v_lshl_or_b32 v%d, v%d, 1, v%d" % (t3, t4, t3))
    k.e("v_and_b32 v%d, 8, v%d" % (t4, t1))
    k.e("v_lshrrev_b32 v%d, 1, v%d" % (t4, t4))
    k.e("v_or_b32 v%d, v%d, v%d" % (t3, t3, t4))
    k.e("v_mul_u32_u24 v%d, %d, v%d" % (vdst, stride, t3))
    k.e("v_lshl_add_u32 v%d, v%d, 4, v%d" % (vdst, t2, vdst))


def tr_raddr(k, vdst, vLane, t):
    k.e("v_lshrrev_b32 v%d, 5, v%d" % (vdst, vLane))
    k.e("v_lshlrev_b32 v%d, 4, v%d" % (vdst, vdst))
    k.e("v_bfe_u32 v%d, v%d, 4, 1" % (t, vLane))
    k.e("v_lshl_add_u32 v%d, v%d, 2, v%d" % (vdst, t, vdst))
    k.e("v_bfe_u32 v%d, v%d, 2, 2" % (t, vLane))
    k.e("v_add_u32 v%d, v%d, v%d" % (vdst, vdst, t))
    k.e("v_mul_u32_u24 v%d, 288, v%d" % (vdst, vdst))
    k.e("v_and_b32 v%d, 3, v%d" % (t, vLane))
    k.e("v_lshl_add_u32 v%d, v%d, 3, v%d" % (vdst, t, vdst))


def store_tiles_bf16(k, js, accf, vO, vO2, SRO, soff, sfl, TB, neg=None, colbase=0):
    idx = 0
    slot = 0
    while idx < len(js):
        pr = js[idx:idx + 2]
        if len(pr) == 2 and pr[1] != pr[0] + 1:
            pr = pr[:1]
        o = TB + 4 * (slot % 4)
        for n_, j in enumerate(pr):
            a = accf(j)
            k.e("v_cvt_pk_bf16_f32 v%d, v%d, v%d" % (o + 2 * n_, a, a + 1))
            k.e("v_cvt_pk_bf16_f32 v%d, v%d, v%d" % (o + 2 * n_ + 1, a + 2, a + 3))
            if neg is not None:
                k.e("v_xor_b32 v%d, s%d, v%d" % (o + 2 * n_, neg, o + 2 * n_))
                k.e("v_xor_b32 v%d, s%d, v%d" % (o + 2 * n_ + 1, neg, o + 2 * n_ + 1))
        if len(pr) == 2:
            k.e("s_nop 1")
            k.e("v_permlane16_swap_b32 v%d, v%d" % (o, o + 2))
            k.e("v_permlane16_swap_b32 v%d, v%d" % (o + 1, o + 3))
            k.e("s_nop 0")
            if SRO is None:
                k.e("ds_write_b128 v%d, %s offset:%d" % (vO, vr(o), colbase + pr[0] * 32))
            else:
                k.e("buffer_store_dwordx4 %s, v%d, %s, s%d offen offset:%d%s" % (vr(o), vO, sr(SRO), soff, colbase + pr[0] * 32, sfl))
        elif SRO is None:
            k.e("ds_write_b64 v%d, %s offset:%d" % (vO2, vr(o, 2), colbase + pr[0] * 32))
        else:
            k.e("buffer_store_dwordx2 %s, v%d, %s, s%d offen offset:%d%s" % (vr(o, 2), vO2, sr(SRO), soff, colbase + pr[0] * 32, sfl))
        idx += len(pr)
        slot += 1


PREG = 36864


def store_native(k, tiles, accf, vP, SRO, sTmp, blk0, sblk, TB, par):
    for n, j in enumerate(tiles):
        o = TB + 4 * (n % 4)
        for i in range(2):
            a = accf(j, i)
            if par:
                k.e("v_and_b32 v%d, 0xfffe0000, v%d" % (a, a))
                k.e("v_or_b32 v%d, 0x10000, v%d" % (a, a))
            else:
                k.e("v_add_u32 v%d, 0x10000, v%d" % (a, a))
                k.e("v_and_b32 v%d, 0xfffe0000, v%d" % (a, a))
            k.e("v_cvt_pk_bf16_f32 v%d, v%d, v%d" % (o + 2 * i, a, a + 1))
            k.e("v_cvt_pk_bf16_f32 v%d, v%d, v%d" % (o + 2 * i + 1, a + 2, a + 3))
            k.e(("v_or_b32 v%d, 1, v%d" if par else "v_and_b32 v%d, -2, v%d") % (o + 2 * i, o + 2 * i))
        if n % 4 == 0:
            if sblk is None:
                k.e("s_mov_b32 s%d, %d" % (sTmp, (blk0 + j) * 1024))
            else:
                k.e("s_add_u32 s%d, s%d, %d" % (sTmp, sblk, (blk0 + j) * 1024))
        else:
            k.e("s_nop 0")
        k.e("s_nop 0")
        k.e("v_permlane16_swap_b32 v%d, v%d" % (o, o + 2))
        k.e("v_permlane16_swap_b32 v%d, v%d" % (o + 1, o + 3))
        k.e("s_nop 0")
        k.e("buffer_store_dwordx4 %s, v%d, %s, s%d offen offset:%d%s" % (vr(o), vP, sr(SRO), sTmp, (n % 4) * 1024, XF))


def r_tail(k, rcfg, npart, sW, vLane, sGroup, sMember, XBUF, WSP, XNO, nxt_phase=None):
    freg, xin, xout, ln = rcfg
    if xin[0] == 'in':
        srd(k, 12, 48, 0, None, XB)
    else:
        srd(k, 12, 4, xin[1], None, xin[1] + XB)
    k.e("s_lshr_b32 s46, s%d, 2" % sMember)
    k.e("s_lshl_b32 s47, s%d, 2" % sGroup)
    k.e("s_add_u32 s46, s46, s47")
    k.e("s_mul_i32 s46, s46, %d" % PREG)
    srd(k, 20, 4, WSP, 46, WSP + npart * XB)
    if xout[0] == 'out':
        srd(k, 24, 50, 0, None, XB)
    else:
        srd(k, 24, 4, xout[1], None, xout[1] + XB)
    if ln:
        srd(k, 52, 4, XNO, None, XNO + XB)
    stamp(k, 4)
    k.e("s_lshl_b32 s46, s%d, 7" % sGroup)
    k.e("s_lshl_b32 s47, s%d, 3" % sMember)
    k.e("s_add_u32 s46, s46, s47")
    k.e("s_add_u32 s46, s46, s%d" % sW)
    k.e("v_mov_b32 v2, s46")
    PB0 = 44
    par = (rcfg[0] + 1) & 1

    def ysrc():
        k.e("s_lshr_b32 s46, s%d, 1" % sMember)
        k.e("s_and_b32 s46, s46, 1")
        k.e("s_lshl_b32 s46, s46, 8")
        k.e("s_and_b32 s47, s%d, 1" % sMember)
        k.e("s_lshl_b32 s47, s47, 7")
        k.e("s_add_u32 s46, s46, s47")
        for n, (mul, add) in enumerate(((64, 0), (8, 512))):
            k.e("s_mul_i32 s47, s%d, %d" % (sW, mul))
            k.e("s_add_u32 s47, s47, %d" % add)
            k.e("v_add_u32 v3, s47, v%d" % vLane)
            k.e("v_lshrrev_b32 v5, 4, v3")
            k.e("v_lshlrev_b32 v5, 10, v5")
            k.e("v_bfe_u32 v6, v3, 3, 1")
            k.e("v_lshl_add_u32 v5, v6, 9, v5")
            k.e("v_and_b32 v6, 7, v3")
            k.e("v_lshl_add_u32 v5, v6, 4, v5")
            k.e("v_add_u32 v%d, s46, v5" % (40 + n))
            k.e("v_mul_u32_u24 v5, 2336, v6")
            k.e("v_lshrrev_b32 v6, 3, v3")
            k.e("v_lshl_add_u32 v5, v6, 5, v5")
            k.e("v_add_u32 v%d, 0x%x, v5" % (42 + n, XBUF))
        for z in range(npart):
            for r in range(4):
                k.e("v_mov_b32 v%d, %d" % (PB0 + 8 * z + 4 + r, par))
        AB_ = PB0 + 8 * npart
        lp = k.newlabel("LW")
        ld = k.newlabel("LD")
        k.e("s_mov_b32 s45, 0")
        k.label(lp)
        if int(OPT.get('psleep', 0)):
            k.e("s_sleep %d" % int(OPT.get('psleep', 0)))
        for z in range(npart):
            k.e("s_mov_b32 s47, 0x%x" % (z * 64 * PREG))
            k.e("buffer_load_dwordx4 %s, v40, s[20:23], s47 offen%s" % (vr(PB0 + 8 * z), XF))
            k.e("s_mov_b64 exec, 0xff")
            k.e("buffer_load_dwordx4 %s, v41, s[20:23], s47 offen%s" % (vr(PB0 + 8 * z + 4), XF))
            k.e("s_mov_b64 exec, -1")
        k.vm0()
        regs = list(range(PB0, PB0 + 8 * npart, 2))
        op3 = "v_and_b32" if par else "v_or_b32"
        k.e("%s v26, v%d, v%d" % (op3, regs[0], regs[1]))
        k.e("%s v27, v%d, v%d" % (op3, regs[2], regs[3]))
        rest = regs[4:]
        n = 0
        while rest:
            d = 26 + (n & 1)
            if par:
                k.e("v_and_b32 v%d, v%d, v%d" % (d, d, rest[0]))
                rest = rest[1:]
            else:
                k.e("v_or3_b32 v%d, v%d, v%d, v%d" % (d, d, rest[0], rest[1]))
                rest = rest[2:]
            n += 1
        k.e("%s v26, v26, v27" % op3)
        k.e("v_and_b32 v26, 1, v26")
        k.e("v_cmp_ne_u32 vcc, %d, v26" % par)
        k.e("s_nop 3")
        k.e("s_cmp_eq_u64 vcc, 0")
        k.e("s_cbranch_scc1 %s" % ld)
        k.e("s_add_u32 s45, s45, 1")
        k.e("s_cmp_lt_u32 s45, 0x100000")
        k.e("s_cbranch_scc1 %s" % lp)
        k.label(ld)
        stamp(k, 5)
        if False:
            for r in range(4):
                k.e("v_mov_b32 v%d, -1" % (AB_ + 16 + r))
            for z in range(npart):
                k.e("s_mov_b32 s47, 0x%x" % (z * 64 * PREG))
                k.e("buffer_store_dwordx4 %s, v40, s[20:23], s47 offen" % vr(AB_ + 16))
                k.e("s_mov_b64 exec, 0xff")
                k.e("buffer_store_dwordx4 %s, v41, s[20:23], s47 offen" % vr(AB_ + 16))
                k.e("s_mov_b64 exec, -1")
        for z in range(npart):
            for h in range(2):
                for r in range(4):
                    src = PB0 + 8 * z + 4 * h + r
                    a = AB_ + 8 * h + 2 * r
                    if z == 0:
                        k.e("v_lshlrev_b32 v%d, 16, v%d" % (a, src))
                        k.e("v_and_b32 v%d, 0xffff0000, v%d" % (a + 1, src))
                    else:
                        k.e("v_lshlrev_b32 v26, 16, v%d" % src)
                        k.e("v_and_b32 v27, 0xffff0000, v%d" % src)
                        k.e("v_add_f32 v%d, v%d, v26" % (a, a))
                        k.e("v_add_f32 v%d, v%d, v27" % (a + 1, a + 1))
        k.e("ds_write_b128 v42, %s" % vr(AB_))
        k.e("ds_write_b128 v42, %s offset:16" % vr(AB_ + 4))
        k.e("s_mov_b64 exec, 0xff")
        k.e("ds_write_b128 v43, %s" % vr(AB_ + 8))
        k.e("ds_write_b128 v43, %s offset:16" % vr(AB_ + 12))
        k.e("s_mov_b64 exec, -1")
        k.e("s_mul_i32 s47, s%d, 2336" % sW)
        k.e("s_add_u32 s47, s47, 0x%x" % XBUF)
        k.e("v_lshl_add_u32 v5, v%d, 4, s47" % vLane)
        k.e("v_lshl_add_u32 v6, v%d, 2, s47" % vLane)
        k.e("s_waitcnt lgkmcnt(0)")
        k.e("s_barrier")
        k.e("ds_read_b128 v[16:19], v5")
        k.e("ds_read_b128 v[20:23], v5 offset:1024")
        k.e("ds_read_b32 v24, v6 offset:2048")
        if nxt_phase and PRE:
            pre_issue(k, nxt_phase, 180)
        k.e("s_waitcnt lgkmcnt(0)")
    r_body(k, 2, vLane, ysrc, True, ln, 12, 24, 52)
    return PB0 + 8 * npart + 20


def preset_pieces(k, sW, vLane, vA_, vD4, SR, sTmp, WSP):
    L = ["s_mul_i32 s%d, s2, %d" % (sTmp, PREG),
         "s_add_u32 s%d, s4, 0x%x" % (SR, WSP), "s_addc_u32 s%d, s5, 0" % (SR + 1),
         "s_add_u32 s%d, s%d, s%d" % (SR, SR, sTmp), "s_addc_u32 s%d, s%d, 0" % (SR + 1, SR + 1),
         "s_and_b32 s%d, s%d, 0xffff" % (SR + 1, SR + 1),
         "s_mov_b32 s%d, %d" % (SR + 2, PREG), "s_mov_b32 s%d, 0x20000" % (SR + 3),
         "s_mul_i32 s%d, s%d, 5120" % (sTmp, sW),
         "v_lshl_add_u32 v%d, v%d, 4, s%d" % (vA_, vLane, sTmp)]
    for r in range(4):
        L.append("v_mov_b32 v%d, -1" % (vD4 + r))
    P = [("S", L + ["buffer_store_dwordx4 %s, v%d, %s, 0 offen" % (vr(vD4), vA_, sr(SR))])]
    for n in range(1, 4):
        P.append(("S", ["buffer_store_dwordx4 %s, v%d, %s, 0 offen offset:%d" % (vr(vD4), vA_, sr(SR), n * 1024)]))
    P.append(("S", ["s_mov_b32 s%d, 4096" % sTmp, "buffer_store_dwordx4 %s, v%d, %s, s%d offen" % (vr(vD4), vA_, sr(SR), sTmp)]))
    return P


def gen_gemm(k, kind, rcfg=None, kidx=0, pf=(), xn=None, ab=None, h=None, dep=None, pub=None, nxt_phase=None):
    nwg = 256
    k.pend = []
    LNF = (kind == 'A1L')
    if LNF:
        kind = 'A1'
    if kind == 'A2':
        NFR, NBUF, mmode, NS = 2, 4, 'tr', 16
        strideN, strideM = 4096, 288
    elif kind == 'B2':
        NFR, NBUF, mmode, NS = 2, 4, 'tr', 18
        strideN, strideM = 0, 1152
    else:
        NFR, NBUF, mmode, NS = 1, 4, 'row', 9
        strideN, strideM = 1152, 1152
    WSP, WSPO = WS_P, WS_P
    groups = [list(range(5)), list(range(5, 9))]
    NSET = 4
    NT = 4 * NFR * 16
    NTB = NT * 128
    STB = NTB + MTB
    NDN = NT // 64
    LDSB = NBUF * STB + (8 * 2336 if rcfg else 0)
    MB0 = NTB
    if LNF:
        STB, NDN, MB0 = MTB, 0, 73728
        LDSB = 73728 + NBUF * MTB
    KS = 2
    Wmul = float(OPT.get('twmul', 2.0))
    Wmax = int(5 * Wmul + 0.5)

    vLane, vT0, vT1, vT2, vT3, vT4 = 1, 2, 3, 4, 5, 6
    vO = 7
    vDN = 8
    vDM = [9, 10, 11]
    nxt = 12
    nrm = KS if mmode == 'row' else 1
    vRN = [[0] * KS for _ in range(NBUF)]
    vRM = [[0] * nrm for _ in range(NBUF)]
    for b in range(NBUF):
        for s_ in range(KS):
            vRN[b][s_] = nxt; nxt += 1
        for s_ in range(nrm):
            vRM[b][s_] = nxt; nxt += 1
    nxt = (nxt + 3) // 4 * 4
    vPA, vPS, vPD = nxt, nxt + 2, nxt + 3
    nxt += 4
    PD = int(OPT.get('pd', 0)) if kind in ('A2', 'B2') else 0
    vM = [nxt + 4 * j for j in range(Wmax)]; nxt += 4 * Wmax
    vN = [[nxt + 4 * (p * NFR + i) for i in range(NFR)] for p in range(NSET)]; nxt += 4 * NSET * NFR
    vAbase = nxt
    nxt += 4 * 5 * NFR
    nxt = max(nxt, 176 if LNF else 96, 196 if nxt_phase else 0)
    vPF = nxt
    nxt += 1
    nvgpr = nxt
    sW, sW1024, sW256, sKN, sKM, sTmp, sLoop = 28, 29, 30, 31, 32, 33, 40
    SRN, SRM, SRO = 12, 16, 24
    if not PF:
        pf = ()

    stamp(k, 0, 1)
    k.e("s_load_dwordx2 s[4:5], s[0:1], %d" % KA_WS)
    if kind == 'A2':
        k.e("s_load_dwordx4 s[8:11], s[0:1], %d" % KA_CR)
    elif kind == 'B2':
        k.e("s_load_dwordx2 s[8:9], s[0:1], %d" % KA_WD)
    else:
        k.e("s_load_dwordx2 s[8:9], s[0:1], %d" % KA_WR)
        k.e("s_load_dwordx2 s[10:11], s[0:1], %d" % KA_WI)
    if LNF:
        k.e("s_load_dwordx2 s[48:49], s[0:1], %d" % KA_X)
    if rcfg:
        if rcfg[1][0] == 'in':
            k.e("s_load_dwordx2 s[48:49], s[0:1], %d" % rcfg[1][1])
        if rcfg[2][0] == 'out':
            k.e("s_load_dwordx2 s[50:51], s[0:1], %d" % KA_OUT)
    for n, (ka, nb_) in enumerate(pf):
        k.e("s_load_dwordx2 s[%d:%d], s[0:1], %d" % (56 + 4 * n, 57 + 4 * n, ka))
    k.e("v_and_b32 v%d, 63, v0" % vLane)
    k.e("v_lshrrev_b32 v%d, 6, v0" % vT0)
    k.e("s_nop 0")
    k.e("v_readfirstlane_b32 s%d, v%d" % (sW, vT0))
    k.e("s_and_b32 s34, s2, 7")
    k.e("s_lshr_b32 s35, s2, 3")
    if kind in ('A2', 'B2'):
        k.e("s_and_b32 s36, s34, 3")
        k.e("s_lshr_b32 s37, s34, 2")
        k.e("s_lshl_b32 s37, s37, 3")
        k.e("s_lshr_b32 s38, s35, 2")
        k.e("s_add_u32 s37, s37, s38")
        k.e("s_and_b32 s38, s35, 3")
    else:
        k.e("s_mov_b32 s38, s34")
        k.e("s_mov_b32 s37, s35")
    k.e("s_lshl_b32 s%d, s%d, 10" % (sW1024, sW))
    k.e("s_lshl_b32 s%d, s%d, 8" % (sW256, sW))
    k.e("v_lshrrev_b32 v%d, 3, v%d" % (vT0, vLane))
    k.e("s_lshl_b32 s%d, s%d, 3" % (sTmp, sW))
    k.e("v_add_u32 v%d, s%d, v%d" % (vT0, sTmp, vT0))
    k.e("v_bfe_u32 v%d, v%d, 1, 3" % (vT1, vT0))
    k.e("v_and_b32 v%d, 7, v%d" % (vT2, vLane))
    k.e("v_xor_b32 v%d, v%d, v%d" % (vT1, vT1, vT2))
    if kind == 'B2':
        k.e("s_lshr_b32 s44, s%d, 2" % sW)
        k.e("s_mul_i32 s44, s44, %d" % (288 * 1024))
        k.e("s_and_b32 s45, s%d, 3" % sW)
        k.e("s_lshl_b32 s45, s45, 10")
        k.e("s_add_u32 s44, s44, s45")
        k.e("v_lshl_add_u32 v%d, v%d, 4, s44" % (vDN, vLane))
    else:
        k.e("v_mul_u32_u24 v%d, %d, v%d" % (vDN, strideN, vT0))
        k.e("v_lshl_add_u32 v%d, v%d, 4, v%d" % (vDN, vT1, vDN))
    if mmode == 'row':
        k.e("v_mul_u32_u24 v%d, %d, v%d" % (vDM[0], strideM, vT0))
        k.e("v_lshl_add_u32 v%d, v%d, 4, v%d" % (vDM[0], vT1, vDM[0]))
        k.e("v_lshrrev_b32 v%d, 3, v%d" % (vT0, vLane))
        k.e("s_lshl_b32 s%d, s%d, 1" % (sTmp, sW))
        k.e("s_add_u32 s%d, s%d, 128" % (sTmp, sTmp))
        k.e("v_add_u32 v%d, s%d, v%d" % (vT0, sTmp, vT0))
        k.e("v_bfe_u32 v%d, v%d, 1, 3" % (vT1, vT0))
        k.e("v_xor_b32 v%d, v%d, v%d" % (vT1, vT1, vT2))
        k.e("v_mul_u32_u24 v%d, %d, v%d" % (vDM[2], strideM, vT0))
        k.e("v_lshl_add_u32 v%d, v%d, 4, v%d" % (vDM[2], vT1, vDM[2]))
    else:
        for q in range(3):
            if q < 2:
                k.e("s_lshl_b32 s%d, s%d, 6" % (sTmp, sW))
                k.e("s_add_u32 s%d, s%d, %d" % (sTmp, sTmp, 512 * q))
            else:
                k.e("s_lshl_b32 s%d, s%d, 4" % (sTmp, sW))
                k.e("s_add_u32 s%d, s%d, 1024" % (sTmp, sTmp))
            tr_voff(k, vDM[q], sTmp, vLane, (vT0, vT1, vT2, vT3, vT4), strideM, 0x33)
    k.e("s_mov_b32 s%d, 0" % sKN)
    k.e("s_mov_b32 s%d, 0" % sKM)
    if OPT.get('pst'):
        k.e("s_memtime s[%d:%d]" % (SB + 8, SB + 9))
    k.e("s_waitcnt lgkmcnt(0)")
    if OPT.get('pst'):
        stamp(k, 5)
    if kind == 'A2':
        k.e("s_cmp_lt_u32 s36, 2")
        k.e("s_cselect_b32 s6, s8, s10")
        k.e("s_cselect_b32 s7, s9, s11")
        k.e("s_mul_i32 s44, s37, %d" % (128 * 4096))
        k.e("s_and_b32 s45, s36, 1")
        k.e("s_lshl_b32 s45, s45, 11")
        k.e("s_add_u32 s44, s44, s45")
        srd(k, SRN, 6, 0, 44, S * S * 2)
        k.e("s_lshr_b32 s44, s36, 1")
        k.e("s_lshl_b32 s44, s44, 2")
        k.e("s_add_u32 s44, s44, s38")
        k.e("s_lshl_b32 s44, s44, 1")
        k.e("s_and_b32 s45, s36, 1")
        k.e("s_add_u32 s44, s44, s45")
        k.e("s_mul_i32 s44, s44, %d" % (1024 * 288))
        srd(k, SRM, 4, ab, 44, ab + 2 * XB)
    elif kind == 'B2':
        k.e("s_mul_i32 s44, s37, %d" % (4 * 288 * 1024))
        k.e("s_mul_i32 s45, s36, %d" % (72 * 1024))
        k.e("s_add_u32 s44, s44, s45")
        srd(k, SRN, 4, h, 44, h + HB)
        k.e("s_mul_i32 s44, s36, %d" % (1152 * 1152))
        k.e("s_mul_i32 s45, s38, 288")
        k.e("s_add_u32 s44, s44, s45")
        srd(k, SRM, 8, 0, 44, F * D * 2)
    else:
        k.e("s_mul_i32 s44, s37, %d" % (64 * 1152))
        if LNF:
            srd(k, SRN, 48, 0, 44, XB)
            k.e("s_mul_i32 s44, s%d, %d" % (sW, 8 * 1152))
            k.e("v_lshl_add_u32 v%d, v%d, 3, s44" % (vT0, vLane))
            k.e("v_lshl_add_u32 v%d, v%d, 1, s44" % (vT1, vLane))
            for rr in range(8):
                b = 32 + 16 * rr
                k.e("s_mov_b32 s44, %d" % (rr * 1152))
                k.e("buffer_load_dwordx2 %s, v%d, %s, s44 offen" % (vr(b + 10, 2), vT0, sr(SRN)), "X")
                k.e("buffer_load_dwordx2 %s, v%d, %s, s44 offen offset:512" % (vr(b + 12, 2), vT0, sr(SRN)), "X")
                k.e("buffer_load_ushort v%d, v%d, %s, s44 offen offset:1024" % (b + 14, vT1, sr(SRN)), "X")
        else:
            srd(k, SRN, 4, xn, 44, xn + XB)
        k.e("s_cmp_lt_u32 s38, 4")
        k.e("s_cselect_b32 s6, s8, s10")
        k.e("s_cselect_b32 s7, s9, s11")
        k.e("s_and_b32 s45, s38, 3")
        k.e("s_mul_i32 s44, s45, %d" % (144 * 1152))
        srd(k, SRM, 6, 0, 44, D * D * 2)
    if PD:
        k.e("s_mul_i32 s45, s38, 288")
        k.e("s_sub_u32 s44, s%d, s45" % SRM)
        k.e("s_subb_u32 s45, s%d, 0" % (SRM + 1))
        k.e("s_lshl_b32 s46, s38, 5")
        k.e("s_lshl_b32 s47, s%d, 2" % sW)
        k.e("s_add_u32 s46, s46, s47")
        k.e("v_add_u32 v%d, s46, v%d" % (vT0, vLane))
        if kind == 'A2':
            k.e("v_lshlrev_b32 v%d, 12, v%d" % (vT1, vT0))
            SN = 128
        else:
            k.e("v_lshrrev_b32 v%d, 5, v%d" % (vT1, vT0))
            k.e("v_mul_u32_u24 v%d, %d, v%d" % (vT1, 288 * 1024, vT1))
            k.e("v_and_b32 v%d, 31, v%d" % (vT2, vT0))
            k.e("v_lshl_add_u32 v%d, v%d, 7, v%d" % (vT1, vT2, vT1))
            SN = 4096
        k.e("v_add_u32 v%d, 0x%x, v%d" % (vT1, PD * SN, vT1))
        k.e("s_mul_i32 s46, s%d, 3" % sW)
        k.e("s_sub_u32 s46, s46, 4")
        k.e("v_add_u32 v%d, s46, v%d" % (vT0, vLane))
        k.e("v_min_u32 v%d, 17, v%d" % (vT0, vT0))
        k.e("s_mul_i32 s46, s35, 18")
        k.e("v_add_u32 v%d, s46, v%d" % (vT0, vT0))
        k.e("v_mul_u32_u24 v%d, 7282, v%d" % (vT2, vT0))
        k.e("v_lshrrev_b32 v%d, 16, v%d" % (vT2, vT2))
        k.e("v_mul_u32_u24 v%d, 9, v%d" % (vT3, vT2))
        k.e("v_sub_u32 v%d, v%d, v%d" % (vT3, vT0, vT3))
        k.e("v_mul_u32_u24 v%d, 1152, v%d" % (vT2, vT2))
        k.e("v_lshl_add_u32 v%d, v%d, 7, v%d" % (vT2, vT3, vT2))
        k.e("v_add_u32 v%d, 0x%x, v%d" % (vT2, PD * 64 * 1152, vT2))
        k.e("v_cmp_gt_u32 vcc, 4, v%d" % vLane)
        k.e("v_mov_b32 v%d, s44" % vT0)
        k.e("v_mov_b32 v%d, s%d" % (vT3, SRN))
        k.e("v_cndmask_b32 v%d, v%d, v%d, vcc" % (vPA, vT0, vT3))
        k.e("v_mov_b32 v%d, s45" % vT0)
        k.e("v_mov_b32 v%d, s%d" % (vT3, SRN + 1))
        k.e("v_cndmask_b32 v%d, v%d, v%d, vcc" % (vPA + 1, vT0, vT3))
        k.e("v_cndmask_b32 v%d, v%d, v%d, vcc" % (vT1, vT2, vT1))
        k.e("v_mov_b32 v%d, 0x%x" % (vT0, 64 * 1152))
        k.e("v_mov_b32 v%d, %d" % (vT3, SN))
        k.e("v_cndmask_b32 v%d, v%d, v%d, vcc" % (vPS, vT0, vT3))
        k.e("v_add_co_u32 v%d, vcc, v%d, v%d" % (vPA, vT1, vPA))
        k.e("s_nop 1")
        k.e("v_addc_co_u32 v%d, vcc, 0, v%d, vcc" % (vPA + 1, vPA + 1))

    def dma_n(stage):
        b = stage % NBUF
        tag = "D%d" % stage
        P = []
        for j in range(NDN):
            L = ["s_add_u32 m0, s%d, 0x%x" % (sW1024, b * STB + j * 8192)]
            if j:
                L.append("s_add_u32 s%d, s%d, 0x%x" % (sTmp, sKN, j * (2 * 288 * 1024 if kind == 'B2' else 64 * strideN)))
                L.append("buffer_load_dwordx4 v%d, %s, s%d offen lds" % (vDN, sr(SRN), sTmp))
            else:
                L.append("s_nop 0")
                L.append("buffer_load_dwordx4 v%d, %s, s%d offen lds" % (vDN, sr(SRN), sKN))
            P.append((tag, L))
        if P:
            P[-1] = (tag, P[-1][1] + ["s_add_u32 s%d, s%d, %d" % (sKN, sKN, 4096 if kind == 'B2' else 128)])
        return P

    def dma_m(stage):
        b = stage % NBUF
        tag = "D%d" % stage
        P = []
        mb_ = b * STB + MB0
        for q in range(3):
            L = []
            if q < 2:
                L.append("s_add_u32 m0, s%d, 0x%x" % (sW1024, mb_ + q * 8192))
            else:
                L.append("s_add_u32 m0, s%d, 0x%x" % (sW256, mb_ + 16384))
            if mmode == 'row' and q == 1:
                L.append("s_add_u32 s%d, s%d, 0x%x" % (sTmp, sKM, 64 * strideM))
                so, vo = sTmp, vDM[0]
            else:
                so, vo = sKM, vDM[q]
                L.append("s_nop 0")
            if q == 2:
                L.append("s_mov_b64 exec, 0xffff")
            L.append("buffer_load_dwordx4 v%d, %s, s%d offen lds" % (vo, sr(SRM), so))
            if q == 2:
                L.append("s_mov_b64 exec, -1")
            P.append((tag, L))
        P[-1] = (tag, P[-1][1] + ["s_add_u32 s%d, s%d, 0x%x" % (sKM, sKM, 128 if mmode == 'row' else 64 * strideM)])
        return P

    def dma(stage):
        return dma_n(stage) + dma_m(stage)

    def emit(P):
        for tag, L in P:
            for x in L:
                k.e(x, tag)

    if dep is None:
        for stg in range(NBUF):
            emit(dma(stg))
    else:
        first, second = (dma_n, dma_m) if kind == 'A2' else (dma_m, dma_n)
        if dep == 'pre':
            for stg in range(NBUF):
                emit(first(stg))
            raise PreDone()
        if PRE:
            if kind == 'A2':
                k.e("s_mov_b32 s%d, %d" % (sKN, NBUF * 128))
            else:
                k.e("s_mov_b32 s%d, 0x%x" % (sKM, NBUF * (128 if mmode == 'row' else 64 * strideM)))
        elif not POLLF:
            for stg in range(NBUF):
                emit(first(stg))
        elif POLLF == 2:
            emit(first(0))
        if kind == 'A2':
            k.e("s_and_b32 s44, s36, 1")
            k.e("s_lshl_b32 s44, s44, 7")
            k.e("s_lshr_b32 s45, s36, 1")
            k.e("s_lshl_b32 s45, s45, 2")
            k.e("s_add_u32 s44, s44, s45")
            k.e("s_add_u32 s44, s44, s38")
            k.e("v_lshl_add_u32 v%d, v%d, 3, s44" % (vT0, vLane))
            nl = 16
        elif kind == 'B2':
            k.e("s_lshr_b32 s44, s37, 1")
            k.e("s_lshl_b32 s44, s44, 5")
            k.e("s_lshl_b32 s45, s36, 3")
            k.e("s_add_u32 s44, s44, s45")
            k.e("v_add_u32 v%d, s44, v%d" % (vT0, vLane))
            nl = 8
        else:
            k.e("s_lshl_b32 s44, s37, 3")
            k.e("v_add_u32 v%d, s44, v%d" % (vT0, vLane))
            nl = 8
        wait_flags(k, dep, nl, vT0, vT1)
        for stg in range(NBUF):
            emit(second(stg))
            if POLLF and not PRE and not (POLLF == 2 and stg == 0):
                emit(first(stg))
    for n, (ka, nb_) in enumerate(pf):
        srd(k, 56 + 4 * n, 56 + 4 * n, 0, None, nb_)
    k.e("s_and_b32 s%d, s%d, 3" % (sTmp, sW))
    k.e("s_mul_i32 s%d, s%d, %d" % (sTmp, sTmp, NFR * 16 * 128))
    k.e("v_and_b32 v%d, 15, v%d" % (vT0, vLane))
    k.e("v_lshrrev_b32 v%d, 4, v%d" % (vT1, vLane))
    k.e("v_bfe_u32 v%d, v%d, 1, 3" % (vT2, vLane))
    k.e("v_xor_b32 v%d, v%d, v%d" % (vT2, vT1, vT2))
    k.e("v_lshlrev_b32 v%d, 4, v%d" % (vT2, vT2))
    k.e("v_lshl_add_u32 v%d, v%d, 7, v%d" % (vT2, vT0, vT2))
    k.e("v_add_u32 v%d, s%d, v%d" % (vT3, sTmp, vT2))
    if kind == 'B2':
        k.e("v_lshlrev_b32 v%d, 9, v%d" % (vT3, vT1))
        k.e("v_lshl_add_u32 v%d, v%d, 4, v%d" % (vT3, vT0, vT3))
        k.e("v_add_u32 v%d, s%d, v%d" % (vT3, sTmp, vT3))
        for b in range(NBUF):
            k.e("v_add_u32 v%d, 0x%x, v%d" % (vRN[b][0], b * STB, vT3))
            k.e("v_add_u32 v%d, 2048, v%d" % (vRN[b][1], vRN[b][0]))
    else:
        for b in range(NBUF):
            k.e("v_add_u32 v%d, 0x%x, v%d" % (vRN[b][0], (b * 65536 if LNF else b * STB), vT3))
            k.e("v_xor_b32 v%d, 64, v%d" % (vRN[b][1], vRN[b][0]))
    if mmode == 'row':
        for b in range(NBUF):
            k.e("v_add_u32 v%d, 0x%x, v%d" % (vRM[b][0], b * STB + MB0, vT2))
            k.e("v_xor_b32 v%d, 64, v%d" % (vRM[b][1], vRM[b][0]))
    else:
        tr_raddr(k, vT2, vLane, vT3)
        for b in range(NBUF):
            k.e("v_add_u32 v%d, 0x%x, v%d" % (vRM[b][0], b * STB + NTB, vT2))
    k.e("s_and_b32 s%d, s%d, 3" % (sTmp, sW))
    k.e("s_mul_i32 s%d, s%d, %d" % (sTmp, sTmp, NFR * 16))
    k.e("v_and_b32 v%d, 15, v%d" % (vT3, vLane))
    k.e("v_add_u32 v%d, s%d, v%d" % (vT3, sTmp, vT3))
    k.e("v_lshrrev_b32 v%d, 4, v%d" % (vT4, vLane))
    k.e("v_mul_u32_u24 v%d, 288, v%d" % (vT3, vT3))
    k.e("v_and_b32 v%d, 1, v%d" % (vT0, vT4))
    k.e("v_lshl_add_u32 v%d, v%d, 5, v%d" % (vO, vT0, vT3))
    k.e("v_lshrrev_b32 v%d, 1, v%d" % (vT0, vT4))
    k.e("v_lshl_add_u32 v%d, v%d, 4, v%d" % (vO, vT0, vO))
    k.e("v_lshl_add_u32 v%d, v%d, 3, v%d" % (vT4, vT4, vT3))
    vO2 = vT4
    if kind == 'A1':
        k.e("s_lshr_b32 s45, s38, 2")
        k.e("s_lshl_b32 s44, s38, 5")
        k.e("s_add_u32 s44, s44, s37")
        k.e("s_mul_i32 s44, s44, 18432")
        srd(k, SRO, 4, ab, 44, ab + 2 * XB)
        k.e("s_mov_b32 s%d, 18432" % (SRO + 2))
        k.e("s_mul_i32 s47, s45, 0x80008000")
    else:
        k.e("s_lshl_b32 s44, s36, 4")
        k.e("s_add_u32 s44, s44, s37")
        k.e("s_lshl_b32 s44, s44, 2")
        k.e("s_and_b32 s46, s%d, 3" % sW)
        k.e("s_add_u32 s44, s44, s46")
        k.e("s_mul_i32 s44, s44, %d" % PREG)
        k.e("s_mul_i32 s46, s38, 9216")
        k.e("s_add_u32 s44, s44, s46")
        srd(k, SRO, 4, WSP, 44, WSP + 4 * XB)
        k.e("v_lshlrev_b32 v%d, 4, v%d" % (vO, vLane))
    def pf_emit():
        k.e("s_lshl_b32 s%d, s2, 3" % sTmp)
        k.e("s_add_u32 s%d, s%d, s%d" % (sTmp, sTmp, sW))
        k.e("s_lshl_b32 s%d, s%d, 12" % (sTmp, sTmp))
        k.e("v_lshl_add_u32 v%d, v%d, 6, s%d" % (vT0, vLane, sTmp))
        for n in range(len(pf)):
            k.e("buffer_load_dword v%d, v%d, %s, 0 offen" % (vPF, vT0, sr(56 + 4 * n)), "PF")

    stamp(k, 1)
    if LNF:
        for tg, L in preset_pieces(k, sW, vLane, vT2, vPA, 72, sTmp, WS_P):
            for x in L:
                k.e(x.replace(", -1", ", 0") if x.startswith("v_mov") else x, "S")
        lz = k.newlabel("LZ")
        k.e("s_cmp_ge_u32 s2, 1")
        k.e("s_cbranch_scc1 %s" % lz)
        srd(k, 72, 4, WS_FL, None, WS_FL + 8192)
        k.e("v_lshlrev_b32 v%d, 4, v0" % vT2)
        k.e("buffer_store_dwordx4 %s, v%d, s[72:75], 0 offen" % (vr(vPA), vT2))
        k.vm.pop()
        k.label(lz)
        if pf and OPT.get('pfpos', 'end') == 'early':
            pf_emit()
        R = range(8)
        B = lambda rr: 32 + 16 * rr
        k.e("v_lshrrev_b32 v%d, 4, v%d" % (vT0, vLane))
        k.e("v_lshlrev_b32 v%d, 13, v%d" % (vT0, vT0))
        k.e("v_bfe_u32 v%d, v%d, 1, 3" % (vT1, vLane))
        k.e("v_lshl_add_u32 v%d, v%d, 4, v%d" % (vT0, vT1, vT0))
        k.e("v_and_b32 v%d, 1, v%d" % (vT1, vLane))
        k.e("v_lshl_add_u32 v%d, v%d, 3, v%d" % (vT0, vT1, vT0))
        k.e("v_add_u32 v%d, s%d, v%d" % (vT0, sW1024, vT0))
        k.e("v_lshrrev_b32 v%d, 3, v%d" % (vT1, vLane))
        k.e("v_lshlrev_b32 v%d, 4, v%d" % (vT1, vT1))
        k.e("v_and_b32 v%d, 7, v%d" % (vT2, vLane))
        k.e("v_lshl_add_u32 v%d, v%d, 1, v%d" % (vT1, vT2, vT1))
        k.e("v_add_u32 v%d, s%d, v%d" % (vT1, sW1024, vT1))
        k.e("v_add_u32 v%d, 0x10000, v%d" % (vT1, vT1))
        for pr in range(4):
            k.e("s_lshl_b32 s44, s%d, 2" % sW)
            k.e("s_add_u32 s44, s44, %d" % pr)
            k.e("s_and_b32 s44, s44, 7")
            k.e("s_lshl_b32 s44, s44, 4")
            k.e("v_xor_b32 v%d, s44, v%d" % (160 + pr, vT0))
            k.e("v_xor_b32 v%d, s44, v%d" % (164 + pr, vT1))
        stamp(k, 5)
        k.vneed("X")
        stamp(k, 4)

        def allrows(fmt, *offs):
            for rr in R:
                k.e(fmt % tuple(B(rr) + o for o in offs))

        def xsum(o, t):
            for ctl in ("quad_perm:[1,0,3,2]", "quad_perm:[2,3,0,1]", "row_half_mirror", "row_mirror"):
                allrows("v_add_f32_dpp v%d, v%d, v%d " + ctl + " row_mask:0xf bank_mask:0xf", o, o, o)
            for sw_ in ("v_permlane16_swap_b32", "v_permlane32_swap_b32"):
                allrows("v_mov_b32 v%d, v%d", t, o)
                allrows(sw_ + " v%d, v%d", o, t)
                allrows("v_add_f32 v%d, v%d, v%d", o, o, t)
        for i in range(4):
            allrows("v_lshlrev_b32 v%d, 16, v%d", 2 * i, 10 + i)
            allrows("v_and_b32 v%d, 0xffff0000, v%d", 2 * i + 1, 10 + i)
        allrows("v_lshlrev_b32 v%d, 16, v%d", 8, 14)
        def pk(op, d, a, b, c=None, mods=""):
            for rr in R:
                x = B(rr)
                ops = [vr(x + d, 2), vr(x + a, 2), vr(x + b, 2)] + ([vr(x + c, 2)] if c is not None else [])
                k.e("%s %s%s" % (op, ", ".join(ops), mods))
        pk("v_pk_add_f32", 10, 0, 2)
        pk("v_pk_add_f32", 12, 4, 6)
        pk("v_pk_add_f32", 10, 10, 12)
        allrows("v_add_f32 v%d, v%d, v%d", 14, 10, 11)
        allrows("v_add_f32 v%d, v%d, v%d", 14, 14, 8)
        xsum(14, 15)
        allrows("v_mul_f32 v%%d, 0x%08x, v%%d" % f32bits(-1.0 / D), 14, 14)
        allrows("v_mov_b32 v%d, v%d", 15, 14)
        for e in range(0, 8, 2):
            pk("v_pk_add_f32", e, e, 14)
        allrows("v_add_f32 v%d, v%d, v%d", 8, 8, 14)
        pk("v_pk_mul_f32", 10, 0, 0)
        pk("v_pk_mul_f32", 12, 2, 2)
        pk("v_pk_fma_f32", 10, 4, 4, 10)
        pk("v_pk_fma_f32", 12, 6, 6, 12)
        pk("v_pk_add_f32", 10, 10, 12)
        allrows("v_add_f32 v%d, v%d, v%d", 14, 10, 11)
        allrows("v_fmac_f32 v%d, v%d, v%d", 14, 8, 8)
        xsum(14, 15)
        allrows("v_mov_b32 v%%d, 0x%08x" % f32bits(1e-5), 15)
        allrows("v_fmac_f32 v%%d, 0x%08x, v%%d" % f32bits(1.0 / D), 15, 14)
        allrows("v_rsq_f32 v%d, v%d", 14, 15)
        allrows("v_mov_b32 v%d, v%d", 15, 14)
        for e in range(0, 8, 2):
            pk("v_pk_mul_f32", e, e, 14)
        allrows("v_mul_f32 v%d, v%d, v%d", 8, 8, 14)
        for i in range(4):
            allrows("v_cvt_pk_bf16_f32 v%d, v%d, v%d", 10 + i, 2 * i, 2 * i + 1)
        allrows("v_cvt_pk_bf16_f32 v%d, v%d, v%d", 14, 8, 8)
        stamp(k, 6)
        for rr in R:
            k.e("ds_write_b64 v%d, %s offset:%d" % (160 + rr // 2, vr(B(rr) + 10, 2), rr * 128))
            k.e("ds_write_b64 v%d, %s offset:%d" % (160 + rr // 2, vr(B(rr) + 12, 2), rr * 128 + 32768))
            k.e("ds_write_b16 v%d, v%d offset:%d" % (164 + rr // 2, B(rr) + 14, rr * 128))
        k.e("s_waitcnt lgkmcnt(0)")
    k.vneed("D0")
    k.e("s_barrier")
    stamp(k, 2)

    ljoin = k.newlabel("LJ")
    lg1 = k.newlabel("LG")
    k.e("s_cmp_ge_u32 s%d, 4" % sW)
    k.e("s_cbranch_scc1 %s" % lg1)
    vm_save = list(k.vm)
    for gi, tiles in enumerate(groups):
        if gi:
            k.label(lg1)
            k.vm = list(vm_save)
        nt = len(tiles)
        W = int(nt * Wmul + 0.5)
        vA = {(j, i): vAbase + 4 * (ti * NFR + i) for ti, j in enumerate(tiles) for i in range(NFR)}

        def rd_m(stg, ks, j, reg, tag):
            b = stg % NBUF
            if mmode == 'row':
                k.lds("ds_read_b128 %s, v%d offset:%d" % (vr(reg), vRM[b][ks], j * 2048), tag)
            else:
                o = ks * 9216 + j * 32
                k.lds("ds_read_b64_tr_b16 %s, v%d offset:%d" % (vr(reg, 2), vRM[b][0], o), tag)
                k.lds("ds_read_b64_tr_b16 %s, v%d offset:%d" % (vr(reg + 2, 2), vRM[b][0], o + 2304), tag)

        def rd_n(stg, ks, i, reg, tag):
            if LNF:
                k.lds("ds_read_b128 %s, v%d offset:%d" % (vr(reg), vRN[stg // 8][ks], (stg % 8) * 8192), tag)
            else:
                k.lds("ds_read_b128 %s, v%d offset:%d" % (vr(reg), vRN[stg % NBUF][ks], i * (256 if kind == 'B2' else 2048)), tag)

        def ald():
            L = ["s_lshl_b32 s%d, s2, 3" % sTmp, "s_add_u32 s%d, s%d, s%d" % (sTmp, sTmp, sW), "s_lshl_b32 s%d, s%d, 12" % (sTmp, sTmp),
                 "v_lshl_add_u32 v%d, v%d, 6, s%d" % (vT0, vLane, sTmp)]
            for n in range(len(pf)):
                L.append("buffer_load_dword v%d, v%d, %s, 0 offen" % (vPF, vT0, sr(56 + 4 * n)))
            P = [("PF", L)] if pf else []
            return P

        pp = preset_pieces(k, sW, vLane, vT2, vPA, 72, sTmp, WSPO)

        def sx(t):
            return [pp[t]] if t < len(pp) else []

        engine(k, tiles, NFR, KS, NS, NBUF, W, NSET, int(OPT.get('tdelta', 1)), rd_m, rd_n, dma,
               lambda t, j, i: vA[(j, i)], lambda t, ks: t == 0 and ks == 0, vM, vN, sLoop,
               after_last_dma=ald if (pf and not (LNF and OPT.get('pfpos', 'end') != 'mid')) else None, stage_extra=None, n_static=LNF)
        k.e("s_nop 7")
        k.e("s_nop 3")
        stamp(k, 3)
        if kind == 'A1' and nxt_phase and PRE:
            k.e("s_barrier")
            pre_issue(k, nxt_phase, 180)
        if kind in ('A2', 'B2'):
            store_native(k, tiles, lambda j, i: vA[(j, i)], vO, SRO, sTmp, 0, None, 28, (rcfg[0] + 1) & 1)
        else:
            k.e("s_barrier")
            store_tiles_bf16(k, tiles, lambda j: vA[(j, 0)], vO, vO2, None, None, "", 28, neg=47)
        if gi == 0:
            k.e("s_branch %s" % ljoin)
    k.label(ljoin)
    if kind == 'A1':
        k.e("v_lshlrev_b32 v%d, 4, v0" % vT0)
        k.e("s_waitcnt lgkmcnt(0)")
        k.e("s_barrier")
        for n in range(3):
            k.e("ds_read_b128 %s, v%d offset:%d" % (vr(28 + 4 * n), vT0, n * 8192))
        for n in range(3):
            k.e("s_mov_b32 s%d, %d" % (sTmp, n * 8192))
            k.e("s_waitcnt lgkmcnt(%d)" % (2 - n))
            k.e("buffer_store_dwordx4 %s, v%d, %s, s%d offen" % (vr(28 + 4 * n), vT0, sr(SRO), sTmp))
    if LNF and pf and OPT.get('pfpos', 'end') == 'end':
        pf_emit()
    if rcfg:
        k.e("s_lshl_b32 s39, s36, 2")
        k.e("s_add_u32 s39, s39, s38")
        nv = r_tail(k, rcfg, 4, sW, vLane, 37, 39, NBUF * STB, WSP, xn, nxt_phase)
        nvgpr = max(nvgpr, nv)
    elif not LNF:
        stamp(k, 4)
    if not LNF:
        stamp(k, 6)
    stamp_store(k, kidx)
    if pub is not None:
        if rcfg:
            k.e("s_lshl_b32 s44, s37, 4")
            k.e("s_add_u32 s44, s44, s39")
        else:
            k.e("s_mov_b32 s44, s2")
        publish(k, pub, 44, sW)
    return nvgpr, LDSB


def gen_b1(k, kidx=0, pf=(), xn=None, h=None, dep=None, pub=None, nxt_phase=None):
    nwg = 256
    k.pend = []
    NBUF, NS, KS = int(OPT.get('b1nb', 3)), 18, 1
    NTB = 256 * 64
    STB = NTB + 2 * 9216
    W = int(OPT.get('b1w', 10))
    NFR = 4
    vLane, vT0, vT1, vT2, vT3, vT4 = 1, 2, 3, 4, 5, 6
    vO = 7
    vDN = 8
    vDM = [9, 10]
    vRN = [12 + b for b in range(NBUF)]
    vRM = [16 + b for b in range(NBUF)]
    nxt = 20
    vM = [nxt + 4 * j for j in range(W)]; nxt += 4 * W
    vN = [[nxt + 4 * (p * NFR + i) for i in range(NFR)] for p in range(2)]; nxt += 8 * NFR
    vAbase = nxt
    nxt += 160
    vPF = nxt
    nxt += 1
    nvgpr = nxt
    assert nvgpr <= 256
    sW, sW1024, sW256, sKN, sKM, sTmp, sLoop = 28, 29, 30, 31, 32, 33, 39
    SRN, SRM, SRO, SRQ = 12, [16, 20], 24, 40
    if not PF:
        pf = ()
    stamp(k, 0, 1)
    k.e("s_load_dwordx2 s[4:5], s[0:1], %d" % KA_WS)
    k.e("s_load_dwordx4 s[8:11], s[0:1], %d" % KA_WG)
    for n, (ka, nb_) in enumerate(pf):
        k.e("s_load_dwordx2 s[%d:%d], s[0:1], %d" % (56 + 4 * n, 57 + 4 * n, ka))
    k.e("v_and_b32 v%d, 63, v0" % vLane)
    k.e("v_lshrrev_b32 v%d, 6, v0" % vT0)
    k.e("s_nop 0")
    k.e("v_readfirstlane_b32 s%d, v%d" % (sW, vT0))
    k.e("s_and_b32 s34, s2, 7")
    k.e("s_lshr_b32 s35, s2, 3")
    k.e("s_lshl_b32 s38, s34, 2")
    k.e("s_and_b32 s36, s35, 3")
    k.e("s_add_u32 s38, s38, s36")
    k.e("s_lshr_b32 s37, s35, 2")
    k.e("s_lshl_b32 s%d, s%d, 10" % (sW1024, sW))
    k.e("s_and_b32 s44, s%d, 3" % sW)
    k.e("s_lshl_b32 s%d, s44, 8" % sW256)
    k.e("s_lshr_b32 s45, s%d, 2" % sW)
    k.e("s_mul_i32 s45, s45, 9216")
    k.e("s_add_u32 s%d, s%d, s45" % (sW256, sW256))
    k.e("v_lshrrev_b32 v%d, 2, v%d" % (vT0, vLane))
    k.e("s_lshl_b32 s%d, s%d, 4" % (sTmp, sW))
    k.e("v_add_u32 v%d, s%d, v%d" % (vT0, sTmp, vT0))
    k.e("v_lshrrev_b32 v%d, 2, v%d" % (vT1, vT0))
    k.e("v_sub_u32 v%d, 0, v%d" % (vT1, vT1))
    k.e("v_xor_b32 v%d, v%d, v%d" % (vT1, vT1, vLane))
    k.e("v_and_b32 v%d, 3, v%d" % (vT1, vT1))
    k.e("v_mul_u32_u24 v%d, 1152, v%d" % (vDN, vT0))
    k.e("v_lshl_add_u32 v%d, v%d, 4, v%d" % (vDN, vT1, vDN))
    T5 = (vT0, vT1, vT2, vT3, vT4)
    k.e("s_lshl_b32 s%d, s%d, 6" % (sTmp, sW))
    tr_voff(k, vDM[0], sTmp, vLane, T5, 9216, 0x13)
    k.e("s_lshl_b32 s%d, s44, 4" % sTmp)
    k.e("s_add_u32 s%d, s%d, 512" % (sTmp, sTmp))
    tr_voff(k, vDM[1], sTmp, vLane, T5, 9216, 0x13)
    k.e("s_mov_b32 s%d, 0" % sKN)
    k.e("s_mov_b32 s%d, 0" % sKM)
    k.e("s_waitcnt lgkmcnt(0)")
    k.e("s_mul_i32 s44, s37, %d" % (256 * 1152))
    srd(k, SRN, 4, xn, 44, xn + XB)
    k.e("s_mul_i32 s44, s38, 288")
    srd(k, SRM[0], 8, 0, 44, D * F * 2)
    srd(k, SRM[1], 10, 0, 44, D * F * 2)
    k.e("s_cmp_lt_u32 s%d, 4" % sW)
    for x in range(3):
        k.e("s_cselect_b32 s%d, s%d, s%d" % (SRQ + x, SRM[0] + x, SRM[1] + x))
    k.e("s_mov_b32 s%d, 0x20000" % (SRQ + 3))

    def dma_n(stage):
        tag = "D%d" % stage
        base = (stage % NBUF) * STB
        return [(tag, ["s_add_u32 m0, s%d, 0x%x" % (sW1024, base), "s_nop 0",
                       "buffer_load_dwordx4 v%d, %s, s%d offen lds" % (vDN, sr(SRN), sKN)]),
                (tag, ["s_add_u32 m0, s%d, 0x%x" % (sW1024, base + 8192), "s_add_u32 s%d, s%d, 0x%x" % (sTmp, sKN, 128 * 1152),
                       "buffer_load_dwordx4 v%d, %s, s%d offen lds" % (vDN, sr(SRN), sTmp),
                       "s_add_u32 s%d, s%d, 64" % (sKN, sKN)])]

    def dma_m(stage):
        tag = "D%d" % stage
        base = (stage % NBUF) * STB
        P = []
        for mat in range(2):
            P.append((tag, ["s_add_u32 m0, s%d, 0x%x" % (sW1024, base + NTB + mat * 9216), "s_nop 0",
                            "buffer_load_dwordx4 v%d, %s, s%d offen lds" % (vDM[0], sr(SRM[mat]), sKM)]))
        P.append((tag, ["s_add_u32 m0, s%d, 0x%x" % (sW256, base + NTB + 8192), "s_mov_b64 exec, 0xffff",
                        "buffer_load_dwordx4 v%d, %s, s%d offen lds" % (vDM[1], sr(SRQ), sKM),
                        "s_mov_b64 exec, -1",
                        "s_add_u32 s%d, s%d, 0x%x" % (sKM, sKM, 32 * 9216)]))
        return P

    def dma(stage):
        return dma_n(stage) + dma_m(stage)

    def emit(P):
        for tag, L in P:
            for x in L:
                k.e(x, tag)

    if dep is None:
        for stg in range(NBUF):
            emit(dma(stg))
    else:
        if dep == 'pre':
            for stg in range(NBUF):
                emit(dma_m(stg))
            raise PreDone()
        if PRE:
            k.e("s_mov_b32 s%d, 0x%x" % (sKM, NBUF * 32 * 9216))
        elif not POLLF:
            for stg in range(NBUF):
                emit(dma_m(stg))
        elif POLLF == 2:
            emit(dma_m(0))
        k.e("s_lshl_b32 s44, s37, 5")
        k.e("v_add_u32 v%d, s44, v%d" % (vT0, vLane))
        wait_flags(k, dep, 32, vT0, vT1)
        for stg in range(NBUF):
            emit(dma_n(stg))
            if POLLF and not PRE and not (POLLF == 2 and stg == 0):
                emit(dma_m(stg))
    for n, (ka, nb_) in enumerate(pf):
        srd(k, 56 + 4 * n, 56 + 4 * n, 0, None, nb_)
    k.e("v_and_b32 v%d, 15, v%d" % (vT0, vLane))
    k.e("v_lshrrev_b32 v%d, 4, v%d" % (vT1, vLane))
    k.e("v_lshrrev_b32 v%d, 2, v%d" % (vT2, vT0))
    k.e("v_sub_u32 v%d, 0, v%d" % (vT2, vT2))
    k.e("v_xor_b32 v%d, v%d, v%d" % (vT2, vT2, vT1))
    k.e("v_and_b32 v%d, 3, v%d" % (vT2, vT2))
    k.e("v_lshlrev_b32 v%d, 4, v%d" % (vT2, vT2))
    k.e("v_lshl_add_u32 v%d, v%d, 6, v%d" % (vT2, vT0, vT2))
    k.e("s_and_b32 s%d, s%d, 3" % (sTmp, sW))
    k.e("s_lshl_b32 s%d, s%d, 12" % (sTmp, sTmp))
    k.e("v_add_u32 v%d, s%d, v%d" % (vT3, sTmp, vT2))
    for b in range(NBUF):
        k.e("v_add_u32 v%d, 0x%x, v%d" % (vRN[b], b * STB, vT3))
    tr_raddr(k, vT2, vLane, vT3)
    for b in range(NBUF):
        k.e("v_add_u32 v%d, 0x%x, v%d" % (vRM[b], b * STB + NTB, vT2))
    k.e("s_lshl_b32 s44, s37, 3")
    k.e("s_and_b32 s46, s%d, 3" % sW)
    k.e("s_lshl_b32 s46, s46, 1")
    k.e("s_add_u32 s44, s44, s46")
    k.e("s_mul_i32 s44, s44, 288")
    k.e("s_mul_i32 s46, s38, 9")
    k.e("s_add_u32 s44, s44, s46")
    k.e("s_lshl_b32 s44, s44, 10")
    srd(k, SRO, 4, h, 44, h + HB)
    k.e("v_lshlrev_b32 v%d, 4, v%d" % (vO, vLane))
    k.e("s_mov_b32 s46, 0x%08x" % f32bits(-1.4426950408889634))
    k.e("s_mov_b32 s47, s46")
    stamp(k, 1)
    k.vneed("D0")
    k.e("s_barrier")
    stamp(k, 2)
    ljoin = k.newlabel("LJ")
    lg1 = k.newlabel("LG")
    k.e("s_cmp_ge_u32 s%d, 4" % sW)
    k.e("s_cbranch_scc1 %s" % lg1)
    vm_save = list(k.vm)
    for gi, js in enumerate((list(range(5)), list(range(5, 9)))):
        if gi:
            k.label(lg1)
            k.vm = list(vm_save)
        tiles = [(m, j) for j in js for m in range(2)]
        vA = {(t, i): vAbase + 4 * (ti * NFR + i) for ti, t in enumerate(tiles) for i in range(NFR)}

        def rd_m(stg, ks, t, reg, tag):
            o = t[0] * 9216 + t[1] * 32
            k.lds("ds_read_b64_tr_b16 %s, v%d offset:%d" % (vr(reg, 2), vRM[stg % NBUF], o), tag)
            k.lds("ds_read_b64_tr_b16 %s, v%d offset:%d" % (vr(reg + 2, 2), vRM[stg % NBUF], o + 2304), tag)

        def rd_n(stg, ks, i, reg, tag):
            k.lds("ds_read_b128 %s, v%d offset:%d" % (vr(reg), vRN[stg % NBUF], i * 1024), tag)

        Wg = min(W, len(tiles))
        engine(k, tiles, NFR, KS, NS, NBUF, Wg, 2, int(OPT.get('delta', 2)), rd_m, rd_n, dma,
               lambda t, tl, i: vA[(tl, i)], lambda t, ks: t == 0, vM, vN, sLoop)
        k.e("s_nop 7")
        k.e("s_nop 3")
        stamp(k, 3)
        if nxt_phase and PRE:
            k.e("s_barrier")
            pre_issue(k, nxt_phase, 40)
        TB = 20
        n = 0
        for pr in range(2):
            for jn, j in enumerate(js):
                o = TB + 4 * (n % 4)
                n += 1
                for i in range(2):
                    g = vA[((0, j), 2 * pr + i)]
                    u_ = vA[((1, j), 2 * pr + i)]
                    if OPT.get('nosig'):
                        pass
                    elif int(OPT.get('pk', 0)):
                        for r in (0, 2):
                            k.e("v_pk_mul_f32 %s, %s, s[46:47]" % (vr(g + r, 2), vr(g + r, 2)))
                        for r in range(4):
                            k.e("v_exp_f32 v%d, v%d" % (g + r, g + r))
                        for r in (0, 2):
                            k.e("v_pk_add_f32 %s, %s, 1.0 op_sel_hi:[1,0]" % (vr(g + r, 2), vr(g + r, 2)))
                        for r in range(4):
                            k.e("v_rcp_f32 v%d, v%d" % (g + r, g + r))
                        k.e("s_nop 0")
                        for r in (0, 2):
                            k.e("v_pk_mul_f32 %s, %s, %s" % (vr(g + r, 2), vr(g + r, 2), vr(u_ + r, 2)))
                    else:
                        for r in range(4):
                            k.e("v_mul_f32 v%d, s46, v%d" % (g + r, g + r))
                        for r in range(4):
                            k.e("v_exp_f32 v%d, v%d" % (g + r, g + r))
                        for r in range(4):
                            k.e("v_add_f32 v%d, 1.0, v%d" % (g + r, g + r))
                        for r in range(4):
                            k.e("v_rcp_f32 v%d, v%d" % (g + r, g + r))
                        for r in range(4):
                            k.e("v_mul_f32 v%d, v%d, v%d" % (g + r, g + r, u_ + r))
                    k.e("v_cvt_pk_bf16_f32 v%d, v%d, v%d" % (o + 2 * i, g, g + 1))
                    k.e("v_cvt_pk_bf16_f32 v%d, v%d, v%d" % (o + 2 * i + 1, g + 2, g + 3))
                if jn % 4 == 0:
                    k.e("s_mov_b32 s%d, %d" % (sTmp, (pr * 288 + j) * 1024))
                else:
                    k.e("s_nop 0")
                k.e("s_nop 0")
                k.e("v_permlane16_swap_b32 v%d, v%d" % (o, o + 2))
                k.e("v_permlane16_swap_b32 v%d, v%d" % (o + 1, o + 3))
                k.e("s_nop 0")
                if not OPT.get('nohst'):
                    k.e("buffer_store_dwordx4 %s, v%d, %s, s%d offen offset:%d%s" % (vr(o), vO, sr(SRO), sTmp, (jn % 4) * 1024, OPT.get('hflag', '').replace('_', ' ')))
        if gi == 0:
            k.e("s_branch %s" % ljoin)
    k.label(ljoin)
    stamp(k, 4)
    stamp_store(k, kidx)
    if pub is not None:
        k.e("s_lshl_b32 s44, s37, 5")
        k.e("s_add_u32 s44, s44, s38")
        publish(k, pub, 44, sW)
    return nvgpr, NBUF * STB


def main():
    phases = [
        lambda k, d, p, nx: gen_gemm(k, 'A1L', None, 0, ab=WS_AB, dep=d, pub=p, nxt_phase=nx),
        lambda k, d, p, nx: gen_gemm(k, 'A2', (0, ('in', KA_X), ('ws', WS_X1), True), 1, xn=WS_XN, ab=WS_AB, dep=d, pub=p, nxt_phase=nx),
        lambda k, d, p, nx: gen_b1(k, 2, xn=WS_XN, h=WS_H, dep=d, pub=p, nxt_phase=nx),
        lambda k, d, p, nx: gen_gemm(k, 'B2', (1, ('ws', WS_X1), ('ws', WS_X2), True), 3, xn=WS_XNB, h=WS_H, dep=d, pub=p, nxt_phase=nx),
        lambda k, d, p, nx: gen_gemm(k, 'A1', None, 4, xn=WS_XNB, ab=WS_AB2, dep=d, pub=p, nxt_phase=nx),
        lambda k, d, p, nx: gen_gemm(k, 'A2', (2, ('ws', WS_X2), ('ws', WS_X3), True), 5, xn=WS_XNC, ab=WS_AB2, dep=d, pub=p, nxt_phase=nx),
        lambda k, d, p, nx: gen_b1(k, 6, xn=WS_XNC, h=WS_H2, dep=d, pub=p, nxt_phase=nx),
        lambda k, d, p, nx: gen_gemm(k, 'B2', (3, ('ws', WS_X3), ('out', 0), False), 7, h=WS_H2, dep=d, pub=p, nxt_phase=nx),
    ]
    grouping = [[int(c) for c in g] for g in OPT.get('merge', '01234567').split('-')]
    ks = {}
    order = []
    for gi, g in enumerate(grouping):
        name = MAIN + "_kernel" if gi == 0 else "p%s_kernel" % "".join(str(x) for x in g)
        k = K(name)
        header(k, 256)
        nv, lds = 0, 0
        for n, ph in enumerate(g):
            a, b = phases[ph](k, (ph - 1) if n else None, ph if n + 1 < len(g) else None, phases[ph + 1] if n + 1 < len(g) else None)
            nv, lds = max(nv, a), max(lds, b)
        footer(k, nv, 102)
        ks[name] = (k, 256, 512, lds)
        order.append(name)
    out = ["; FNet (DFT matmul) + GLU interleaved layers; generated by gen3.py"]
    for n in order:
        kk, nwg, blk, lds = ks[n]
        out.append("; @launch kernel=%s grid=(%d,1,1) block=(%d,1,1) lds=%d" % (kk.name, nwg, blk, lds))
    out.append('.amdgcn_target "amdgcn-amd-amdhsa--gfx950"')
    out.append(".text")
    for n, (kk, nwg, blk, lds) in ks.items():
        out.append(".globl %s" % kk.name)
        out += kk.lines
    open(sys.argv[1] if len(sys.argv) > 1 else "cdna_kernels/%s.s" % MAIN, "w").write("\n".join(out) + "\n")


if __name__ == "__main__":
    main()
```

```python
import sys, os, struct
OPT = dict(x.split('=') for x in os.environ.get('GENOPT', '').split(',') if x)
STAMP = int(OPT.get('stamp', 0))
PF = int(OPT.get('pf', 0))
STF = {'': '', 'sc1': ' sc1', 'nt': ' nt', 'sc01': ' sc0 sc1'}[OPT.get('stf', 'sc01')]
XF = {'sc1': ' sc1', 'sc01': ' sc0 sc1'}[OPT.get('xf', 'sc01')]

LF = {'x': XF, 'p': '', 'sc1': ' sc1', 'nt': ' nt'}[OPT.get('lf', 'x')]
PRE = int(OPT.get('pre', 0))
POLLF = int(OPT.get('pollf', 0))
MAIN = "interleave_layers__spectral_fnet__glu_gated_glu__prompt"
S, D, F = 2048, 576, 4608
KA_X, KA_CR, KA_CI, KA_WR, KA_WI, KA_BX, KA_WG, KA_WU, KA_WD, KA_OUT, KA_DBG, KA_WS = [8 * i for i in range(12)]
WS_XN = 0x0000000
WS_X1 = 0x0400000
WS_X2 = 0x0800000
WS_AB = 0x0C00000
WS_XNB = 0x2000000
WS_XNC = 0x2400000
WS_X3 = 0x2800000
WS_AB2 = 0x5800000
WS_H2 = 0x4400000
WS_FL = 0x1200000
WS_P = 0x1400000
WS_P2 = 0x1E00000
WS_H = 0x3000000
HB = S * F * 2
WS_DBG = 0x8000000
XB = S * D * 2
MTB = 18432


def f32bits(x):
    return struct.unpack("<I", struct.pack("<f", x))[0]


class K:
    def __init__(self, name):
        self.name = name
        self.lines = []
        self.pend = []
        self.vm = []
        self.nlab = 0

    def e(self, s, vtag=None):
        if s.startswith('buffer_store') and ' sc' not in s:
            s += STF
        if s.startswith('buffer_') or s.startswith('global_'):
            self.vm.append(vtag)
        self.lines.append("    " + s)

    def label(self, l):
        self.lines.append(l + ":")

    def newlabel(self, p="L"):
        self.nlab += 1
        return "%s_%s_%d" % (p, self.name[-12:], self.nlab)

    def lds(self, s, tag):
        if OPT.get('nolds') and tag[0] in OPT.get('nolds'):
            return
        if len(self.pend) >= 15:
            self.e("s_waitcnt lgkmcnt(13)")
            self.pend = self.pend[-13:]
        self.e(s)
        self.pend.append(tag)

    def need(self, *tags):
        idx = -1
        for i, p in enumerate(self.pend):
            if p in tags:
                idx = i
        if idx < 0:
            return
        n = min(len(self.pend) - 1 - idx, 14)
        self.e("s_waitcnt lgkmcnt(%d)" % n)
        self.pend = self.pend[len(self.pend) - n:] if n else []

    def vneed(self, tag, lgkm0=False):
        idx = -1
        for i, p in enumerate(self.vm):
            if p == tag:
                idx = i
        extra = " lgkmcnt(0)" if lgkm0 else ""
        if lgkm0:
            self.pend = []
        if idx < 0:
            if lgkm0:
                self.e("s_waitcnt lgkmcnt(0)")
            return
        n = len(self.vm) - 1 - idx
        assert n < 63
        self.e("s_waitcnt vmcnt(%d)%s" % (n, extra))
        self.vm = self.vm[len(self.vm) - n:] if n else []

    def vm0(self):
        self.e("s_waitcnt vmcnt(0)")
        self.vm = []


def vr(b, n=4):
    return "v[%d:%d]" % (b, b + n - 1)


def sr(b, n=4):
    return "s[%d:%d]" % (b, b + n - 1)


def header(k, nwg):
    k.lines.append(".p2align 8")
    k.lines.append(".type %s,@function" % k.name)
    k.label(k.name)
    k.e("s_cmp_ge_u32 s2, %d" % nwg)
    k.e("s_cbranch_scc1 L_end_%s" % k.name)


def footer(k, nvgpr, nsgpr=64):
    k.label("L_end_%s" % k.name)
    k.e("s_endpgm")
    acc = (nvgpr + 3) // 4 * 4
    k.lines.append(""".section .rodata,"a"
.p2align 6
.amdhsa_kernel %s
  .amdhsa_next_free_vgpr %d
  .amdhsa_next_free_sgpr %d
  .amdhsa_accum_offset %d
  .amdhsa_group_segment_fixed_size 0
  .amdhsa_kernarg_size 96
  .amdhsa_user_sgpr_count 2
  .amdhsa_user_sgpr_kernarg_segment_ptr 1
  .amdhsa_system_sgpr_workgroup_id_x 1
.end_amdhsa_kernel
.text""" % (k.name, nvgpr, nsgpr, acc))


def srd(k, d, pbase, off_const, off_sgpr, total):
    k.e("s_add_u32 s%d, s%d, 0x%x" % (d, pbase, off_const))
    k.e("s_addc_u32 s%d, s%d, 0" % (d + 1, pbase + 1))
    if off_sgpr is None:
        k.e("s_mov_b32 s%d, 0x%x" % (d + 2, total - off_const))
    else:
        k.e("s_add_u32 s%d, s%d, s%d" % (d, d, off_sgpr))
        k.e("s_addc_u32 s%d, s%d, 0" % (d + 1, d + 1))
        k.e("s_sub_u32 s%d, 0x%x, s%d" % (d + 2, total - off_const, off_sgpr))
    k.e("s_and_b32 s%d, s%d, 0xffff" % (d + 1, d + 1))
    k.e("s_mov_b32 s%d, 0x20000" % (d + 3))


SB = 76


def stamp(k, idx, real=0):
    if not STAMP or (STAMP == 2 and not real):
        return
    if OPT.get('pst') and idx in (4, 5, 6) and getattr(k, 'st%d' % idx, False):
        return
    if OPT.get('pst') and idx == 4:
        return
    setattr(k, 'st%d' % idx, True)
    k.e("s_memtime s[%d:%d]" % (SB + 2 * idx, SB + 1 + 2 * idx))
    if real:
        k.e("s_memrealtime s[%d:%d]" % (SB + 16 + 2 * real - 2, SB + 17 + 2 * real - 2))
    k.e("s_waitcnt lgkmcnt(0)")
    k.pend = []


def stamp_store(k, kidx):
    if not STAMP:
        return
    k.vm0()
    stamp(k, 7, 2)
    if STAMP == 2:
        k.e("s_cmp_lg_u32 s2, 100")
        k.e("s_cbranch_scc1 L_end_%s" % k.name)
        k.e("s_load_dwordx2 s[24:25], s[0:1], %d" % KA_DBG)
        k.e("s_waitcnt lgkmcnt(0)")
        k.e("s_add_u32 s24, s24, %d" % ((7 - kidx) * 512 + kidx * 8))
        k.e("s_addc_u32 s25, s25, 0")
        k.e("s_and_b32 s25, s25, 0xffff")
        k.e("s_mov_b32 s26, 8")
        k.e("s_mov_b32 s27, 0x20000")
        k.e("v_cmp_eq_u32 vcc, 0, v0")
        k.e("s_and_saveexec_b64 s[46:47], vcc")
        k.e("s_cbranch_execz L_end_%s" % k.name)
        k.e("v_mov_b32 v1, 0")
        k.e("v_mov_b32 v2, s%d" % (SB + 16))
        k.e("v_mov_b32 v3, s%d" % (SB + 18))
        k.e("buffer_store_dwordx2 v[2:3], v1, s[24:27], 0 offen")
        return
    k.e("s_lshl_b32 s44, s2, 7")
    k.e("s_add_u32 s44, s44, 0x%x" % (kidx * 65536))
    srd(k, 24, 4, WS_DBG, 44, WS_DBG + 16 * 65536)
    lsk = k.newlabel("LSS")
    k.e("v_cmp_eq_u32 vcc, 0, v0")
    k.e("s_and_saveexec_b64 s[46:47], vcc")
    k.e("s_cbranch_execz %s" % lsk)
    k.e("v_mov_b32 v1, 0")
    for i in range(10):
        k.e("v_mov_b32 v2, s%d" % (SB + 2 * i))
        k.e("v_mov_b32 v3, s%d" % (SB + 1 + 2 * i))
        k.e("buffer_store_dwordx2 v[2:3], v1, s[24:27], 0 offen offset:%d" % (8 * i))
        k.e("s_nop 1")
    k.label(lsk)
    k.e("s_mov_b64 exec, -1")
    k.vm0()


import re as _re


def remap_line(line, vb, sb=52):
    def rv(m):
        n = int(m.group(1))
        return "v%d" % (n + vb if n else 0)

    def rvr(m):
        return "v[%d:%d]" % (int(m.group(1)) + vb, int(m.group(2)) + vb)

    def rs(m):
        n = int(m.group(1))
        return "s%d" % (n + sb if n >= 6 else n)

    def rsr(m):
        a, b = int(m.group(1)), int(m.group(2))
        return "s[%d:%d]" % ((a + sb, b + sb) if a >= 6 else (a, b))
    line = _re.sub(r"\bv\[(\d+):(\d+)\]", rvr, line)
    line = _re.sub(r"\bv(\d+)\b", rv, line)
    line = _re.sub(r"\bs\[(\d+):(\d+)\]", rsr, line)
    line = _re.sub(r"\bs(\d+)\b", rs, line)
    return line


class PreDone(Exception):
    pass


def pre_issue(k, phase, vb):
    t = K(k.name)
    t.nlab = k.nlab + 1000
    try:
        phase(t, 'pre', None, None)
    except PreDone:
        pass
    k.nlab = t.nlab
    for l in t.lines:
        if l.strip().startswith(("s_load_dwordx2 s[4:5]", "s_load_dwordx2 s[48:49]", "s_load_dwordx2 s[50:51]")):
            continue
        k.lines.append(remap_line(l, vb))
    k.vm += ["PRE"] * len(t.vm)
    k.pend = []


def publish(k, farr, sIdx, sW):
    k.vm0()
    k.e("s_barrier")
    lsk = k.newlabel("LPB")
    k.e("s_cmp_lg_u32 s%d, 0" % sW)
    k.e("s_cbranch_scc1 %s" % lsk)
    if farr == 0:
        k.e("s_load_dwordx2 s[72:73], s[0:1], %d" % KA_DBG)
        k.e("s_waitcnt lgkmcnt(0)")
        srd(k, 72, 72, 0, None, 256)
        k.e("s_mov_b64 exec, 1")
        k.e("s_and_b32 s46, s2, 7")
        k.e("s_lshl_b32 s46, s46, 5")
        k.e("v_mov_b32 v2, s46")
        k.e("v_mov_b32 v3, 1")
        k.e("buffer_atomic_add v3, v2, s[72:75], 0 offen sc1")
    else:
        srd(k, 72, 4, WS_FL + farr * 1024, None, WS_FL + 8192)
        k.e("s_mov_b64 exec, 1")
        k.e("s_lshl_b32 s46, s%d, 2" % sIdx)
        k.e("v_mov_b32 v2, s46")
        k.e("v_mov_b32 v3, 1")
        k.e("buffer_store_dword v3, v2, s[72:75], 0 offen" + XF)
    k.e("s_mov_b64 exec, -1")
    k.label(lsk)
    k.vm = ["F"]


def wait_flags(k, farr, nl, vIdx, vT, sW=28):
    one = int(OPT.get('w1poll', 1))
    slp = int(OPT.get('fsleep', 0))
    lsk = k.newlabel("LFS")
    if one:
        k.e("s_cmp_lg_u32 s%d, 0" % sW)
        k.e("s_cbranch_scc1 %s" % lsk)
    vm_keep = list(k.vm)
    want = 1
    if farr == 0:
        k.e("s_load_dwordx2 s[72:73], s[0:1], %d" % KA_DBG)
        k.e("s_waitcnt lgkmcnt(0)")
        srd(k, 72, 72, 0, None, 256)
        k.e("v_and_b32 v%d, 63, v0" % vIdx)
        k.e("v_lshlrev_b32 v%d, 3, v%d" % (vIdx, vIdx))
        nl, want = 8, 32
    else:
        srd(k, 72, 4, WS_FL + farr * 1024, None, WS_FL + 8192)
    lp = k.newlabel("LFW")
    ld = k.newlabel("LFD")
    k.e("v_lshlrev_b32 v%d, 2, v%d" % (vIdx, vIdx))
    if nl < 64:
        k.e("s_mov_b64 exec, 0x%x" % ((1 << nl) - 1))
    k.e("s_mov_b32 s45, 0")
    k.label(lp)
    if slp:
        k.e("s_sleep %d" % slp)
    k.e("buffer_load_dword v%d, v%d, s[72:75], 0 offen%s" % (vT, vIdx, XF))
    k.vm0()
    k.e("v_cmp_ne_u32 vcc, %d, v%d" % (want, vT))
    k.e("s_nop 3")
    k.e("s_cmp_eq_u64 vcc, 0")
    k.e("s_cbranch_scc1 %s" % ld)
    k.e("s_add_u32 s45, s45, 1")
    k.e("s_cmp_lt_u32 s45, 0x100000")
    k.e("s_cbranch_scc1 %s" % lp)
    k.label(ld)
    k.e("s_mov_b64 exec, -1")
    if one:
        k.label(lsk)
        k.e("s_barrier")
        k.vm = vm_keep


def pf2_loads(k, items):
    for n, (ka, nb_) in enumerate(items):
        k.e("s_load_dwordx2 s[%d:%d], s[0:1], %d" % (56 + 2 * n, 57 + 2 * n, ka))


def pf2_setup(k, items, sW, vLane, vA_):
    stride = int(OPT.get('pfs', 128))
    ch = 64 * stride
    k.e("s_lshl_b32 s64, s2, 3")
    k.e("s_add_u32 s64, s64, s%d" % sW)
    k.e("s_mul_i32 s64, s64, %d" % ch)
    k.e("s_mov_b32 s60, s56")
    k.e("s_mov_b32 s61, s57")
    k.e("s_mov_b32 s62, 0x%x" % items[0][1])
    if len(items) == 2:
        lim = (items[0][1] + ch - 1) // ch * ch
        k.e("s_cmp_ge_u32 s64, 0x%x" % lim)
        k.e("s_cselect_b32 s60, s58, s60")
        k.e("s_cselect_b32 s61, s59, s61")
        k.e("s_cselect_b32 s65, 0x%x, 0" % lim)
        k.e("s_sub_u32 s64, s64, s65")
    k.e("s_and_b32 s61, s61, 0xffff")
    k.e("s_mov_b32 s63, 0x20000")
    k.e("v_mul_u32_u24 v%d, %d, v%d" % (vA_, stride, vLane))
    k.e("v_add_u32 v%d, s64, v%d" % (vA_, vA_))


def code_prefetch(k, sW, vLane, vA_, vD, SR, sTmp):
    if not int(OPT.get('cpf', 0)):
        return
    lab = k.newlabel("LPC")
    k.e("s_getpc_b64 s[%d:%d]" % (SR, SR + 1))
    k.label(lab)
    k.e("s_sub_u32 s%d, s%d, %s-%s" % (SR, SR, lab, k.name))
    k.e("s_subb_u32 s%d, s%d, 0" % (SR + 1, SR + 1))
    k.e("s_and_b32 s%d, s%d, 0xffff" % (SR + 1, SR + 1))
    k.e("s_mov_b32 s%d, L_end_%s-%s" % (SR + 2, k.name, k.name))
    k.e("s_mov_b32 s%d, 0x20000" % (SR + 3))
    k.e("s_lshl_b32 s%d, s%d, 13" % (sTmp, sW))
    k.e("v_lshl_add_u32 v%d, v%d, 7, s%d" % (vA_, vLane, sTmp))
    k.e("buffer_load_dword v%d, v%d, %s, 0 offen" % (vD, vA_, sr(SR)), "C")


def wave_sum(k, v, sbase):
    for ctl in ("quad_perm:[1,0,3,2]", "quad_perm:[2,3,0,1]", "row_half_mirror", "row_mirror"):
        k.e("s_nop 1")
        k.e("v_add_f32_dpp %s, %s, %s %s row_mask:0xf bank_mask:0xf" % (v, v, v, ctl))
    k.e("s_nop 1")
    for i in range(4):
        k.e("v_readlane_b32 s%d, %s, %d" % (sbase + i, v, 16 * i))
    k.e("s_nop 1")
    k.e("v_mov_b32 %s, s%d" % (v, sbase))
    for i in range(1, 4):
        k.e("v_add_f32 %s, s%d, %s" % (v, sbase + i, v))


def r_body(k, vrow, vlane, ysrc, has_xout, ln, SX, SO, SN, hook=None):
    k.e("v_mul_u32_u24 v4, 1152, v%d" % vrow)
    k.e("v_lshl_add_u32 v7, v%d, 3, v4" % vlane)
    k.e("v_lshl_add_u32 v8, v%d, 1, v4" % vlane)
    k.e("buffer_load_dwordx2 v[10:11], v7, %s, 0 offen" % sr(SX), "X")
    k.e("buffer_load_dwordx2 v[12:13], v7, %s, 0 offen offset:512" % sr(SX), "X")
    k.e("buffer_load_ushort v14, v8, %s, 0 offen offset:1024" % sr(SX), "X")
    if hook:
        hook()
    X = 30
    A = 16
    if ysrc:
        ysrc()
    k.vneed("X")
    for i, src in enumerate([10, 11, 12, 13]):
        k.e("v_lshlrev_b32 v%d, 16, v%d" % (X + 2 * i, src))
        k.e("v_and_b32 v%d, 0xffff0000, v%d" % (X + 2 * i + 1, src))
    k.e("v_lshlrev_b32 v%d, 16, v14" % (X + 8))
    if ysrc:
        for e in range(9):
            k.e("v_add_f32 v%d, v%d, v%d" % (X + e, X + e, A + e))
        for i in range(4):
            k.e("v_cvt_pk_bf16_f32 v%d, v%d, v%d" % (10 + i, X + 2 * i, X + 2 * i + 1))
        k.e("v_cvt_pk_bf16_f32 v14, v%d, v%d" % (X + 8, X + 8))
        if has_xout:
            k.e("buffer_store_dwordx2 v[10:11], v7, %s, 0 offen" % sr(SO))
            k.e("buffer_store_dwordx2 v[12:13], v7, %s, 0 offen offset:512" % sr(SO))
            k.e("buffer_store_short v14, v8, %s, 0 offen offset:1024" % sr(SO))
        if ln:
            for i, src in enumerate([10, 11, 12, 13]):
                k.e("v_lshlrev_b32 v%d, 16, v%d" % (X + 2 * i, src))
                k.e("v_and_b32 v%d, 0xffff0000, v%d" % (X + 2 * i + 1, src))
            k.e("v_lshlrev_b32 v%d, 16, v14" % (X + 8))
    if ln:
        k.e("v_add_f32 v20, v%d, v%d" % (X, X + 1))
        k.e("v_add_f32 v21, v%d, v%d" % (X + 2, X + 3))
        k.e("v_add_f32 v22, v%d, v%d" % (X + 4, X + 5))
        k.e("v_add_f32 v23, v%d, v%d" % (X + 6, X + 7))
        k.e("v_add_f32 v20, v20, v21")
        k.e("v_add_f32 v22, v22, v23")
        k.e("v_add_f32 v20, v20, v%d" % (X + 8))
        k.e("v_add_f32 v20, v20, v22")
        wave_sum(k, "v20", 32)
        k.e("v_mul_f32 v20, 0x%08x, v20" % f32bits(1.0 / D))
        for e in range(9):
            k.e("v_sub_f32 v%d, v%d, v20" % (X + e, X + e))
        k.e("v_mul_f32 v21, v%d, v%d" % (X, X))
        k.e("v_mul_f32 v22, v%d, v%d" % (X + 1, X + 1))
        for e in range(2, 9):
            k.e("v_fmac_f32 v%d, v%d, v%d" % (21 + (e & 1), X + e, X + e))
        k.e("v_add_f32 v21, v21, v22")
        wave_sum(k, "v21", 32)
        k.e("v_mov_b32 v22, 0x%08x" % f32bits(1e-5))
        k.e("v_fmac_f32 v22, 0x%08x, v21" % f32bits(1.0 / D))
        k.e("v_rsq_f32 v22, v22")
        k.e("s_nop 0")
        for e in range(9):
            k.e("v_mul_f32 v%d, v%d, v22" % (X + e, X + e))
        for i in range(4):
            k.e("v_cvt_pk_bf16_f32 v%d, v%d, v%d" % (24 + i, X + 2 * i, X + 2 * i + 1))
        k.e("v_cvt_pk_bf16_f32 v28, v%d, v%d" % (X + 8, X + 8))
        k.e("buffer_store_dwordx2 v[24:25], v7, %s, 0 offen" % sr(SN))
        k.e("buffer_store_dwordx2 v[26:27], v7, %s, 0 offen offset:512" % sr(SN))
        k.e("buffer_store_short v28, v8, %s, 0 offen offset:1024" % sr(SN))


def gen_r0(name):
    k = K(name)
    nwg = S // 4
    header(k, nwg)
    k.e("s_load_dwordx2 s[4:5], s[0:1], %d" % KA_WS)
    k.e("s_load_dwordx2 s[6:7], s[0:1], %d" % KA_X)
    pf = [(KA_WR, D * D * 2), (KA_WI, D * D * 2), (KA_CR, S * S * 2), (KA_CI, S * S * 2)] if PF else []
    for n, (ka, nb_) in enumerate(pf):
        k.e("s_load_dwordx2 s[%d:%d], s[0:1], %d" % (40 + 4 * n, 41 + 4 * n, ka))
    k.e("v_lshrrev_b32 v1, 6, v0")
    k.e("v_and_b32 v2, 63, v0")
    k.e("s_lshl_b32 s3, s2, 2")
    k.e("v_add_u32 v1, s3, v1")
    k.e("s_waitcnt lgkmcnt(0)")
    srd(k, 12, 6, 0, None, XB)
    srd(k, 24, 4, WS_XN, None, WS_XN + XB)
    for n, (ka, nb_) in enumerate(pf):
        srd(k, 40 + 4 * n, 40 + 4 * n, 0, None, nb_)
    k.e("s_mul_i32 s3, s2, 18432")
    srd(k, 16, 4, WS_P, 3, WS_P + 4 * XB)
    k.e("s_mov_b32 s18, 18432")
    k.e("v_lshrrev_b32 v3, 6, v0")
    k.e("v_mul_u32_u24 v3, 5120, v3")
    k.e("v_lshl_add_u32 v3, v2, 4, v3")
    for r in range(4):
        k.e("v_mov_b32 v%d, 0" % (36 + r))
    for n in range(4):
        k.e("buffer_store_dwordx4 v[36:39], v3, s[16:19], 0 offen offset:%d" % (n * 1024))
    k.e("s_mov_b32 s3, 4096")
    k.e("buffer_store_dwordx4 v[36:39], v3, s[16:19], s3 offen")

    def hook():
        if pf:
            k.e("v_lshlrev_b32 v42, 12, v1")
            k.e("v_lshl_add_u32 v42, v2, 6, v42")
            for n in range(len(pf)):
                k.e("buffer_load_dword v43, v42, %s, 0 offen" % sr(40 + 4 * n))
    r_body(k, 1, 2, None, False, True, 12, None, 24, hook=hook)
    footer(k, 44, 60)
    return k, nwg, 256, 0


def engine(k, tiles, NFR, KS, NS, NBUF, W, NSET, DELTA, rd_m, rd_n, dma, acc, first, vM, vN, sLoop,
           n_static=False, after_use=None, after_last_dma=None, npre=None, stage_extra=None):
    nt = len(tiles)
    UPS = KS * nt
    total = NS * UPS
    NSL = W
    W = W - int(OPT.get('lag', 2))
    st = {'nrM': 0, 'nrN': 0, 'pub': 0, 'ald': False}
    k.pend = []

    BUD = int(OPT.get('bud', 3))

    def pump(udone, maxm=2):
        bud = BUD if maxm < 50 else 999
        while bud > 0:
            f = st['nrN']
            s_ = f // NFR
            okN = s_ < NS * KS and (n_static or s_ // KS <= st['pub']) and s_ - NSET < udone // nt
            u = st['nrM']
            okM = u < total and u // UPS <= st['pub'] and u - W < udone
            if okN and (not okM or s_ * nt <= u):
                rd_n(s_ // KS, s_ % KS, f % NFR, vN[s_ % NSET][f % NFR], "N%d" % (s_ % NSET))
                st['nrN'] += 1
                bud -= 1
            elif okM:
                stg, rem = divmod(u, UPS)
                ks, ti = divmod(rem, nt)
                rd_m(stg, ks, tiles[ti], vM[u % NSL], "M%d" % (u % NSL))
                st['nrM'] += 1
                bud -= 2
            else:
                break

    pump(0, maxm=99)
    pre = k.lines
    k.lines = []
    blocks = []
    pos = max(1, min(UPS, UPS - W + DELTA))
    for t in range(NS):
        last = (t == NS - 1)
        extras = []
        for r in range(UPS):
            u = t * UPS + r
            ks, ti = divmod(r, nt)
            s = t * KS + ks
            k.need("M%d" % (u % NSL), "N%d" % (s % NSET))
            for i in range(NFR):
                a = acc(t, tiles[ti], i)
                c = "0" if first(t, ks) else vr(a)
                if not (OPT.get('nomfma') and t > 0):
                    k.e("v_mfma_f32_16x16x32_bf16 %s, %s, %s, %s" % (vr(a), vr(vM[u % NSL]), vr(vN[s % NSET][i]), c))
            if not last and r + 1 == pos:
                assert st['nrM'] == (t + 1) * UPS, (st, t)
                assert n_static or st['nrN'] >= (t + 1) * KS * NFR, (st, t)
                k.vneed("D%d" % (t + 1), lgkm0=True)
                k.e("s_barrier")
                st['pub'] = t + 1
                if t + NBUF < NS:
                    extras = dma(t + NBUF)
                    if OPT.get('nodma'):
                        extras = [(tg, [x for x in L if not x.startswith('buffer_load')]) for tg, L in extras]
                    if OPT.get('dropdma'):
                        pat = {'n': 'v8,', 'm': ('v9,', 'v10,', 'v11,'), 'q': 'v11,'}[OPT['dropdma']]
                        pats = pat if isinstance(pat, tuple) else (pat,)
                        extras = [(tg, [x for x in L if not (x.startswith('buffer_load') and any(p in x for p in pats))]) for tg, L in extras]
                elif after_last_dma and not st['ald']:
                    st['ald'] = True
                    extras = after_last_dma()
                if stage_extra:
                    extras = extras + stage_extra(t)
            pump(u + 1)
            if after_use:
                after_use(t, r)
            if extras:
                left = UPS - r
                n = (len(extras) + left - 1) // left
                for _ in range(n):
                    tag, L = extras.pop(0)
                    for x in L:
                        k.e(x, tag)
        assert not extras
        blocks.append(k.lines)
        k.lines = []
    best = None
    for U in (1, 2, 3, 4, 6):
        for a in range(NS):
            bnd = a + U
            while bnd + U <= NS and all(blocks[bnd + x] == blocks[a + x] for x in range(U)):
                bnd += U
            cnt = (bnd - a) // U
            if cnt >= 2 and (best is None or (cnt - 1) * U > (best[2] - 1) * best[3]):
                best = (a, bnd, cnt, U)
    out = pre
    if best is None:
        for bl in blocks:
            out += bl
    else:
        a, bnd, cnt, U = best
        for bl in blocks[:a]:
            out += bl
        lab = k.newlabel("LP")
        out.append("    s_mov_b32 s%d, %d" % (sLoop, cnt))
        out.append(lab + ":")
        for bl in blocks[a:a + U]:
            out += bl
        out.append("    s_sub_u32 s%d, s%d, 1" % (sLoop, sLoop))
        out.append("    s_cmp_lg_u32 s%d, 0" % sLoop)
        out.append("    s_cbranch_scc1 %s" % lab)
        for bl in blocks[bnd:]:
            out += bl
    k.lines = out


def tr_voff(k, vdst, sslot, vLane, T, stride, posmask):
    t0, t1, t2, t3, t4 = T
    k.e("v_add_u32 v%d, s%d, v%d" % (t0, sslot, vLane))
    k.e("v_mul_u32_u24 v%d, 3641, v%d" % (t1, t0))
    k.e("v_lshrrev_b32 v%d, 16, v%d" % (t1, t1))
    k.e("v_mul_u32_u24 v%d, 18, v%d" % (t2, t1))
    k.e("v_sub_u32 v%d, v%d, v%d" % (t2, t0, t2))
    k.e("v_and_b32 v%d, 0x%x, v%d" % (t3, posmask, t1))
    k.e("v_and_b32 v%d, 4, v%d" % (t4, t1))
    k.e("v_lshl_or_b32 v%d, v%d, 1, v%d" % (t3, t4, t3))
    k.e("v_and_b32 v%d, 8, v%d" % (t4, t1))
    k.e("v_lshrrev_b32 v%d, 1, v%d" % (t4, t4))
    k.e("v_or_b32 v%d, v%d, v%d" % (t3, t3, t4))
    k.e("v_mul_u32_u24 v%d, %d, v%d" % (vdst, stride, t3))
    k.e("v_lshl_add_u32 v%d, v%d, 4, v%d" % (vdst, t2, vdst))


def tr_raddr(k, vdst, vLane, t):
    k.e("v_lshrrev_b32 v%d, 5, v%d" % (vdst, vLane))
    k.e("v_lshlrev_b32 v%d, 4, v%d" % (vdst, vdst))
    k.e("v_bfe_u32 v%d, v%d, 4, 1" % (t, vLane))
    k.e("v_lshl_add_u32 v%d, v%d, 2, v%d" % (vdst, t, vdst))
    k.e("v_bfe_u32 v%d, v%d, 2, 2" % (t, vLane))
    k.e("v_add_u32 v%d, v%d, v%d" % (vdst, vdst, t))
    k.e("v_mul_u32_u24 v%d, 288, v%d" % (vdst, vdst))
    k.e("v_and_b32 v%d, 3, v%d" % (t, vLane))
    k.e("v_lshl_add_u32 v%d, v%d, 3, v%d" % (vdst, t, vdst))


def store_tiles_bf16(k, js, accf, vO, vO2, SRO, soff, sfl, TB, neg=None, colbase=0):
    idx = 0
    slot = 0
    while idx < len(js):
        pr = js[idx:idx + 2]
        if len(pr) == 2 and pr[1] != pr[0] + 1:
            pr = pr[:1]
        o = TB + 4 * (slot % 4)
        for n_, j in enumerate(pr):
            a = accf(j)
            k.e("v_cvt_pk_bf16_f32 v%d, v%d, v%d" % (o + 2 * n_, a, a + 1))
            k.e("v_cvt_pk_bf16_f32 v%d, v%d, v%d" % (o + 2 * n_ + 1, a + 2, a + 3))
            if neg is not None:
                k.e("v_xor_b32 v%d, s%d, v%d" % (o + 2 * n_, neg, o + 2 * n_))
                k.e("v_xor_b32 v%d, s%d, v%d" % (o + 2 * n_ + 1, neg, o + 2 * n_ + 1))
        if len(pr) == 2:
            k.e("s_nop 1")
            k.e("v_permlane16_swap_b32 v%d, v%d" % (o, o + 2))
            k.e("v_permlane16_swap_b32 v%d, v%d" % (o + 1, o + 3))
            k.e("s_nop 0")
            if SRO is None:
                k.e("ds_write_b128 v%d, %s offset:%d" % (vO, vr(o), colbase + pr[0] * 32))
            else:
                k.e("buffer_store_dwordx4 %s, v%d, %s, s%d offen offset:%d%s" % (vr(o), vO, sr(SRO), soff, colbase + pr[0] * 32, sfl))
        elif SRO is None:
            k.e("ds_write_b64 v%d, %s offset:%d" % (vO2, vr(o, 2), colbase + pr[0] * 32))
        else:
            k.e("buffer_store_dwordx2 %s, v%d, %s, s%d offen offset:%d%s" % (vr(o, 2), vO2, sr(SRO), soff, colbase + pr[0] * 32, sfl))
        idx += len(pr)
        slot += 1


PREG = 36864


def store_native(k, tiles, accf, vP, SRO, sTmp, blk0, sblk, TB, par):
    for n, j in enumerate(tiles):
        o = TB + 4 * (n % 4)
        for i in range(2):
            a = accf(j, i)
            if par:
                k.e("v_and_b32 v%d, 0xfffe0000, v%d" % (a, a))
                k.e("v_or_b32 v%d, 0x10000, v%d" % (a, a))
            else:
                k.e("v_add_u32 v%d, 0x10000, v%d" % (a, a))
                k.e("v_and_b32 v%d, 0xfffe0000, v%d" % (a, a))
            k.e("v_cvt_pk_bf16_f32 v%d, v%d, v%d" % (o + 2 * i, a, a + 1))
            k.e("v_cvt_pk_bf16_f32 v%d, v%d, v%d" % (o + 2 * i + 1, a + 2, a + 3))
            k.e(("v_or_b32 v%d, 1, v%d" if par else "v_and_b32 v%d, -2, v%d") % (o + 2 * i, o + 2 * i))
        if n % 4 == 0:
            if sblk is None:
                k.e("s_mov_b32 s%d, %d" % (sTmp, (blk0 + j) * 1024))
            else:
                k.e("s_add_u32 s%d, s%d, %d" % (sTmp, sblk, (blk0 + j) * 1024))
        else:
            k.e("s_nop 0")
        k.e("s_nop 0")
        k.e("v_permlane16_swap_b32 v%d, v%d" % (o, o + 2))
        k.e("v_permlane16_swap_b32 v%d, v%d" % (o + 1, o + 3))
        k.e("s_nop 0")
        k.e("buffer_store_dwordx4 %s, v%d, %s, s%d offen offset:%d%s" % (vr(o), vP, sr(SRO), sTmp, (n % 4) * 1024, XF))


def r_tail(k, rcfg, npart, sW, vLane, sGroup, sMember, XBUF, WSP, XNO, nxt_phase=None):
    freg, xin, xout, ln = rcfg
    if xin[0] == 'in':
        srd(k, 12, 48, 0, None, XB)
    else:
        srd(k, 12, 4, xin[1], None, xin[1] + XB)
    k.e("s_lshr_b32 s46, s%d, 2" % sMember)
    k.e("s_lshl_b32 s47, s%d, 2" % sGroup)
    k.e("s_add_u32 s46, s46, s47")
    k.e("s_mul_i32 s46, s46, %d" % PREG)
    srd(k, 20, 4, WSP, 46, WSP + npart * XB)
    if xout[0] == 'out':
        srd(k, 24, 50, 0, None, XB)
    else:
        srd(k, 24, 4, xout[1], None, xout[1] + XB)
    if ln:
        srd(k, 52, 4, XNO, None, XNO + XB)
    stamp(k, 4)
    k.e("s_lshl_b32 s46, s%d, 7" % sGroup)
    k.e("s_lshl_b32 s47, s%d, 3" % sMember)
    k.e("s_add_u32 s46, s46, s47")
    k.e("s_add_u32 s46, s46, s%d" % sW)
    k.e("v_mov_b32 v2, s46")
    PB0 = 44
    par = (rcfg[0] + 1) & 1

    def ysrc():
        k.e("s_lshr_b32 s46, s%d, 1" % sMember)
        k.e("s_and_b32 s46, s46, 1")
        k.e("s_lshl_b32 s46, s46, 8")
        k.e("s_and_b32 s47, s%d, 1" % sMember)
        k.e("s_lshl_b32 s47, s47, 7")
        k.e("s_add_u32 s46, s46, s47")
        for n, (mul, add) in enumerate(((64, 0), (8, 512))):
            k.e("s_mul_i32 s47, s%d, %d" % (sW, mul))
            k.e("s_add_u32 s47, s47, %d" % add)
            k.e("v_add_u32 v3, s47, v%d" % vLane)
            k.e("v_lshrrev_b32 v5, 4, v3")
            k.e("v_lshlrev_b32 v5, 10, v5")
            k.e("v_bfe_u32 v6, v3, 3, 1")
            k.e("v_lshl_add_u32 v5, v6, 9, v5")
            k.e("v_and_b32 v6, 7, v3")
            k.e("v_lshl_add_u32 v5, v6, 4, v5")
            k.e("v_add_u32 v%d, s46, v5" % (40 + n))
            k.e("v_mul_u32_u24 v5, 2336, v6")
            k.e("v_lshrrev_b32 v6, 3, v3")
            k.e("v_lshl_add_u32 v5, v6, 5, v5")
            k.e("v_add_u32 v%d, 0x%x, v5" % (42 + n, XBUF))
        for z in range(npart):
            for r in range(4):
                k.e("v_mov_b32 v%d, %d" % (PB0 + 8 * z + 4 + r, par))
        AB_ = PB0 + 8 * npart
        lp = k.newlabel("LW")
        ld = k.newlabel("LD")
        k.e("s_mov_b32 s45, 0")
        k.label(lp)
        if int(OPT.get('psleep', 0)):
            k.e("s_sleep %d" % int(OPT.get('psleep', 0)))
        for z in range(npart):
            k.e("s_mov_b32 s47, 0x%x" % (z * 64 * PREG))
            k.e("buffer_load_dwordx4 %s, v40, s[20:23], s47 offen%s" % (vr(PB0 + 8 * z), XF))
            k.e("s_mov_b64 exec, 0xff")
            k.e("buffer_load_dwordx4 %s, v41, s[20:23], s47 offen%s" % (vr(PB0 + 8 * z + 4), XF))
            k.e("s_mov_b64 exec, -1")
        k.vm0()
        regs = list(range(PB0, PB0 + 8 * npart, 2))
        op3 = "v_and_b32" if par else "v_or_b32"
        k.e("%s v26, v%d, v%d" % (op3, regs[0], regs[1]))
        k.e("%s v27, v%d, v%d" % (op3, regs[2], regs[3]))
        rest = regs[4:]
        n = 0
        while rest:
            d = 26 + (n & 1)
            if par:
                k.e("v_and_b32 v%d, v%d, v%d" % (d, d, rest[0]))
                rest = rest[1:]
            else:
                k.e("v_or3_b32 v%d, v%d, v%d, v%d" % (d, d, rest[0], rest[1]))
                rest = rest[2:]
            n += 1
        k.e("%s v26, v26, v27" % op3)
        k.e("v_and_b32 v26, 1, v26")
        k.e("v_cmp_ne_u32 vcc, %d, v26" % par)
        k.e("s_nop 3")
        k.e("s_cmp_eq_u64 vcc, 0")
        k.e("s_cbranch_scc1 %s" % ld)
        k.e("s_add_u32 s45, s45, 1")
        k.e("s_cmp_lt_u32 s45, 0x100000")
        k.e("s_cbranch_scc1 %s" % lp)
        k.label(ld)
        stamp(k, 5)
        if False:
            for r in range(4):
                k.e("v_mov_b32 v%d, -1" % (AB_ + 16 + r))
            for z in range(npart):
                k.e("s_mov_b32 s47, 0x%x" % (z * 64 * PREG))
                k.e("buffer_store_dwordx4 %s, v40, s[20:23], s47 offen" % vr(AB_ + 16))
                k.e("s_mov_b64 exec, 0xff")
                k.e("buffer_store_dwordx4 %s, v41, s[20:23], s47 offen" % vr(AB_ + 16))
                k.e("s_mov_b64 exec, -1")
        for z in range(npart):
            for h in range(2):
                for r in range(4):
                    src = PB0 + 8 * z + 4 * h + r
                    a = AB_ + 8 * h + 2 * r
                    if z == 0:
                        k.e("v_lshlrev_b32 v%d, 16, v%d" % (a, src))
                        k.e("v_and_b32 v%d, 0xffff0000, v%d" % (a + 1, src))
                    else:
                        k.e("v_lshlrev_b32 v26, 16, v%d" % src)
                        k.e("v_and_b32 v27, 0xffff0000, v%d" % src)
                        k.e("v_add_f32 v%d, v%d, v26" % (a, a))
                        k.e("v_add_f32 v%d, v%d, v27" % (a + 1, a + 1))
        k.e("ds_write_b128 v42, %s" % vr(AB_))
        k.e("ds_write_b128 v42, %s offset:16" % vr(AB_ + 4))
        k.e("s_mov_b64 exec, 0xff")
        k.e("ds_write_b128 v43, %s" % vr(AB_ + 8))
        k.e("ds_write_b128 v43, %s offset:16" % vr(AB_ + 12))
        k.e("s_mov_b64 exec, -1")
        k.e("s_mul_i32 s47, s%d, 2336" % sW)
        k.e("s_add_u32 s47, s47, 0x%x" % XBUF)
        k.e("v_lshl_add_u32 v5, v%d, 4, s47" % vLane)
        k.e("v_lshl_add_u32 v6, v%d, 2, s47" % vLane)
        k.e("s_waitcnt lgkmcnt(0)")
        k.e("s_barrier")
        k.e("ds_read_b128 v[16:19], v5")
        k.e("ds_read_b128 v[20:23], v5 offset:1024")
        k.e("ds_read_b32 v24, v6 offset:2048")
        if nxt_phase and PRE:
            pre_issue(k, nxt_phase, 180)
        k.e("s_waitcnt lgkmcnt(0)")
    r_body(k, 2, vLane, ysrc, True, ln, 12, 24, 52)
    return PB0 + 8 * npart + 20


def preset_pieces(k, sW, vLane, vA_, vD4, SR, sTmp, WSP):
    L = ["s_mul_i32 s%d, s2, %d" % (sTmp, PREG),
         "s_add_u32 s%d, s4, 0x%x" % (SR, WSP), "s_addc_u32 s%d, s5, 0" % (SR + 1),
         "s_add_u32 s%d, s%d, s%d" % (SR, SR, sTmp), "s_addc_u32 s%d, s%d, 0" % (SR + 1, SR + 1),
         "s_and_b32 s%d, s%d, 0xffff" % (SR + 1, SR + 1),
         "s_mov_b32 s%d, %d" % (SR + 2, PREG), "s_mov_b32 s%d, 0x20000" % (SR + 3),
         "s_mul_i32 s%d, s%d, 5120" % (sTmp, sW),
         "v_lshl_add_u32 v%d, v%d, 4, s%d" % (vA_, vLane, sTmp)]
    for r in range(4):
        L.append("v_mov_b32 v%d, -1" % (vD4 + r))
    P = [("S", L + ["buffer_store_dwordx4 %s, v%d, %s, 0 offen" % (vr(vD4), vA_, sr(SR))])]
    for n in range(1, 4):
        P.append(("S", ["buffer_store_dwordx4 %s, v%d, %s, 0 offen offset:%d" % (vr(vD4), vA_, sr(SR), n * 1024)]))
    P.append(("S", ["s_mov_b32 s%d, 4096" % sTmp, "buffer_store_dwordx4 %s, v%d, %s, s%d offen" % (vr(vD4), vA_, sr(SR), sTmp)]))
    return P


def gen_gemm(k, kind, rcfg=None, kidx=0, pf=(), xn=None, ab=None, h=None, dep=None, pub=None, nxt_phase=None, pf2=()):
    nwg = 256
    k.pend = []
    if not int(OPT.get('pf2', 1)):
        pf2 = ()
    LNF = (kind == 'A1L')
    if LNF:
        kind = 'A1'
    if kind == 'A2':
        NFR, NBUF, mmode, NS = 2, 4, 'tr', 16
        strideN, strideM = 4096, 288
    elif kind == 'B2':
        NFR, NBUF, mmode, NS = 2, 4, 'tr', 18
        strideN, strideM = 0, 1152
    else:
        NFR, NBUF, mmode, NS = 1, 4, 'row', 9
        strideN, strideM = 1152, 1152
    WSP, WSPO = WS_P, WS_P
    groups = [list(range(5)), list(range(5, 9))]
    NSET = 4
    NT = 4 * NFR * 16
    NTB = NT * 128
    STB = NTB + MTB
    NDN = NT // 64
    LDSB = NBUF * STB + (8 * 2336 if rcfg else 0)
    MB0 = NTB
    if LNF:
        STB, NDN, MB0 = MTB, 0, 73728
        LDSB = 73728 + NBUF * MTB
    KS = 2
    Wmul = float(OPT.get('twmul', 2.0))
    Wmax = int(5 * Wmul + 0.5)

    vLane, vT0, vT1, vT2, vT3, vT4 = 1, 2, 3, 4, 5, 6
    vO = 7
    vDN = 8
    vDM = [9, 10, 11]
    nxt = 12
    nrm = KS if mmode == 'row' else 1
    vRN = [[0] * KS for _ in range(NBUF)]
    vRM = [[0] * nrm for _ in range(NBUF)]
    for b in range(NBUF):
        for s_ in range(KS):
            vRN[b][s_] = nxt; nxt += 1
        for s_ in range(nrm):
            vRM[b][s_] = nxt; nxt += 1
    nxt = (nxt + 3) // 4 * 4
    vPA, vPS, vPD = nxt, nxt + 2, nxt + 3
    nxt += 4
    PD = int(OPT.get('pd', 0)) if kind in ('A2', 'B2') else 0
    vM = [nxt + 4 * j for j in range(Wmax)]; nxt += 4 * Wmax
    vN = [[nxt + 4 * (p * NFR + i) for i in range(NFR)] for p in range(NSET)]; nxt += 4 * NSET * NFR
    vAbase = nxt
    nxt += 4 * 5 * NFR
    nxt = max(nxt, 176 if LNF else 96, 196 if nxt_phase else 0)
    vPF = nxt
    vPFA = nxt + 1
    nxt += 2
    nvgpr = nxt
    sW, sW1024, sW256, sKN, sKM, sTmp, sLoop = 28, 29, 30, 31, 32, 33, 40
    SRN, SRM, SRO = 12, 16, 24
    if not PF:
        pf = ()

    stamp(k, 0, 1)
    k.e("s_load_dwordx2 s[4:5], s[0:1], %d" % KA_WS)
    if kind == 'A2':
        k.e("s_load_dwordx4 s[8:11], s[0:1], %d" % KA_CR)
    elif kind == 'B2':
        k.e("s_load_dwordx2 s[8:9], s[0:1], %d" % KA_WD)
    else:
        k.e("s_load_dwordx2 s[8:9], s[0:1], %d" % KA_WR)
        k.e("s_load_dwordx2 s[10:11], s[0:1], %d" % KA_WI)
    if LNF:
        k.e("s_load_dwordx2 s[48:49], s[0:1], %d" % KA_X)
    if rcfg:
        if rcfg[1][0] == 'in':
            k.e("s_load_dwordx2 s[48:49], s[0:1], %d" % rcfg[1][1])
        if rcfg[2][0] == 'out':
            k.e("s_load_dwordx2 s[50:51], s[0:1], %d" % KA_OUT)
    pf2_loads(k, pf2)
    k.e("v_and_b32 v%d, 63, v0" % vLane)
    k.e("v_lshrrev_b32 v%d, 6, v0" % vT0)
    k.e("s_nop 0")
    k.e("v_readfirstlane_b32 s%d, v%d" % (sW, vT0))
    k.e("s_and_b32 s34, s2, 7")
    k.e("s_lshr_b32 s35, s2, 3")
    if kind in ('A2', 'B2'):
        k.e("s_and_b32 s36, s34, 3")
        k.e("s_lshr_b32 s37, s34, 2")
        k.e("s_lshl_b32 s37, s37, 3")
        k.e("s_lshr_b32 s38, s35, 2")
        k.e("s_add_u32 s37, s37, s38")
        k.e("s_and_b32 s38, s35, 3")
    else:
        k.e("s_mov_b32 s38, s34")
        k.e("s_mov_b32 s37, s35")
    k.e("s_lshl_b32 s%d, s%d, 10" % (sW1024, sW))
    k.e("s_lshl_b32 s%d, s%d, 8" % (sW256, sW))
    k.e("v_lshrrev_b32 v%d, 3, v%d" % (vT0, vLane))
    k.e("s_lshl_b32 s%d, s%d, 3" % (sTmp, sW))
    k.e("v_add_u32 v%d, s%d, v%d" % (vT0, sTmp, vT0))
    k.e("v_bfe_u32 v%d, v%d, 1, 3" % (vT1, vT0))
    k.e("v_and_b32 v%d, 7, v%d" % (vT2, vLane))
    k.e("v_xor_b32 v%d, v%d, v%d" % (vT1, vT1, vT2))
    if kind == 'B2':
        k.e("s_lshr_b32 s44, s%d, 2" % sW)
        k.e("s_mul_i32 s44, s44, %d" % (288 * 1024))
        k.e("s_and_b32 s45, s%d, 3" % sW)
        k.e("s_lshl_b32 s45, s45, 10")
        k.e("s_add_u32 s44, s44, s45")
        k.e("v_lshl_add_u32 v%d, v%d, 4, s44" % (vDN, vLane))
    else:
        k.e("v_mul_u32_u24 v%d, %d, v%d" % (vDN, strideN, vT0))
        k.e("v_lshl_add_u32 v%d, v%d, 4, v%d" % (vDN, vT1, vDN))
    if mmode == 'row':
        k.e("v_mul_u32_u24 v%d, %d, v%d" % (vDM[0], strideM, vT0))
        k.e("v_lshl_add_u32 v%d, v%d, 4, v%d" % (vDM[0], vT1, vDM[0]))
        k.e("v_lshrrev_b32 v%d, 3, v%d" % (vT0, vLane))
        k.e("s_lshl_b32 s%d, s%d, 1" % (sTmp, sW))
        k.e("s_add_u32 s%d, s%d, 128" % (sTmp, sTmp))
        k.e("v_add_u32 v%d, s%d, v%d" % (vT0, sTmp, vT0))
        k.e("v_bfe_u32 v%d, v%d, 1, 3" % (vT1, vT0))
        k.e("v_xor_b32 v%d, v%d, v%d" % (vT1, vT1, vT2))
        k.e("v_mul_u32_u24 v%d, %d, v%d" % (vDM[2], strideM, vT0))
        k.e("v_lshl_add_u32 v%d, v%d, 4, v%d" % (vDM[2], vT1, vDM[2]))
    else:
        for q in range(3):
            if q < 2:
                k.e("s_lshl_b32 s%d, s%d, 6" % (sTmp, sW))
                k.e("s_add_u32 s%d, s%d, %d" % (sTmp, sTmp, 512 * q))
            else:
                k.e("s_lshl_b32 s%d, s%d, 4" % (sTmp, sW))
                k.e("s_add_u32 s%d, s%d, 1024" % (sTmp, sTmp))
            tr_voff(k, vDM[q], sTmp, vLane, (vT0, vT1, vT2, vT3, vT4), strideM, 0x33)
    k.e("s_mov_b32 s%d, 0" % sKN)
    k.e("s_mov_b32 s%d, 0" % sKM)
    if OPT.get('pst'):
        k.e("s_memtime s[%d:%d]" % (SB + 8, SB + 9))
    k.e("s_waitcnt lgkmcnt(0)")
    if OPT.get('pst'):
        stamp(k, 5)
    if kind == 'A2':
        k.e("s_cmp_lt_u32 s36, 2")
        k.e("s_cselect_b32 s6, s8, s10")
        k.e("s_cselect_b32 s7, s9, s11")
        k.e("s_mul_i32 s44, s37, %d" % (128 * 4096))
        k.e("s_and_b32 s45, s36, 1")
        k.e("s_lshl_b32 s45, s45, 11")
        k.e("s_add_u32 s44, s44, s45")
        srd(k, SRN, 6, 0, 44, S * S * 2)
        k.e("s_lshr_b32 s44, s36, 1")
        k.e("s_lshl_b32 s44, s44, 2")
        k.e("s_add_u32 s44, s44, s38")
        k.e("s_lshl_b32 s44, s44, 1")
        k.e("s_and_b32 s45, s36, 1")
        k.e("s_add_u32 s44, s44, s45")
        k.e("s_mul_i32 s44, s44, %d" % (1024 * 288))
        srd(k, SRM, 4, ab, 44, ab + 2 * XB)
    elif kind == 'B2':
        k.e("s_mul_i32 s44, s37, %d" % (4 * 288 * 1024))
        k.e("s_mul_i32 s45, s36, %d" % (72 * 1024))
        k.e("s_add_u32 s44, s44, s45")
        srd(k, SRN, 4, h, 44, h + HB)
        k.e("s_mul_i32 s44, s36, %d" % (1152 * 1152))
        k.e("s_mul_i32 s45, s38, 288")
        k.e("s_add_u32 s44, s44, s45")
        srd(k, SRM, 8, 0, 44, F * D * 2)
    else:
        k.e("s_mul_i32 s44, s37, %d" % (64 * 1152))
        if LNF:
            srd(k, SRN, 48, 0, 44, XB)
            k.e("s_mul_i32 s44, s%d, %d" % (sW, 8 * 1152))
            k.e("v_lshl_add_u32 v%d, v%d, 3, s44" % (vT0, vLane))
            k.e("v_lshl_add_u32 v%d, v%d, 1, s44" % (vT1, vLane))
            for rr in range(8):
                b = 32 + 16 * rr
                k.e("s_mov_b32 s44, %d" % (rr * 1152))
                k.e("buffer_load_dwordx2 %s, v%d, %s, s44 offen" % (vr(b + 10, 2), vT0, sr(SRN)), "X")
                k.e("buffer_load_dwordx2 %s, v%d, %s, s44 offen offset:512" % (vr(b + 12, 2), vT0, sr(SRN)), "X")
                k.e("buffer_load_ushort v%d, v%d, %s, s44 offen offset:1024" % (b + 14, vT1, sr(SRN)), "X")
        else:
            srd(k, SRN, 4, xn, 44, xn + XB)
        k.e("s_cmp_lt_u32 s38, 4")
        k.e("s_cselect_b32 s6, s8, s10")
        k.e("s_cselect_b32 s7, s9, s11")
        k.e("s_and_b32 s45, s38, 3")
        k.e("s_mul_i32 s44, s45, %d" % (144 * 1152))
        srd(k, SRM, 6, 0, 44, D * D * 2)
    if PD:
        k.e("s_mul_i32 s45, s38, 288")
        k.e("s_sub_u32 s44, s%d, s45" % SRM)
        k.e("s_subb_u32 s45, s%d, 0" % (SRM + 1))
        k.e("s_lshl_b32 s46, s38, 5")
        k.e("s_lshl_b32 s47, s%d, 2" % sW)
        k.e("s_add_u32 s46, s46, s47")
        k.e("v_add_u32 v%d, s46, v%d" % (vT0, vLane))
        if kind == 'A2':
            k.e("v_lshlrev_b32 v%d, 12, v%d" % (vT1, vT0))
            SN = 128
        else:
            k.e("v_lshrrev_b32 v%d, 5, v%d" % (vT1, vT0))
            k.e("v_mul_u32_u24 v%d, %d, v%d" % (vT1, 288 * 1024, vT1))
            k.e("v_and_b32 v%d, 31, v%d" % (vT2, vT0))
            k.e("v_lshl_add_u32 v%d, v%d, 7, v%d" % (vT1, vT2, vT1))
            SN = 4096
        k.e("v_add_u32 v%d, 0x%x, v%d" % (vT1, PD * SN, vT1))
        k.e("s_mul_i32 s46, s%d, 3" % sW)
        k.e("s_sub_u32 s46, s46, 4")
        k.e("v_add_u32 v%d, s46, v%d" % (vT0, vLane))
        k.e("v_min_u32 v%d, 17, v%d" % (vT0, vT0))
        k.e("s_mul_i32 s46, s35, 18")
        k.e("v_add_u32 v%d, s46, v%d" % (vT0, vT0))
        k.e("v_mul_u32_u24 v%d, 7282, v%d" % (vT2, vT0))
        k.e("v_lshrrev_b32 v%d, 16, v%d" % (vT2, vT2))
        k.e("v_mul_u32_u24 v%d, 9, v%d" % (vT3, vT2))
        k.e("v_sub_u32 v%d, v%d, v%d" % (vT3, vT0, vT3))
        k.e("v_mul_u32_u24 v%d, 1152, v%d" % (vT2, vT2))
        k.e("v_lshl_add_u32 v%d, v%d, 7, v%d" % (vT2, vT3, vT2))
        k.e("v_add_u32 v%d, 0x%x, v%d" % (vT2, PD * 64 * 1152, vT2))
        k.e("v_cmp_gt_u32 vcc, 4, v%d" % vLane)
        k.e("v_mov_b32 v%d, s44" % vT0)
        k.e("v_mov_b32 v%d, s%d" % (vT3, SRN))
        k.e("v_cndmask_b32 v%d, v%d, v%d, vcc" % (vPA, vT0, vT3))
        k.e("v_mov_b32 v%d, s45" % vT0)
        k.e("v_mov_b32 v%d, s%d" % (vT3, SRN + 1))
        k.e("v_cndmask_b32 v%d, v%d, v%d, vcc" % (vPA + 1, vT0, vT3))
        k.e("v_cndmask_b32 v%d, v%d, v%d, vcc" % (vT1, vT2, vT1))
        k.e("v_mov_b32 v%d, 0x%x" % (vT0, 64 * 1152))
        k.e("v_mov_b32 v%d, %d" % (vT3, SN))
        k.e("v_cndmask_b32 v%d, v%d, v%d, vcc" % (vPS, vT0, vT3))
        k.e("v_add_co_u32 v%d, vcc, v%d, v%d" % (vPA, vT1, vPA))
        k.e("s_nop 1")
        k.e("v_addc_co_u32 v%d, vcc, 0, v%d, vcc" % (vPA + 1, vPA + 1))

    def dma_n(stage):
        b = stage % NBUF
        tag = "D%d" % stage
        P = []
        for j in range(NDN):
            L = ["s_add_u32 m0, s%d, 0x%x" % (sW1024, b * STB + j * 8192)]
            if j:
                L.append("s_add_u32 s%d, s%d, 0x%x" % (sTmp, sKN, j * (2 * 288 * 1024 if kind == 'B2' else 64 * strideN)))
                L.append("buffer_load_dwordx4 v%d, %s, s%d offen lds" % (vDN, sr(SRN), sTmp))
            else:
                L.append("s_nop 0")
                L.append("buffer_load_dwordx4 v%d, %s, s%d offen lds" % (vDN, sr(SRN), sKN))
            P.append((tag, L))
        if P:
            P[-1] = (tag, P[-1][1] + ["s_add_u32 s%d, s%d, %d" % (sKN, sKN, 4096 if kind == 'B2' else 128)])
        return P

    def dma_m(stage):
        b = stage % NBUF
        tag = "D%d" % stage
        P = []
        mb_ = b * STB + MB0
        for q in range(3):
            L = []
            if q < 2:
                L.append("s_add_u32 m0, s%d, 0x%x" % (sW1024, mb_ + q * 8192))
            else:
                L.append("s_add_u32 m0, s%d, 0x%x" % (sW256, mb_ + 16384))
            if mmode == 'row' and q == 1:
                L.append("s_add_u32 s%d, s%d, 0x%x" % (sTmp, sKM, 64 * strideM))
                so, vo = sTmp, vDM[0]
            else:
                so, vo = sKM, vDM[q]
                L.append("s_nop 0")
            if q == 2:
                L.append("s_mov_b64 exec, 0xffff")
            L.append("buffer_load_dwordx4 v%d, %s, s%d offen lds" % (vo, sr(SRM), so))
            if q == 2:
                L.append("s_mov_b64 exec, -1")
            P.append((tag, L))
        P[-1] = (tag, P[-1][1] + ["s_add_u32 s%d, s%d, 0x%x" % (sKM, sKM, 128 if mmode == 'row' else 64 * strideM)])
        return P

    def dma(stage):
        return dma_n(stage) + dma_m(stage)

    def emit(P):
        for tag, L in P:
            for x in L:
                k.e(x, tag)

    if dep is None:
        for stg in range(NBUF):
            emit(dma(stg))
    else:
        first, second = (dma_n, dma_m) if kind == 'A2' else (dma_m, dma_n)
        if dep == 'pre':
            for stg in range(NBUF):
                emit(first(stg))
            raise PreDone()
        if PRE:
            if kind == 'A2':
                k.e("s_mov_b32 s%d, %d" % (sKN, NBUF * 128))
            else:
                k.e("s_mov_b32 s%d, 0x%x" % (sKM, NBUF * (128 if mmode == 'row' else 64 * strideM)))
        elif not POLLF:
            for stg in range(NBUF):
                emit(first(stg))
        elif POLLF == 2:
            emit(first(0))
        if kind == 'A2':
            k.e("s_and_b32 s44, s36, 1")
            k.e("s_lshl_b32 s44, s44, 7")
            k.e("s_lshr_b32 s45, s36, 1")
            k.e("s_lshl_b32 s45, s45, 2")
            k.e("s_add_u32 s44, s44, s45")
            k.e("s_add_u32 s44, s44, s38")
            k.e("v_lshl_add_u32 v%d, v%d, 3, s44" % (vT0, vLane))
            nl = 16
        elif kind == 'B2':
            k.e("s_lshr_b32 s44, s37, 1")
            k.e("s_lshl_b32 s44, s44, 5")
            k.e("s_lshl_b32 s45, s36, 3")
            k.e("s_add_u32 s44, s44, s45")
            k.e("v_add_u32 v%d, s44, v%d" % (vT0, vLane))
            nl = 8
        else:
            k.e("s_lshl_b32 s44, s37, 3")
            k.e("v_add_u32 v%d, s44, v%d" % (vT0, vLane))
            nl = 8
        wait_flags(k, dep, nl, vT0, vT1)
        for stg in range(NBUF):
            emit(second(stg))
            if POLLF and not PRE and not (POLLF == 2 and stg == 0):
                emit(first(stg))
    if pf2:
        pf2_setup(k, pf2, sW, vLane, vPFA)
    pfp = [("PF", ["buffer_load_dword v%d, v%d, s[60:63], 0 offen" % (vPF, vPFA)])]
    if pf2 and LNF:
        emit(pfp)
    k.e("s_and_b32 s%d, s%d, 3" % (sTmp, sW))
    k.e("s_mul_i32 s%d, s%d, %d" % (sTmp, sTmp, NFR * 16 * 128))
    k.e("v_and_b32 v%d, 15, v%d" % (vT0, vLane))
    k.e("v_lshrrev_b32 v%d, 4, v%d" % (vT1, vLane))
    k.e("v_bfe_u32 v%d, v%d, 1, 3" % (vT2, vLane))
    k.e("v_xor_b32 v%d, v%d, v%d" % (vT2, vT1, vT2))
    k.e("v_lshlrev_b32 v%d, 4, v%d" % (vT2, vT2))
    k.e("v_lshl_add_u32 v%d, v%d, 7, v%d" % (vT2, vT0, vT2))
    k.e("v_add_u32 v%d, s%d, v%d" % (vT3, sTmp, vT2))
    if kind == 'B2':
        k.e("v_lshlrev_b32 v%d, 9, v%d" % (vT3, vT1))
        k.e("v_lshl_add_u32 v%d, v%d, 4, v%d" % (vT3, vT0, vT3))
        k.e("v_add_u32 v%d, s%d, v%d" % (vT3, sTmp, vT3))
        for b in range(NBUF):
            k.e("v_add_u32 v%d, 0x%x, v%d" % (vRN[b][0], b * STB, vT3))
            k.e("v_add_u32 v%d, 2048, v%d" % (vRN[b][1], vRN[b][0]))
    else:
        for b in range(NBUF):
            k.e("v_add_u32 v%d, 0x%x, v%d" % (vRN[b][0], (b * 65536 if LNF else b * STB), vT3))
            k.e("v_xor_b32 v%d, 64, v%d" % (vRN[b][1], vRN[b][0]))
    if mmode == 'row':
        for b in range(NBUF):
            k.e("v_add_u32 v%d, 0x%x, v%d" % (vRM[b][0], b * STB + MB0, vT2))
            k.e("v_xor_b32 v%d, 64, v%d" % (vRM[b][1], vRM[b][0]))
    else:
        tr_raddr(k, vT2, vLane, vT3)
        for b in range(NBUF):
            k.e("v_add_u32 v%d, 0x%x, v%d" % (vRM[b][0], b * STB + NTB, vT2))
    k.e("s_and_b32 s%d, s%d, 3" % (sTmp, sW))
    k.e("s_mul_i32 s%d, s%d, %d" % (sTmp, sTmp, NFR * 16))
    k.e("v_and_b32 v%d, 15, v%d" % (vT3, vLane))
    k.e("v_add_u32 v%d, s%d, v%d" % (vT3, sTmp, vT3))
    k.e("v_lshrrev_b32 v%d, 4, v%d" % (vT4, vLane))
    k.e("v_mul_u32_u24 v%d, 288, v%d" % (vT3, vT3))
    k.e("v_and_b32 v%d, 1, v%d" % (vT0, vT4))
    k.e("v_lshl_add_u32 v%d, v%d, 5, v%d" % (vO, vT0, vT3))
    k.e("v_lshrrev_b32 v%d, 1, v%d" % (vT0, vT4))
    k.e("v_lshl_add_u32 v%d, v%d, 4, v%d" % (vO, vT0, vO))
    k.e("v_lshl_add_u32 v%d, v%d, 3, v%d" % (vT4, vT4, vT3))
    vO2 = vT4
    if kind == 'A1':
        k.e("s_lshr_b32 s45, s38, 2")
        k.e("s_lshl_b32 s44, s38, 5")
        k.e("s_add_u32 s44, s44, s37")
        k.e("s_mul_i32 s44, s44, 18432")
        srd(k, SRO, 4, ab, 44, ab + 2 * XB)
        k.e("s_mov_b32 s%d, 18432" % (SRO + 2))
        k.e("s_mul_i32 s47, s45, 0x80008000")
    else:
        k.e("s_lshl_b32 s44, s36, 4")
        k.e("s_add_u32 s44, s44, s37")
        k.e("s_lshl_b32 s44, s44, 2")
        k.e("s_and_b32 s46, s%d, 3" % sW)
        k.e("s_add_u32 s44, s44, s46")
        k.e("s_mul_i32 s44, s44, %d" % PREG)
        k.e("s_mul_i32 s46, s38, 9216")
        k.e("s_add_u32 s44, s44, s46")
        srd(k, SRO, 4, WSP, 44, WSP + 4 * XB)
        k.e("v_lshlrev_b32 v%d, 4, v%d" % (vO, vLane))
    def pf_emit():
        k.e("s_lshl_b32 s%d, s2, 3" % sTmp)
        k.e("s_add_u32 s%d, s%d, s%d" % (sTmp, sTmp, sW))
        k.e("s_lshl_b32 s%d, s%d, 12" % (sTmp, sTmp))
        k.e("v_lshl_add_u32 v%d, v%d, 6, s%d" % (vT0, vLane, sTmp))
        for n in range(len(pf)):
            k.e("buffer_load_dword v%d, v%d, %s, 0 offen" % (vPF, vT0, sr(56 + 4 * n)), "PF")

    stamp(k, 1)
    if LNF:
        for tg, L in preset_pieces(k, sW, vLane, vT2, vPA, 72, sTmp, WS_P):
            for x in L:
                k.e(x.replace(", -1", ", 0") if x.startswith("v_mov") else x, "S")
        lz = k.newlabel("LZ")
        k.e("s_cmp_ge_u32 s2, 1")
        k.e("s_cbranch_scc1 %s" % lz)
        srd(k, 72, 4, WS_FL, None, WS_FL + 8192)
        k.e("v_lshlrev_b32 v%d, 4, v0" % vT2)
        k.e("buffer_store_dwordx4 %s, v%d, s[72:75], 0 offen" % (vr(vPA), vT2))
        k.vm.pop()
        k.label(lz)
        if pf and OPT.get('pfpos', 'end') == 'early':
            pf_emit()
        R = range(8)
        B = lambda rr: 32 + 16 * rr
        k.e("v_lshrrev_b32 v%d, 4, v%d" % (vT0, vLane))
        k.e("v_lshlrev_b32 v%d, 13, v%d" % (vT0, vT0))
        k.e("v_bfe_u32 v%d, v%d, 1, 3" % (vT1, vLane))
        k.e("v_lshl_add_u32 v%d, v%d, 4, v%d" % (vT0, vT1, vT0))
        k.e("v_and_b32 v%d, 1, v%d" % (vT1, vLane))
        k.e("v_lshl_add_u32 v%d, v%d, 3, v%d" % (vT0, vT1, vT0))
        k.e("v_add_u32 v%d, s%d, v%d" % (vT0, sW1024, vT0))
        k.e("v_lshrrev_b32 v%d, 3, v%d" % (vT1, vLane))
        k.e("v_lshlrev_b32 v%d, 4, v%d" % (vT1, vT1))
        k.e("v_and_b32 v%d, 7, v%d" % (vT2, vLane))
        k.e("v_lshl_add_u32 v%d, v%d, 1, v%d" % (vT1, vT2, vT1))
        k.e("v_add_u32 v%d, s%d, v%d" % (vT1, sW1024, vT1))
        k.e("v_add_u32 v%d, 0x10000, v%d" % (vT1, vT1))
        for pr in range(4):
            k.e("s_lshl_b32 s44, s%d, 2" % sW)
            k.e("s_add_u32 s44, s44, %d" % pr)
            k.e("s_and_b32 s44, s44, 7")
            k.e("s_lshl_b32 s44, s44, 4")
            k.e("v_xor_b32 v%d, s44, v%d" % (160 + pr, vT0))
            k.e("v_xor_b32 v%d, s44, v%d" % (164 + pr, vT1))
        stamp(k, 5)
        k.vneed("X")
        stamp(k, 4)

        def allrows(fmt, *offs):
            for rr in R:
                k.e(fmt % tuple(B(rr) + o for o in offs))

        def xsum(o, t):
            for ctl in ("quad_perm:[1,0,3,2]", "quad_perm:[2,3,0,1]", "row_half_mirror", "row_mirror"):
                allrows("v_add_f32_dpp v%d, v%d, v%d " + ctl + " row_mask:0xf bank_mask:0xf", o, o, o)
            for sw_ in ("v_permlane16_swap_b32", "v_permlane32_swap_b32"):
                allrows("v_mov_b32 v%d, v%d", t, o)
                allrows(sw_ + " v%d, v%d", o, t)
                allrows("v_add_f32 v%d, v%d, v%d", o, o, t)
        for i in range(4):
            allrows("v_lshlrev_b32 v%d, 16, v%d", 2 * i, 10 + i)
            allrows("v_and_b32 v%d, 0xffff0000, v%d", 2 * i + 1, 10 + i)
        allrows("v_lshlrev_b32 v%d, 16, v%d", 8, 14)
        def pk(op, d, a, b, c=None, mods=""):
            for rr in R:
                x = B(rr)
                ops = [vr(x + d, 2), vr(x + a, 2), vr(x + b, 2)] + ([vr(x + c, 2)] if c is not None else [])
                k.e("%s %s%s" % (op, ", ".join(ops), mods))
        pk("v_pk_add_f32", 10, 0, 2)
        pk("v_pk_add_f32", 12, 4, 6)
        pk("v_pk_add_f32", 10, 10, 12)
        allrows("v_add_f32 v%d, v%d, v%d", 14, 10, 11)
        allrows("v_add_f32 v%d, v%d, v%d", 14, 14, 8)
        xsum(14, 15)
        allrows("v_mul_f32 v%%d, 0x%08x, v%%d" % f32bits(-1.0 / D), 14, 14)
        allrows("v_mov_b32 v%d, v%d", 15, 14)
        for e in range(0, 8, 2):
            pk("v_pk_add_f32", e, e, 14)
        allrows("v_add_f32 v%d, v%d, v%d", 8, 8, 14)
        pk("v_pk_mul_f32", 10, 0, 0)
        pk("v_pk_mul_f32", 12, 2, 2)
        pk("v_pk_fma_f32", 10, 4, 4, 10)
        pk("v_pk_fma_f32", 12, 6, 6, 12)
        pk("v_pk_add_f32", 10, 10, 12)
        allrows("v_add_f32 v%d, v%d, v%d", 14, 10, 11)
        allrows("v_fmac_f32 v%d, v%d, v%d", 14, 8, 8)
        xsum(14, 15)
        allrows("v_mov_b32 v%%d, 0x%08x" % f32bits(1e-5), 15)
        allrows("v_fmac_f32 v%%d, 0x%08x, v%%d" % f32bits(1.0 / D), 15, 14)
        allrows("v_rsq_f32 v%d, v%d", 14, 15)
        allrows("v_mov_b32 v%d, v%d", 15, 14)
        for e in range(0, 8, 2):
            pk("v_pk_mul_f32", e, e, 14)
        allrows("v_mul_f32 v%d, v%d, v%d", 8, 8, 14)
        for i in range(4):
            allrows("v_cvt_pk_bf16_f32 v%d, v%d, v%d", 10 + i, 2 * i, 2 * i + 1)
        allrows("v_cvt_pk_bf16_f32 v%d, v%d, v%d", 14, 8, 8)
        stamp(k, 6)
        for rr in R:
            k.e("ds_write_b64 v%d, %s offset:%d" % (160 + rr // 2, vr(B(rr) + 10, 2), rr * 128))
            k.e("ds_write_b64 v%d, %s offset:%d" % (160 + rr // 2, vr(B(rr) + 12, 2), rr * 128 + 32768))
            k.e("ds_write_b16 v%d, v%d offset:%d" % (164 + rr // 2, B(rr) + 14, rr * 128))
        k.e("s_waitcnt lgkmcnt(0)")
    k.vneed("D0")
    k.e("s_barrier")
    stamp(k, 2)

    ljoin = k.newlabel("LJ")
    lg1 = k.newlabel("LG")
    k.e("s_cmp_ge_u32 s%d, 4" % sW)
    k.e("s_cbranch_scc1 %s" % lg1)
    vm_save = list(k.vm)
    for gi, tiles in enumerate(groups):
        if gi:
            k.label(lg1)
            k.vm = list(vm_save)
        nt = len(tiles)
        W = int(nt * Wmul + 0.5)
        vA = {(j, i): vAbase + 4 * (ti * NFR + i) for ti, j in enumerate(tiles) for i in range(NFR)}

        def rd_m(stg, ks, j, reg, tag):
            b = stg % NBUF
            if mmode == 'row':
                k.lds("ds_read_b128 %s, v%d offset:%d" % (vr(reg), vRM[b][ks], j * 2048), tag)
            else:
                o = ks * 9216 + j * 32
                k.lds("ds_read_b64_tr_b16 %s, v%d offset:%d" % (vr(reg, 2), vRM[b][0], o), tag)
                k.lds("ds_read_b64_tr_b16 %s, v%d offset:%d" % (vr(reg + 2, 2), vRM[b][0], o + 2304), tag)

        def rd_n(stg, ks, i, reg, tag):
            if LNF:
                k.lds("ds_read_b128 %s, v%d offset:%d" % (vr(reg), vRN[stg // 8][ks], (stg % 8) * 8192), tag)
            else:
                k.lds("ds_read_b128 %s, v%d offset:%d" % (vr(reg), vRN[stg % NBUF][ks], i * (256 if kind == 'B2' else 2048)), tag)

        def ald():
            L = ["s_lshl_b32 s%d, s2, 3" % sTmp, "s_add_u32 s%d, s%d, s%d" % (sTmp, sTmp, sW), "s_lshl_b32 s%d, s%d, 12" % (sTmp, sTmp),
                 "v_lshl_add_u32 v%d, v%d, 6, s%d" % (vT0, vLane, sTmp)]
            for n in range(len(pf)):
                L.append("buffer_load_dword v%d, v%d, %s, 0 offen" % (vPF, vT0, sr(56 + 4 * n)))
            P = [("PF", L)] if pf else []
            return P

        pp = preset_pieces(k, sW, vLane, vT2, vPA, 72, sTmp, WSPO)

        def sx(t):
            return [pp[t]] if t < len(pp) else []

        engine(k, tiles, NFR, KS, NS, NBUF, W, NSET, int(OPT.get('tdelta', 1)), rd_m, rd_n, dma,
               lambda t, j, i: vA[(j, i)], lambda t, ks: t == 0 and ks == 0, vM, vN, sLoop,
               after_last_dma=ald if (pf and not (LNF and OPT.get('pfpos', 'end') != 'mid')) else None, stage_extra=(lambda t: pfp if t == 1 else []) if (pf2 and not LNF) else None, n_static=LNF)
        k.e("s_nop 7")
        k.e("s_nop 3")
        stamp(k, 3)
        if kind == 'A1' and nxt_phase and PRE:
            k.e("s_barrier")
            pre_issue(k, nxt_phase, 180)
        if kind in ('A2', 'B2'):
            store_native(k, tiles, lambda j, i: vA[(j, i)], vO, SRO, sTmp, 0, None, 28, (rcfg[0] + 1) & 1)
        else:
            k.e("s_barrier")
            store_tiles_bf16(k, tiles, lambda j: vA[(j, 0)], vO, vO2, None, None, "", 28, neg=47)
        if gi == 0:
            k.e("s_branch %s" % ljoin)
    k.label(ljoin)
    if kind == 'A1':
        k.e("v_lshlrev_b32 v%d, 4, v0" % vT0)
        k.e("s_waitcnt lgkmcnt(0)")
        k.e("s_barrier")
        for n in range(3):
            k.e("ds_read_b128 %s, v%d offset:%d" % (vr(28 + 4 * n), vT0, n * 8192))
        for n in range(3):
            k.e("s_mov_b32 s%d, %d" % (sTmp, n * 8192))
            k.e("s_waitcnt lgkmcnt(%d)" % (2 - n))
            k.e("buffer_store_dwordx4 %s, v%d, %s, s%d offen" % (vr(28 + 4 * n), vT0, sr(SRO), sTmp))
    if LNF and pf and OPT.get('pfpos', 'end') == 'end':
        pf_emit()
    if rcfg:
        k.e("s_lshl_b32 s39, s36, 2")
        k.e("s_add_u32 s39, s39, s38")
        nv = r_tail(k, rcfg, 4, sW, vLane, 37, 39, NBUF * STB, WSP, xn, nxt_phase)
        nvgpr = max(nvgpr, nv)
    elif not LNF:
        stamp(k, 4)
    if not LNF:
        stamp(k, 6)
    stamp_store(k, kidx)
    if pub is not None:
        if rcfg:
            k.e("s_lshl_b32 s44, s37, 4")
            k.e("s_add_u32 s44, s44, s39")
        else:
            k.e("s_mov_b32 s44, s2")
        publish(k, pub, 44, sW)
    return nvgpr, LDSB


def gen_b1(k, kidx=0, pf=(), xn=None, h=None, dep=None, pub=None, nxt_phase=None, pf2=()):
    nwg = 256
    k.pend = []
    if not int(OPT.get('pf2', 1)):
        pf2 = ()
    NBUF, NS, KS = int(OPT.get('b1nb', 3)), 18, 1
    NTB = 256 * 64
    STB = NTB + 2 * 9216
    W = int(OPT.get('b1w', 10))
    NFR = 4
    vLane, vT0, vT1, vT2, vT3, vT4 = 1, 2, 3, 4, 5, 6
    vO = 7
    vDN = 8
    vDM = [9, 10]
    vRN = [12 + b for b in range(NBUF)]
    vRM = [16 + b for b in range(NBUF)]
    nxt = 20
    vM = [nxt + 4 * j for j in range(W)]; nxt += 4 * W
    vN = [[nxt + 4 * (p * NFR + i) for i in range(NFR)] for p in range(2)]; nxt += 8 * NFR
    vAbase = nxt
    nxt += 160
    vPF = nxt
    vPFA = nxt + 1
    nxt += 2
    nvgpr = nxt
    assert nvgpr <= 256
    sW, sW1024, sW256, sKN, sKM, sTmp, sLoop = 28, 29, 30, 31, 32, 33, 39
    SRN, SRM, SRO, SRQ = 12, [16, 20], 24, 40
    if not PF:
        pf = ()
    stamp(k, 0, 1)
    k.e("s_load_dwordx2 s[4:5], s[0:1], %d" % KA_WS)
    k.e("s_load_dwordx4 s[8:11], s[0:1], %d" % KA_WG)
    pf2_loads(k, pf2)
    k.e("v_and_b32 v%d, 63, v0" % vLane)
    k.e("v_lshrrev_b32 v%d, 6, v0" % vT0)
    k.e("s_nop 0")
    k.e("v_readfirstlane_b32 s%d, v%d" % (sW, vT0))
    k.e("s_and_b32 s34, s2, 7")
    k.e("s_lshr_b32 s35, s2, 3")
    k.e("s_lshl_b32 s38, s34, 2")
    k.e("s_and_b32 s36, s35, 3")
    k.e("s_add_u32 s38, s38, s36")
    k.e("s_lshr_b32 s37, s35, 2")
    k.e("s_lshl_b32 s%d, s%d, 10" % (sW1024, sW))
    k.e("s_and_b32 s44, s%d, 3" % sW)
    k.e("s_lshl_b32 s%d, s44, 8" % sW256)
    k.e("s_lshr_b32 s45, s%d, 2" % sW)
    k.e("s_mul_i32 s45, s45, 9216")
    k.e("s_add_u32 s%d, s%d, s45" % (sW256, sW256))
    k.e("v_lshrrev_b32 v%d, 2, v%d" % (vT0, vLane))
    k.e("s_lshl_b32 s%d, s%d, 4" % (sTmp, sW))
    k.e("v_add_u32 v%d, s%d, v%d" % (vT0, sTmp, vT0))
    k.e("v_lshrrev_b32 v%d, 2, v%d" % (vT1, vT0))
    k.e("v_sub_u32 v%d, 0, v%d" % (vT1, vT1))
    k.e("v_xor_b32 v%d, v%d, v%d" % (vT1, vT1, vLane))
    k.e("v_and_b32 v%d, 3, v%d" % (vT1, vT1))
    k.e("v_mul_u32_u24 v%d, 1152, v%d" % (vDN, vT0))
    k.e("v_lshl_add_u32 v%d, v%d, 4, v%d" % (vDN, vT1, vDN))
    T5 = (vT0, vT1, vT2, vT3, vT4)
    k.e("s_lshl_b32 s%d, s%d, 6" % (sTmp, sW))
    tr_voff(k, vDM[0], sTmp, vLane, T5, 9216, 0x13)
    k.e("s_lshl_b32 s%d, s44, 4" % sTmp)
    k.e("s_add_u32 s%d, s%d, 512" % (sTmp, sTmp))
    tr_voff(k, vDM[1], sTmp, vLane, T5, 9216, 0x13)
    k.e("s_mov_b32 s%d, 0" % sKN)
    k.e("s_mov_b32 s%d, 0" % sKM)
    k.e("s_waitcnt lgkmcnt(0)")
    k.e("s_mul_i32 s44, s37, %d" % (256 * 1152))
    srd(k, SRN, 4, xn, 44, xn + XB)
    k.e("s_mul_i32 s44, s38, 288")
    srd(k, SRM[0], 8, 0, 44, D * F * 2)
    srd(k, SRM[1], 10, 0, 44, D * F * 2)
    k.e("s_cmp_lt_u32 s%d, 4" % sW)
    for x in range(3):
        k.e("s_cselect_b32 s%d, s%d, s%d" % (SRQ + x, SRM[0] + x, SRM[1] + x))
    k.e("s_mov_b32 s%d, 0x20000" % (SRQ + 3))

    def dma_n(stage):
        tag = "D%d" % stage
        base = (stage % NBUF) * STB
        return [(tag, ["s_add_u32 m0, s%d, 0x%x" % (sW1024, base), "s_nop 0",
                       "buffer_load_dwordx4 v%d, %s, s%d offen lds" % (vDN, sr(SRN), sKN)]),
                (tag, ["s_add_u32 m0, s%d, 0x%x" % (sW1024, base + 8192), "s_add_u32 s%d, s%d, 0x%x" % (sTmp, sKN, 128 * 1152),
                       "buffer_load_dwordx4 v%d, %s, s%d offen lds" % (vDN, sr(SRN), sTmp),
                       "s_add_u32 s%d, s%d, 64" % (sKN, sKN)])]

    def dma_m(stage):
        tag = "D%d" % stage
        base = (stage % NBUF) * STB
        P = []
        for mat in range(2):
            P.append((tag, ["s_add_u32 m0, s%d, 0x%x" % (sW1024, base + NTB + mat * 9216), "s_nop 0",
                            "buffer_load_dwordx4 v%d, %s, s%d offen lds" % (vDM[0], sr(SRM[mat]), sKM)]))
        P.append((tag, ["s_add_u32 m0, s%d, 0x%x" % (sW256, base + NTB + 8192), "s_mov_b64 exec, 0xffff",
                        "buffer_load_dwordx4 v%d, %s, s%d offen lds" % (vDM[1], sr(SRQ), sKM),
                        "s_mov_b64 exec, -1",
                        "s_add_u32 s%d, s%d, 0x%x" % (sKM, sKM, 32 * 9216)]))
        return P

    def dma(stage):
        return dma_n(stage) + dma_m(stage)

    def emit(P):
        for tag, L in P:
            for x in L:
                k.e(x, tag)

    if dep is None:
        for stg in range(NBUF):
            emit(dma(stg))
    else:
        if dep == 'pre':
            for stg in range(NBUF):
                emit(dma_m(stg))
            raise PreDone()
        if PRE:
            k.e("s_mov_b32 s%d, 0x%x" % (sKM, NBUF * 32 * 9216))
        elif not POLLF:
            for stg in range(NBUF):
                emit(dma_m(stg))
        elif POLLF == 2:
            emit(dma_m(0))
        k.e("s_lshl_b32 s44, s37, 5")
        k.e("v_add_u32 v%d, s44, v%d" % (vT0, vLane))
        wait_flags(k, dep, 32, vT0, vT1)
        for stg in range(NBUF):
            emit(dma_n(stg))
            if POLLF and not PRE and not (POLLF == 2 and stg == 0):
                emit(dma_m(stg))
    if pf2:
        pf2_setup(k, pf2, sW, vLane, vPFA)
    pfp = [("PF", ["buffer_load_dword v%d, v%d, s[60:63], 0 offen" % (vPF, vPFA)])]
    k.e("v_and_b32 v%d, 15, v%d" % (vT0, vLane))
    k.e("v_lshrrev_b32 v%d, 4, v%d" % (vT1, vLane))
    k.e("v_lshrrev_b32 v%d, 2, v%d" % (vT2, vT0))
    k.e("v_sub_u32 v%d, 0, v%d" % (vT2, vT2))
    k.e("v_xor_b32 v%d, v%d, v%d" % (vT2, vT2, vT1))
    k.e("v_and_b32 v%d, 3, v%d" % (vT2, vT2))
    k.e("v_lshlrev_b32 v%d, 4, v%d" % (vT2, vT2))
    k.e("v_lshl_add_u32 v%d, v%d, 6, v%d" % (vT2, vT0, vT2))
    k.e("s_and_b32 s%d, s%d, 3" % (sTmp, sW))
    k.e("s_lshl_b32 s%d, s%d, 12" % (sTmp, sTmp))
    k.e("v_add_u32 v%d, s%d, v%d" % (vT3, sTmp, vT2))
    for b in range(NBUF):
        k.e("v_add_u32 v%d, 0x%x, v%d" % (vRN[b], b * STB, vT3))
    tr_raddr(k, vT2, vLane, vT3)
    for b in range(NBUF):
        k.e("v_add_u32 v%d, 0x%x, v%d" % (vRM[b], b * STB + NTB, vT2))
    k.e("s_lshl_b32 s44, s37, 3")
    k.e("s_and_b32 s46, s%d, 3" % sW)
    k.e("s_lshl_b32 s46, s46, 1")
    k.e("s_add_u32 s44, s44, s46")
    k.e("s_mul_i32 s44, s44, 288")
    k.e("s_mul_i32 s46, s38, 9")
    k.e("s_add_u32 s44, s44, s46")
    k.e("s_lshl_b32 s44, s44, 10")
    srd(k, SRO, 4, h, 44, h + HB)
    k.e("v_lshlrev_b32 v%d, 4, v%d" % (vO, vLane))
    k.e("s_mov_b32 s46, 0x%08x" % f32bits(-1.4426950408889634))
    k.e("s_mov_b32 s47, s46")
    stamp(k, 1)
    k.vneed("D0")
    k.e("s_barrier")
    stamp(k, 2)
    ljoin = k.newlabel("LJ")
    lg1 = k.newlabel("LG")
    k.e("s_cmp_ge_u32 s%d, 4" % sW)
    k.e("s_cbranch_scc1 %s" % lg1)
    vm_save = list(k.vm)
    for gi, js in enumerate((list(range(5)), list(range(5, 9)))):
        if gi:
            k.label(lg1)
            k.vm = list(vm_save)
        tiles = [(m, j) for j in js for m in range(2)]
        vA = {(t, i): vAbase + 4 * (ti * NFR + i) for ti, t in enumerate(tiles) for i in range(NFR)}

        def rd_m(stg, ks, t, reg, tag):
            o = t[0] * 9216 + t[1] * 32
            k.lds("ds_read_b64_tr_b16 %s, v%d offset:%d" % (vr(reg, 2), vRM[stg % NBUF], o), tag)
            k.lds("ds_read_b64_tr_b16 %s, v%d offset:%d" % (vr(reg + 2, 2), vRM[stg % NBUF], o + 2304), tag)

        def rd_n(stg, ks, i, reg, tag):
            k.lds("ds_read_b128 %s, v%d offset:%d" % (vr(reg), vRN[stg % NBUF], i * 1024), tag)

        Wg = min(W, len(tiles))
        engine(k, tiles, NFR, KS, NS, NBUF, Wg, 2, int(OPT.get('delta', 2)), rd_m, rd_n, dma,
               lambda t, tl, i: vA[(tl, i)], lambda t, ks: t == 0, vM, vN, sLoop,
               stage_extra=(lambda t: pfp if t == 1 else []) if pf2 else None)
        k.e("s_nop 7")
        k.e("s_nop 3")
        stamp(k, 3)
        if nxt_phase and PRE:
            k.e("s_barrier")
            pre_issue(k, nxt_phase, 40)
        TB = 20
        n = 0
        for pr in range(2):
            for jn, j in enumerate(js):
                o = TB + 4 * (n % 4)
                n += 1
                for i in range(2):
                    g = vA[((0, j), 2 * pr + i)]
                    u_ = vA[((1, j), 2 * pr + i)]
                    if OPT.get('nosig'):
                        pass
                    elif int(OPT.get('pk', 0)):
                        for r in (0, 2):
                            k.e("v_pk_mul_f32 %s, %s, s[46:47]" % (vr(g + r, 2), vr(g + r, 2)))
                        for r in range(4):
                            k.e("v_exp_f32 v%d, v%d" % (g + r, g + r))
                        for r in (0, 2):
                            k.e("v_pk_add_f32 %s, %s, 1.0 op_sel_hi:[1,0]" % (vr(g + r, 2), vr(g + r, 2)))
                        for r in range(4):
                            k.e("v_rcp_f32 v%d, v%d" % (g + r, g + r))
                        k.e("s_nop 0")
                        for r in (0, 2):
                            k.e("v_pk_mul_f32 %s, %s, %s" % (vr(g + r, 2), vr(g + r, 2), vr(u_ + r, 2)))
                    else:
                        for r in range(4):
                            k.e("v_mul_f32 v%d, s46, v%d" % (g + r, g + r))
                        for r in range(4):
                            k.e("v_exp_f32 v%d, v%d" % (g + r, g + r))
                        for r in range(4):
                            k.e("v_add_f32 v%d, 1.0, v%d" % (g + r, g + r))
                        for r in range(4):
                            k.e("v_rcp_f32 v%d, v%d" % (g + r, g + r))
                        for r in range(4):
                            k.e("v_mul_f32 v%d, v%d, v%d" % (g + r, g + r, u_ + r))
                    k.e("v_cvt_pk_bf16_f32 v%d, v%d, v%d" % (o + 2 * i, g, g + 1))
                    k.e("v_cvt_pk_bf16_f32 v%d, v%d, v%d" % (o + 2 * i + 1, g + 2, g + 3))
                if jn % 4 == 0:
                    k.e("s_mov_b32 s%d, %d" % (sTmp, (pr * 288 + j) * 1024))
                else:
                    k.e("s_nop 0")
                k.e("s_nop 0")
                k.e("v_permlane16_swap_b32 v%d, v%d" % (o, o + 2))
                k.e("v_permlane16_swap_b32 v%d, v%d" % (o + 1, o + 3))
                k.e("s_nop 0")
                if not OPT.get('nohst'):
                    k.e("buffer_store_dwordx4 %s, v%d, %s, s%d offen offset:%d%s" % (vr(o), vO, sr(SRO), sTmp, (jn % 4) * 1024, OPT.get('hflag', '').replace('_', ' ')))
        if gi == 0:
            k.e("s_branch %s" % ljoin)
    k.label(ljoin)
    stamp(k, 4)
    stamp_store(k, kidx)
    if pub is not None:
        k.e("s_lshl_b32 s44, s37, 5")
        k.e("s_add_u32 s44, s44, s38")
        publish(k, pub, 44, sW)
    return nvgpr, NBUF * STB


def main():
    phases = [
        lambda k, d, p, nx: gen_gemm(k, 'A1L', None, 0, ab=WS_AB, pf2=((KA_CR, S * S * 2), (KA_CI, S * S * 2)), dep=d, pub=p, nxt_phase=nx),
        lambda k, d, p, nx: gen_gemm(k, 'A2', (0, ('in', KA_X), ('ws', WS_X1), True), 1, xn=WS_XN, ab=WS_AB, pf2=((KA_WG, D * F * 2), (KA_WU, D * F * 2)), dep=d, pub=p, nxt_phase=nx),
        lambda k, d, p, nx: gen_b1(k, 2, xn=WS_XN, h=WS_H, pf2=((KA_WD, D * F * 2),), dep=d, pub=p, nxt_phase=nx),
        lambda k, d, p, nx: gen_gemm(k, 'B2', (1, ('ws', WS_X1), ('ws', WS_X2), True), 3, xn=WS_XNB, h=WS_H, dep=d, pub=p, nxt_phase=nx),
        lambda k, d, p, nx: gen_gemm(k, 'A1', None, 4, xn=WS_XNB, ab=WS_AB2, dep=d, pub=p, nxt_phase=nx),
        lambda k, d, p, nx: gen_gemm(k, 'A2', (2, ('ws', WS_X2), ('ws', WS_X3), True), 5, xn=WS_XNC, ab=WS_AB2, dep=d, pub=p, nxt_phase=nx),
        lambda k, d, p, nx: gen_b1(k, 6, xn=WS_XNC, h=WS_H2, dep=d, pub=p, nxt_phase=nx),
        lambda k, d, p, nx: gen_gemm(k, 'B2', (3, ('ws', WS_X3), ('out', 0), False), 7, h=WS_H2, dep=d, pub=p, nxt_phase=nx),
    ]
    grouping = [[int(c) for c in g] for g in OPT.get('merge', '01234567').split('-')]
    ks = {}
    order = []
    for gi, g in enumerate(grouping):
        name = MAIN + "_kernel" if gi == 0 else "p%s_kernel" % "".join(str(x) for x in g)
        k = K(name)
        header(k, 256)
        nv, lds = 0, 0
        for n, ph in enumerate(g):
            a, b = phases[ph](k, (ph - 1) if n else None, ph if n + 1 < len(g) else None, phases[ph + 1] if n + 1 < len(g) else None)
            nv, lds = max(nv, a), max(lds, b)
        footer(k, nv, 102)
        ks[name] = (k, 256, 512, lds)
        order.append(name)
    out = ["; FNet (DFT matmul) + GLU interleaved layers; generated by gen3.py"]
    for n in order:
        kk, nwg, blk, lds = ks[n]
        out.append("; @launch kernel=%s grid=(%d,1,1) block=(%d,1,1) lds=%d" % (kk.name, nwg, blk, lds))
    out.append('.amdgcn_target "amdgcn-amd-amdhsa--gfx950"')
    out.append(".text")
    for n, (kk, nwg, blk, lds) in ks.items():
        out.append(".globl %s" % kk.name)
        out += kk.lines
    open(sys.argv[1] if len(sys.argv) > 1 else "cdna_kernels/%s.s" % MAIN, "w").write("\n".join(out) + "\n")


if __name__ == "__main__":
    main()
```

```python
import sys, os, struct
OPT = dict(x.split('=') for x in os.environ.get('GENOPT', '').split(',') if x)
STAMP = int(OPT.get('stamp', 0))
PF = int(OPT.get('pf', 0))
STF = {'': '', 'sc1': ' sc1', 'nt': ' nt', 'sc01': ' sc0 sc1'}[OPT.get('stf', 'sc01')]
XF = {'sc1': ' sc1', 'sc01': ' sc0 sc1'}[OPT.get('xf', 'sc01')]

LF = {'x': XF, 'p': '', 'sc1': ' sc1', 'nt': ' nt'}[OPT.get('lf', 'x')]
PRE = int(OPT.get('pre', 0))
POLLF = int(OPT.get('pollf', 0))
MAIN = "interleave_layers__spectral_fnet__glu_gated_glu__prompt"
S, D, F = 2048, 576, 4608
KA_X, KA_CR, KA_CI, KA_WR, KA_WI, KA_BX, KA_WG, KA_WU, KA_WD, KA_OUT, KA_DBG, KA_WS = [8 * i for i in range(12)]
WS_XN = 0x0000000
WS_X1 = 0x0400000
WS_X2 = 0x0800000
WS_AB = 0x0C00000
WS_XNB = 0x2000000
WS_XNC = 0x2400000
WS_X3 = 0x2800000
WS_AB2 = 0x5800000
WS_H2 = 0x4400000
WS_FL = 0x1200000
WS_P = 0x1400000
WS_P2 = 0x1E00000
WS_H = 0x3000000
HB = S * F * 2
WS_DBG = 0x8000000
XB = S * D * 2
MTB = 18432


def f32bits(x):
    return struct.unpack("<I", struct.pack("<f", x))[0]


class K:
    def __init__(self, name):
        self.name = name
        self.lines = []
        self.pend = []
        self.vm = []
        self.nlab = 0

    def e(self, s, vtag=None):
        if s.startswith('buffer_store') and ' sc' not in s:
            s += STF
        if s.startswith('buffer_') or s.startswith('global_'):
            self.vm.append(vtag)
        self.lines.append("    " + s)

    def label(self, l):
        self.lines.append(l + ":")

    def newlabel(self, p="L"):
        self.nlab += 1
        return "%s_%s_%d" % (p, self.name[-12:], self.nlab)

    def lds(self, s, tag):
        if OPT.get('nolds') and tag[0] in OPT.get('nolds'):
            return
        if len(self.pend) >= 15:
            self.e("s_waitcnt lgkmcnt(13)")
            self.pend = self.pend[-13:]
        self.e(s)
        self.pend.append(tag)

    def need(self, *tags):
        idx = -1
        for i, p in enumerate(self.pend):
            if p in tags:
                idx = i
        if idx < 0:
            return
        n = min(len(self.pend) - 1 - idx, 14)
        self.e("s_waitcnt lgkmcnt(%d)" % n)
        self.pend = self.pend[len(self.pend) - n:] if n else []

    def vneed(self, tag, lgkm0=False):
        idx = -1
        for i, p in enumerate(self.vm):
            if p == tag:
                idx = i
        extra = " lgkmcnt(0)" if lgkm0 else ""
        if lgkm0:
            self.pend = []
        if idx < 0:
            if lgkm0:
                self.e("s_waitcnt lgkmcnt(0)")
            return
        n = len(self.vm) - 1 - idx
        assert n < 63
        self.e("s_waitcnt vmcnt(%d)%s" % (n, extra))
        self.vm = self.vm[len(self.vm) - n:] if n else []

    def vm0(self):
        self.e("s_waitcnt vmcnt(0)")
        self.vm = []


def vr(b, n=4):
    return "v[%d:%d]" % (b, b + n - 1)


def sr(b, n=4):
    return "s[%d:%d]" % (b, b + n - 1)


def header(k, nwg):
    k.lines.append(".p2align 8")
    k.lines.append(".type %s,@function" % k.name)
    k.label(k.name)
    k.e("s_cmp_ge_u32 s2, %d" % nwg)
    k.e("s_cbranch_scc1 L_end_%s" % k.name)


def footer(k, nvgpr, nsgpr=64):
    k.label("L_end_%s" % k.name)
    k.e("s_endpgm")
    acc = (nvgpr + 3) // 4 * 4
    k.lines.append(""".section .rodata,"a"
.p2align 6
.amdhsa_kernel %s
  .amdhsa_next_free_vgpr %d
  .amdhsa_next_free_sgpr %d
  .amdhsa_accum_offset %d
  .amdhsa_group_segment_fixed_size 0
  .amdhsa_kernarg_size 96
  .amdhsa_user_sgpr_count 2
  .amdhsa_user_sgpr_kernarg_segment_ptr 1
  .amdhsa_system_sgpr_workgroup_id_x 1
.end_amdhsa_kernel
.text""" % (k.name, nvgpr, nsgpr, acc))


def srd(k, d, pbase, off_const, off_sgpr, total):
    k.e("s_add_u32 s%d, s%d, 0x%x" % (d, pbase, off_const))
    k.e("s_addc_u32 s%d, s%d, 0" % (d + 1, pbase + 1))
    if off_sgpr is None:
        k.e("s_mov_b32 s%d, 0x%x" % (d + 2, total - off_const))
    else:
        k.e("s_add_u32 s%d, s%d, s%d" % (d, d, off_sgpr))
        k.e("s_addc_u32 s%d, s%d, 0" % (d + 1, d + 1))
        k.e("s_sub_u32 s%d, 0x%x, s%d" % (d + 2, total - off_const, off_sgpr))
    k.e("s_and_b32 s%d, s%d, 0xffff" % (d + 1, d + 1))
    k.e("s_mov_b32 s%d, 0x20000" % (d + 3))


SB = 76


def stamp(k, idx, real=0):
    if not STAMP or (STAMP == 2 and not real):
        return
    if OPT.get('pst') and idx in (4, 5, 6) and getattr(k, 'st%d' % idx, False):
        return
    if OPT.get('pst') and idx == 4:
        return
    setattr(k, 'st%d' % idx, True)
    k.e("s_memtime s[%d:%d]" % (SB + 2 * idx, SB + 1 + 2 * idx))
    if real:
        k.e("s_memrealtime s[%d:%d]" % (SB + 16 + 2 * real - 2, SB + 17 + 2 * real - 2))
    k.e("s_waitcnt lgkmcnt(0)")
    k.pend = []


def stamp_store(k, kidx):
    if not STAMP:
        return
    k.vm0()
    stamp(k, 7, 2)
    if STAMP == 2:
        k.e("s_cmp_lg_u32 s2, 100")
        k.e("s_cbranch_scc1 L_end_%s" % k.name)
        k.e("s_load_dwordx2 s[24:25], s[0:1], %d" % KA_DBG)
        k.e("s_waitcnt lgkmcnt(0)")
        k.e("s_add_u32 s24, s24, %d" % ((7 - kidx) * 512 + kidx * 8))
        k.e("s_addc_u32 s25, s25, 0")
        k.e("s_and_b32 s25, s25, 0xffff")
        k.e("s_mov_b32 s26, 8")
        k.e("s_mov_b32 s27, 0x20000")
        k.e("v_cmp_eq_u32 vcc, 0, v0")
        k.e("s_and_saveexec_b64 s[46:47], vcc")
        k.e("s_cbranch_execz L_end_%s" % k.name)
        k.e("v_mov_b32 v1, 0")
        k.e("v_mov_b32 v2, s%d" % (SB + 16))
        k.e("v_mov_b32 v3, s%d" % (SB + 18))
        k.e("buffer_store_dwordx2 v[2:3], v1, s[24:27], 0 offen")
        return
    k.e("s_lshl_b32 s44, s2, 7")
    k.e("s_add_u32 s44, s44, 0x%x" % (kidx * 65536))
    srd(k, 24, 4, WS_DBG, 44, WS_DBG + 16 * 65536)
    lsk = k.newlabel("LSS")
    k.e("v_cmp_eq_u32 vcc, %d, v0" % (64 * int(OPT.get('sw', 0))))
    k.e("s_and_saveexec_b64 s[46:47], vcc")
    k.e("s_cbranch_execz %s" % lsk)
    k.e("v_mov_b32 v1, 0")
    for i in range(10):
        k.e("v_mov_b32 v2, s%d" % (SB + 2 * i))
        k.e("v_mov_b32 v3, s%d" % (SB + 1 + 2 * i))
        k.e("buffer_store_dwordx2 v[2:3], v1, s[24:27], 0 offen offset:%d" % (8 * i))
        k.e("s_nop 1")
    k.label(lsk)
    k.e("s_mov_b64 exec, -1")
    k.vm0()


import re as _re


def remap_line(line, vb, sb=52):
    def rv(m):
        n = int(m.group(1))
        return "v%d" % (n + vb if n else 0)

    def rvr(m):
        return "v[%d:%d]" % (int(m.group(1)) + vb, int(m.group(2)) + vb)

    def rs(m):
        n = int(m.group(1))
        return "s%d" % (n + sb if n >= 6 else n)

    def rsr(m):
        a, b = int(m.group(1)), int(m.group(2))
        return "s[%d:%d]" % ((a + sb, b + sb) if a >= 6 else (a, b))
    line = _re.sub(r"\bv\[(\d+):(\d+)\]", rvr, line)
    line = _re.sub(r"\bv(\d+)\b", rv, line)
    line = _re.sub(r"\bs\[(\d+):(\d+)\]", rsr, line)
    line = _re.sub(r"\bs(\d+)\b", rs, line)
    return line


class PreDone(Exception):
    pass


def pre_issue(k, phase, vb):
    t = K(k.name)
    t.nlab = k.nlab + 1000
    try:
        phase(t, 'pre', None, None)
    except PreDone:
        pass
    k.nlab = t.nlab
    for l in t.lines:
        if l.strip().startswith(("s_load_dwordx2 s[4:5]", "s_load_dwordx2 s[48:49]", "s_load_dwordx2 s[50:51]")):
            continue
        k.lines.append(remap_line(l, vb))
    k.vm += ["PRE"] * len(t.vm)
    k.pend = []


def publish(k, farr, sIdx, sW):
    k.vm0()
    k.e("s_barrier")
    lsk = k.newlabel("LPB")
    k.e("s_cmp_lg_u32 s%d, 0" % sW)
    k.e("s_cbranch_scc1 %s" % lsk)
    if farr == 0:
        k.e("s_load_dwordx2 s[72:73], s[0:1], %d" % KA_DBG)
        k.e("s_waitcnt lgkmcnt(0)")
        srd(k, 72, 72, 0, None, 256)
        k.e("s_mov_b64 exec, 1")
        k.e("s_and_b32 s46, s2, 7")
        k.e("s_lshl_b32 s46, s46, 5")
        k.e("v_mov_b32 v2, s46")
        k.e("v_mov_b32 v3, 1")
        k.e("buffer_atomic_add v3, v2, s[72:75], 0 offen sc1")
    else:
        srd(k, 72, 4, WS_FL + farr * 1024, None, WS_FL + 8192)
        k.e("s_mov_b64 exec, 1")
        k.e("s_lshl_b32 s46, s%d, 2" % sIdx)
        k.e("v_mov_b32 v2, s46")
        k.e("v_mov_b32 v3, 1")
        k.e("buffer_store_dword v3, v2, s[72:75], 0 offen" + XF)
    k.e("s_mov_b64 exec, -1")
    k.label(lsk)
    k.vm = ["F"]


def wait_flags(k, farr, nl, vIdx, vT, sW=28):
    one = int(OPT.get('w1poll', 1))
    slp = int(OPT.get('fsleep', 0))
    lsk = k.newlabel("LFS")
    if one:
        k.e("s_cmp_lg_u32 s%d, 0" % sW)
        k.e("s_cbranch_scc1 %s" % lsk)
    vm_keep = list(k.vm)
    want = 1
    if farr == 0:
        k.e("s_load_dwordx2 s[72:73], s[0:1], %d" % KA_DBG)
        k.e("s_waitcnt lgkmcnt(0)")
        srd(k, 72, 72, 0, None, 256)
        k.e("v_and_b32 v%d, 63, v0" % vIdx)
        k.e("v_lshlrev_b32 v%d, 3, v%d" % (vIdx, vIdx))
        nl, want = 8, 32
    else:
        srd(k, 72, 4, WS_FL + farr * 1024, None, WS_FL + 8192)
    lp = k.newlabel("LFW")
    ld = k.newlabel("LFD")
    k.e("v_lshlrev_b32 v%d, 2, v%d" % (vIdx, vIdx))
    if nl < 64:
        k.e("s_mov_b64 exec, 0x%x" % ((1 << nl) - 1))
    k.e("s_mov_b32 s45, 0")
    k.label(lp)
    if slp:
        k.e("s_sleep %d" % slp)
    k.e("buffer_load_dword v%d, v%d, s[72:75], 0 offen%s" % (vT, vIdx, XF))
    k.vm0()
    k.e("v_cmp_ne_u32 vcc, %d, v%d" % (want, vT))
    k.e("s_nop 3")
    k.e("s_cmp_eq_u64 vcc, 0")
    k.e("s_cbranch_scc1 %s" % ld)
    k.e("s_add_u32 s45, s45, 1")
    k.e("s_cmp_lt_u32 s45, 0x100000")
    k.e("s_cbranch_scc1 %s" % lp)
    k.label(ld)
    k.e("s_mov_b64 exec, -1")
    if one:
        k.label(lsk)
        k.e("s_barrier")
        k.vm = vm_keep


def pf2_loads(k, items):
    for n, (ka, nb_) in enumerate(items):
        k.e("s_load_dwordx2 s[%d:%d], s[0:1], %d" % (56 + 2 * n, 57 + 2 * n, ka))


def pf2_setup(k, items, sW, vLane, vA_):
    stride = int(OPT.get('pfs', 128))
    ch = 64 * stride
    k.e("s_lshl_b32 s64, s2, 3")
    k.e("s_add_u32 s64, s64, s%d" % sW)
    k.e("s_mul_i32 s64, s64, %d" % ch)
    k.e("s_mov_b32 s60, s56")
    k.e("s_mov_b32 s61, s57")
    k.e("s_mov_b32 s62, 0x%x" % items[0][1])
    if len(items) == 2:
        lim = (items[0][1] + ch - 1) // ch * ch
        k.e("s_cmp_ge_u32 s64, 0x%x" % lim)
        k.e("s_cselect_b32 s60, s58, s60")
        k.e("s_cselect_b32 s61, s59, s61")
        k.e("s_cselect_b32 s65, 0x%x, 0" % lim)
        k.e("s_sub_u32 s64, s64, s65")
    k.e("s_and_b32 s61, s61, 0xffff")
    k.e("s_mov_b32 s63, 0x20000")
    k.e("v_mul_u32_u24 v%d, %d, v%d" % (vA_, stride, vLane))
    k.e("v_add_u32 v%d, s64, v%d" % (vA_, vA_))


def code_prefetch(k, sW, vLane, vA_, vD, SR, sTmp):
    if not int(OPT.get('cpf', 1)):
        return
    lab = k.newlabel("LPC")
    k.e("s_getpc_b64 s[%d:%d]" % (SR, SR + 1))
    k.label(lab)
    k.e("s_sub_u32 s%d, s%d, %s-%s" % (SR, SR, lab, k.name))
    k.e("s_subb_u32 s%d, s%d, 0" % (SR + 1, SR + 1))
    k.e("s_and_b32 s%d, s%d, 0xffff" % (SR + 1, SR + 1))
    k.e("s_mov_b32 s%d, L_end_%s-%s" % (SR + 2, k.name, k.name))
    k.e("s_mov_b32 s%d, 0x20000" % (SR + 3))
    k.e("s_lshr_b32 s%d, s2, 3" % sTmp)
    k.e("s_and_b32 s%d, s%d, 1" % (sTmp, sTmp))
    k.e("s_lshl_b32 s%d, s%d, 3" % (sTmp, sTmp))
    k.e("s_add_u32 s%d, s%d, s%d" % (sTmp, sTmp, sW))
    k.e("s_lshl_b32 s%d, s%d, 13" % (sTmp, sTmp))
    k.e("v_lshl_add_u32 v%d, v%d, 7, s%d" % (vA_, vLane, sTmp))
    k.e("buffer_load_dword v%d, v%d, %s, 0 offen" % (vD, vA_, sr(SR)), "C")


def wave_sum(k, v, sbase):
    for ctl in ("quad_perm:[1,0,3,2]", "quad_perm:[2,3,0,1]", "row_half_mirror", "row_mirror"):
        k.e("s_nop 1")
        k.e("v_add_f32_dpp %s, %s, %s %s row_mask:0xf bank_mask:0xf" % (v, v, v, ctl))
    k.e("s_nop 1")
    for i in range(4):
        k.e("v_readlane_b32 s%d, %s, %d" % (sbase + i, v, 16 * i))
    k.e("s_nop 1")
    k.e("v_mov_b32 %s, s%d" % (v, sbase))
    for i in range(1, 4):
        k.e("v_add_f32 %s, s%d, %s" % (v, sbase + i, v))


def r_body(k, vrow, vlane, ysrc, has_xout, ln, SX, SO, SN, hook=None, sLds=None):
    k.e("v_mul_u32_u24 v4, 1152, v%d" % vrow)
    k.e("v_lshl_add_u32 v7, v%d, 3, v4" % vlane)
    k.e("v_lshl_add_u32 v8, v%d, 1, v4" % vlane)
    k.e("buffer_load_dwordx2 v[10:11], v7, %s, 0 offen" % sr(SX), "X")
    k.e("buffer_load_dwordx2 v[12:13], v7, %s, 0 offen offset:512" % sr(SX), "X")
    k.e("buffer_load_ushort v14, v8, %s, 0 offen offset:1024" % sr(SX), "X")
    if hook:
        hook()
    X = 30
    A = 16
    if ysrc:
        ysrc()

    def row_store(p, SR, off, t):
        k.e("ds_write_b64 v40, %s offset:%d" % (vr(p, 2), off))
        k.e("ds_write_b64 v40, %s offset:%d" % (vr(p + 2, 2), off + 512))
        k.e("ds_write_b16 v41, v%d offset:%d" % (p + 4, off + 1024))
        k.e("s_waitcnt lgkmcnt(0)")
        k.e("ds_read_b128 %s, v42 offset:%d" % (vr(t), off))
        k.e("ds_read_b128 %s, v42 offset:%d" % (vr(t + 4), off + 1024))
        return lambda: (k.e("s_waitcnt lgkmcnt(0)"),
                        k.e("buffer_store_dwordx4 %s, v43, %s, 0 offen" % (vr(t), sr(SR))),
                        k.e("s_mov_b64 exec, 0xff"),
                        k.e("buffer_store_dwordx4 %s, v43, %s, 0 offen offset:1024" % (vr(t + 4), sr(SR))),
                        k.e("s_mov_b64 exec, -1"))
    if sLds is not None:
        k.e("v_lshl_add_u32 v40, v%d, 3, s%d" % (vlane, sLds))
        k.e("v_lshl_add_u32 v41, v%d, 1, s%d" % (vlane, sLds))
        k.e("v_lshl_add_u32 v42, v%d, 4, s%d" % (vlane, sLds))
        k.e("v_lshl_add_u32 v43, v%d, 4, v4" % vlane)
    fin_x = None
    k.vneed("X")
    for i, src in enumerate([10, 11, 12, 13]):
        k.e("v_lshlrev_b32 v%d, 16, v%d" % (X + 2 * i, src))
        k.e("v_and_b32 v%d, 0xffff0000, v%d" % (X + 2 * i + 1, src))
    k.e("v_lshlrev_b32 v%d, 16, v14" % (X + 8))
    if ysrc:
        for e in range(9):
            k.e("v_add_f32 v%d, v%d, v%d" % (X + e, X + e, A + e))
        for i in range(4):
            k.e("v_cvt_pk_bf16_f32 v%d, v%d, v%d" % (10 + i, X + 2 * i, X + 2 * i + 1))
        k.e("v_cvt_pk_bf16_f32 v14, v%d, v%d" % (X + 8, X + 8))
        if has_xout and sLds is not None:
            fin_x = row_store(10, SO, 0, 44)
            if not ln:
                fin_x()
        elif has_xout:
            k.e("buffer_store_dwordx2 v[10:11], v7, %s, 0 offen" % sr(SO))
            k.e("buffer_store_dwordx2 v[12:13], v7, %s, 0 offen offset:512" % sr(SO))
            k.e("buffer_store_short v14, v8, %s, 0 offen offset:1024" % sr(SO))
        if ln:
            for i, src in enumerate([10, 11, 12, 13]):
                k.e("v_lshlrev_b32 v%d, 16, v%d" % (X + 2 * i, src))
                k.e("v_and_b32 v%d, 0xffff0000, v%d" % (X + 2 * i + 1, src))
            k.e("v_lshlrev_b32 v%d, 16, v14" % (X + 8))
    if ln:
        k.e("v_add_f32 v20, v%d, v%d" % (X, X + 1))
        k.e("v_add_f32 v21, v%d, v%d" % (X + 2, X + 3))
        k.e("v_add_f32 v22, v%d, v%d" % (X + 4, X + 5))
        k.e("v_add_f32 v23, v%d, v%d" % (X + 6, X + 7))
        k.e("v_add_f32 v20, v20, v21")
        k.e("v_add_f32 v22, v22, v23")
        k.e("v_add_f32 v20, v20, v%d" % (X + 8))
        k.e("v_add_f32 v20, v20, v22")
        wave_sum(k, "v20", 32)
        k.e("v_mul_f32 v20, 0x%08x, v20" % f32bits(1.0 / D))
        for e in range(9):
            k.e("v_sub_f32 v%d, v%d, v20" % (X + e, X + e))
        k.e("v_mul_f32 v21, v%d, v%d" % (X, X))
        k.e("v_mul_f32 v22, v%d, v%d" % (X + 1, X + 1))
        for e in range(2, 9):
            k.e("v_fmac_f32 v%d, v%d, v%d" % (21 + (e & 1), X + e, X + e))
        k.e("v_add_f32 v21, v21, v22")
        wave_sum(k, "v21", 32)
        k.e("v_mov_b32 v22, 0x%08x" % f32bits(1e-5))
        k.e("v_fmac_f32 v22, 0x%08x, v21" % f32bits(1.0 / D))
        k.e("v_rsq_f32 v22, v22")
        k.e("s_nop 0")
        for e in range(9):
            k.e("v_mul_f32 v%d, v%d, v22" % (X + e, X + e))
        for i in range(4):
            k.e("v_cvt_pk_bf16_f32 v%d, v%d, v%d" % (24 + i, X + 2 * i, X + 2 * i + 1))
        k.e("v_cvt_pk_bf16_f32 v28, v%d, v%d" % (X + 8, X + 8))
        if sLds is not None:
            fin_n = row_store(24, SN, 1168, 52)
            fin_n()
            if fin_x:
                fin_x()
        else:
            k.e("buffer_store_dwordx2 v[24:25], v7, %s, 0 offen" % sr(SN))
            k.e("buffer_store_dwordx2 v[26:27], v7, %s, 0 offen offset:512" % sr(SN))
            k.e("buffer_store_short v28, v8, %s, 0 offen offset:1024" % sr(SN))


def gen_r0(name):
    k = K(name)
    nwg = S // 4
    header(k, nwg)
    k.e("s_load_dwordx2 s[4:5], s[0:1], %d" % KA_WS)
    k.e("s_load_dwordx2 s[6:7], s[0:1], %d" % KA_X)
    pf = [(KA_WR, D * D * 2), (KA_WI, D * D * 2), (KA_CR, S * S * 2), (KA_CI, S * S * 2)] if PF else []
    for n, (ka, nb_) in enumerate(pf):
        k.e("s_load_dwordx2 s[%d:%d], s[0:1], %d" % (40 + 4 * n, 41 + 4 * n, ka))
    k.e("v_lshrrev_b32 v1, 6, v0")
    k.e("v_and_b32 v2, 63, v0")
    k.e("s_lshl_b32 s3, s2, 2")
    k.e("v_add_u32 v1, s3, v1")
    k.e("s_waitcnt lgkmcnt(0)")
    srd(k, 12, 6, 0, None, XB)
    srd(k, 24, 4, WS_XN, None, WS_XN + XB)
    for n, (ka, nb_) in enumerate(pf):
        srd(k, 40 + 4 * n, 40 + 4 * n, 0, None, nb_)
    k.e("s_mul_i32 s3, s2, 18432")
    srd(k, 16, 4, WS_P, 3, WS_P + 4 * XB)
    k.e("s_mov_b32 s18, 18432")
    k.e("v_lshrrev_b32 v3, 6, v0")
    k.e("v_mul_u32_u24 v3, 5120, v3")
    k.e("v_lshl_add_u32 v3, v2, 4, v3")
    for r in range(4):
        k.e("v_mov_b32 v%d, 0" % (36 + r))
    for n in range(4):
        k.e("buffer_store_dwordx4 v[36:39], v3, s[16:19], 0 offen offset:%d" % (n * 1024))
    k.e("s_mov_b32 s3, 4096")
    k.e("buffer_store_dwordx4 v[36:39], v3, s[16:19], s3 offen")

    def hook():
        if pf:
            k.e("v_lshlrev_b32 v42, 12, v1")
            k.e("v_lshl_add_u32 v42, v2, 6, v42")
            for n in range(len(pf)):
                k.e("buffer_load_dword v43, v42, %s, 0 offen" % sr(40 + 4 * n))
    r_body(k, 1, 2, None, False, True, 12, None, 24, hook=hook)
    footer(k, 44, 60)
    return k, nwg, 256, 0


def engine(k, tiles, NFR, KS, NS, NBUF, W, NSET, DELTA, rd_m, rd_n, dma, acc, first, vM, vN, sLoop,
           n_static=False, after_use=None, after_last_dma=None, npre=None, stage_extra=None):
    nt = len(tiles)
    UPS = KS * nt
    total = NS * UPS
    NSL = W
    W = W - int(OPT.get('lag', 2))
    st = {'nrM': 0, 'nrN': 0, 'pub': 0, 'ald': False}
    k.pend = []

    BUD = int(OPT.get('bud', 3))

    def pump(udone, maxm=2):
        bud = BUD if maxm < 50 else 999
        while bud > 0:
            f = st['nrN']
            s_ = f // NFR
            okN = s_ < NS * KS and (n_static or s_ // KS <= st['pub']) and s_ - NSET < udone // nt
            u = st['nrM']
            okM = u < total and u // UPS <= st['pub'] and u - W < udone
            if okN and (not okM or s_ * nt <= u):
                rd_n(s_ // KS, s_ % KS, f % NFR, vN[s_ % NSET][f % NFR], "N%d" % (s_ % NSET))
                st['nrN'] += 1
                bud -= 1
            elif okM:
                stg, rem = divmod(u, UPS)
                ks, ti = divmod(rem, nt)
                rd_m(stg, ks, tiles[ti], vM[u % NSL], "M%d" % (u % NSL))
                st['nrM'] += 1
                bud -= 2
            else:
                break

    pump(0, maxm=99)
    pre = k.lines
    k.lines = []
    blocks = []
    pos = max(1, min(UPS, UPS - W + DELTA))
    for t in range(NS):
        last = (t == NS - 1)
        extras = []
        for r in range(UPS):
            u = t * UPS + r
            ks, ti = divmod(r, nt)
            s = t * KS + ks
            k.need("M%d" % (u % NSL), "N%d" % (s % NSET))
            for i in range(NFR):
                a = acc(t, tiles[ti], i)
                c = "0" if first(t, ks) else vr(a)
                if not (OPT.get('nomfma') and t > 0):
                    k.e("v_mfma_f32_16x16x32_bf16 %s, %s, %s, %s" % (vr(a), vr(vM[u % NSL]), vr(vN[s % NSET][i]), c))
            if not last and r + 1 == pos:
                assert st['nrM'] == (t + 1) * UPS, (st, t)
                assert n_static or st['nrN'] >= (t + 1) * KS * NFR, (st, t)
                k.vneed("D%d" % (t + 1), lgkm0=True)
                k.e("s_barrier")
                st['pub'] = t + 1
                if t + NBUF < NS:
                    extras = dma(t + NBUF)
                    if OPT.get('nodma'):
                        extras = [(tg, [x for x in L if not x.startswith('buffer_load')]) for tg, L in extras]
                    if OPT.get('dropdma'):
                        pat = {'n': 'v8,', 'm': ('v9,', 'v10,', 'v11,'), 'q': 'v11,'}[OPT['dropdma']]
                        pats = pat if isinstance(pat, tuple) else (pat,)
                        extras = [(tg, [x for x in L if not (x.startswith('buffer_load') and any(p in x for p in pats))]) for tg, L in extras]
                elif after_last_dma and not st['ald']:
                    st['ald'] = True
                    extras = after_last_dma()
                if stage_extra:
                    extras = extras + stage_extra(t)
            pump(u + 1)
            if after_use:
                after_use(t, r)
            if extras:
                left = UPS - r
                n = (len(extras) + left - 1) // left
                for _ in range(n):
                    tag, L = extras.pop(0)
                    for x in L:
                        k.e(x, tag)
        assert not extras
        blocks.append(k.lines)
        k.lines = []
    best = None
    for U in (1, 2, 3, 4, 6):
        for a in range(NS):
            bnd = a + U
            while bnd + U <= NS and all(blocks[bnd + x] == blocks[a + x] for x in range(U)):
                bnd += U
            cnt = (bnd - a) // U
            if cnt >= 2 and (best is None or (cnt - 1) * U > (best[2] - 1) * best[3]):
                best = (a, bnd, cnt, U)
    out = pre
    if best is None:
        for bl in blocks:
            out += bl
    else:
        a, bnd, cnt, U = best
        for bl in blocks[:a]:
            out += bl
        lab = k.newlabel("LP")
        out.append("    s_mov_b32 s%d, %d" % (sLoop, cnt))
        out.append(lab + ":")
        for bl in blocks[a:a + U]:
            out += bl
        out.append("    s_sub_u32 s%d, s%d, 1" % (sLoop, sLoop))
        out.append("    s_cmp_lg_u32 s%d, 0" % sLoop)
        out.append("    s_cbranch_scc1 %s" % lab)
        for bl in blocks[bnd:]:
            out += bl
    k.lines = out


def tr_voff(k, vdst, sslot, vLane, T, stride, posmask):
    t0, t1, t2, t3, t4 = T
    k.e("v_add_u32 v%d, s%d, v%d" % (t0, sslot, vLane))
    k.e("v_mul_u32_u24 v%d, 3641, v%d" % (t1, t0))
    k.e("v_lshrrev_b32 v%d, 16, v%d" % (t1, t1))
    k.e("v_mul_u32_u24 v%d, 18, v%d" % (t2, t1))
    k.e("v_sub_u32 v%d, v%d, v%d" % (t2, t0, t2))
    k.e("v_and_b32 v%d, 0x%x, v%d" % (t3, posmask, t1))
    k.e("v_and_b32 v%d, 4, v%d" % (t4, t1))
    k.e("v_lshl_or_b32 v%d, v%d, 1, v%d" % (t3, t4, t3))
    k.e("v_and_b32 v%d, 8, v%d" % (t4, t1))
    k.e("v_lshrrev_b32 v%d, 1, v%d" % (t4, t4))
    k.e("v_or_b32 v%d, v%d, v%d" % (t3, t3, t4))
    k.e("v_mul_u32_u24 v%d, %d, v%d" % (vdst, stride, t3))
    k.e("v_lshl_add_u32 v%d, v%d, 4, v%d" % (vdst, t2, vdst))


def tr_raddr(k, vdst, vLane, t):
    k.e("v_lshrrev_b32 v%d, 5, v%d" % (vdst, vLane))
    k.e("v_lshlrev_b32 v%d, 4, v%d" % (vdst, vdst))
    k.e("v_bfe_u32 v%d, v%d, 4, 1" % (t, vLane))
    k.e("v_lshl_add_u32 v%d, v%d, 2, v%d" % (vdst, t, vdst))
    k.e("v_bfe_u32 v%d, v%d, 2, 2" % (t, vLane))
    k.e("v_add_u32 v%d, v%d, v%d" % (vdst, vdst, t))
    k.e("v_mul_u32_u24 v%d, 288, v%d" % (vdst, vdst))
    k.e("v_and_b32 v%d, 3, v%d" % (t, vLane))
    k.e("v_lshl_add_u32 v%d, v%d, 3, v%d" % (vdst, t, vdst))


def store_tiles_bf16(k, js, accf, vO, vO2, SRO, soff, sfl, TB, neg=None, colbase=0):
    idx = 0
    slot = 0
    while idx < len(js):
        pr = js[idx:idx + 2]
        if len(pr) == 2 and pr[1] != pr[0] + 1:
            pr = pr[:1]
        o = TB + 4 * (slot % 4)
        for n_, j in enumerate(pr):
            a = accf(j)
            k.e("v_cvt_pk_bf16_f32 v%d, v%d, v%d" % (o + 2 * n_, a, a + 1))
            k.e("v_cvt_pk_bf16_f32 v%d, v%d, v%d" % (o + 2 * n_ + 1, a + 2, a + 3))
            if neg is not None:
                k.e("v_xor_b32 v%d, s%d, v%d" % (o + 2 * n_, neg, o + 2 * n_))
                k.e("v_xor_b32 v%d, s%d, v%d" % (o + 2 * n_ + 1, neg, o + 2 * n_ + 1))
        if len(pr) == 2:
            k.e("s_nop 1")
            k.e("v_permlane16_swap_b32 v%d, v%d" % (o, o + 2))
            k.e("v_permlane16_swap_b32 v%d, v%d" % (o + 1, o + 3))
            k.e("s_nop 0")
            if SRO is None:
                k.e("ds_write_b128 v%d, %s offset:%d" % (vO, vr(o), colbase + pr[0] * 32))
            else:
                k.e("buffer_store_dwordx4 %s, v%d, %s, s%d offen offset:%d%s" % (vr(o), vO, sr(SRO), soff, colbase + pr[0] * 32, sfl))
        elif SRO is None:
            k.e("ds_write_b64 v%d, %s offset:%d" % (vO2, vr(o, 2), colbase + pr[0] * 32))
        else:
            k.e("buffer_store_dwordx2 %s, v%d, %s, s%d offen offset:%d%s" % (vr(o, 2), vO2, sr(SRO), soff, colbase + pr[0] * 32, sfl))
        idx += len(pr)
        slot += 1


PREG = 36864


def store_native(k, tiles, accf, vP, SRO, sTmp, blk0, sblk, TB, par):
    for n, j in enumerate(tiles):
        o = TB + 4 * (n % 4)
        for i in range(2):
            a = accf(j, i)
            if par:
                k.e("v_and_b32 v%d, 0xfffe0000, v%d" % (a, a))
                k.e("v_or_b32 v%d, 0x10000, v%d" % (a, a))
            else:
                k.e("v_add_u32 v%d, 0x10000, v%d" % (a, a))
                k.e("v_and_b32 v%d, 0xfffe0000, v%d" % (a, a))
            k.e("v_cvt_pk_bf16_f32 v%d, v%d, v%d" % (o + 2 * i, a, a + 1))
            k.e("v_cvt_pk_bf16_f32 v%d, v%d, v%d" % (o + 2 * i + 1, a + 2, a + 3))
            k.e(("v_or_b32 v%d, 1, v%d" if par else "v_and_b32 v%d, -2, v%d") % (o + 2 * i, o + 2 * i))
        if n % 4 == 0:
            if sblk is None:
                k.e("s_mov_b32 s%d, %d" % (sTmp, (blk0 + j) * 1024))
            else:
                k.e("s_add_u32 s%d, s%d, %d" % (sTmp, sblk, (blk0 + j) * 1024))
        else:
            k.e("s_nop 0")
        k.e("s_nop 0")
        k.e("v_permlane16_swap_b32 v%d, v%d" % (o, o + 2))
        k.e("v_permlane16_swap_b32 v%d, v%d" % (o + 1, o + 3))
        k.e("s_nop 0")
        k.e("buffer_store_dwordx4 %s, v%d, %s, s%d offen offset:%d%s" % (vr(o), vP, sr(SRO), sTmp, (n % 4) * 1024, XF))


def r_tail(k, rcfg, npart, sW, vLane, sGroup, sMember, XBUF, WSP, XNO, nxt_phase=None):
    freg, xin, xout, ln = rcfg
    if xin[0] == 'in':
        srd(k, 12, 48, 0, None, XB)
    else:
        srd(k, 12, 4, xin[1], None, xin[1] + XB)
    k.e("s_lshr_b32 s46, s%d, 2" % sMember)
    k.e("s_lshl_b32 s47, s%d, 2" % sGroup)
    k.e("s_add_u32 s46, s46, s47")
    k.e("s_mul_i32 s46, s46, %d" % PREG)
    srd(k, 20, 4, WSP, 46, WSP + npart * XB)
    if xout[0] == 'out':
        srd(k, 24, 50, 0, None, XB)
    else:
        srd(k, 24, 4, xout[1], None, xout[1] + XB)
    if ln:
        srd(k, 52, 4, XNO, None, XNO + XB)
    stamp(k, 4)
    k.e("s_lshl_b32 s46, s%d, 7" % sGroup)
    k.e("s_lshl_b32 s47, s%d, 3" % sMember)
    k.e("s_add_u32 s46, s46, s47")
    k.e("s_add_u32 s46, s46, s%d" % sW)
    k.e("v_mov_b32 v2, s46")
    PB0 = 44
    par = (rcfg[0] + 1) & 1

    def ysrc():
        k.e("s_lshr_b32 s46, s%d, 1" % sMember)
        k.e("s_and_b32 s46, s46, 1")
        k.e("s_lshl_b32 s46, s46, 8")
        k.e("s_and_b32 s47, s%d, 1" % sMember)
        k.e("s_lshl_b32 s47, s47, 7")
        k.e("s_add_u32 s46, s46, s47")
        for n, (mul, add) in enumerate(((64, 0), (8, 512))):
            k.e("s_mul_i32 s47, s%d, %d" % (sW, mul))
            k.e("s_add_u32 s47, s47, %d" % add)
            k.e("v_add_u32 v3, s47, v%d" % vLane)
            k.e("v_lshrrev_b32 v5, 4, v3")
            k.e("v_lshlrev_b32 v5, 10, v5")
            k.e("v_bfe_u32 v6, v3, 3, 1")
            k.e("v_lshl_add_u32 v5, v6, 9, v5")
            k.e("v_and_b32 v6, 7, v3")
            k.e("v_lshl_add_u32 v5, v6, 4, v5")
            k.e("v_add_u32 v%d, s46, v5" % (40 + n))
            k.e("v_mul_u32_u24 v5, 2336, v6")
            k.e("v_lshrrev_b32 v6, 3, v3")
            k.e("v_lshl_add_u32 v5, v6, 5, v5")
            k.e("v_add_u32 v%d, 0x%x, v5" % (42 + n, XBUF))
        for z in range(npart):
            for r in range(4):
                k.e("v_mov_b32 v%d, %d" % (PB0 + 8 * z + 4 + r, par))
        AB_ = PB0 + 8 * npart
        lp = k.newlabel("LW")
        ld = k.newlabel("LD")
        k.e("s_mov_b32 s45, 0")
        k.label(lp)
        if int(OPT.get('psleep', 0)):
            k.e("s_sleep %d" % int(OPT.get('psleep', 0)))
        for z in range(npart):
            k.e("s_mov_b32 s47, 0x%x" % (z * 64 * PREG))
            k.e("buffer_load_dwordx4 %s, v40, s[20:23], s47 offen%s" % (vr(PB0 + 8 * z), XF))
            k.e("s_mov_b64 exec, 0xff")
            k.e("buffer_load_dwordx4 %s, v41, s[20:23], s47 offen%s" % (vr(PB0 + 8 * z + 4), XF))
            k.e("s_mov_b64 exec, -1")
        k.vm0()
        regs = list(range(PB0, PB0 + 8 * npart, 2))
        op3 = "v_and_b32" if par else "v_or_b32"
        k.e("%s v26, v%d, v%d" % (op3, regs[0], regs[1]))
        k.e("%s v27, v%d, v%d" % (op3, regs[2], regs[3]))
        rest = regs[4:]
        n = 0
        while rest:
            d = 26 + (n & 1)
            if par:
                k.e("v_and_b32 v%d, v%d, v%d" % (d, d, rest[0]))
                rest = rest[1:]
            else:
                k.e("v_or3_b32 v%d, v%d, v%d, v%d" % (d, d, rest[0], rest[1]))
                rest = rest[2:]
            n += 1
        k.e("%s v26, v26, v27" % op3)
        k.e("v_and_b32 v26, 1, v26")
        k.e("v_cmp_ne_u32 vcc, %d, v26" % par)
        k.e("s_nop 3")
        k.e("s_cmp_eq_u64 vcc, 0")
        k.e("s_cbranch_scc1 %s" % ld)
        k.e("s_add_u32 s45, s45, 1")
        k.e("s_cmp_lt_u32 s45, 0x100000")
        k.e("s_cbranch_scc1 %s" % lp)
        k.label(ld)
        stamp(k, 5)
        if False:
            for r in range(4):
                k.e("v_mov_b32 v%d, -1" % (AB_ + 16 + r))
            for z in range(npart):
                k.e("s_mov_b32 s47, 0x%x" % (z * 64 * PREG))
                k.e("buffer_store_dwordx4 %s, v40, s[20:23], s47 offen" % vr(AB_ + 16))
                k.e("s_mov_b64 exec, 0xff")
                k.e("buffer_store_dwordx4 %s, v41, s[20:23], s47 offen" % vr(AB_ + 16))
                k.e("s_mov_b64 exec, -1")
        for z in range(npart):
            for h in range(2):
                for r in range(4):
                    src = PB0 + 8 * z + 4 * h + r
                    a = AB_ + 8 * h + 2 * r
                    if z == 0:
                        k.e("v_lshlrev_b32 v%d, 16, v%d" % (a, src))
                        k.e("v_and_b32 v%d, 0xffff0000, v%d" % (a + 1, src))
                    else:
                        k.e("v_lshlrev_b32 v26, 16, v%d" % src)
                        k.e("v_and_b32 v27, 0xffff0000, v%d" % src)
                        k.e("v_add_f32 v%d, v%d, v26" % (a, a))
                        k.e("v_add_f32 v%d, v%d, v27" % (a + 1, a + 1))
        k.e("ds_write_b128 v42, %s" % vr(AB_))
        k.e("ds_write_b128 v42, %s offset:16" % vr(AB_ + 4))
        k.e("s_mov_b64 exec, 0xff")
        k.e("ds_write_b128 v43, %s" % vr(AB_ + 8))
        k.e("ds_write_b128 v43, %s offset:16" % vr(AB_ + 12))
        k.e("s_mov_b64 exec, -1")
        k.e("s_mul_i32 s47, s%d, 2336" % sW)
        k.e("s_add_u32 s47, s47, 0x%x" % XBUF)
        k.e("v_lshl_add_u32 v5, v%d, 4, s47" % vLane)
        k.e("v_lshl_add_u32 v6, v%d, 2, s47" % vLane)
        k.e("s_waitcnt lgkmcnt(0)")
        k.e("s_barrier")
        k.e("ds_read_b128 v[16:19], v5")
        k.e("ds_read_b128 v[20:23], v5 offset:1024")
        k.e("ds_read_b32 v24, v6 offset:2048")
        if nxt_phase and PRE:
            pre_issue(k, nxt_phase, 180)
        k.e("s_waitcnt lgkmcnt(0)")
    r_body(k, 2, vLane, ysrc, True, ln, 12, 24, 52, sLds=47 if int(OPT.get('rst', 0)) else None)
    return PB0 + 8 * npart + 20


def preset_pieces(k, sW, vLane, vA_, vD4, SR, sTmp, WSP):
    L = ["s_mul_i32 s%d, s2, %d" % (sTmp, PREG),
         "s_add_u32 s%d, s4, 0x%x" % (SR, WSP), "s_addc_u32 s%d, s5, 0" % (SR + 1),
         "s_add_u32 s%d, s%d, s%d" % (SR, SR, sTmp), "s_addc_u32 s%d, s%d, 0" % (SR + 1, SR + 1),
         "s_and_b32 s%d, s%d, 0xffff" % (SR + 1, SR + 1),
         "s_mov_b32 s%d, %d" % (SR + 2, PREG), "s_mov_b32 s%d, 0x20000" % (SR + 3),
         "s_mul_i32 s%d, s%d, 5120" % (sTmp, sW),
         "v_lshl_add_u32 v%d, v%d, 4, s%d" % (vA_, vLane, sTmp)]
    for r in range(4):
        L.append("v_mov_b32 v%d, -1" % (vD4 + r))
    P = [("S", L + ["buffer_store_dwordx4 %s, v%d, %s, 0 offen" % (vr(vD4), vA_, sr(SR))])]
    for n in range(1, 4):
        P.append(("S", ["buffer_store_dwordx4 %s, v%d, %s, 0 offen offset:%d" % (vr(vD4), vA_, sr(SR), n * 1024)]))
    P.append(("S", ["s_mov_b32 s%d, 4096" % sTmp, "buffer_store_dwordx4 %s, v%d, %s, s%d offen" % (vr(vD4), vA_, sr(SR), sTmp)]))
    return P


def gen_gemm(k, kind, rcfg=None, kidx=0, pf=(), xn=None, ab=None, h=None, dep=None, pub=None, nxt_phase=None, pf2=()):
    nwg = 256
    k.pend = []
    if not int(OPT.get('pf2', 1)):
        pf2 = ()
    LNF = (kind == 'A1L')
    if LNF:
        kind = 'A1'
    if kind == 'A2':
        NFR, NBUF, mmode, NS = 2, 4, 'tr', 16
        strideN, strideM = 4096, 288
    elif kind == 'B2':
        NFR, NBUF, mmode, NS = 2, 4, 'tr', 18
        strideN, strideM = 0, 1152
    else:
        NFR, NBUF, mmode, NS = 1, 4, 'row', 9
        strideN, strideM = 1152, 1152
    WSP, WSPO = WS_P, WS_P
    groups = [list(range(5)), list(range(5, 9))]
    NSET = 4
    NT = 4 * NFR * 16
    NTB = NT * 128
    STB = NTB + MTB
    NDN = NT // 64
    LDSB = NBUF * STB + (8 * 2336 if rcfg else 0)
    MB0 = NTB
    if LNF:
        STB, NDN, MB0 = MTB, 0, 73728
        LDSB = 73728 + NBUF * MTB
    KS = 2
    Wmul = float(OPT.get('twmul', 2.0))
    Wmax = int(5 * Wmul + 0.5)

    vLane, vT0, vT1, vT2, vT3, vT4 = 1, 2, 3, 4, 5, 6
    vO = 7
    vDN = 8
    vDM = [9, 10, 11]
    nxt = 12
    nrm = KS if mmode == 'row' else 1
    vRN = [[0] * KS for _ in range(NBUF)]
    vRM = [[0] * nrm for _ in range(NBUF)]
    for b in range(NBUF):
        for s_ in range(KS):
            vRN[b][s_] = nxt; nxt += 1
        for s_ in range(nrm):
            vRM[b][s_] = nxt; nxt += 1
    nxt = (nxt + 3) // 4 * 4
    vPA, vPS, vPD = nxt, nxt + 2, nxt + 3
    nxt += 4
    PD = int(OPT.get('pd', 0)) if kind in ('A2', 'B2') else 0
    vM = [nxt + 4 * j for j in range(Wmax)]; nxt += 4 * Wmax
    vN = [[nxt + 4 * (p * NFR + i) for i in range(NFR)] for p in range(NSET)]; nxt += 4 * NSET * NFR
    vAbase = nxt
    nxt += 4 * 5 * NFR
    nxt = max(nxt, 192 if LNF else 96, 196 if nxt_phase else 0)
    vPF = nxt
    vPFA = nxt + 1
    nxt += 2
    nvgpr = nxt
    sW, sW1024, sW256, sKN, sKM, sTmp, sLoop = 28, 29, 30, 31, 32, 33, 40
    SRN, SRM, SRO = 12, 16, 24
    if not PF:
        pf = ()

    stamp(k, 0, 1)
    if LNF and int(OPT.get('prio', 1)):
        k.e("s_setprio 3")
    k.e("s_load_dwordx2 s[4:5], s[0:1], %d" % KA_WS)
    if kind == 'A2':
        k.e("s_load_dwordx4 s[8:11], s[0:1], %d" % KA_CR)
    elif kind == 'B2':
        k.e("s_load_dwordx2 s[8:9], s[0:1], %d" % KA_WD)
    else:
        k.e("s_load_dwordx2 s[8:9], s[0:1], %d" % KA_WR)
        k.e("s_load_dwordx2 s[10:11], s[0:1], %d" % KA_WI)
    if LNF:
        k.e("s_load_dwordx2 s[48:49], s[0:1], %d" % KA_X)
    if rcfg:
        if rcfg[1][0] == 'in':
            k.e("s_load_dwordx2 s[48:49], s[0:1], %d" % rcfg[1][1])
        if rcfg[2][0] == 'out':
            k.e("s_load_dwordx2 s[50:51], s[0:1], %d" % KA_OUT)
    pf2_loads(k, pf2)
    k.e("v_and_b32 v%d, 63, v0" % vLane)
    k.e("v_lshrrev_b32 v%d, 6, v0" % vT0)
    k.e("s_nop 0")
    k.e("v_readfirstlane_b32 s%d, v%d" % (sW, vT0))
    k.e("s_and_b32 s34, s2, 7")
    k.e("s_lshr_b32 s35, s2, 3")
    if kind in ('A2', 'B2'):
        k.e("s_and_b32 s36, s34, 3")
        k.e("s_lshr_b32 s37, s34, 2")
        k.e("s_lshl_b32 s37, s37, 3")
        k.e("s_lshr_b32 s38, s35, 2")
        k.e("s_add_u32 s37, s37, s38")
        k.e("s_and_b32 s38, s35, 3")
    else:
        k.e("s_mov_b32 s38, s34")
        k.e("s_mov_b32 s37, s35")
    if LNF and OPT.get('cpos', 'x') == 'first':
        code_prefetch(k, sW, vLane, vT0, vPF, 72, sTmp)
    k.e("s_lshl_b32 s%d, s%d, 10" % (sW1024, sW))
    k.e("s_lshl_b32 s%d, s%d, 8" % (sW256, sW))
    k.e("v_lshrrev_b32 v%d, 3, v%d" % (vT0, vLane))
    k.e("s_lshl_b32 s%d, s%d, 3" % (sTmp, sW))
    k.e("v_add_u32 v%d, s%d, v%d" % (vT0, sTmp, vT0))
    k.e("v_bfe_u32 v%d, v%d, 1, 3" % (vT1, vT0))
    k.e("v_and_b32 v%d, 7, v%d" % (vT2, vLane))
    k.e("v_xor_b32 v%d, v%d, v%d" % (vT1, vT1, vT2))
    if kind == 'B2':
        k.e("s_lshr_b32 s44, s%d, 2" % sW)
        k.e("s_mul_i32 s44, s44, %d" % (288 * 1024))
        k.e("s_and_b32 s45, s%d, 3" % sW)
        k.e("s_lshl_b32 s45, s45, 10")
        k.e("s_add_u32 s44, s44, s45")
        k.e("v_lshl_add_u32 v%d, v%d, 4, s44" % (vDN, vLane))
    else:
        k.e("v_mul_u32_u24 v%d, %d, v%d" % (vDN, strideN, vT0))
        k.e("v_lshl_add_u32 v%d, v%d, 4, v%d" % (vDN, vT1, vDN))
    if mmode == 'row':
        k.e("v_mul_u32_u24 v%d, %d, v%d" % (vDM[0], strideM, vT0))
        k.e("v_lshl_add_u32 v%d, v%d, 4, v%d" % (vDM[0], vT1, vDM[0]))
        k.e("v_lshrrev_b32 v%d, 3, v%d" % (vT0, vLane))
        k.e("s_lshl_b32 s%d, s%d, 1" % (sTmp, sW))
        k.e("s_add_u32 s%d, s%d, 128" % (sTmp, sTmp))
        k.e("v_add_u32 v%d, s%d, v%d" % (vT0, sTmp, vT0))
        k.e("v_bfe_u32 v%d, v%d, 1, 3" % (vT1, vT0))
        k.e("v_xor_b32 v%d, v%d, v%d" % (vT1, vT1, vT2))
        k.e("v_mul_u32_u24 v%d, %d, v%d" % (vDM[2], strideM, vT0))
        k.e("v_lshl_add_u32 v%d, v%d, 4, v%d" % (vDM[2], vT1, vDM[2]))
        if LNF:
            k.e("v_subrev_u32 v%d, %d, v%d" % (vDM[1], 32 * strideM, vDM[0]))
            k.e("v_lshrrev_b32 v%d, 3, v%d" % (vT0, vLane))
            k.e("s_and_b32 s%d, s%d, 3" % (sTmp, sW))
            k.e("s_lshl_b32 s41, s%d, 9" % sTmp)
            k.e("s_lshl_b32 s%d, s%d, 2" % (sTmp, sTmp))
            k.e("s_add_u32 s%d, s%d, 128" % (sTmp, sTmp))
            k.e("v_add_u32 v%d, s%d, v%d" % (vT0, sTmp, vT0))
            k.e("v_bfe_u32 v%d, v%d, 1, 3" % (vT1, vT0))
            k.e("v_xor_b32 v%d, v%d, v%d" % (vT1, vT1, vT2))
            k.e("v_mul_u32_u24 v%d, %d, v%d" % (vDN, strideM, vT0))
            k.e("v_lshl_add_u32 v%d, v%d, 4, v%d" % (vDN, vT1, vDN))
    else:
        for q in range(3):
            if q < 2:
                k.e("s_lshl_b32 s%d, s%d, 6" % (sTmp, sW))
                k.e("s_add_u32 s%d, s%d, %d" % (sTmp, sTmp, 512 * q))
            else:
                k.e("s_lshl_b32 s%d, s%d, 4" % (sTmp, sW))
                k.e("s_add_u32 s%d, s%d, 1024" % (sTmp, sTmp))
            tr_voff(k, vDM[q], sTmp, vLane, (vT0, vT1, vT2, vT3, vT4), strideM, 0x33)
    k.e("s_mov_b32 s%d, 0" % sKN)
    k.e("s_mov_b32 s%d, 0" % sKM)
    if OPT.get('pst'):
        k.e("s_memtime s[%d:%d]" % (SB + 8, SB + 9))
    k.e("s_waitcnt lgkmcnt(0)")
    if OPT.get('pst'):
        stamp(k, 5)
    if kind == 'A2':
        k.e("s_cmp_lt_u32 s36, 2")
        k.e("s_cselect_b32 s6, s8, s10")
        k.e("s_cselect_b32 s7, s9, s11")
        k.e("s_mul_i32 s44, s37, %d" % (128 * 4096))
        k.e("s_and_b32 s45, s36, 1")
        k.e("s_lshl_b32 s45, s45, 11")
        k.e("s_add_u32 s44, s44, s45")
        srd(k, SRN, 6, 0, 44, S * S * 2)
        k.e("s_lshr_b32 s44, s36, 1")
        k.e("s_lshl_b32 s44, s44, 2")
        k.e("s_add_u32 s44, s44, s38")
        k.e("s_lshl_b32 s44, s44, 1")
        k.e("s_and_b32 s45, s36, 1")
        k.e("s_add_u32 s44, s44, s45")
        k.e("s_mul_i32 s44, s44, %d" % (1024 * 288))
        srd(k, SRM, 4, ab, 44, ab + 2 * XB)
    elif kind == 'B2':
        k.e("s_mul_i32 s44, s37, %d" % (4 * 288 * 1024))
        k.e("s_mul_i32 s45, s36, %d" % (72 * 1024))
        k.e("s_add_u32 s44, s44, s45")
        srd(k, SRN, 4, h, 44, h + HB)
        k.e("s_mul_i32 s44, s36, %d" % (1152 * 1152))
        k.e("s_mul_i32 s45, s38, 288")
        k.e("s_add_u32 s44, s44, s45")
        srd(k, SRM, 8, 0, 44, F * D * 2)
    else:
        k.e("s_mul_i32 s44, s37, %d" % (64 * 1152))
        if LNF:
            srd(k, SRN, 48, 0, 44, XB)
            k.e("s_mul_i32 s44, s%d, %d" % (sW, 8 * 1152))
            k.e("v_lshl_add_u32 v%d, v%d, 4, s44" % (vT0, vLane))
            k.e("v_lshrrev_b32 v%d, 3, v%d" % (vT1, vLane))
            k.e("v_mul_u32_u24 v%d, 1152, v%d" % (vT1, vT1))
            k.e("v_and_b32 v%d, 7, v%d" % (vT2, vLane))
            k.e("v_lshl_add_u32 v%d, v%d, 4, v%d" % (vT1, vT2, vT1))
            k.e("v_add_u32 v%d, s44, v%d" % (vT1, vT1))
            for rr in range(8):
                k.e("s_mov_b32 s44, %d" % (rr * 1152))
                k.e("buffer_load_dwordx4 %s, v%d, %s, s44 offen" % (vr(32 + 16 * rr + 8), vT0, sr(SRN)), "X")
            k.e("buffer_load_dwordx4 %s, v%d, %s, 0 offen offset:1024" % (vr(32 + 16 * 8 + 8), vT1, sr(SRN)), "X")
            if OPT.get('cpos', 'x') == 'x':
                code_prefetch(k, sW, vLane, vT0, vPF, 72, sTmp)
        else:
            srd(k, SRN, 4, xn, 44, xn + XB)
        k.e("s_cmp_lt_u32 s38, 4")
        k.e("s_cselect_b32 s6, s8, s10")
        k.e("s_cselect_b32 s7, s9, s11")
        k.e("s_and_b32 s45, s38, 3")
        k.e("s_mul_i32 s44, s45, %d" % (144 * 1152))
        srd(k, SRM, 6, 0, 44, D * D * 2)
    if PD:
        k.e("s_mul_i32 s45, s38, 288")
        k.e("s_sub_u32 s44, s%d, s45" % SRM)
        k.e("s_subb_u32 s45, s%d, 0" % (SRM + 1))
        k.e("s_lshl_b32 s46, s38, 5")
        k.e("s_lshl_b32 s47, s%d, 2" % sW)
        k.e("s_add_u32 s46, s46, s47")
        k.e("v_add_u32 v%d, s46, v%d" % (vT0, vLane))
        if kind == 'A2':
            k.e("v_lshlrev_b32 v%d, 12, v%d" % (vT1, vT0))
            SN = 128
        else:
            k.e("v_lshrrev_b32 v%d, 5, v%d" % (vT1, vT0))
            k.e("v_mul_u32_u24 v%d, %d, v%d" % (vT1, 288 * 1024, vT1))
            k.e("v_and_b32 v%d, 31, v%d" % (vT2, vT0))
            k.e("v_lshl_add_u32 v%d, v%d, 7, v%d" % (vT1, vT2, vT1))
            SN = 4096
        k.e("v_add_u32 v%d, 0x%x, v%d" % (vT1, PD * SN, vT1))
        k.e("s_mul_i32 s46, s%d, 3" % sW)
        k.e("s_sub_u32 s46, s46, 4")
        k.e("v_add_u32 v%d, s46, v%d" % (vT0, vLane))
        k.e("v_min_u32 v%d, 17, v%d" % (vT0, vT0))
        k.e("s_mul_i32 s46, s35, 18")
        k.e("v_add_u32 v%d, s46, v%d" % (vT0, vT0))
        k.e("v_mul_u32_u24 v%d, 7282, v%d" % (vT2, vT0))
        k.e("v_lshrrev_b32 v%d, 16, v%d" % (vT2, vT2))
        k.e("v_mul_u32_u24 v%d, 9, v%d" % (vT3, vT2))
        k.e("v_sub_u32 v%d, v%d, v%d" % (vT3, vT0, vT3))
        k.e("v_mul_u32_u24 v%d, 1152, v%d" % (vT2, vT2))
        k.e("v_lshl_add_u32 v%d, v%d, 7, v%d" % (vT2, vT3, vT2))
        k.e("v_add_u32 v%d, 0x%x, v%d" % (vT2, PD * 64 * 1152, vT2))
        k.e("v_cmp_gt_u32 vcc, 4, v%d" % vLane)
        k.e("v_mov_b32 v%d, s44" % vT0)
        k.e("v_mov_b32 v%d, s%d" % (vT3, SRN))
        k.e("v_cndmask_b32 v%d, v%d, v%d, vcc" % (vPA, vT0, vT3))
        k.e("v_mov_b32 v%d, s45" % vT0)
        k.e("v_mov_b32 v%d, s%d" % (vT3, SRN + 1))
        k.e("v_cndmask_b32 v%d, v%d, v%d, vcc" % (vPA + 1, vT0, vT3))
        k.e("v_cndmask_b32 v%d, v%d, v%d, vcc" % (vT1, vT2, vT1))
        k.e("v_mov_b32 v%d, 0x%x" % (vT0, 64 * 1152))
        k.e("v_mov_b32 v%d, %d" % (vT3, SN))
        k.e("v_cndmask_b32 v%d, v%d, v%d, vcc" % (vPS, vT0, vT3))
        k.e("v_add_co_u32 v%d, vcc, v%d, v%d" % (vPA, vT1, vPA))
        k.e("s_nop 1")
        k.e("v_addc_co_u32 v%d, vcc, 0, v%d, vcc" % (vPA + 1, vPA + 1))

    def dma_n(stage):
        b = stage % NBUF
        tag = "D%d" % stage
        P = []
        for j in range(NDN):
            L = ["s_add_u32 m0, s%d, 0x%x" % (sW1024, b * STB + j * 8192)]
            if j:
                L.append("s_add_u32 s%d, s%d, 0x%x" % (sTmp, sKN, j * (2 * 288 * 1024 if kind == 'B2' else 64 * strideN)))
                L.append("buffer_load_dwordx4 v%d, %s, s%d offen lds" % (vDN, sr(SRN), sTmp))
            else:
                L.append("s_nop 0")
                L.append("buffer_load_dwordx4 v%d, %s, s%d offen lds" % (vDN, sr(SRN), sKN))
            P.append((tag, L))
        if P:
            P[-1] = (tag, P[-1][1] + ["s_add_u32 s%d, s%d, %d" % (sKN, sKN, 4096 if kind == 'B2' else 128)])
        return P

    def dma_m(stage):
        b = stage % NBUF
        tag = "D%d" % stage
        P = []
        mb_ = b * STB + MB0
        for q in range(3):
            L = []
            if q < 2:
                L.append("s_add_u32 m0, s%d, 0x%x" % (sW1024, mb_ + q * 8192))
            else:
                L.append("s_add_u32 m0, s%d, 0x%x" % (sW256, mb_ + 16384))
            if mmode == 'row' and q == 1:
                L.append("s_add_u32 s%d, s%d, 0x%x" % (sTmp, sKM, 64 * strideM))
                so, vo = sTmp, vDM[0]
            else:
                so, vo = sKM, vDM[q]
                L.append("s_nop 0")
            if q == 2:
                L.append("s_mov_b64 exec, 0xffff")
            L.append("buffer_load_dwordx4 v%d, %s, s%d offen lds" % (vo, sr(SRM), so))
            if q == 2:
                L.append("s_mov_b64 exec, -1")
            P.append((tag, L))
        P[-1] = (tag, P[-1][1] + ["s_add_u32 s%d, s%d, 0x%x" % (sKM, sKM, 128 if mmode == 'row' else 64 * strideM)])
        return P

    def dma(stage):
        return dma_n(stage) + dma_m(stage)

    def dma4(stage):
        tag = "D%d" % stage
        mb_ = (stage % NBUF) * STB + MB0
        P = []
        for n in range(4):
            P.append((tag, ["s_add_u32 m0, s%d, 0x%x" % (sW1024, mb_ - 4096 + n * 4096),
                            "s_add_u32 s%d, s%d, 0x%x" % (sTmp, sKM, n * 32 * strideM),
                            "buffer_load_dwordx4 v%d, %s, s%d offen lds" % (vDM[1], sr(SRM), sTmp)]))
        P.append((tag, ["s_add_u32 m0, s41, 0x%x" % (mb_ + 16384), "s_mov_b64 exec, 0xffffffff",
                        "buffer_load_dwordx4 v%d, %s, s%d offen lds" % (vDN, sr(SRM), sKM),
                        "s_mov_b64 exec, -1", "s_add_u32 s%d, s%d, 128" % (sKM, sKM)]))
        return P

    def emit(P):
        for tag, L in P:
            for x in L:
                k.e(x, tag)

    NPRO = int(OPT.get('npro', 2)) if LNF else NBUF
    if dep is None:
        for stg in range(NPRO):
            emit(dma(stg))
    else:
        first, second = (dma_n, dma_m) if kind == 'A2' else (dma_m, dma_n)
        if dep == 'pre':
            for stg in range(NBUF):
                emit(first(stg))
            raise PreDone()
        if PRE:
            if kind == 'A2':
                k.e("s_mov_b32 s%d, %d" % (sKN, NBUF * 128))
            else:
                k.e("s_mov_b32 s%d, 0x%x" % (sKM, NBUF * (128 if mmode == 'row' else 64 * strideM)))
        elif not POLLF:
            for stg in range(NBUF):
                emit(first(stg))
        elif POLLF == 2:
            emit(first(0))
        if kind == 'A2':
            k.e("s_and_b32 s44, s36, 1")
            k.e("s_lshl_b32 s44, s44, 7")
            k.e("s_lshr_b32 s45, s36, 1")
            k.e("s_lshl_b32 s45, s45, 2")
            k.e("s_add_u32 s44, s44, s45")
            k.e("s_add_u32 s44, s44, s38")
            k.e("v_lshl_add_u32 v%d, v%d, 3, s44" % (vT0, vLane))
            nl = 16
        elif kind == 'B2':
            k.e("s_lshr_b32 s44, s37, 1")
            k.e("s_lshl_b32 s44, s44, 5")
            k.e("s_lshl_b32 s45, s36, 3")
            k.e("s_add_u32 s44, s44, s45")
            k.e("v_add_u32 v%d, s44, v%d" % (vT0, vLane))
            nl = 8
        else:
            k.e("s_lshl_b32 s44, s37, 3")
            k.e("v_add_u32 v%d, s44, v%d" % (vT0, vLane))
            nl = 8
        if pf2 and int(OPT.get('pfb', -1)) == -1:
            pf2_setup(k, pf2, sW, vLane, vPFA)
            lsk_ = k.newlabel("LPF")
            k.e("s_cmp_eq_u32 s%d, 0" % sW)
            k.e("s_cbranch_scc1 %s" % lsk_)
            k.e("buffer_load_dword v%d, v%d, s[60:63], 0 offen" % (vPF, vPFA), "PF")
            k.vm.pop()
            k.label(lsk_)
        wait_flags(k, dep, nl, vT0, vT1)
        for stg in range(NBUF):
            emit(second(stg))
            if POLLF and not PRE and not (POLLF == 2 and stg == 0):
                emit(first(stg))
    if pf2:
        pf2_setup(k, pf2, sW, vLane, vPFA)
    pfp = [("PF", ["buffer_load_dword v%d, v%d, s[60:63], 0 offen" % (vPF, vPFA)])]
    if pf2 and LNF and OPT.get('pfa', 'afterx') == 'early':
        emit(pfp)
    k.e("s_and_b32 s%d, s%d, 3" % (sTmp, sW))
    k.e("s_mul_i32 s%d, s%d, %d" % (sTmp, sTmp, NFR * 16 * 128))
    k.e("v_and_b32 v%d, 15, v%d" % (vT0, vLane))
    k.e("v_lshrrev_b32 v%d, 4, v%d" % (vT1, vLane))
    k.e("v_bfe_u32 v%d, v%d, 1, 3" % (vT2, vLane))
    k.e("v_xor_b32 v%d, v%d, v%d" % (vT2, vT1, vT2))
    k.e("v_lshlrev_b32 v%d, 4, v%d" % (vT2, vT2))
    k.e("v_lshl_add_u32 v%d, v%d, 7, v%d" % (vT2, vT0, vT2))
    k.e("v_add_u32 v%d, s%d, v%d" % (vT3, sTmp, vT2))
    if kind == 'B2':
        k.e("v_lshlrev_b32 v%d, 9, v%d" % (vT3, vT1))
        k.e("v_lshl_add_u32 v%d, v%d, 4, v%d" % (vT3, vT0, vT3))
        k.e("v_add_u32 v%d, s%d, v%d" % (vT3, sTmp, vT3))
        for b in range(NBUF):
            k.e("v_add_u32 v%d, 0x%x, v%d" % (vRN[b][0], b * STB, vT3))
            k.e("v_add_u32 v%d, 2048, v%d" % (vRN[b][1], vRN[b][0]))
    else:
        for b in range(NBUF):
            k.e("v_add_u32 v%d, 0x%x, v%d" % (vRN[b][0], (b * 65536 if LNF else b * STB), vT3))
            k.e("v_xor_b32 v%d, 64, v%d" % (vRN[b][1], vRN[b][0]))
    if mmode == 'row':
        for b in range(NBUF):
            k.e("v_add_u32 v%d, 0x%x, v%d" % (vRM[b][0], b * STB + MB0, vT2))
            k.e("v_xor_b32 v%d, 64, v%d" % (vRM[b][1], vRM[b][0]))
    else:
        tr_raddr(k, vT2, vLane, vT3)
        for b in range(NBUF):
            k.e("v_add_u32 v%d, 0x%x, v%d" % (vRM[b][0], b * STB + NTB, vT2))
    k.e("s_and_b32 s%d, s%d, 3" % (sTmp, sW))
    k.e("s_mul_i32 s%d, s%d, %d" % (sTmp, sTmp, NFR * 16))
    k.e("v_and_b32 v%d, 15, v%d" % (vT3, vLane))
    k.e("v_add_u32 v%d, s%d, v%d" % (vT3, sTmp, vT3))
    k.e("v_lshrrev_b32 v%d, 4, v%d" % (vT4, vLane))
    k.e("v_mul_u32_u24 v%d, 288, v%d" % (vT3, vT3))
    k.e("v_and_b32 v%d, 1, v%d" % (vT0, vT4))
    k.e("v_lshl_add_u32 v%d, v%d, 5, v%d" % (vO, vT0, vT3))
    k.e("v_lshrrev_b32 v%d, 1, v%d" % (vT0, vT4))
    k.e("v_lshl_add_u32 v%d, v%d, 4, v%d" % (vO, vT0, vO))
    k.e("v_lshl_add_u32 v%d, v%d, 3, v%d" % (vT4, vT4, vT3))
    vO2 = vT4
    if kind == 'A1':
        k.e("s_lshr_b32 s45, s38, 2")
        k.e("s_lshl_b32 s44, s38, 5")
        k.e("s_add_u32 s44, s44, s37")
        k.e("s_mul_i32 s44, s44, 18432")
        srd(k, SRO, 4, ab, 44, ab + 2 * XB)
        k.e("s_mov_b32 s%d, 18432" % (SRO + 2))
        k.e("s_mul_i32 s47, s45, 0x80008000")
    else:
        k.e("s_lshl_b32 s44, s36, 4")
        k.e("s_add_u32 s44, s44, s37")
        k.e("s_lshl_b32 s44, s44, 2")
        k.e("s_and_b32 s46, s%d, 3" % sW)
        k.e("s_add_u32 s44, s44, s46")
        k.e("s_mul_i32 s44, s44, %d" % PREG)
        k.e("s_mul_i32 s46, s38, 9216")
        k.e("s_add_u32 s44, s44, s46")
        srd(k, SRO, 4, WSP, 44, WSP + 4 * XB)
        k.e("v_lshlrev_b32 v%d, 4, v%d" % (vO, vLane))
    def pf_emit():
        k.e("s_lshl_b32 s%d, s2, 3" % sTmp)
        k.e("s_add_u32 s%d, s%d, s%d" % (sTmp, sTmp, sW))
        k.e("s_lshl_b32 s%d, s%d, 12" % (sTmp, sTmp))
        k.e("v_lshl_add_u32 v%d, v%d, 6, s%d" % (vT0, vLane, sTmp))
        for n in range(len(pf)):
            k.e("buffer_load_dword v%d, v%d, %s, 0 offen" % (vPF, vT0, sr(56 + 4 * n)), "PF")

    stamp(k, 1)
    if LNF:
        if pf and OPT.get('pfpos', 'end') == 'early':
            pf_emit()
        R = range(8)
        R9 = range(9)
        B = lambda rr: 32 + 16 * rr
        LA = 176
        k.e("v_lshrrev_b32 v%d, 3, v%d" % (vT0, vLane))
        k.e("v_and_b32 v%d, 7, v%d" % (vT1, vLane))
        k.e("v_lshlrev_b32 v%d, 4, v%d" % (vT1, vT1))
        k.e("v_lshl_add_u32 v%d, v%d, 13, v%d" % (vT2, vT0, vT1))
        k.e("v_add_u32 v%d, s%d, v%d" % (vT2, sW1024, vT2))
        for pr in range(4):
            k.e("s_lshl_b32 s44, s%d, 2" % sW)
            k.e("s_add_u32 s44, s44, %d" % pr)
            k.e("s_and_b32 s44, s44, 7")
            k.e("s_lshl_b32 s44, s44, 4")
            k.e("v_xor_b32 v%d, s44, v%d" % (LA + pr, vT2))
        k.e("s_lshl_b32 s44, s%d, 2" % sW)
        k.e("v_lshrrev_b32 v%d, 4, v%d" % (vT2, vLane))
        k.e("v_add_u32 v%d, s44, v%d" % (vT2, vT2))
        k.e("v_and_b32 v%d, 7, v%d" % (vT2, vT2))
        k.e("v_lshlrev_b32 v%d, 4, v%d" % (vT2, vT2))
        k.e("v_xor_b32 v%d, v%d, v%d" % (vT2, vT2, vT1))
        k.e("v_lshl_add_u32 v%d, v%d, 7, v%d" % (vT2, vT0, vT2))
        k.e("v_add_u32 v%d, s%d, v%d" % (vT2, sW1024, vT2))
        k.e("v_add_u32 v%d, 0x10000, v%d" % (LA + 4, vT2))
        for rr in R:
            k.e("v_cmp_eq_u32 vcc, %d, v%d" % (rr, vT0))
            k.e("s_nop 1")
            k.e("v_cndmask_b32 v%d, 0, 1.0, vcc" % (LA + 5 + rr))
        stamp(k, 5)
        if int(OPT.get('prio', 1)):
            k.e("s_setprio 0")
        k.vneed("X")
        stamp(k, 4)
        for stg in range(NPRO, NBUF):
            emit(dma(stg))
        if pf2 and OPT.get('pfa', 'afterx') == 'afterx':
            emit(pfp)
        if pf2 and OPT.get('pfa', 'afterx') == 'bar':
            k.vneed("D3")
            k.e("s_barrier")
            emit(pfp)
        if pf2 and OPT.get('pfa', 'afterx') == 'split':
            lsk_ = k.newlabel("LPF")
            k.e("s_cmp_ge_u32 s%d, 4" % sW)
            k.e("s_cbranch_scc1 %s" % lsk_)
            k.e("s_mov_b32 s%d, 32768" % sTmp)
            k.e("buffer_load_dword v%d, v%d, s[60:63], 0 offen" % (vPF, vPFA))
            k.e("buffer_load_dword v%d, v%d, s[60:63], s%d offen" % (vPF, vPFA, sTmp))
            k.vm.pop(); k.vm.pop()
            k.label(lsk_)

        def allrows(fmt, *offs, rows=R):
            for rr in rows:
                k.e(fmt % tuple(B(rr) + o for o in offs))

        def pk(op, d, a, b, c=None, rows=R9):
            for rr in rows:
                x = B(rr)
                ops = [vr(x + d, 2), vr(x + a, 2), vr(x + b, 2)] + ([vr(x + c, 2)] if c is not None else [])
                k.e("%s %s" % (op, ", ".join(ops)))

        def xsum(o, t):
            for ctl in ("quad_perm:[1,0,3,2]", "quad_perm:[2,3,0,1]", "row_half_mirror", "row_mirror"):
                allrows("v_add_f32_dpp v%d, v%d, v%d " + ctl + " row_mask:0xf bank_mask:0xf", o, o, o)
            for sw_ in ("v_permlane16_swap_b32", "v_permlane32_swap_b32"):
                allrows("v_mov_b32 v%d, v%d", t, o)
                allrows(sw_ + " v%d, v%d", o, t)
                allrows("v_add_f32 v%d, v%d, v%d", o, o, t)

        def add_tail(o):
            for rr in R:
                k.e("v_fmac_f32 v%d, v%d, v%d" % (B(rr) + o, LA + 5 + rr, B(8) + o))

        def sel_tail(o):
            k.e("v_mul_f32 v%d, v%d, v%d" % (B(8) + o, LA + 5, B(0) + o))
            for rr in range(1, 8):
                k.e("v_fmac_f32 v%d, v%d, v%d" % (B(8) + o, LA + 5 + rr, B(rr) + o))
        for i in range(4):
            allrows("v_lshlrev_b32 v%d, 16, v%d", 2 * i, 8 + i, rows=R9)
            allrows("v_and_b32 v%d, 0xffff0000, v%d", 2 * i + 1, 8 + i, rows=R9)
        pk("v_pk_add_f32", 8, 0, 2)
        pk("v_pk_add_f32", 10, 4, 6)
        pk("v_pk_add_f32", 8, 8, 10)
        allrows("v_add_f32 v%d, v%d, v%d", 12, 8, 9, rows=R9)
        add_tail(12)
        xsum(12, 13)
        allrows("v_mul_f32 v%%d, 0x%08x, v%%d" % f32bits(-1.0 / D), 12, 12)
        sel_tail(12)
        allrows("v_mov_b32 v%d, v%d", 13, 12, rows=R9)
        for e in range(0, 8, 2):
            pk("v_pk_add_f32", e, e, 12)
        pk("v_pk_mul_f32", 8, 0, 0)
        pk("v_pk_mul_f32", 10, 2, 2)
        pk("v_pk_fma_f32", 8, 4, 4, 8)
        pk("v_pk_fma_f32", 10, 6, 6, 10)
        pk("v_pk_add_f32", 8, 8, 10)
        allrows("v_add_f32 v%d, v%d, v%d", 12, 8, 9, rows=R9)
        add_tail(12)
        xsum(12, 13)
        allrows("v_mov_b32 v%%d, 0x%08x" % f32bits(1e-5), 13)
        allrows("v_fmac_f32 v%%d, 0x%08x, v%%d" % f32bits(1.0 / D), 13, 12)
        allrows("v_rsq_f32 v%d, v%d", 12, 13)
        k.e("s_nop 0")
        sel_tail(12)
        allrows("v_mov_b32 v%d, v%d", 13, 12, rows=R9)
        for e in range(0, 8, 2):
            pk("v_pk_mul_f32", e, e, 12)
        for i in range(4):
            allrows("v_cvt_pk_bf16_f32 v%d, v%d, v%d", 8 + i, 2 * i, 2 * i + 1, rows=R9)
        stamp(k, 6)
        for rr in R:
            k.e("ds_write_b128 v%d, %s offset:%d" % (LA + rr // 2, vr(B(rr) + 8), rr * 128))
        k.e("ds_write_b128 v%d, %s" % (LA + 4, vr(B(8) + 8)))
        for tg, L in preset_pieces(k, sW, vLane, vT2, vPA, 72, sTmp, WS_P):
            for x in L:
                k.e(x.replace(", -1", ", 0") if x.startswith("v_mov") else x, "S")
        lz = k.newlabel("LZ")
        k.e("s_cmp_ge_u32 s2, 1")
        k.e("s_cbranch_scc1 %s" % lz)
        srd(k, 72, 4, WS_FL, None, WS_FL + 8192)
        k.e("v_lshlrev_b32 v%d, 4, v0" % vT2)
        k.e("buffer_store_dwordx4 %s, v%d, s[72:75], 0 offen" % (vr(vPA), vT2))
        k.vm.pop()
        k.label(lz)
        k.e("s_waitcnt lgkmcnt(0)")
    k.vneed("D0")
    k.e("s_barrier")
    stamp(k, 2)

    ljoin = k.newlabel("LJ")
    lg1 = k.newlabel("LG")
    k.e("s_cmp_ge_u32 s%d, 4" % sW)
    k.e("s_cbranch_scc1 %s" % lg1)
    vm_save = list(k.vm)
    for gi, tiles in enumerate(groups):
        if gi:
            k.label(lg1)
            k.vm = list(vm_save)
        nt = len(tiles)
        W = int(nt * Wmul + 0.5)
        vA = {(j, i): vAbase + 4 * (ti * NFR + i) for ti, j in enumerate(tiles) for i in range(NFR)}

        def rd_m(stg, ks, j, reg, tag):
            b = stg % NBUF
            if mmode == 'row':
                k.lds("ds_read_b128 %s, v%d offset:%d" % (vr(reg), vRM[b][ks], j * 2048), tag)
            else:
                o = ks * 9216 + j * 32
                k.lds("ds_read_b64_tr_b16 %s, v%d offset:%d" % (vr(reg, 2), vRM[b][0], o), tag)
                k.lds("ds_read_b64_tr_b16 %s, v%d offset:%d" % (vr(reg + 2, 2), vRM[b][0], o + 2304), tag)

        def rd_n(stg, ks, i, reg, tag):
            if LNF:
                k.lds("ds_read_b128 %s, v%d offset:%d" % (vr(reg), vRN[stg // 8][ks], (stg % 8) * 8192), tag)
            else:
                k.lds("ds_read_b128 %s, v%d offset:%d" % (vr(reg), vRN[stg % NBUF][ks], i * (256 if kind == 'B2' else 2048)), tag)

        def ald():
            L = ["s_lshl_b32 s%d, s2, 3" % sTmp, "s_add_u32 s%d, s%d, s%d" % (sTmp, sTmp, sW), "s_lshl_b32 s%d, s%d, 12" % (sTmp, sTmp),
                 "v_lshl_add_u32 v%d, v%d, 6, s%d" % (vT0, vLane, sTmp)]
            for n in range(len(pf)):
                L.append("buffer_load_dword v%d, v%d, %s, 0 offen" % (vPF, vT0, sr(56 + 4 * n)))
            P = [("PF", L)] if pf else []
            return P

        pp = preset_pieces(k, sW, vLane, vT2, vPA, 72, sTmp, WSPO)

        def sx(t):
            return [pp[t]] if t < len(pp) else []

        dmaf = dma
        if LNF and OPT.get('pfa', 'afterx') == 'split':
            dmaf = dma4 if gi == 1 else (lambda st_: [])
            if gi == 0 and pf2:
                k.vm += ["PF", "PF"]
        engine(k, tiles, NFR, KS, NS, NBUF, W, NSET, int(OPT.get('tdelta', 1)), rd_m, rd_n, dmaf,
               lambda t, j, i: vA[(j, i)], lambda t, ks: t == 0 and ks == 0, vM, vN, sLoop,
               after_last_dma=ald if (pf and not (LNF and OPT.get('pfpos', 'end') != 'mid')) else None, stage_extra=(lambda t: pfp if t == int(OPT.get('pfb', -1)) else []) if (pf2 and not LNF) else None, n_static=LNF)
        k.e("s_nop 7")
        k.e("s_nop 3")
        stamp(k, 3)
        if kind == 'A1' and nxt_phase and PRE:
            k.e("s_barrier")
            pre_issue(k, nxt_phase, 180)
        if kind in ('A2', 'B2'):
            store_native(k, tiles, lambda j, i: vA[(j, i)], vO, SRO, sTmp, 0, None, 28, (rcfg[0] + 1) & 1)
        else:
            k.e("s_barrier")
            store_tiles_bf16(k, tiles, lambda j: vA[(j, 0)], vO, vO2, None, None, "", 28, neg=47)
        if gi == 0:
            k.e("s_branch %s" % ljoin)
    k.label(ljoin)
    if kind == 'A1':
        k.e("v_lshlrev_b32 v%d, 4, v0" % vT0)
        k.e("s_waitcnt lgkmcnt(0)")
        k.e("s_barrier")
        for n in range(3):
            k.e("ds_read_b128 %s, v%d offset:%d" % (vr(28 + 4 * n), vT0, n * 8192))
        for n in range(3):
            k.e("s_mov_b32 s%d, %d" % (sTmp, n * 8192))
            k.e("s_waitcnt lgkmcnt(%d)" % (2 - n))
            k.e("buffer_store_dwordx4 %s, v%d, %s, s%d offen" % (vr(28 + 4 * n), vT0, sr(SRO), sTmp))
    if LNF and pf and OPT.get('pfpos', 'end') == 'end':
        pf_emit()
    if rcfg:
        k.e("s_lshl_b32 s39, s36, 2")
        k.e("s_add_u32 s39, s39, s38")
        nv = r_tail(k, rcfg, 4, sW, vLane, 37, 39, NBUF * STB, WSP, xn, nxt_phase)
        nvgpr = max(nvgpr, nv)
    elif not LNF:
        stamp(k, 4)
    if not LNF:
        stamp(k, 6)
    stamp_store(k, kidx)
    if pub is not None:
        if rcfg:
            k.e("s_lshl_b32 s44, s37, 4")
            k.e("s_add_u32 s44, s44, s39")
        else:
            k.e("s_mov_b32 s44, s2")
        publish(k, pub, 44, sW)
    return nvgpr, LDSB


def gen_b1(k, kidx=0, pf=(), xn=None, h=None, dep=None, pub=None, nxt_phase=None, pf2=()):
    nwg = 256
    k.pend = []
    if not int(OPT.get('pf2', 1)):
        pf2 = ()
    NBUF, NS, KS = int(OPT.get('b1nb', 3)), 18, 1
    NTB = 256 * 64
    STB = NTB + 2 * 9216
    W = int(OPT.get('b1w', 10))
    NFR = 4
    vLane, vT0, vT1, vT2, vT3, vT4 = 1, 2, 3, 4, 5, 6
    vO = 7
    vDN = 8
    vDM = [9, 10]
    vRN = [12 + b for b in range(NBUF)]
    vRM = [16 + b for b in range(NBUF)]
    nxt = 20
    vM = [nxt + 4 * j for j in range(W)]; nxt += 4 * W
    vN = [[nxt + 4 * (p * NFR + i) for i in range(NFR)] for p in range(2)]; nxt += 8 * NFR
    vAbase = nxt
    nxt += 160
    vPF = nxt
    vPFA = nxt + 1
    nxt += 2
    nvgpr = nxt
    assert nvgpr <= 256
    sW, sW1024, sW256, sKN, sKM, sTmp, sLoop = 28, 29, 30, 31, 32, 33, 39
    SRN, SRM, SRO, SRQ = 12, [16, 20], 24, 40
    if not PF:
        pf = ()
    stamp(k, 0, 1)
    k.e("s_load_dwordx2 s[4:5], s[0:1], %d" % KA_WS)
    k.e("s_load_dwordx4 s[8:11], s[0:1], %d" % KA_WG)
    pf2_loads(k, pf2)
    k.e("v_and_b32 v%d, 63, v0" % vLane)
    k.e("v_lshrrev_b32 v%d, 6, v0" % vT0)
    k.e("s_nop 0")
    k.e("v_readfirstlane_b32 s%d, v%d" % (sW, vT0))
    k.e("s_and_b32 s34, s2, 7")
    k.e("s_lshr_b32 s35, s2, 3")
    k.e("s_lshl_b32 s38, s34, 2")
    k.e("s_and_b32 s36, s35, 3")
    k.e("s_add_u32 s38, s38, s36")
    k.e("s_lshr_b32 s37, s35, 2")
    k.e("s_lshl_b32 s%d, s%d, 10" % (sW1024, sW))
    k.e("s_and_b32 s44, s%d, 3" % sW)
    k.e("s_lshl_b32 s%d, s44, 8" % sW256)
    k.e("s_lshr_b32 s45, s%d, 2" % sW)
    k.e("s_mul_i32 s45, s45, 9216")
    k.e("s_add_u32 s%d, s%d, s45" % (sW256, sW256))
    k.e("v_lshrrev_b32 v%d, 2, v%d" % (vT0, vLane))
    k.e("s_lshl_b32 s%d, s%d, 4" % (sTmp, sW))
    k.e("v_add_u32 v%d, s%d, v%d" % (vT0, sTmp, vT0))
    k.e("v_lshrrev_b32 v%d, 2, v%d" % (vT1, vT0))
    k.e("v_sub_u32 v%d, 0, v%d" % (vT1, vT1))
    k.e("v_xor_b32 v%d, v%d, v%d" % (vT1, vT1, vLane))
    k.e("v_and_b32 v%d, 3, v%d" % (vT1, vT1))
    k.e("v_mul_u32_u24 v%d, 1152, v%d" % (vDN, vT0))
    k.e("v_lshl_add_u32 v%d, v%d, 4, v%d" % (vDN, vT1, vDN))
    T5 = (vT0, vT1, vT2, vT3, vT4)
    k.e("s_lshl_b32 s%d, s%d, 6" % (sTmp, sW))
    tr_voff(k, vDM[0], sTmp, vLane, T5, 9216, 0x13)
    k.e("s_lshl_b32 s%d, s44, 4" % sTmp)
    k.e("s_add_u32 s%d, s%d, 512" % (sTmp, sTmp))
    tr_voff(k, vDM[1], sTmp, vLane, T5, 9216, 0x13)
    k.e("s_mov_b32 s%d, 0" % sKN)
    k.e("s_mov_b32 s%d, 0" % sKM)
    k.e("s_waitcnt lgkmcnt(0)")
    k.e("s_mul_i32 s44, s37, %d" % (256 * 1152))
    srd(k, SRN, 4, xn, 44, xn + XB)
    k.e("s_mul_i32 s44, s38, 288")
    srd(k, SRM[0], 8, 0, 44, D * F * 2)
    srd(k, SRM[1], 10, 0, 44, D * F * 2)
    k.e("s_cmp_lt_u32 s%d, 4" % sW)
    for x in range(3):
        k.e("s_cselect_b32 s%d, s%d, s%d" % (SRQ + x, SRM[0] + x, SRM[1] + x))
    k.e("s_mov_b32 s%d, 0x20000" % (SRQ + 3))

    def dma_n(stage):
        tag = "D%d" % stage
        base = (stage % NBUF) * STB
        return [(tag, ["s_add_u32 m0, s%d, 0x%x" % (sW1024, base), "s_nop 0",
                       "buffer_load_dwordx4 v%d, %s, s%d offen lds" % (vDN, sr(SRN), sKN)]),
                (tag, ["s_add_u32 m0, s%d, 0x%x" % (sW1024, base + 8192), "s_add_u32 s%d, s%d, 0x%x" % (sTmp, sKN, 128 * 1152),
                       "buffer_load_dwordx4 v%d, %s, s%d offen lds" % (vDN, sr(SRN), sTmp),
                       "s_add_u32 s%d, s%d, 64" % (sKN, sKN)])]

    def dma_m(stage):
        tag = "D%d" % stage
        base = (stage % NBUF) * STB
        P = []
        for mat in range(2):
            P.append((tag, ["s_add_u32 m0, s%d, 0x%x" % (sW1024, base + NTB + mat * 9216), "s_nop 0",
                            "buffer_load_dwordx4 v%d, %s, s%d offen lds" % (vDM[0], sr(SRM[mat]), sKM)]))
        P.append((tag, ["s_add_u32 m0, s%d, 0x%x" % (sW256, base + NTB + 8192), "s_mov_b64 exec, 0xffff",
                        "buffer_load_dwordx4 v%d, %s, s%d offen lds" % (vDM[1], sr(SRQ), sKM),
                        "s_mov_b64 exec, -1",
                        "s_add_u32 s%d, s%d, 0x%x" % (sKM, sKM, 32 * 9216)]))
        return P

    def dma(stage):
        return dma_n(stage) + dma_m(stage)

    def emit(P):
        for tag, L in P:
            for x in L:
                k.e(x, tag)

    if dep is None:
        for stg in range(NBUF):
            emit(dma(stg))
    else:
        if dep == 'pre':
            for stg in range(NBUF):
                emit(dma_m(stg))
            raise PreDone()
        if PRE:
            k.e("s_mov_b32 s%d, 0x%x" % (sKM, NBUF * 32 * 9216))
        elif not POLLF:
            for stg in range(NBUF):
                emit(dma_m(stg))
        elif POLLF == 2:
            emit(dma_m(0))
        k.e("s_lshl_b32 s44, s37, 5")
        k.e("v_add_u32 v%d, s44, v%d" % (vT0, vLane))
        wait_flags(k, dep, 32, vT0, vT1)
        for stg in range(NBUF):
            emit(dma_n(stg))
            if POLLF and not PRE and not (POLLF == 2 and stg == 0):
                emit(dma_m(stg))
    if pf2:
        pf2_setup(k, pf2, sW, vLane, vPFA)
    pfp = [("PF", ["buffer_load_dword v%d, v%d, s[60:63], 0 offen" % (vPF, vPFA)])]
    k.e("v_and_b32 v%d, 15, v%d" % (vT0, vLane))
    k.e("v_lshrrev_b32 v%d, 4, v%d" % (vT1, vLane))
    k.e("v_lshrrev_b32 v%d, 2, v%d" % (vT2, vT0))
    k.e("v_sub_u32 v%d, 0, v%d" % (vT2, vT2))
    k.e("v_xor_b32 v%d, v%d, v%d" % (vT2, vT2, vT1))
    k.e("v_and_b32 v%d, 3, v%d" % (vT2, vT2))
    k.e("v_lshlrev_b32 v%d, 4, v%d" % (vT2, vT2))
    k.e("v_lshl_add_u32 v%d, v%d, 6, v%d" % (vT2, vT0, vT2))
    k.e("s_and_b32 s%d, s%d, 3" % (sTmp, sW))
    k.e("s_lshl_b32 s%d, s%d, 12" % (sTmp, sTmp))
    k.e("v_add_u32 v%d, s%d, v%d" % (vT3, sTmp, vT2))
    for b in range(NBUF):
        k.e("v_add_u32 v%d, 0x%x, v%d" % (vRN[b], b * STB, vT3))
    tr_raddr(k, vT2, vLane, vT3)
    for b in range(NBUF):
        k.e("v_add_u32 v%d, 0x%x, v%d" % (vRM[b], b * STB + NTB, vT2))
    k.e("s_lshl_b32 s44, s37, 3")
    k.e("s_and_b32 s46, s%d, 3" % sW)
    k.e("s_lshl_b32 s46, s46, 1")
    k.e("s_add_u32 s44, s44, s46")
    k.e("s_mul_i32 s44, s44, 288")
    k.e("s_mul_i32 s46, s38, 9")
    k.e("s_add_u32 s44, s44, s46")
    k.e("s_lshl_b32 s44, s44, 10")
    srd(k, SRO, 4, h, 44, h + HB)
    k.e("v_lshlrev_b32 v%d, 4, v%d" % (vO, vLane))
    k.e("s_mov_b32 s46, 0x%08x" % f32bits(-1.4426950408889634))
    k.e("s_mov_b32 s47, s46")
    stamp(k, 1)
    k.vneed("D0")
    k.e("s_barrier")
    stamp(k, 2)
    ljoin = k.newlabel("LJ")
    lg1 = k.newlabel("LG")
    k.e("s_cmp_ge_u32 s%d, 4" % sW)
    k.e("s_cbranch_scc1 %s" % lg1)
    vm_save = list(k.vm)
    for gi, js in enumerate((list(range(5)), list(range(5, 9)))):
        if gi:
            k.label(lg1)
            k.vm = list(vm_save)
        tiles = [(m, j) for j in js for m in range(2)]
        vA = {(t, i): vAbase + 4 * (ti * NFR + i) for ti, t in enumerate(tiles) for i in range(NFR)}

        def rd_m(stg, ks, t, reg, tag):
            o = t[0] * 9216 + t[1] * 32
            k.lds("ds_read_b64_tr_b16 %s, v%d offset:%d" % (vr(reg, 2), vRM[stg % NBUF], o), tag)
            k.lds("ds_read_b64_tr_b16 %s, v%d offset:%d" % (vr(reg + 2, 2), vRM[stg % NBUF], o + 2304), tag)

        def rd_n(stg, ks, i, reg, tag):
            k.lds("ds_read_b128 %s, v%d offset:%d" % (vr(reg), vRN[stg % NBUF], i * 1024), tag)

        Wg = min(W, len(tiles))
        engine(k, tiles, NFR, KS, NS, NBUF, Wg, 2, int(OPT.get('delta', 2)), rd_m, rd_n, dma,
               lambda t, tl, i: vA[(tl, i)], lambda t, ks: t == 0, vM, vN, sLoop,
               stage_extra=(lambda t: pfp if t == 1 else []) if pf2 else None)
        k.e("s_nop 7")
        k.e("s_nop 3")
        stamp(k, 3)
        if nxt_phase and PRE:
            k.e("s_barrier")
            pre_issue(k, nxt_phase, 40)
        TB = 20
        n = 0
        for pr in range(2):
            for jn, j in enumerate(js):
                o = TB + 4 * (n % 4)
                n += 1
                for i in range(2):
                    g = vA[((0, j), 2 * pr + i)]
                    u_ = vA[((1, j), 2 * pr + i)]
                    if OPT.get('nosig'):
                        pass
                    elif int(OPT.get('pk', 0)):
                        for r in (0, 2):
                            k.e("v_pk_mul_f32 %s, %s, s[46:47]" % (vr(g + r, 2), vr(g + r, 2)))
                        for r in range(4):
                            k.e("v_exp_f32 v%d, v%d" % (g + r, g + r))
                        for r in (0, 2):
                            k.e("v_pk_add_f32 %s, %s, 1.0 op_sel_hi:[1,0]" % (vr(g + r, 2), vr(g + r, 2)))
                        for r in range(4):
                            k.e("v_rcp_f32 v%d, v%d" % (g + r, g + r))
                        k.e("s_nop 0")
                        for r in (0, 2):
                            k.e("v_pk_mul_f32 %s, %s, %s" % (vr(g + r, 2), vr(g + r, 2), vr(u_ + r, 2)))
                    else:
                        for r in range(4):
                            k.e("v_mul_f32 v%d, s46, v%d" % (g + r, g + r))
                        for r in range(4):
                            k.e("v_exp_f32 v%d, v%d" % (g + r, g + r))
                        for r in range(4):
                            k.e("v_add_f32 v%d, 1.0, v%d" % (g + r, g + r))
                        for r in range(4):
                            k.e("v_rcp_f32 v%d, v%d" % (g + r, g + r))
                        for r in range(4):
                            k.e("v_mul_f32 v%d, v%d, v%d" % (g + r, g + r, u_ + r))
                    k.e("v_cvt_pk_bf16_f32 v%d, v%d, v%d" % (o + 2 * i, g, g + 1))
                    k.e("v_cvt_pk_bf16_f32 v%d, v%d, v%d" % (o + 2 * i + 1, g + 2, g + 3))
                if jn % 4 == 0:
                    k.e("s_mov_b32 s%d, %d" % (sTmp, (pr * 288 + j) * 1024))
                else:
                    k.e("s_nop 0")
                k.e("s_nop 0")
                k.e("v_permlane16_swap_b32 v%d, v%d" % (o, o + 2))
                k.e("v_permlane16_swap_b32 v%d, v%d" % (o + 1, o + 3))
                k.e("s_nop 0")
                if not OPT.get('nohst'):
                    k.e("buffer_store_dwordx4 %s, v%d, %s, s%d offen offset:%d%s" % (vr(o), vO, sr(SRO), sTmp, (jn % 4) * 1024, OPT.get('hflag', '').replace('_', ' ')))
        if gi == 0:
            k.e("s_branch %s" % ljoin)
    k.label(ljoin)
    stamp(k, 4)
    stamp_store(k, kidx)
    if pub is not None:
        k.e("s_lshl_b32 s44, s37, 5")
        k.e("s_add_u32 s44, s44, s38")
        publish(k, pub, 44, sW)
    return nvgpr, NBUF * STB


def main():
    phases = [
        lambda k, d, p, nx: gen_gemm(k, 'A1L', None, 0, ab=WS_AB, pf2=((KA_CR, S * S * 2), (KA_CI, S * S * 2)), dep=d, pub=p, nxt_phase=nx),
        lambda k, d, p, nx: gen_gemm(k, 'A2', (0, ('in', KA_X), ('ws', WS_X1), True), 1, xn=WS_XN, ab=WS_AB, pf2=((KA_WG, D * F * 2), (KA_WU, D * F * 2)), dep=d, pub=p, nxt_phase=nx),
        lambda k, d, p, nx: gen_b1(k, 2, xn=WS_XN, h=WS_H, pf2=((KA_WD, D * F * 2),), dep=d, pub=p, nxt_phase=nx),
        lambda k, d, p, nx: gen_gemm(k, 'B2', (1, ('ws', WS_X1), ('ws', WS_X2), True), 3, xn=WS_XNB, h=WS_H, dep=d, pub=p, nxt_phase=nx),
        lambda k, d, p, nx: gen_gemm(k, 'A1', None, 4, xn=WS_XNB, ab=WS_AB2, dep=d, pub=p, nxt_phase=nx),
        lambda k, d, p, nx: gen_gemm(k, 'A2', (2, ('ws', WS_X2), ('ws', WS_X3), True), 5, xn=WS_XNC, ab=WS_AB2, dep=d, pub=p, nxt_phase=nx),
        lambda k, d, p, nx: gen_b1(k, 6, xn=WS_XNC, h=WS_H2, dep=d, pub=p, nxt_phase=nx),
        lambda k, d, p, nx: gen_gemm(k, 'B2', (3, ('ws', WS_X3), ('out', 0), False), 7, h=WS_H2, dep=d, pub=p, nxt_phase=nx),
    ]
    grouping = [[int(c) for c in g] for g in OPT.get('merge', '01234567').split('-')]
    ks = {}
    order = []
    for gi, g in enumerate(grouping):
        name = MAIN + "_kernel" if gi == 0 else "p%s_kernel" % "".join(str(x) for x in g)
        k = K(name)
        header(k, 256)
        nv, lds = 0, 0
        for n, ph in enumerate(g):
            a, b = phases[ph](k, (ph - 1) if n else None, ph if n + 1 < len(g) else None, phases[ph + 1] if n + 1 < len(g) else None)
            nv, lds = max(nv, a), max(lds, b)
        footer(k, nv, 102)
        ks[name] = (k, 256, 512, lds)
        order.append(name)
    out = ["; FNet (DFT matmul) + GLU interleaved layers; generated by gen3.py"]
    for n in order:
        kk, nwg, blk, lds = ks[n]
        out.append("; @launch kernel=%s grid=(%d,1,1) block=(%d,1,1) lds=%d" % (kk.name, nwg, blk, lds))
    out.append('.amdgcn_target "amdgcn-amd-amdhsa--gfx950"')
    out.append(".text")
    for n, (kk, nwg, blk, lds) in ks.items():
        out.append(".globl %s" % kk.name)
        out += kk.lines
    open(sys.argv[1] if len(sys.argv) > 1 else "cdna_kernels/%s.s" % MAIN, "w").write("\n".join(out) + "\n")


if __name__ == "__main__":
    main()
```

```python
import sys, os, struct
OPT = dict(x.split('=') for x in os.environ.get('GENOPT', '').split(',') if x)
STAMP = int(OPT.get('stamp', 0))
PF = int(OPT.get('pf', 0))
STF = {'': '', 'sc1': ' sc1', 'nt': ' nt', 'sc01': ' sc0 sc1'}[OPT.get('stf', 'sc01')]
XF = {'sc1': ' sc1', 'sc01': ' sc0 sc1'}[OPT.get('xf', 'sc01')]

LF = {'x': XF, 'p': '', 'sc1': ' sc1', 'nt': ' nt'}[OPT.get('lf', 'x')]
PRE = int(OPT.get('pre', 0))
POLLF = int(OPT.get('pollf', 0))
H2 = int(OPT.get('h2', 0))
MAIN = "interleave_layers__spectral_fnet__glu_gated_glu__prompt"
S, D, F = 2048, 576, 4608
KA_X, KA_CR, KA_CI, KA_WR, KA_WI, KA_BX, KA_WG, KA_WU, KA_WD, KA_OUT, KA_DBG, KA_WS = [8 * i for i in range(12)]
WS_XN = 0x0000000
WS_X1 = 0x0400000
WS_X2 = 0x0800000
WS_AB = 0x0C00000
WS_XNB = 0x2000000
WS_XNC = 0x2400000
WS_X3 = 0x2800000
WS_AB2 = 0x5800000
WS_H2 = 0x4400000
WS_FL = 0x1200000
WS_P = 0x1400000
WS_P2 = 0x1E00000
WS_H = 0x3000000
HB = S * F * 2
WS_DBG = 0x8000000
XB = S * D * 2
MTB = 18432


def f32bits(x):
    return struct.unpack("<I", struct.pack("<f", x))[0]


class K:
    def __init__(self, name):
        self.name = name
        self.lines = []
        self.pend = []
        self.vm = []
        self.nlab = 0

    def e(self, s, vtag=None):
        if s.startswith('buffer_store') and ' sc' not in s:
            s += STF
        if s.endswith(' lds') and OPT.get('dmaf'):
            s = s[:-4] + ' ' + OPT['dmaf'].replace('_', ' ') + ' lds'
        if s.startswith('buffer_') or s.startswith('global_'):
            self.vm.append(vtag)
        self.lines.append("    " + s)

    def label(self, l):
        self.lines.append(l + ":")

    def newlabel(self, p="L"):
        self.nlab += 1
        return "%s_%s_%d" % (p, self.name[-12:], self.nlab)

    def lds(self, s, tag):
        if OPT.get('nolds') and tag[0] in OPT.get('nolds'):
            return
        if len(self.pend) >= 15:
            self.e("s_waitcnt lgkmcnt(13)")
            self.pend = self.pend[-13:]
        self.e(s)
        self.pend.append(tag)

    def need(self, *tags):
        idx = -1
        for i, p in enumerate(self.pend):
            if p in tags:
                idx = i
        if idx < 0:
            return
        n = min(len(self.pend) - 1 - idx, 14)
        self.e("s_waitcnt lgkmcnt(%d)" % n)
        self.pend = self.pend[len(self.pend) - n:] if n else []

    def vneed(self, tag, lgkm0=False):
        idx = -1
        for i, p in enumerate(self.vm):
            if p == tag:
                idx = i
        extra = " lgkmcnt(0)" if lgkm0 else ""
        if lgkm0:
            self.pend = []
        if idx < 0:
            if lgkm0:
                self.e("s_waitcnt lgkmcnt(0)")
            return
        n = len(self.vm) - 1 - idx
        assert n < 63
        self.e("s_waitcnt vmcnt(%d)%s" % (n, extra))
        self.vm = self.vm[len(self.vm) - n:] if n else []

    def vm0(self):
        self.e("s_waitcnt vmcnt(0)")
        self.vm = []


def vr(b, n=4):
    return "v[%d:%d]" % (b, b + n - 1)


def sr(b, n=4):
    return "s[%d:%d]" % (b, b + n - 1)


def header(k, nwg):
    k.lines.append(".p2align 8")
    k.lines.append(".type %s,@function" % k.name)
    k.label(k.name)
    k.e("s_cmp_ge_u32 s2, %d" % nwg)
    k.e("s_cbranch_scc1 L_end_%s" % k.name)


def footer(k, nvgpr, nsgpr=64):
    k.label("L_end_%s" % k.name)
    k.e("s_endpgm")
    acc = (nvgpr + 3) // 4 * 4
    k.lines.append(""".section .rodata,"a"
.p2align 6
.amdhsa_kernel %s
  .amdhsa_next_free_vgpr %d
  .amdhsa_next_free_sgpr %d
  .amdhsa_accum_offset %d
  .amdhsa_group_segment_fixed_size 0
  .amdhsa_kernarg_size 96
  .amdhsa_user_sgpr_count 2
  .amdhsa_user_sgpr_kernarg_segment_ptr 1
  .amdhsa_system_sgpr_workgroup_id_x 1
.end_amdhsa_kernel
.text""" % (k.name, nvgpr, nsgpr, acc))


def srd(k, d, pbase, off_const, off_sgpr, total):
    k.e("s_add_u32 s%d, s%d, 0x%x" % (d, pbase, off_const))
    k.e("s_addc_u32 s%d, s%d, 0" % (d + 1, pbase + 1))
    if off_sgpr is None:
        k.e("s_mov_b32 s%d, 0x%x" % (d + 2, total - off_const))
    else:
        k.e("s_add_u32 s%d, s%d, s%d" % (d, d, off_sgpr))
        k.e("s_addc_u32 s%d, s%d, 0" % (d + 1, d + 1))
        k.e("s_sub_u32 s%d, 0x%x, s%d" % (d + 2, total - off_const, off_sgpr))
    k.e("s_and_b32 s%d, s%d, 0xffff" % (d + 1, d + 1))
    k.e("s_mov_b32 s%d, 0x20000" % (d + 3))


SB = 76


def stamp(k, idx, real=0):
    if not STAMP or (STAMP == 2 and not real):
        return
    if OPT.get('pst') and idx in (4, 5, 6) and getattr(k, 'st%d' % idx, False):
        return
    if OPT.get('pst') and idx == 4:
        return
    setattr(k, 'st%d' % idx, True)
    k.e("s_memtime s[%d:%d]" % (SB + 2 * idx, SB + 1 + 2 * idx))
    if real:
        k.e("s_memrealtime s[%d:%d]" % (SB + 16 + 2 * real - 2, SB + 17 + 2 * real - 2))
    k.e("s_waitcnt lgkmcnt(0)")
    k.pend = []


def stamp_store(k, kidx):
    if not STAMP:
        return
    k.vm0()
    stamp(k, 7, 2)
    if STAMP == 2:
        k.e("s_cmp_lg_u32 s2, 100")
        k.e("s_cbranch_scc1 L_end_%s" % k.name)
        k.e("s_load_dwordx2 s[24:25], s[0:1], %d" % KA_DBG)
        k.e("s_waitcnt lgkmcnt(0)")
        k.e("s_add_u32 s24, s24, %d" % ((7 - kidx) * 512 + kidx * 8))
        k.e("s_addc_u32 s25, s25, 0")
        k.e("s_and_b32 s25, s25, 0xffff")
        k.e("s_mov_b32 s26, 8")
        k.e("s_mov_b32 s27, 0x20000")
        k.e("v_cmp_eq_u32 vcc, 0, v0")
        k.e("s_and_saveexec_b64 s[46:47], vcc")
        k.e("s_cbranch_execz L_end_%s" % k.name)
        k.e("v_mov_b32 v1, 0")
        k.e("v_mov_b32 v2, s%d" % (SB + 16))
        k.e("v_mov_b32 v3, s%d" % (SB + 18))
        k.e("buffer_store_dwordx2 v[2:3], v1, s[24:27], 0 offen")
        return
    k.e("s_lshl_b32 s44, s2, 7")
    k.e("s_add_u32 s44, s44, 0x%x" % (kidx * 65536))
    srd(k, 24, 4, WS_DBG, 44, WS_DBG + 16 * 65536)
    lsk = k.newlabel("LSS")
    k.e("v_cmp_eq_u32 vcc, %d, v0" % (64 * int(OPT.get('sw', 0))))
    k.e("s_and_saveexec_b64 s[46:47], vcc")
    k.e("s_cbranch_execz %s" % lsk)
    k.e("v_mov_b32 v1, 0")
    for i in range(10):
        k.e("v_mov_b32 v2, s%d" % (SB + 2 * i))
        k.e("v_mov_b32 v3, s%d" % (SB + 1 + 2 * i))
        k.e("buffer_store_dwordx2 v[2:3], v1, s[24:27], 0 offen offset:%d" % (8 * i))
        k.e("s_nop 1")
    k.label(lsk)
    k.e("s_mov_b64 exec, -1")
    k.vm0()


import re as _re


def remap_line(line, vb, sb=52):
    def rv(m):
        n = int(m.group(1))
        return "v%d" % (n + vb if n else 0)

    def rvr(m):
        return "v[%d:%d]" % (int(m.group(1)) + vb, int(m.group(2)) + vb)

    def rs(m):
        n = int(m.group(1))
        return "s%d" % (n + sb if n >= 6 else n)

    def rsr(m):
        a, b = int(m.group(1)), int(m.group(2))
        return "s[%d:%d]" % ((a + sb, b + sb) if a >= 6 else (a, b))
    line = _re.sub(r"\bv\[(\d+):(\d+)\]", rvr, line)
    line = _re.sub(r"\bv(\d+)\b", rv, line)
    line = _re.sub(r"\bs\[(\d+):(\d+)\]", rsr, line)
    line = _re.sub(r"\bs(\d+)\b", rs, line)
    return line


class PreDone(Exception):
    pass


def pre_issue(k, phase, vb):
    t = K(k.name)
    t.nlab = k.nlab + 1000
    try:
        phase(t, 'pre', None, None)
    except PreDone:
        pass
    k.nlab = t.nlab
    for l in t.lines:
        if l.strip().startswith(("s_load_dwordx2 s[4:5]", "s_load_dwordx2 s[48:49]", "s_load_dwordx2 s[50:51]")):
            continue
        k.lines.append(remap_line(l, vb))
    k.vm += ["PRE"] * len(t.vm)
    k.pend = []


def publish(k, farr, sIdx, sW):
    k.vm0()
    k.e("s_barrier")
    lsk = k.newlabel("LPB")
    k.e("s_cmp_lg_u32 s%d, 0" % sW)
    k.e("s_cbranch_scc1 %s" % lsk)
    if farr == 0:
        k.e("s_load_dwordx2 s[72:73], s[0:1], %d" % KA_DBG)
        k.e("s_waitcnt lgkmcnt(0)")
        srd(k, 72, 72, 0, None, 256)
        k.e("s_mov_b64 exec, 1")
        k.e("s_and_b32 s46, s2, 7")
        k.e("s_lshl_b32 s46, s46, 5")
        k.e("v_mov_b32 v2, s46")
        k.e("v_mov_b32 v3, 1")
        k.e("buffer_atomic_add v3, v2, s[72:75], 0 offen sc1")
    else:
        srd(k, 72, 4, WS_FL + farr * 1024, None, WS_FL + 8192)
        k.e("s_mov_b64 exec, 1")
        k.e("s_lshl_b32 s46, s%d, 2" % sIdx)
        k.e("v_mov_b32 v2, s46")
        k.e("v_mov_b32 v3, 1")
        k.e("buffer_store_dword v3, v2, s[72:75], 0 offen" + XF)
    k.e("s_mov_b64 exec, -1")
    k.label(lsk)
    k.vm = ["F"]


def handoff2(k, farr, nl, vIdx, vT, emit_indep, sW=28):
    l0 = k.newlabel("LH0")
    l1 = k.newlabel("LH1")
    vm0_ = list(k.vm)
    k.e("s_cmp_eq_u32 s%d, 0" % sW)
    k.e("s_cbranch_scc1 %s" % l0)
    emit_indep()
    vmA = list(k.vm)
    k.e("s_barrier")
    k.e("s_branch %s" % l1)
    k.label(l0)
    k.vm = vm0_
    old = OPT.get('w1poll')
    OPT['w1poll'] = '0'
    wait_flags(k, farr, nl, vIdx, vT)
    if old is None:
        del OPT['w1poll']
    else:
        OPT['w1poll'] = old
    k.e("s_barrier")
    emit_indep()
    k.label(l1)
    k.vm = vmA


def wait_flags(k, farr, nl, vIdx, vT, sW=28):
    one = int(OPT.get('w1poll', 1))
    slp = int(OPT.get('fsleep', 0))
    lsk = k.newlabel("LFS")
    if one:
        k.e("s_cmp_lg_u32 s%d, 0" % sW)
        k.e("s_cbranch_scc1 %s" % lsk)
    vm_keep = list(k.vm)
    want = 1
    if farr == 0:
        k.e("s_load_dwordx2 s[72:73], s[0:1], %d" % KA_DBG)
        k.e("s_waitcnt lgkmcnt(0)")
        srd(k, 72, 72, 0, None, 256)
        k.e("v_and_b32 v%d, 63, v0" % vIdx)
        k.e("v_lshlrev_b32 v%d, 3, v%d" % (vIdx, vIdx))
        nl, want = 8, 32
    else:
        srd(k, 72, 4, WS_FL + farr * 1024, None, WS_FL + 8192)
    lp = k.newlabel("LFW")
    ld = k.newlabel("LFD")
    k.e("v_lshlrev_b32 v%d, 2, v%d" % (vIdx, vIdx))
    if nl < 64:
        k.e("s_mov_b64 exec, 0x%x" % ((1 << nl) - 1))
    k.e("s_mov_b32 s45, 0")
    k.label(lp)
    if slp:
        k.e("s_sleep %d" % slp)
    k.e("buffer_load_dword v%d, v%d, s[72:75], 0 offen%s" % (vT, vIdx, XF))
    k.vm0()
    k.e("v_cmp_ne_u32 vcc, %d, v%d" % (want, vT))
    k.e("s_nop 3")
    k.e("s_cmp_eq_u64 vcc, 0")
    k.e("s_cbranch_scc1 %s" % ld)
    k.e("s_add_u32 s45, s45, 1")
    k.e("s_cmp_lt_u32 s45, 0x100000")
    k.e("s_cbranch_scc1 %s" % lp)
    k.label(ld)
    k.e("s_mov_b64 exec, -1")
    if one:
        k.label(lsk)
        k.e("s_barrier")
        k.vm = vm_keep


def pf2_loads(k, items):
    for n, (ka, nb_) in enumerate(items):
        k.e("s_load_dwordx2 s[%d:%d], s[0:1], %d" % (56 + 2 * n, 57 + 2 * n, ka))


def pf2_setup(k, items, sW, vLane, vA_):
    stride = int(OPT.get('pfs', 128))
    ch = 64 * stride
    k.e("s_lshl_b32 s64, s2, 3")
    k.e("s_add_u32 s64, s64, s%d" % sW)
    k.e("s_mul_i32 s64, s64, %d" % ch)
    k.e("s_mov_b32 s60, s56")
    k.e("s_mov_b32 s61, s57")
    k.e("s_mov_b32 s62, 0x%x" % items[0][1])
    if len(items) == 2:
        lim = (items[0][1] + ch - 1) // ch * ch
        k.e("s_cmp_ge_u32 s64, 0x%x" % lim)
        k.e("s_cselect_b32 s60, s58, s60")
        k.e("s_cselect_b32 s61, s59, s61")
        k.e("s_cselect_b32 s65, 0x%x, 0" % lim)
        k.e("s_sub_u32 s64, s64, s65")
    k.e("s_and_b32 s61, s61, 0xffff")
    k.e("s_mov_b32 s63, 0x20000")
    k.e("v_mul_u32_u24 v%d, %d, v%d" % (vA_, stride, vLane))
    k.e("v_add_u32 v%d, s64, v%d" % (vA_, vA_))


def code_prefetch(k, sW, vLane, vA_, vD, SR, sTmp):
    if not int(OPT.get('cpf', 1)):
        return
    lab = k.newlabel("LPC")
    k.e("s_getpc_b64 s[%d:%d]" % (SR, SR + 1))
    k.label(lab)
    k.e("s_sub_u32 s%d, s%d, %s-%s" % (SR, SR, lab, k.name))
    k.e("s_subb_u32 s%d, s%d, 0" % (SR + 1, SR + 1))
    k.e("s_and_b32 s%d, s%d, 0xffff" % (SR + 1, SR + 1))
    k.e("s_mov_b32 s%d, L_end_%s-%s" % (SR + 2, k.name, k.name))
    k.e("s_mov_b32 s%d, 0x20000" % (SR + 3))
    k.e("s_lshr_b32 s%d, s2, 3" % sTmp)
    k.e("s_and_b32 s%d, s%d, 1" % (sTmp, sTmp))
    k.e("s_lshl_b32 s%d, s%d, 3" % (sTmp, sTmp))
    k.e("s_add_u32 s%d, s%d, s%d" % (sTmp, sTmp, sW))
    k.e("s_lshl_b32 s%d, s%d, 13" % (sTmp, sTmp))
    k.e("v_lshl_add_u32 v%d, v%d, 7, s%d" % (vA_, vLane, sTmp))
    k.e("buffer_load_dword v%d, v%d, %s, 0 offen" % (vD, vA_, sr(SR)), "C")


def wave_sum(k, v, sbase):
    for ctl in ("quad_perm:[1,0,3,2]", "quad_perm:[2,3,0,1]", "row_half_mirror", "row_mirror"):
        k.e("s_nop 1")
        k.e("v_add_f32_dpp %s, %s, %s %s row_mask:0xf bank_mask:0xf" % (v, v, v, ctl))
    k.e("s_nop 1")
    for i in range(4):
        k.e("v_readlane_b32 s%d, %s, %d" % (sbase + i, v, 16 * i))
    k.e("s_nop 1")
    k.e("v_mov_b32 %s, s%d" % (v, sbase))
    for i in range(1, 4):
        k.e("v_add_f32 %s, s%d, %s" % (v, sbase + i, v))


def r_body(k, vrow, vlane, ysrc, has_xout, ln, SX, SO, SN, hook=None, sLds=None):
    k.e("v_mul_u32_u24 v4, 1152, v%d" % vrow)
    k.e("v_lshl_add_u32 v7, v%d, 3, v4" % vlane)
    k.e("v_lshl_add_u32 v8, v%d, 1, v4" % vlane)
    k.e("buffer_load_dwordx2 v[10:11], v7, %s, 0 offen" % sr(SX), "X")
    k.e("buffer_load_dwordx2 v[12:13], v7, %s, 0 offen offset:512" % sr(SX), "X")
    k.e("buffer_load_ushort v14, v8, %s, 0 offen offset:1024" % sr(SX), "X")
    if hook:
        hook()
    X = 30
    A = 16
    if ysrc:
        ysrc()

    def row_store(p, SR, off, t):
        k.e("ds_write_b64 v40, %s offset:%d" % (vr(p, 2), off))
        k.e("ds_write_b64 v40, %s offset:%d" % (vr(p + 2, 2), off + 512))
        k.e("ds_write_b16 v41, v%d offset:%d" % (p + 4, off + 1024))
        k.e("s_waitcnt lgkmcnt(0)")
        k.e("ds_read_b128 %s, v42 offset:%d" % (vr(t), off))
        k.e("ds_read_b128 %s, v42 offset:%d" % (vr(t + 4), off + 1024))
        return lambda: (k.e("s_waitcnt lgkmcnt(0)"),
                        k.e("buffer_store_dwordx4 %s, v43, %s, 0 offen" % (vr(t), sr(SR))),
                        k.e("s_mov_b64 exec, 0xff"),
                        k.e("buffer_store_dwordx4 %s, v43, %s, 0 offen offset:1024" % (vr(t + 4), sr(SR))),
                        k.e("s_mov_b64 exec, -1"))
    if sLds is not None:
        k.e("v_lshl_add_u32 v40, v%d, 3, s%d" % (vlane, sLds))
        k.e("v_lshl_add_u32 v41, v%d, 1, s%d" % (vlane, sLds))
        k.e("v_lshl_add_u32 v42, v%d, 4, s%d" % (vlane, sLds))
        k.e("v_lshl_add_u32 v43, v%d, 4, v4" % vlane)
    fin_x = None
    k.vneed("X")
    for i, src in enumerate([10, 11, 12, 13]):
        k.e("v_lshlrev_b32 v%d, 16, v%d" % (X + 2 * i, src))
        k.e("v_and_b32 v%d, 0xffff0000, v%d" % (X + 2 * i + 1, src))
    k.e("v_lshlrev_b32 v%d, 16, v14" % (X + 8))
    if ysrc:
        for e in range(9):
            k.e("v_add_f32 v%d, v%d, v%d" % (X + e, X + e, A + e))
        for i in range(4):
            k.e("v_cvt_pk_bf16_f32 v%d, v%d, v%d" % (10 + i, X + 2 * i, X + 2 * i + 1))
        k.e("v_cvt_pk_bf16_f32 v14, v%d, v%d" % (X + 8, X + 8))
        if has_xout and sLds is not None:
            fin_x = row_store(10, SO, 0, 44)
            if not ln:
                fin_x()
        elif has_xout:
            k.e("buffer_store_dwordx2 v[10:11], v7, %s, 0 offen" % sr(SO))
            k.e("buffer_store_dwordx2 v[12:13], v7, %s, 0 offen offset:512" % sr(SO))
            k.e("buffer_store_short v14, v8, %s, 0 offen offset:1024" % sr(SO))
        if ln:
            for i, src in enumerate([10, 11, 12, 13]):
                k.e("v_lshlrev_b32 v%d, 16, v%d" % (X + 2 * i, src))
                k.e("v_and_b32 v%d, 0xffff0000, v%d" % (X + 2 * i + 1, src))
            k.e("v_lshlrev_b32 v%d, 16, v14" % (X + 8))
    if ln:
        k.e("v_add_f32 v20, v%d, v%d" % (X, X + 1))
        k.e("v_add_f32 v21, v%d, v%d" % (X + 2, X + 3))
        k.e("v_add_f32 v22, v%d, v%d" % (X + 4, X + 5))
        k.e("v_add_f32 v23, v%d, v%d" % (X + 6, X + 7))
        k.e("v_add_f32 v20, v20, v21")
        k.e("v_add_f32 v22, v22, v23")
        k.e("v_add_f32 v20, v20, v%d" % (X + 8))
        k.e("v_add_f32 v20, v20, v22")
        wave_sum(k, "v20", 32)
        k.e("v_mul_f32 v20, 0x%08x, v20" % f32bits(1.0 / D))
        for e in range(9):
            k.e("v_sub_f32 v%d, v%d, v20" % (X + e, X + e))
        k.e("v_mul_f32 v21, v%d, v%d" % (X, X))
        k.e("v_mul_f32 v22, v%d, v%d" % (X + 1, X + 1))
        for e in range(2, 9):
            k.e("v_fmac_f32 v%d, v%d, v%d" % (21 + (e & 1), X + e, X + e))
        k.e("v_add_f32 v21, v21, v22")
        wave_sum(k, "v21", 32)
        k.e("v_mov_b32 v22, 0x%08x" % f32bits(1e-5))
        k.e("v_fmac_f32 v22, 0x%08x, v21" % f32bits(1.0 / D))
        k.e("v_rsq_f32 v22, v22")
        k.e("s_nop 0")
        for e in range(9):
            k.e("v_mul_f32 v%d, v%d, v22" % (X + e, X + e))
        for i in range(4):
            k.e("v_cvt_pk_bf16_f32 v%d, v%d, v%d" % (24 + i, X + 2 * i, X + 2 * i + 1))
        k.e("v_cvt_pk_bf16_f32 v28, v%d, v%d" % (X + 8, X + 8))
        if sLds is not None:
            fin_n = row_store(24, SN, 1168, 52)
            fin_n()
            if fin_x:
                fin_x()
        else:
            k.e("buffer_store_dwordx2 v[24:25], v7, %s, 0 offen" % sr(SN))
            k.e("buffer_store_dwordx2 v[26:27], v7, %s, 0 offen offset:512" % sr(SN))
            k.e("buffer_store_short v28, v8, %s, 0 offen offset:1024" % sr(SN))


def gen_r0(name):
    k = K(name)
    nwg = S // 4
    header(k, nwg)
    k.e("s_load_dwordx2 s[4:5], s[0:1], %d" % KA_WS)
    k.e("s_load_dwordx2 s[6:7], s[0:1], %d" % KA_X)
    pf = [(KA_WR, D * D * 2), (KA_WI, D * D * 2), (KA_CR, S * S * 2), (KA_CI, S * S * 2)] if PF else []
    for n, (ka, nb_) in enumerate(pf):
        k.e("s_load_dwordx2 s[%d:%d], s[0:1], %d" % (40 + 4 * n, 41 + 4 * n, ka))
    k.e("v_lshrrev_b32 v1, 6, v0")
    k.e("v_and_b32 v2, 63, v0")
    k.e("s_lshl_b32 s3, s2, 2")
    k.e("v_add_u32 v1, s3, v1")
    k.e("s_waitcnt lgkmcnt(0)")
    srd(k, 12, 6, 0, None, XB)
    srd(k, 24, 4, WS_XN, None, WS_XN + XB)
    for n, (ka, nb_) in enumerate(pf):
        srd(k, 40 + 4 * n, 40 + 4 * n, 0, None, nb_)
    k.e("s_mul_i32 s3, s2, 18432")
    srd(k, 16, 4, WS_P, 3, WS_P + 4 * XB)
    k.e("s_mov_b32 s18, 18432")
    k.e("v_lshrrev_b32 v3, 6, v0")
    k.e("v_mul_u32_u24 v3, 5120, v3")
    k.e("v_lshl_add_u32 v3, v2, 4, v3")
    for r in range(4):
        k.e("v_mov_b32 v%d, 0" % (36 + r))
    for n in range(4):
        k.e("buffer_store_dwordx4 v[36:39], v3, s[16:19], 0 offen offset:%d" % (n * 1024))
    k.e("s_mov_b32 s3, 4096")
    k.e("buffer_store_dwordx4 v[36:39], v3, s[16:19], s3 offen")

    def hook():
        if pf:
            k.e("v_lshlrev_b32 v42, 12, v1")
            k.e("v_lshl_add_u32 v42, v2, 6, v42")
            for n in range(len(pf)):
                k.e("buffer_load_dword v43, v42, %s, 0 offen" % sr(40 + 4 * n))
    r_body(k, 1, 2, None, False, True, 12, None, 24, hook=hook)
    footer(k, 44, 60)
    return k, nwg, 256, 0


def engine(k, tiles, NFR, KS, NS, NBUF, W, NSET, DELTA, rd_m, rd_n, dma, acc, first, vM, vN, sLoop,
           n_static=False, after_use=None, after_last_dma=None, npre=None, stage_extra=None, s0=0, ns_total=None, static=False):
    nt = len(tiles)
    UPS = KS * nt
    total = NS * UPS
    NSL = W
    W = W - int(OPT.get('lag', 2))
    st = {'nrM': 0, 'nrN': 0, 'pub': (NS if static else 0), 'ald': False}
    k.pend = []
    if ns_total is None:
        ns_total = NS

    BUD = int(OPT.get('bud', 3))

    def pump(udone, maxm=2):
        bud = BUD if maxm < 50 else 999
        while bud > 0:
            f = st['nrN']
            s_ = f // NFR
            okN = s_ < NS * KS and (n_static or s_ // KS <= st['pub']) and s_ - NSET < udone // nt
            u = st['nrM']
            okM = u < total and u // UPS <= st['pub'] and u - W < udone
            if okN and (not okM or s_ * nt <= u):
                rd_n(s0 + s_ // KS, s_ % KS, f % NFR, vN[s_ % NSET][f % NFR], "N%d" % (s_ % NSET))
                st['nrN'] += 1
                bud -= 1
            elif okM:
                stg, rem = divmod(u, UPS)
                ks, ti = divmod(rem, nt)
                rd_m(s0 + stg, ks, tiles[ti], vM[u % NSL], "M%d" % (u % NSL))
                st['nrM'] += 1
                bud -= 2
            else:
                break

    pump(0, maxm=99)
    pre = k.lines
    k.lines = []
    blocks = []
    pos = max(1, min(UPS, UPS - W + DELTA))
    for t in range(NS):
        last = (s0 + t == ns_total - 1) or static
        extras = []
        for r in range(UPS):
            u = t * UPS + r
            ks, ti = divmod(r, nt)
            s = t * KS + ks
            k.need("M%d" % (u % NSL), "N%d" % (s % NSET))
            for i in range(NFR):
                a = acc(t, tiles[ti], i)
                c = "0" if first(t, ks) else vr(a)
                if not (OPT.get('nomfma') and t > 0):
                    k.e("v_mfma_f32_16x16x32_bf16 %s, %s, %s, %s" % (vr(a), vr(vM[u % NSL]), vr(vN[s % NSET][i]), c))
            if not last and r + 1 == pos:
                assert st['nrM'] == (t + 1) * UPS, (st, t)
                assert n_static or st['nrN'] >= (t + 1) * KS * NFR, (st, t)
                k.vneed("D%d" % (s0 + t + 1), lgkm0=True)
                k.e("s_barrier")
                st['pub'] = t + 1
                if s0 + t + NBUF < ns_total:
                    extras = dma(s0 + t + NBUF)
                    if OPT.get('nodma'):
                        extras = [(tg, [x for x in L if not x.startswith('buffer_load')]) for tg, L in extras]
                    if OPT.get('dropdma'):
                        pat = {'n': 'v8,', 'm': ('v9,', 'v10,', 'v11,'), 'q': 'v11,'}[OPT['dropdma']]
                        pats = pat if isinstance(pat, tuple) else (pat,)
                        extras = [(tg, [x for x in L if not (x.startswith('buffer_load') and any(p in x for p in pats))]) for tg, L in extras]
                elif after_last_dma and not st['ald']:
                    st['ald'] = True
                    extras = after_last_dma()
                if stage_extra:
                    extras = extras + stage_extra(t)
            pump(u + 1)
            if after_use:
                after_use(t, r)
            if extras:
                left = UPS - r
                n = (len(extras) + left - 1) // left
                for _ in range(n):
                    tag, L = extras.pop(0)
                    for x in L:
                        k.e(x, tag)
        assert not extras
        blocks.append(k.lines)
        k.lines = []
    best = None
    for U in (1, 2, 3, 4, 6):
        for a in range(NS):
            bnd = a + U
            while bnd + U <= NS and all(blocks[bnd + x] == blocks[a + x] for x in range(U)):
                bnd += U
            cnt = (bnd - a) // U
            if cnt >= 2 and (best is None or (cnt - 1) * U > (best[2] - 1) * best[3]):
                best = (a, bnd, cnt, U)
    out = pre
    if best is None:
        for bl in blocks:
            out += bl
    else:
        a, bnd, cnt, U = best
        for bl in blocks[:a]:
            out += bl
        lab = k.newlabel("LP")
        out.append("    s_mov_b32 s%d, %d" % (sLoop, cnt))
        out.append(lab + ":")
        for bl in blocks[a:a + U]:
            out += bl
        out.append("    s_sub_u32 s%d, s%d, 1" % (sLoop, sLoop))
        out.append("    s_cmp_lg_u32 s%d, 0" % sLoop)
        out.append("    s_cbranch_scc1 %s" % lab)
        for bl in blocks[bnd:]:
            out += bl
    k.lines = out


def tr_voff(k, vdst, sslot, vLane, T, stride, posmask):
    t0, t1, t2, t3, t4 = T
    k.e("v_add_u32 v%d, s%d, v%d" % (t0, sslot, vLane))
    k.e("v_mul_u32_u24 v%d, 3641, v%d" % (t1, t0))
    k.e("v_lshrrev_b32 v%d, 16, v%d" % (t1, t1))
    k.e("v_mul_u32_u24 v%d, 18, v%d" % (t2, t1))
    k.e("v_sub_u32 v%d, v%d, v%d" % (t2, t0, t2))
    k.e("v_and_b32 v%d, 0x%x, v%d" % (t3, posmask, t1))
    k.e("v_and_b32 v%d, 4, v%d" % (t4, t1))
    k.e("v_lshl_or_b32 v%d, v%d, 1, v%d" % (t3, t4, t3))
    k.e("v_and_b32 v%d, 8, v%d" % (t4, t1))
    k.e("v_lshrrev_b32 v%d, 1, v%d" % (t4, t4))
    k.e("v_or_b32 v%d, v%d, v%d" % (t3, t3, t4))
    k.e("v_mul_u32_u24 v%d, %d, v%d" % (vdst, stride, t3))
    k.e("v_lshl_add_u32 v%d, v%d, 4, v%d" % (vdst, t2, vdst))


def tr_raddr(k, vdst, vLane, t):
    k.e("v_lshrrev_b32 v%d, 5, v%d" % (vdst, vLane))
    k.e("v_lshlrev_b32 v%d, 4, v%d" % (vdst, vdst))
    k.e("v_bfe_u32 v%d, v%d, 4, 1" % (t, vLane))
    k.e("v_lshl_add_u32 v%d, v%d, 2, v%d" % (vdst, t, vdst))
    k.e("v_bfe_u32 v%d, v%d, 2, 2" % (t, vLane))
    k.e("v_add_u32 v%d, v%d, v%d" % (vdst, vdst, t))
    k.e("v_mul_u32_u24 v%d, 288, v%d" % (vdst, vdst))
    k.e("v_and_b32 v%d, 3, v%d" % (t, vLane))
    k.e("v_lshl_add_u32 v%d, v%d, 3, v%d" % (vdst, t, vdst))


def store_tiles_bf16(k, js, accf, vO, vO2, SRO, soff, sfl, TB, neg=None, colbase=0):
    idx = 0
    slot = 0
    while idx < len(js):
        pr = js[idx:idx + 2]
        if len(pr) == 2 and pr[1] != pr[0] + 1:
            pr = pr[:1]
        o = TB + 4 * (slot % 4)
        for n_, j in enumerate(pr):
            a = accf(j)
            k.e("v_cvt_pk_bf16_f32 v%d, v%d, v%d" % (o + 2 * n_, a, a + 1))
            k.e("v_cvt_pk_bf16_f32 v%d, v%d, v%d" % (o + 2 * n_ + 1, a + 2, a + 3))
            if neg is not None:
                k.e("v_xor_b32 v%d, s%d, v%d" % (o + 2 * n_, neg, o + 2 * n_))
                k.e("v_xor_b32 v%d, s%d, v%d" % (o + 2 * n_ + 1, neg, o + 2 * n_ + 1))
        if len(pr) == 2:
            k.e("s_nop 1")
            k.e("v_permlane16_swap_b32 v%d, v%d" % (o, o + 2))
            k.e("v_permlane16_swap_b32 v%d, v%d" % (o + 1, o + 3))
            k.e("s_nop 0")
            if SRO is None:
                k.e("ds_write_b128 v%d, %s offset:%d" % (vO, vr(o), colbase + pr[0] * 32))
            else:
                k.e("buffer_store_dwordx4 %s, v%d, %s, s%d offen offset:%d%s" % (vr(o), vO, sr(SRO), soff, colbase + pr[0] * 32, sfl))
        elif SRO is None:
            k.e("ds_write_b64 v%d, %s offset:%d" % (vO2, vr(o, 2), colbase + pr[0] * 32))
        else:
            k.e("buffer_store_dwordx2 %s, v%d, %s, s%d offen offset:%d%s" % (vr(o, 2), vO2, sr(SRO), soff, colbase + pr[0] * 32, sfl))
        idx += len(pr)
        slot += 1


PREG = 36864


def store_native(k, tiles, accf, vP, SRO, sTmp, blk0, sblk, TB, par):
    for n, j in enumerate(tiles):
        o = TB + 4 * (n % 4)
        for i in range(2):
            a = accf(j, i)
            if par:
                k.e("v_and_b32 v%d, 0xfffe0000, v%d" % (a, a))
                k.e("v_or_b32 v%d, 0x10000, v%d" % (a, a))
            else:
                k.e("v_add_u32 v%d, 0x10000, v%d" % (a, a))
                k.e("v_and_b32 v%d, 0xfffe0000, v%d" % (a, a))
            k.e("v_cvt_pk_bf16_f32 v%d, v%d, v%d" % (o + 2 * i, a, a + 1))
            k.e("v_cvt_pk_bf16_f32 v%d, v%d, v%d" % (o + 2 * i + 1, a + 2, a + 3))
            k.e(("v_or_b32 v%d, 1, v%d" if par else "v_and_b32 v%d, -2, v%d") % (o + 2 * i, o + 2 * i))
        if n % 4 == 0:
            if sblk is None:
                k.e("s_mov_b32 s%d, %d" % (sTmp, (blk0 + j) * 1024))
            else:
                k.e("s_add_u32 s%d, s%d, %d" % (sTmp, sblk, (blk0 + j) * 1024))
        else:
            k.e("s_nop 0")
        k.e("s_nop 0")
        k.e("v_permlane16_swap_b32 v%d, v%d" % (o, o + 2))
        k.e("v_permlane16_swap_b32 v%d, v%d" % (o + 1, o + 3))
        k.e("s_nop 0")
        k.e("buffer_store_dwordx4 %s, v%d, %s, s%d offen offset:%d%s" % (vr(o), vP, sr(SRO), sTmp, (n % 4) * 1024, XF))


def r_tail(k, rcfg, npart, sW, vLane, sGroup, sMember, XBUF, WSP, XNO, nxt_phase=None):
    freg, xin, xout, ln = rcfg
    if xin[0] == 'in':
        srd(k, 12, 48, 0, None, XB)
    else:
        srd(k, 12, 4, xin[1], None, xin[1] + XB)
    k.e("s_lshr_b32 s46, s%d, 2" % sMember)
    k.e("s_lshl_b32 s47, s%d, 2" % sGroup)
    k.e("s_add_u32 s46, s46, s47")
    k.e("s_mul_i32 s46, s46, %d" % PREG)
    srd(k, 20, 4, WSP, 46, WSP + npart * XB)
    if xout[0] == 'out':
        srd(k, 24, 50, 0, None, XB)
    else:
        srd(k, 24, 4, xout[1], None, xout[1] + XB)
    if ln:
        srd(k, 52, 4, XNO, None, XNO + XB)
    stamp(k, 4)
    k.e("s_lshl_b32 s46, s%d, 7" % sGroup)
    k.e("s_lshl_b32 s47, s%d, 3" % sMember)
    k.e("s_add_u32 s46, s46, s47")
    k.e("s_add_u32 s46, s46, s%d" % sW)
    k.e("v_mov_b32 v2, s46")
    PB0 = 44
    par = (rcfg[0] + 1) & 1

    def ysrc():
        k.e("s_lshr_b32 s46, s%d, 1" % sMember)
        k.e("s_and_b32 s46, s46, 1")
        k.e("s_lshl_b32 s46, s46, 8")
        k.e("s_and_b32 s47, s%d, 1" % sMember)
        k.e("s_lshl_b32 s47, s47, 7")
        k.e("s_add_u32 s46, s46, s47")
        for n, (mul, add) in enumerate(((64, 0), (8, 512))):
            k.e("s_mul_i32 s47, s%d, %d" % (sW, mul))
            k.e("s_add_u32 s47, s47, %d" % add)
            k.e("v_add_u32 v3, s47, v%d" % vLane)
            k.e("v_lshrrev_b32 v5, 4, v3")
            k.e("v_lshlrev_b32 v5, 10, v5")
            k.e("v_bfe_u32 v6, v3, 3, 1")
            k.e("v_lshl_add_u32 v5, v6, 9, v5")
            k.e("v_and_b32 v6, 7, v3")
            k.e("v_lshl_add_u32 v5, v6, 4, v5")
            k.e("v_add_u32 v%d, s46, v5" % (40 + n))
            k.e("v_mul_u32_u24 v5, 2336, v6")
            k.e("v_lshrrev_b32 v6, 3, v3")
            k.e("v_lshl_add_u32 v5, v6, 5, v5")
            k.e("v_add_u32 v%d, 0x%x, v5" % (42 + n, XBUF))
        for z in range(npart):
            for r in range(4):
                k.e("v_mov_b32 v%d, %d" % (PB0 + 8 * z + 4 + r, par))
        AB_ = PB0 + 8 * npart
        lp = k.newlabel("LW")
        ld = k.newlabel("LD")
        k.e("s_mov_b32 s45, 0")
        k.label(lp)
        if int(OPT.get('psleep', 0)):
            k.e("s_sleep %d" % int(OPT.get('psleep', 0)))
        for z in range(npart):
            k.e("s_mov_b32 s47, 0x%x" % (z * 64 * PREG))
            k.e("buffer_load_dwordx4 %s, v40, s[20:23], s47 offen%s" % (vr(PB0 + 8 * z), XF))
            k.e("s_mov_b64 exec, 0xff")
            k.e("buffer_load_dwordx4 %s, v41, s[20:23], s47 offen%s" % (vr(PB0 + 8 * z + 4), XF))
            k.e("s_mov_b64 exec, -1")
        k.vm0()
        regs = list(range(PB0, PB0 + 8 * npart, 2))
        op3 = "v_and_b32" if par else "v_or_b32"
        k.e("%s v26, v%d, v%d" % (op3, regs[0], regs[1]))
        k.e("%s v27, v%d, v%d" % (op3, regs[2], regs[3]))
        rest = regs[4:]
        n = 0
        while rest:
            d = 26 + (n & 1)
            if par:
                k.e("v_and_b32 v%d, v%d, v%d" % (d, d, rest[0]))
                rest = rest[1:]
            else:
                k.e("v_or3_b32 v%d, v%d, v%d, v%d" % (d, d, rest[0], rest[1]))
                rest = rest[2:]
            n += 1
        k.e("%s v26, v26, v27" % op3)
        k.e("v_and_b32 v26, 1, v26")
        k.e("v_cmp_ne_u32 vcc, %d, v26" % par)
        k.e("s_nop 3")
        k.e("s_cmp_eq_u64 vcc, 0")
        k.e("s_cbranch_scc1 %s" % ld)
        k.e("s_add_u32 s45, s45, 1")
        k.e("s_cmp_lt_u32 s45, 0x100000")
        k.e("s_cbranch_scc1 %s" % lp)
        k.label(ld)
        stamp(k, 5)
        if False:
            for r in range(4):
                k.e("v_mov_b32 v%d, -1" % (AB_ + 16 + r))
            for z in range(npart):
                k.e("s_mov_b32 s47, 0x%x" % (z * 64 * PREG))
                k.e("buffer_store_dwordx4 %s, v40, s[20:23], s47 offen" % vr(AB_ + 16))
                k.e("s_mov_b64 exec, 0xff")
                k.e("buffer_store_dwordx4 %s, v41, s[20:23], s47 offen" % vr(AB_ + 16))
                k.e("s_mov_b64 exec, -1")
        for z in range(npart):
            for h in range(2):
                for r in range(4):
                    src = PB0 + 8 * z + 4 * h + r
                    a = AB_ + 8 * h + 2 * r
                    if z == 0:
                        k.e("v_lshlrev_b32 v%d, 16, v%d" % (a, src))
                        k.e("v_and_b32 v%d, 0xffff0000, v%d" % (a + 1, src))
                    else:
                        k.e("v_lshlrev_b32 v26, 16, v%d" % src)
                        k.e("v_and_b32 v27, 0xffff0000, v%d" % src)
                        k.e("v_add_f32 v%d, v%d, v26" % (a, a))
                        k.e("v_add_f32 v%d, v%d, v27" % (a + 1, a + 1))
        k.e("ds_write_b128 v42, %s" % vr(AB_))
        k.e("ds_write_b128 v42, %s offset:16" % vr(AB_ + 4))
        k.e("s_mov_b64 exec, 0xff")
        k.e("ds_write_b128 v43, %s" % vr(AB_ + 8))
        k.e("ds_write_b128 v43, %s offset:16" % vr(AB_ + 12))
        k.e("s_mov_b64 exec, -1")
        k.e("s_mul_i32 s47, s%d, 2336" % sW)
        k.e("s_add_u32 s47, s47, 0x%x" % XBUF)
        k.e("v_lshl_add_u32 v5, v%d, 4, s47" % vLane)
        k.e("v_lshl_add_u32 v6, v%d, 2, s47" % vLane)
        k.e("s_waitcnt lgkmcnt(0)")
        k.e("s_barrier")
        k.e("ds_read_b128 v[16:19], v5")
        k.e("ds_read_b128 v[20:23], v5 offset:1024")
        k.e("ds_read_b32 v24, v6 offset:2048")
        if nxt_phase and PRE:
            pre_issue(k, nxt_phase, 180)
        k.e("s_waitcnt lgkmcnt(0)")
    r_body(k, 2, vLane, ysrc, True, ln, 12, 24, 52, sLds=47 if int(OPT.get('rst', 0)) else None)
    return PB0 + 8 * npart + 20


def preset_pieces(k, sW, vLane, vA_, vD4, SR, sTmp, WSP):
    L = ["s_mul_i32 s%d, s2, %d" % (sTmp, PREG),
         "s_add_u32 s%d, s4, 0x%x" % (SR, WSP), "s_addc_u32 s%d, s5, 0" % (SR + 1),
         "s_add_u32 s%d, s%d, s%d" % (SR, SR, sTmp), "s_addc_u32 s%d, s%d, 0" % (SR + 1, SR + 1),
         "s_and_b32 s%d, s%d, 0xffff" % (SR + 1, SR + 1),
         "s_mov_b32 s%d, %d" % (SR + 2, PREG), "s_mov_b32 s%d, 0x20000" % (SR + 3),
         "s_mul_i32 s%d, s%d, 5120" % (sTmp, sW),
         "v_lshl_add_u32 v%d, v%d, 4, s%d" % (vA_, vLane, sTmp)]
    for r in range(4):
        L.append("v_mov_b32 v%d, -1" % (vD4 + r))
    P = [("S", L + ["buffer_store_dwordx4 %s, v%d, %s, 0 offen" % (vr(vD4), vA_, sr(SR))])]
    for n in range(1, 4):
        P.append(("S", ["buffer_store_dwordx4 %s, v%d, %s, 0 offen offset:%d" % (vr(vD4), vA_, sr(SR), n * 1024)]))
    P.append(("S", ["s_mov_b32 s%d, 4096" % sTmp, "buffer_store_dwordx4 %s, v%d, %s, s%d offen" % (vr(vD4), vA_, sr(SR), sTmp)]))
    return P


def gen_gemm(k, kind, rcfg=None, kidx=0, pf=(), xn=None, ab=None, h=None, dep=None, pub=None, nxt_phase=None, pf2=()):
    nwg = 256
    k.pend = []
    if not int(OPT.get('pf2', 1)):
        pf2 = ()
    LNF = (kind == 'A1L')
    if LNF:
        kind = 'A1'
    if kind == 'A2':
        NFR, NBUF, mmode, NS = 2, 4, 'tr', 16
        strideN, strideM = 4096, 288
    elif kind == 'B2':
        NFR, NBUF, mmode, NS = 2, 4, 'tr', 18
        strideN, strideM = 0, 1152
    else:
        NFR, NBUF, mmode, NS = 1, 4, 'row', 9
        strideN, strideM = 1152, 1152
    WSP, WSPO = WS_P, WS_P
    groups = [list(range(5)), list(range(5, 9))]
    NSET = 4
    NT = 4 * NFR * 16
    NTB = NT * 128
    STB = NTB + MTB
    NDN = NT // 64
    LDSB = NBUF * STB + (8 * 2336 if rcfg else 0)
    MB0 = NTB
    if LNF:
        STB, NDN, MB0 = MTB, 0, 73728
        LDSB = 73728 + NBUF * MTB
    KS = 2
    Wmul = float(OPT.get('twmul', 2.0))
    Wmax = int(5 * Wmul + 0.5)

    vLane, vT0, vT1, vT2, vT3, vT4 = 1, 2, 3, 4, 5, 6
    vO = 7
    vDN = 8
    vDM = [9, 10, 11]
    nxt = 12
    nrm = KS if mmode == 'row' else 1
    vRN = [[0] * KS for _ in range(NBUF)]
    vRM = [[0] * nrm for _ in range(NBUF)]
    for b in range(NBUF):
        for s_ in range(KS):
            vRN[b][s_] = nxt; nxt += 1
        for s_ in range(nrm):
            vRM[b][s_] = nxt; nxt += 1
    nxt = (nxt + 3) // 4 * 4
    vPA, vPS, vPD = nxt, nxt + 2, nxt + 3
    nxt += 4
    PD = int(OPT.get('pd', 0)) if kind in ('A2', 'B2') else 0
    vM = [nxt + 4 * j for j in range(Wmax)]; nxt += 4 * Wmax
    vN = [[nxt + 4 * (p * NFR + i) for i in range(NFR)] for p in range(NSET)]; nxt += 4 * NSET * NFR
    vAbase = nxt
    nxt += 4 * 5 * NFR
    nxt = max(nxt, 192 if LNF else 96, 196 if nxt_phase else 0)
    vPF = nxt
    vPFA = nxt + 1
    nxt += 2
    nvgpr = nxt
    sW, sW1024, sW256, sKN, sKM, sTmp, sLoop = 28, 29, 30, 31, 32, 33, 40
    SRN, SRM, SRO = 12, 16, 24
    if not PF:
        pf = ()

    stamp(k, 0, 1)
    if LNF and int(OPT.get('prio', 1)):
        k.e("s_setprio 3")
    k.e("s_load_dwordx2 s[4:5], s[0:1], %d" % KA_WS)
    if kind == 'A2':
        k.e("s_load_dwordx4 s[8:11], s[0:1], %d" % KA_CR)
    elif kind == 'B2':
        k.e("s_load_dwordx2 s[8:9], s[0:1], %d" % KA_WD)
    else:
        k.e("s_load_dwordx2 s[8:9], s[0:1], %d" % KA_WR)
        k.e("s_load_dwordx2 s[10:11], s[0:1], %d" % KA_WI)
    if LNF:
        k.e("s_load_dwordx2 s[48:49], s[0:1], %d" % KA_X)
    if rcfg:
        if rcfg[1][0] == 'in':
            k.e("s_load_dwordx2 s[48:49], s[0:1], %d" % rcfg[1][1])
        if rcfg[2][0] == 'out':
            k.e("s_load_dwordx2 s[50:51], s[0:1], %d" % KA_OUT)
    pf2_loads(k, pf2)
    k.e("v_and_b32 v%d, 63, v0" % vLane)
    k.e("v_lshrrev_b32 v%d, 6, v0" % vT0)
    k.e("s_nop 0")
    k.e("v_readfirstlane_b32 s%d, v%d" % (sW, vT0))
    k.e("s_and_b32 s34, s2, 7")
    k.e("s_lshr_b32 s35, s2, 3")
    if kind in ('A2', 'B2'):
        k.e("s_and_b32 s36, s34, 3")
        k.e("s_lshr_b32 s37, s34, 2")
        k.e("s_lshl_b32 s37, s37, 3")
        k.e("s_lshr_b32 s38, s35, 2")
        k.e("s_add_u32 s37, s37, s38")
        k.e("s_and_b32 s38, s35, 3")
    else:
        k.e("s_mov_b32 s38, s34")
        k.e("s_mov_b32 s37, s35")
    if LNF and OPT.get('cpos', 'x') == 'first':
        code_prefetch(k, sW, vLane, vT0, vPF, 72, sTmp)
    k.e("s_lshl_b32 s%d, s%d, 10" % (sW1024, sW))
    k.e("s_lshl_b32 s%d, s%d, 8" % (sW256, sW))
    k.e("v_lshrrev_b32 v%d, 3, v%d" % (vT0, vLane))
    k.e("s_lshl_b32 s%d, s%d, 3" % (sTmp, sW))
    k.e("v_add_u32 v%d, s%d, v%d" % (vT0, sTmp, vT0))
    k.e("v_bfe_u32 v%d, v%d, 1, 3" % (vT1, vT0))
    k.e("v_and_b32 v%d, 7, v%d" % (vT2, vLane))
    k.e("v_xor_b32 v%d, v%d, v%d" % (vT1, vT1, vT2))
    if kind == 'B2':
        k.e("s_lshr_b32 s44, s%d, 2" % sW)
        k.e("s_mul_i32 s44, s44, %d" % (288 * 1024))
        k.e("s_and_b32 s45, s%d, 3" % sW)
        k.e("s_lshl_b32 s45, s45, 10")
        k.e("s_add_u32 s44, s44, s45")
        k.e("v_lshl_add_u32 v%d, v%d, 4, s44" % (vDN, vLane))
    else:
        k.e("v_mul_u32_u24 v%d, %d, v%d" % (vDN, strideN, vT0))
        k.e("v_lshl_add_u32 v%d, v%d, 4, v%d" % (vDN, vT1, vDN))
    if mmode == 'row':
        k.e("v_mul_u32_u24 v%d, %d, v%d" % (vDM[0], strideM, vT0))
        k.e("v_lshl_add_u32 v%d, v%d, 4, v%d" % (vDM[0], vT1, vDM[0]))
        k.e("v_lshrrev_b32 v%d, 3, v%d" % (vT0, vLane))
        k.e("s_lshl_b32 s%d, s%d, 1" % (sTmp, sW))
        k.e("s_add_u32 s%d, s%d, 128" % (sTmp, sTmp))
        k.e("v_add_u32 v%d, s%d, v%d" % (vT0, sTmp, vT0))
        k.e("v_bfe_u32 v%d, v%d, 1, 3" % (vT1, vT0))
        k.e("v_xor_b32 v%d, v%d, v%d" % (vT1, vT1, vT2))
        k.e("v_mul_u32_u24 v%d, %d, v%d" % (vDM[2], strideM, vT0))
        k.e("v_lshl_add_u32 v%d, v%d, 4, v%d" % (vDM[2], vT1, vDM[2]))
        if LNF:
            k.e("v_subrev_u32 v%d, %d, v%d" % (vDM[1], 32 * strideM, vDM[0]))
            k.e("v_lshrrev_b32 v%d, 3, v%d" % (vT0, vLane))
            k.e("s_and_b32 s%d, s%d, 3" % (sTmp, sW))
            k.e("s_lshl_b32 s41, s%d, 9" % sTmp)
            k.e("s_lshl_b32 s%d, s%d, 2" % (sTmp, sTmp))
            k.e("s_add_u32 s%d, s%d, 128" % (sTmp, sTmp))
            k.e("v_add_u32 v%d, s%d, v%d" % (vT0, sTmp, vT0))
            k.e("v_bfe_u32 v%d, v%d, 1, 3" % (vT1, vT0))
            k.e("v_xor_b32 v%d, v%d, v%d" % (vT1, vT1, vT2))
            k.e("v_mul_u32_u24 v%d, %d, v%d" % (vDN, strideM, vT0))
            k.e("v_lshl_add_u32 v%d, v%d, 4, v%d" % (vDN, vT1, vDN))
    else:
        for q in range(3):
            if q < 2:
                k.e("s_lshl_b32 s%d, s%d, 6" % (sTmp, sW))
                k.e("s_add_u32 s%d, s%d, %d" % (sTmp, sTmp, 512 * q))
            else:
                k.e("s_lshl_b32 s%d, s%d, 4" % (sTmp, sW))
                k.e("s_add_u32 s%d, s%d, 1024" % (sTmp, sTmp))
            tr_voff(k, vDM[q], sTmp, vLane, (vT0, vT1, vT2, vT3, vT4), strideM, 0x33)
    k.e("s_mov_b32 s%d, 0" % sKN)
    k.e("s_mov_b32 s%d, 0" % sKM)
    if OPT.get('pst'):
        k.e("s_memtime s[%d:%d]" % (SB + 8, SB + 9))
    k.e("s_waitcnt lgkmcnt(0)")
    if OPT.get('pst'):
        stamp(k, 5)
    if kind == 'A2':
        k.e("s_cmp_lt_u32 s36, 2")
        k.e("s_cselect_b32 s6, s8, s10")
        k.e("s_cselect_b32 s7, s9, s11")
        k.e("s_mul_i32 s44, s37, %d" % (128 * 4096))
        k.e("s_and_b32 s45, s36, 1")
        k.e("s_lshl_b32 s45, s45, 11")
        k.e("s_add_u32 s44, s44, s45")
        srd(k, SRN, 6, 0, 44, S * S * 2)
        k.e("s_lshr_b32 s44, s36, 1")
        k.e("s_lshl_b32 s44, s44, 2")
        k.e("s_add_u32 s44, s44, s38")
        k.e("s_lshl_b32 s44, s44, 1")
        k.e("s_and_b32 s45, s36, 1")
        k.e("s_add_u32 s44, s44, s45")
        k.e("s_mul_i32 s44, s44, %d" % (1024 * 288))
        srd(k, SRM, 4, ab, 44, ab + 2 * XB)
    elif kind == 'B2':
        k.e("s_mul_i32 s44, s37, %d" % (4 * 288 * 1024))
        k.e("s_mul_i32 s45, s36, %d" % (72 * 1024))
        k.e("s_add_u32 s44, s44, s45")
        srd(k, SRN, 4, h, 44, h + HB)
        k.e("s_mul_i32 s44, s36, %d" % (1152 * 1152))
        k.e("s_mul_i32 s45, s38, 288")
        k.e("s_add_u32 s44, s44, s45")
        srd(k, SRM, 8, 0, 44, F * D * 2)
    else:
        k.e("s_mul_i32 s44, s37, %d" % (64 * 1152))
        if LNF:
            srd(k, SRN, 48, 0, 44, XB)
            k.e("s_mul_i32 s44, s%d, %d" % (sW, 8 * 1152))
            k.e("v_lshl_add_u32 v%d, v%d, 4, s44" % (vT0, vLane))
            k.e("v_lshrrev_b32 v%d, 3, v%d" % (vT1, vLane))
            k.e("v_mul_u32_u24 v%d, 1152, v%d" % (vT1, vT1))
            k.e("v_and_b32 v%d, 7, v%d" % (vT2, vLane))
            k.e("v_lshl_add_u32 v%d, v%d, 4, v%d" % (vT1, vT2, vT1))
            k.e("v_add_u32 v%d, s44, v%d" % (vT1, vT1))
            for rr in range(8):
                k.e("s_mov_b32 s44, %d" % (rr * 1152))
                k.e("buffer_load_dwordx4 %s, v%d, %s, s44 offen" % (vr(32 + 16 * rr + 8), vT0, sr(SRN)), "X")
            k.e("buffer_load_dwordx4 %s, v%d, %s, 0 offen offset:1024" % (vr(32 + 16 * 8 + 8), vT1, sr(SRN)), "X")
            if OPT.get('cpos', 'x') == 'x':
                code_prefetch(k, sW, vLane, vT0, vPF, 72, sTmp)
        else:
            srd(k, SRN, 4, xn, 44, xn + XB)
        k.e("s_cmp_lt_u32 s38, 4")
        k.e("s_cselect_b32 s6, s8, s10")
        k.e("s_cselect_b32 s7, s9, s11")
        k.e("s_and_b32 s45, s38, 3")
        k.e("s_mul_i32 s44, s45, %d" % (144 * 1152))
        srd(k, SRM, 6, 0, 44, D * D * 2)
    if PD:
        k.e("s_mul_i32 s45, s38, 288")
        k.e("s_sub_u32 s44, s%d, s45" % SRM)
        k.e("s_subb_u32 s45, s%d, 0" % (SRM + 1))
        k.e("s_lshl_b32 s46, s38, 5")
        k.e("s_lshl_b32 s47, s%d, 2" % sW)
        k.e("s_add_u32 s46, s46, s47")
        k.e("v_add_u32 v%d, s46, v%d" % (vT0, vLane))
        if kind == 'A2':
            k.e("v_lshlrev_b32 v%d, 12, v%d" % (vT1, vT0))
            SN = 128
        else:
            k.e("v_lshrrev_b32 v%d, 5, v%d" % (vT1, vT0))
            k.e("v_mul_u32_u24 v%d, %d, v%d" % (vT1, 288 * 1024, vT1))
            k.e("v_and_b32 v%d, 31, v%d" % (vT2, vT0))
            k.e("v_lshl_add_u32 v%d, v%d, 7, v%d" % (vT1, vT2, vT1))
            SN = 4096
        k.e("v_add_u32 v%d, 0x%x, v%d" % (vT1, PD * SN, vT1))
        k.e("s_mul_i32 s46, s%d, 3" % sW)
        k.e("s_sub_u32 s46, s46, 4")
        k.e("v_add_u32 v%d, s46, v%d" % (vT0, vLane))
        k.e("v_min_u32 v%d, 17, v%d" % (vT0, vT0))
        k.e("s_mul_i32 s46, s35, 18")
        k.e("v_add_u32 v%d, s46, v%d" % (vT0, vT0))
        k.e("v_mul_u32_u24 v%d, 7282, v%d" % (vT2, vT0))
        k.e("v_lshrrev_b32 v%d, 16, v%d" % (vT2, vT2))
        k.e("v_mul_u32_u24 v%d, 9, v%d" % (vT3, vT2))
        k.e("v_sub_u32 v%d, v%d, v%d" % (vT3, vT0, vT3))
        k.e("v_mul_u32_u24 v%d, 1152, v%d" % (vT2, vT2))
        k.e("v_lshl_add_u32 v%d, v%d, 7, v%d" % (vT2, vT3, vT2))
        k.e("v_add_u32 v%d, 0x%x, v%d" % (vT2, PD * 64 * 1152, vT2))
        k.e("v_cmp_gt_u32 vcc, 4, v%d" % vLane)
        k.e("v_mov_b32 v%d, s44" % vT0)
        k.e("v_mov_b32 v%d, s%d" % (vT3, SRN))
        k.e("v_cndmask_b32 v%d, v%d, v%d, vcc" % (vPA, vT0, vT3))
        k.e("v_mov_b32 v%d, s45" % vT0)
        k.e("v_mov_b32 v%d, s%d" % (vT3, SRN + 1))
        k.e("v_cndmask_b32 v%d, v%d, v%d, vcc" % (vPA + 1, vT0, vT3))
        k.e("v_cndmask_b32 v%d, v%d, v%d, vcc" % (vT1, vT2, vT1))
        k.e("v_mov_b32 v%d, 0x%x" % (vT0, 64 * 1152))
        k.e("v_mov_b32 v%d, %d" % (vT3, SN))
        k.e("v_cndmask_b32 v%d, v%d, v%d, vcc" % (vPS, vT0, vT3))
        k.e("v_add_co_u32 v%d, vcc, v%d, v%d" % (vPA, vT1, vPA))
        k.e("s_nop 1")
        k.e("v_addc_co_u32 v%d, vcc, 0, v%d, vcc" % (vPA + 1, vPA + 1))

    def dma_n(stage):
        b = stage % NBUF
        tag = "D%d" % stage
        P = []
        for j in range(NDN):
            L = ["s_add_u32 m0, s%d, 0x%x" % (sW1024, b * STB + j * 8192)]
            if j:
                L.append("s_add_u32 s%d, s%d, 0x%x" % (sTmp, sKN, j * (2 * 288 * 1024 if kind == 'B2' else 64 * strideN)))
                L.append("buffer_load_dwordx4 v%d, %s, s%d offen lds" % (vDN, sr(SRN), sTmp))
            else:
                L.append("s_nop 0")
                L.append("buffer_load_dwordx4 v%d, %s, s%d offen lds" % (vDN, sr(SRN), sKN))
            P.append((tag, L))
        if P:
            P[-1] = (tag, P[-1][1] + ["s_add_u32 s%d, s%d, %d" % (sKN, sKN, 4096 if kind == 'B2' else 128)])
        return P

    def dma_m(stage):
        b = stage % NBUF
        tag = "D%d" % stage
        P = []
        mb_ = b * STB + MB0
        for q in range(3):
            L = []
            if q < 2:
                L.append("s_add_u32 m0, s%d, 0x%x" % (sW1024, mb_ + q * 8192))
            else:
                L.append("s_add_u32 m0, s%d, 0x%x" % (sW256, mb_ + 16384))
            if mmode == 'row' and q == 1:
                L.append("s_add_u32 s%d, s%d, 0x%x" % (sTmp, sKM, 64 * strideM))
                so, vo = sTmp, vDM[0]
            else:
                so, vo = sKM, vDM[q]
                L.append("s_nop 0")
            if q == 2:
                L.append("s_mov_b64 exec, 0xffff")
            L.append("buffer_load_dwordx4 v%d, %s, s%d offen lds" % (vo, sr(SRM), so))
            if q == 2:
                L.append("s_mov_b64 exec, -1")
            P.append((tag, L))
        P[-1] = (tag, P[-1][1] + ["s_add_u32 s%d, s%d, 0x%x" % (sKM, sKM, 128 if mmode == 'row' else 64 * strideM)])
        return P

    def dma(stage):
        return dma_n(stage) + dma_m(stage)

    def dma4(stage):
        tag = "D%d" % stage
        mb_ = (stage % NBUF) * STB + MB0
        P = []
        for n in range(4):
            P.append((tag, ["s_add_u32 m0, s%d, 0x%x" % (sW1024, mb_ - 4096 + n * 4096),
                            "s_add_u32 s%d, s%d, 0x%x" % (sTmp, sKM, n * 32 * strideM),
                            "buffer_load_dwordx4 v%d, %s, s%d offen lds" % (vDM[1], sr(SRM), sTmp)]))
        P.append((tag, ["s_add_u32 m0, s41, 0x%x" % (mb_ + 16384), "s_mov_b64 exec, 0xffffffff",
                        "buffer_load_dwordx4 v%d, %s, s%d offen lds" % (vDN, sr(SRM), sKM),
                        "s_mov_b64 exec, -1", "s_add_u32 s%d, s%d, 128" % (sKM, sKM)]))
        return P

    def emit(P):
        for tag, L in P:
            for x in L:
                k.e(x, tag)

    NPRO = int(OPT.get('npro', 2)) if LNF else NBUF
    if dep is None:
        for stg in range(NPRO):
            emit(dma(stg))
    else:
        first, second = (dma_n, dma_m) if kind == 'A2' else (dma_m, dma_n)
        if dep == 'pre':
            for stg in range(NBUF):
                emit(first(stg))
            raise PreDone()
        if PRE:
            if kind == 'A2':
                k.e("s_mov_b32 s%d, %d" % (sKN, NBUF * 128))
            else:
                k.e("s_mov_b32 s%d, 0x%x" % (sKM, NBUF * (128 if mmode == 'row' else 64 * strideM)))
        elif not POLLF and not H2:
            for stg in range(NBUF):
                emit(first(stg))
        elif POLLF == 2:
            emit(first(0))
        if kind == 'A2':
            k.e("s_and_b32 s44, s36, 1")
            k.e("s_lshl_b32 s44, s44, 7")
            k.e("s_lshr_b32 s45, s36, 1")
            k.e("s_lshl_b32 s45, s45, 2")
            k.e("s_add_u32 s44, s44, s45")
            k.e("s_add_u32 s44, s44, s38")
            k.e("v_lshl_add_u32 v%d, v%d, 3, s44" % (vT0, vLane))
            nl = 16
        elif kind == 'B2':
            k.e("s_lshr_b32 s44, s37, 1")
            k.e("s_lshl_b32 s44, s44, 5")
            k.e("s_lshl_b32 s45, s36, 3")
            k.e("s_add_u32 s44, s44, s45")
            k.e("v_add_u32 v%d, s44, v%d" % (vT0, vLane))
            nl = 8
        else:
            k.e("s_lshl_b32 s44, s37, 3")
            k.e("v_add_u32 v%d, s44, v%d" % (vT0, vLane))
            nl = 8
        if pf2 and int(OPT.get('pfb', -1)) == -1:
            pf2_setup(k, pf2, sW, vLane, vPFA)
            lsk_ = k.newlabel("LPF")
            k.e("s_cmp_eq_u32 s%d, 0" % sW)
            k.e("s_cbranch_scc1 %s" % lsk_)
            k.e("buffer_load_dword v%d, v%d, s[60:63], 0 offen" % (vPF, vPFA), "PF")
            k.vm.pop()
            k.label(lsk_)
        if H2:
            handoff2(k, dep, nl, vT0, vT1, lambda: [emit(first(stg)) for stg in range(NBUF)])
        else:
            wait_flags(k, dep, nl, vT0, vT1)
        for stg in range(NBUF):
            emit(second(stg))
            if POLLF and not PRE and not (POLLF == 2 and stg == 0):
                emit(first(stg))
    if pf2:
        pf2_setup(k, pf2, sW, vLane, vPFA)
    pfp = [("PF", ["buffer_load_dword v%d, v%d, s[60:63], 0 offen" % (vPF, vPFA)])]
    if pf2 and LNF and OPT.get('pfa', 'afterx') == 'early':
        emit(pfp)
    k.e("s_and_b32 s%d, s%d, 3" % (sTmp, sW))
    k.e("s_mul_i32 s%d, s%d, %d" % (sTmp, sTmp, NFR * 16 * 128))
    k.e("v_and_b32 v%d, 15, v%d" % (vT0, vLane))
    k.e("v_lshrrev_b32 v%d, 4, v%d" % (vT1, vLane))
    k.e("v_bfe_u32 v%d, v%d, 1, 3" % (vT2, vLane))
    k.e("v_xor_b32 v%d, v%d, v%d" % (vT2, vT1, vT2))
    k.e("v_lshlrev_b32 v%d, 4, v%d" % (vT2, vT2))
    k.e("v_lshl_add_u32 v%d, v%d, 7, v%d" % (vT2, vT0, vT2))
    k.e("v_add_u32 v%d, s%d, v%d" % (vT3, sTmp, vT2))
    if kind == 'B2':
        k.e("v_lshlrev_b32 v%d, 9, v%d" % (vT3, vT1))
        k.e("v_lshl_add_u32 v%d, v%d, 4, v%d" % (vT3, vT0, vT3))
        k.e("v_add_u32 v%d, s%d, v%d" % (vT3, sTmp, vT3))
        for b in range(NBUF):
            k.e("v_add_u32 v%d, 0x%x, v%d" % (vRN[b][0], b * STB, vT3))
            k.e("v_add_u32 v%d, 2048, v%d" % (vRN[b][1], vRN[b][0]))
    else:
        for b in range(NBUF):
            k.e("v_add_u32 v%d, 0x%x, v%d" % (vRN[b][0], (b * 65536 if LNF else b * STB), vT3))
            k.e("v_xor_b32 v%d, 64, v%d" % (vRN[b][1], vRN[b][0]))
    if mmode == 'row':
        for b in range(NBUF):
            k.e("v_add_u32 v%d, 0x%x, v%d" % (vRM[b][0], b * STB + MB0, vT2))
            k.e("v_xor_b32 v%d, 64, v%d" % (vRM[b][1], vRM[b][0]))
    else:
        tr_raddr(k, vT2, vLane, vT3)
        for b in range(NBUF):
            k.e("v_add_u32 v%d, 0x%x, v%d" % (vRM[b][0], b * STB + NTB, vT2))
    k.e("s_and_b32 s%d, s%d, 3" % (sTmp, sW))
    k.e("s_mul_i32 s%d, s%d, %d" % (sTmp, sTmp, NFR * 16))
    k.e("v_and_b32 v%d, 15, v%d" % (vT3, vLane))
    k.e("v_add_u32 v%d, s%d, v%d" % (vT3, sTmp, vT3))
    k.e("v_lshrrev_b32 v%d, 4, v%d" % (vT4, vLane))
    k.e("v_mul_u32_u24 v%d, 288, v%d" % (vT3, vT3))
    k.e("v_and_b32 v%d, 1, v%d" % (vT0, vT4))
    k.e("v_lshl_add_u32 v%d, v%d, 5, v%d" % (vO, vT0, vT3))
    k.e("v_lshrrev_b32 v%d, 1, v%d" % (vT0, vT4))
    k.e("v_lshl_add_u32 v%d, v%d, 4, v%d" % (vO, vT0, vO))
    k.e("v_lshl_add_u32 v%d, v%d, 3, v%d" % (vT4, vT4, vT3))
    vO2 = vT4
    if kind == 'A1':
        k.e("s_lshr_b32 s45, s38, 2")
        k.e("s_lshl_b32 s44, s38, 5")
        k.e("s_add_u32 s44, s44, s37")
        k.e("s_mul_i32 s44, s44, 18432")
        srd(k, SRO, 4, ab, 44, ab + 2 * XB)
        k.e("s_mov_b32 s%d, 18432" % (SRO + 2))
        k.e("s_mul_i32 s47, s45, 0x80008000")
    else:
        k.e("s_lshl_b32 s44, s36, 4")
        k.e("s_add_u32 s44, s44, s37")
        k.e("s_lshl_b32 s44, s44, 2")
        k.e("s_and_b32 s46, s%d, 3" % sW)
        k.e("s_add_u32 s44, s44, s46")
        k.e("s_mul_i32 s44, s44, %d" % PREG)
        k.e("s_mul_i32 s46, s38, 9216")
        k.e("s_add_u32 s44, s44, s46")
        srd(k, SRO, 4, WSP, 44, WSP + 4 * XB)
        k.e("v_lshlrev_b32 v%d, 4, v%d" % (vO, vLane))
    def pf_emit():
        k.e("s_lshl_b32 s%d, s2, 3" % sTmp)
        k.e("s_add_u32 s%d, s%d, s%d" % (sTmp, sTmp, sW))
        k.e("s_lshl_b32 s%d, s%d, 12" % (sTmp, sTmp))
        k.e("v_lshl_add_u32 v%d, v%d, 6, s%d" % (vT0, vLane, sTmp))
        for n in range(len(pf)):
            k.e("buffer_load_dword v%d, v%d, %s, 0 offen" % (vPF, vT0, sr(56 + 4 * n)), "PF")

    stamp(k, 1)
    if LNF:
        if pf and OPT.get('pfpos', 'end') == 'early':
            pf_emit()
        R = range(8)
        R9 = range(9)
        B = lambda rr: 32 + 16 * rr
        LA = 176
        k.e("v_lshrrev_b32 v%d, 3, v%d" % (vT0, vLane))
        k.e("v_and_b32 v%d, 7, v%d" % (vT1, vLane))
        k.e("v_lshlrev_b32 v%d, 4, v%d" % (vT1, vT1))
        k.e("v_lshl_add_u32 v%d, v%d, 13, v%d" % (vT2, vT0, vT1))
        k.e("v_add_u32 v%d, s%d, v%d" % (vT2, sW1024, vT2))
        for pr in range(4):
            k.e("s_lshl_b32 s44, s%d, 2" % sW)
            k.e("s_add_u32 s44, s44, %d" % pr)
            k.e("s_and_b32 s44, s44, 7")
            k.e("s_lshl_b32 s44, s44, 4")
            k.e("v_xor_b32 v%d, s44, v%d" % (LA + pr, vT2))
        k.e("s_lshl_b32 s44, s%d, 2" % sW)
        k.e("v_lshrrev_b32 v%d, 4, v%d" % (vT2, vLane))
        k.e("v_add_u32 v%d, s44, v%d" % (vT2, vT2))
        k.e("v_and_b32 v%d, 7, v%d" % (vT2, vT2))
        k.e("v_lshlrev_b32 v%d, 4, v%d" % (vT2, vT2))
        k.e("v_xor_b32 v%d, v%d, v%d" % (vT2, vT2, vT1))
        k.e("v_lshl_add_u32 v%d, v%d, 7, v%d" % (vT2, vT0, vT2))
        k.e("v_add_u32 v%d, s%d, v%d" % (vT2, sW1024, vT2))
        k.e("v_add_u32 v%d, 0x10000, v%d" % (LA + 4, vT2))
        for rr in R:
            k.e("v_cmp_eq_u32 vcc, %d, v%d" % (rr, vT0))
            k.e("s_nop 1")
            k.e("v_cndmask_b32 v%d, 0, 1.0, vcc" % (LA + 5 + rr))
        stamp(k, 5)
        if int(OPT.get('prio', 1)):
            k.e("s_setprio 0")
        k.vneed("X")
        stamp(k, 4)
        for stg in range(NPRO, NBUF):
            emit(dma(stg))
        if pf2 and OPT.get('pfa', 'afterx') == 'afterx':
            emit(pfp)
        if pf2 and OPT.get('pfa', 'afterx') == 'bar':
            k.vneed("D3")
            k.e("s_barrier")
            emit(pfp)
        if pf2 and OPT.get('pfa', 'afterx') == 'split':
            lsk_ = k.newlabel("LPF")
            k.e("s_cmp_ge_u32 s%d, 4" % sW)
            k.e("s_cbranch_scc1 %s" % lsk_)
            k.e("s_mov_b32 s%d, 32768" % sTmp)
            k.e("buffer_load_dword v%d, v%d, s[60:63], 0 offen" % (vPF, vPFA))
            k.e("buffer_load_dword v%d, v%d, s[60:63], s%d offen" % (vPF, vPFA, sTmp))
            k.vm.pop(); k.vm.pop()
            k.label(lsk_)

        def allrows(fmt, *offs, rows=R):
            for rr in rows:
                k.e(fmt % tuple(B(rr) + o for o in offs))

        def pk(op, d, a, b, c=None, rows=R9):
            for rr in rows:
                x = B(rr)
                ops = [vr(x + d, 2), vr(x + a, 2), vr(x + b, 2)] + ([vr(x + c, 2)] if c is not None else [])
                k.e("%s %s" % (op, ", ".join(ops)))

        def xsum(o, t):
            for ctl in ("quad_perm:[1,0,3,2]", "quad_perm:[2,3,0,1]", "row_half_mirror", "row_mirror"):
                allrows("v_add_f32_dpp v%d, v%d, v%d " + ctl + " row_mask:0xf bank_mask:0xf", o, o, o)
            for sw_ in ("v_permlane16_swap_b32", "v_permlane32_swap_b32"):
                allrows("v_mov_b32 v%d, v%d", t, o)
                allrows(sw_ + " v%d, v%d", o, t)
                allrows("v_add_f32 v%d, v%d, v%d", o, o, t)

        def add_tail(o):
            for rr in R:
                k.e("v_fmac_f32 v%d, v%d, v%d" % (B(rr) + o, LA + 5 + rr, B(8) + o))

        def sel_tail(o):
            k.e("v_mul_f32 v%d, v%d, v%d" % (B(8) + o, LA + 5, B(0) + o))
            for rr in range(1, 8):
                k.e("v_fmac_f32 v%d, v%d, v%d" % (B(8) + o, LA + 5 + rr, B(rr) + o))
        for i in range(4):
            allrows("v_lshlrev_b32 v%d, 16, v%d", 2 * i, 8 + i, rows=R9)
            allrows("v_and_b32 v%d, 0xffff0000, v%d", 2 * i + 1, 8 + i, rows=R9)
        pk("v_pk_add_f32", 8, 0, 2)
        pk("v_pk_add_f32", 10, 4, 6)
        pk("v_pk_add_f32", 8, 8, 10)
        allrows("v_add_f32 v%d, v%d, v%d", 12, 8, 9, rows=R9)
        add_tail(12)
        xsum(12, 13)
        allrows("v_mul_f32 v%%d, 0x%08x, v%%d" % f32bits(-1.0 / D), 12, 12)
        sel_tail(12)
        allrows("v_mov_b32 v%d, v%d", 13, 12, rows=R9)
        for e in range(0, 8, 2):
            pk("v_pk_add_f32", e, e, 12)
        pk("v_pk_mul_f32", 8, 0, 0)
        pk("v_pk_mul_f32", 10, 2, 2)
        pk("v_pk_fma_f32", 8, 4, 4, 8)
        pk("v_pk_fma_f32", 10, 6, 6, 10)
        pk("v_pk_add_f32", 8, 8, 10)
        allrows("v_add_f32 v%d, v%d, v%d", 12, 8, 9, rows=R9)
        add_tail(12)
        xsum(12, 13)
        allrows("v_mov_b32 v%%d, 0x%08x" % f32bits(1e-5), 13)
        allrows("v_fmac_f32 v%%d, 0x%08x, v%%d" % f32bits(1.0 / D), 13, 12)
        allrows("v_rsq_f32 v%d, v%d", 12, 13)
        k.e("s_nop 0")
        sel_tail(12)
        allrows("v_mov_b32 v%d, v%d", 13, 12, rows=R9)
        for e in range(0, 8, 2):
            pk("v_pk_mul_f32", e, e, 12)
        for i in range(4):
            allrows("v_cvt_pk_bf16_f32 v%d, v%d, v%d", 8 + i, 2 * i, 2 * i + 1, rows=R9)
        stamp(k, 6)
        for rr in R:
            k.e("ds_write_b128 v%d, %s offset:%d" % (LA + rr // 2, vr(B(rr) + 8), rr * 128))
        k.e("ds_write_b128 v%d, %s" % (LA + 4, vr(B(8) + 8)))
        for tg, L in preset_pieces(k, sW, vLane, vT2, vPA, 72, sTmp, WS_P):
            for x in L:
                k.e(x.replace(", -1", ", 0") if x.startswith("v_mov") else x, "S")
        lz = k.newlabel("LZ")
        k.e("s_cmp_ge_u32 s2, 1")
        k.e("s_cbranch_scc1 %s" % lz)
        srd(k, 72, 4, WS_FL, None, WS_FL + 8192)
        k.e("v_lshlrev_b32 v%d, 4, v0" % vT2)
        k.e("buffer_store_dwordx4 %s, v%d, s[72:75], 0 offen" % (vr(vPA), vT2))
        k.vm.pop()
        k.label(lz)
        k.e("s_waitcnt lgkmcnt(0)")
    k.vneed("D0")
    k.e("s_barrier")
    stamp(k, 2)

    ljoin = k.newlabel("LJ")
    lg1 = k.newlabel("LG")
    k.e("s_cmp_ge_u32 s%d, 4" % sW)
    k.e("s_cbranch_scc1 %s" % lg1)
    vm_save = list(k.vm)
    for gi, tiles in enumerate(groups):
        if gi:
            k.label(lg1)
            k.vm = list(vm_save)
        nt = len(tiles)
        W = int(nt * Wmul + 0.5)
        vA = {(j, i): vAbase + 4 * (ti * NFR + i) for ti, j in enumerate(tiles) for i in range(NFR)}

        def rd_m(stg, ks, j, reg, tag):
            b = stg % NBUF
            if mmode == 'row':
                k.lds("ds_read_b128 %s, v%d offset:%d" % (vr(reg), vRM[b][ks], j * 2048), tag)
            else:
                o = ks * 9216 + j * 32
                k.lds("ds_read_b64_tr_b16 %s, v%d offset:%d" % (vr(reg, 2), vRM[b][0], o), tag)
                k.lds("ds_read_b64_tr_b16 %s, v%d offset:%d" % (vr(reg + 2, 2), vRM[b][0], o + 2304), tag)

        def rd_n(stg, ks, i, reg, tag):
            if LNF:
                k.lds("ds_read_b128 %s, v%d offset:%d" % (vr(reg), vRN[stg // 8][ks], (stg % 8) * 8192), tag)
            else:
                k.lds("ds_read_b128 %s, v%d offset:%d" % (vr(reg), vRN[stg % NBUF][ks], i * (256 if kind == 'B2' else 2048)), tag)

        def ald():
            L = ["s_lshl_b32 s%d, s2, 3" % sTmp, "s_add_u32 s%d, s%d, s%d" % (sTmp, sTmp, sW), "s_lshl_b32 s%d, s%d, 12" % (sTmp, sTmp),
                 "v_lshl_add_u32 v%d, v%d, 6, s%d" % (vT0, vLane, sTmp)]
            for n in range(len(pf)):
                L.append("buffer_load_dword v%d, v%d, %s, 0 offen" % (vPF, vT0, sr(56 + 4 * n)))
            P = [("PF", L)] if pf else []
            return P

        pp = preset_pieces(k, sW, vLane, vT2, vPA, 72, sTmp, WSPO)

        def sx(t):
            return [pp[t]] if t < len(pp) else []

        dmaf = dma
        if LNF and OPT.get('pfa', 'afterx') == 'split':
            dmaf = dma4 if gi == 1 else (lambda st_: [])
            if gi == 0 and pf2:
                k.vm += ["PF", "PF"]
        engine(k, tiles, NFR, KS, NS, NBUF, W, NSET, int(OPT.get('tdelta', 1)), rd_m, rd_n, dmaf,
               lambda t, j, i: vA[(j, i)], lambda t, ks: t == 0 and ks == 0, vM, vN, sLoop,
               after_last_dma=ald if (pf and not (LNF and OPT.get('pfpos', 'end') != 'mid')) else None, stage_extra=(lambda t: pfp if t == int(OPT.get('pfb', -1)) else []) if (pf2 and not LNF) else None, n_static=LNF)
        k.e("s_nop 7")
        k.e("s_nop 3")
        stamp(k, 3)
        if kind == 'A1' and nxt_phase and PRE:
            k.e("s_barrier")
            pre_issue(k, nxt_phase, 180)
        if kind in ('A2', 'B2'):
            store_native(k, tiles, lambda j, i: vA[(j, i)], vO, SRO, sTmp, 0, None, 28, (rcfg[0] + 1) & 1)
        else:
            k.e("s_barrier")
            store_tiles_bf16(k, tiles, lambda j: vA[(j, 0)], vO, vO2, None, None, "", 28, neg=47)
        if gi == 0:
            k.e("s_branch %s" % ljoin)
    k.label(ljoin)
    if kind == 'A1':
        k.e("v_lshlrev_b32 v%d, 4, v0" % vT0)
        k.e("s_waitcnt lgkmcnt(0)")
        k.e("s_barrier")
        for n in range(3):
            k.e("ds_read_b128 %s, v%d offset:%d" % (vr(28 + 4 * n), vT0, n * 8192))
        for n in range(3):
            k.e("s_mov_b32 s%d, %d" % (sTmp, n * 8192))
            k.e("s_waitcnt lgkmcnt(%d)" % (2 - n))
            k.e("buffer_store_dwordx4 %s, v%d, %s, s%d offen" % (vr(28 + 4 * n), vT0, sr(SRO), sTmp))
    if LNF and pf and OPT.get('pfpos', 'end') == 'end':
        pf_emit()
    if rcfg:
        k.e("s_lshl_b32 s39, s36, 2")
        k.e("s_add_u32 s39, s39, s38")
        nv = r_tail(k, rcfg, 4, sW, vLane, 37, 39, NBUF * STB, WSP, xn, nxt_phase)
        nvgpr = max(nvgpr, nv)
    elif not LNF:
        stamp(k, 4)
    if not LNF:
        stamp(k, 6)
    stamp_store(k, kidx)
    if pub is not None:
        if rcfg:
            k.e("s_lshl_b32 s44, s37, 4")
            k.e("s_add_u32 s44, s44, s39")
        else:
            k.e("s_mov_b32 s44, s2")
        publish(k, pub, 44, sW)
    return nvgpr, LDSB


def gen_b1(k, kidx=0, pf=(), xn=None, h=None, dep=None, pub=None, nxt_phase=None, pf2=()):
    nwg = 256
    k.pend = []
    if not int(OPT.get('pf2', 1)):
        pf2 = ()
    NBUF, NS, KS = int(OPT.get('b1nb', 3)), 18, 1
    NTB = 256 * 64
    STB = NTB + 2 * 9216
    W = int(OPT.get('b1w', 10))
    NFR = 4
    vLane, vT0, vT1, vT2, vT3, vT4 = 1, 2, 3, 4, 5, 6
    vO = 7
    vDN = 8
    vDM = [9, 10]
    vRN = [12 + b for b in range(NBUF)]
    vRM = [16 + b for b in range(NBUF)]
    nxt = 20
    vM = [nxt + 4 * j for j in range(W)]; nxt += 4 * W
    vN = [[nxt + 4 * (p * NFR + i) for i in range(NFR)] for p in range(2)]; nxt += 8 * NFR
    vAbase = nxt
    nxt += 160
    vPF = nxt
    vPFA = nxt + 1
    nxt += 2
    nvgpr = nxt
    assert nvgpr <= 256
    sW, sW1024, sW256, sKN, sKM, sTmp, sLoop = 28, 29, 30, 31, 32, 33, 39
    SRN, SRM, SRO, SRQ = 12, [16, 20], 24, 40
    if not PF:
        pf = ()
    stamp(k, 0, 1)
    k.e("s_load_dwordx2 s[4:5], s[0:1], %d" % KA_WS)
    k.e("s_load_dwordx4 s[8:11], s[0:1], %d" % KA_WG)
    pf2_loads(k, pf2)
    k.e("v_and_b32 v%d, 63, v0" % vLane)
    k.e("v_lshrrev_b32 v%d, 6, v0" % vT0)
    k.e("s_nop 0")
    k.e("v_readfirstlane_b32 s%d, v%d" % (sW, vT0))
    k.e("s_and_b32 s34, s2, 7")
    k.e("s_lshr_b32 s35, s2, 3")
    k.e("s_lshl_b32 s38, s34, 2")
    k.e("s_and_b32 s36, s35, 3")
    k.e("s_add_u32 s38, s38, s36")
    k.e("s_lshr_b32 s37, s35, 2")
    k.e("s_lshl_b32 s%d, s%d, 10" % (sW1024, sW))
    k.e("s_and_b32 s44, s%d, 3" % sW)
    k.e("s_lshl_b32 s%d, s44, 8" % sW256)
    k.e("s_lshr_b32 s45, s%d, 2" % sW)
    k.e("s_mul_i32 s45, s45, 9216")
    k.e("s_add_u32 s%d, s%d, s45" % (sW256, sW256))
    k.e("v_lshrrev_b32 v%d, 2, v%d" % (vT0, vLane))
    k.e("s_lshl_b32 s%d, s%d, 4" % (sTmp, sW))
    k.e("v_add_u32 v%d, s%d, v%d" % (vT0, sTmp, vT0))
    k.e("v_lshrrev_b32 v%d, 2, v%d" % (vT1, vT0))
    k.e("v_sub_u32 v%d, 0, v%d" % (vT1, vT1))
    k.e("v_xor_b32 v%d, v%d, v%d" % (vT1, vT1, vLane))
    k.e("v_and_b32 v%d, 3, v%d" % (vT1, vT1))
    k.e("v_mul_u32_u24 v%d, 1152, v%d" % (vDN, vT0))
    k.e("v_lshl_add_u32 v%d, v%d, 4, v%d" % (vDN, vT1, vDN))
    T5 = (vT0, vT1, vT2, vT3, vT4)
    k.e("s_lshl_b32 s%d, s%d, 6" % (sTmp, sW))
    tr_voff(k, vDM[0], sTmp, vLane, T5, 9216, 0x13)
    k.e("s_lshl_b32 s%d, s44, 4" % sTmp)
    k.e("s_add_u32 s%d, s%d, 512" % (sTmp, sTmp))
    tr_voff(k, vDM[1], sTmp, vLane, T5, 9216, 0x13)
    k.e("s_mov_b32 s%d, 0" % sKN)
    k.e("s_mov_b32 s%d, 0" % sKM)
    k.e("s_waitcnt lgkmcnt(0)")
    k.e("s_mul_i32 s44, s37, %d" % (256 * 1152))
    srd(k, SRN, 4, xn, 44, xn + XB)
    k.e("s_mul_i32 s44, s38, 288")
    srd(k, SRM[0], 8, 0, 44, D * F * 2)
    srd(k, SRM[1], 10, 0, 44, D * F * 2)
    k.e("s_cmp_lt_u32 s%d, 4" % sW)
    for x in range(3):
        k.e("s_cselect_b32 s%d, s%d, s%d" % (SRQ + x, SRM[0] + x, SRM[1] + x))
    k.e("s_mov_b32 s%d, 0x20000" % (SRQ + 3))

    def dma_n(stage):
        tag = "D%d" % stage
        base = (stage % NBUF) * STB
        return [(tag, ["s_add_u32 m0, s%d, 0x%x" % (sW1024, base), "s_nop 0",
                       "buffer_load_dwordx4 v%d, %s, s%d offen lds" % (vDN, sr(SRN), sKN)]),
                (tag, ["s_add_u32 m0, s%d, 0x%x" % (sW1024, base + 8192), "s_add_u32 s%d, s%d, 0x%x" % (sTmp, sKN, 128 * 1152),
                       "buffer_load_dwordx4 v%d, %s, s%d offen lds" % (vDN, sr(SRN), sTmp),
                       "s_add_u32 s%d, s%d, 64" % (sKN, sKN)])]

    def dma_m(stage):
        tag = "D%d" % stage
        base = (stage % NBUF) * STB
        P = []
        for mat in range(2):
            P.append((tag, ["s_add_u32 m0, s%d, 0x%x" % (sW1024, base + NTB + mat * 9216), "s_nop 0",
                            "buffer_load_dwordx4 v%d, %s, s%d offen lds" % (vDM[0], sr(SRM[mat]), sKM)]))
        P.append((tag, ["s_add_u32 m0, s%d, 0x%x" % (sW256, base + NTB + 8192), "s_mov_b64 exec, 0xffff",
                        "buffer_load_dwordx4 v%d, %s, s%d offen lds" % (vDM[1], sr(SRQ), sKM),
                        "s_mov_b64 exec, -1",
                        "s_add_u32 s%d, s%d, 0x%x" % (sKM, sKM, 32 * 9216)]))
        return P

    def dma(stage):
        return dma_n(stage) + dma_m(stage)

    def emit(P):
        for tag, L in P:
            for x in L:
                k.e(x, tag)

    if dep is None:
        for stg in range(NBUF):
            emit(dma(stg))
    else:
        if dep == 'pre':
            for stg in range(NBUF):
                emit(dma_m(stg))
            raise PreDone()
        if PRE:
            k.e("s_mov_b32 s%d, 0x%x" % (sKM, NBUF * 32 * 9216))
        elif not POLLF and not H2:
            for stg in range(NBUF):
                emit(dma_m(stg))
        elif POLLF == 2:
            emit(dma_m(0))
        k.e("s_lshl_b32 s44, s37, 5")
        k.e("v_add_u32 v%d, s44, v%d" % (vT0, vLane))
        if H2:
            handoff2(k, dep, 32, vT0, vT1, lambda: [emit(dma_m(stg)) for stg in range(NBUF)])
        else:
            wait_flags(k, dep, 32, vT0, vT1)
        for stg in range(NBUF):
            emit(dma_n(stg))
            if POLLF and not PRE and not (POLLF == 2 and stg == 0):
                emit(dma_m(stg))
    if pf2:
        pf2_setup(k, pf2, sW, vLane, vPFA)
    pfp = [("PF", ["buffer_load_dword v%d, v%d, s[60:63], 0 offen" % (vPF, vPFA)])]
    k.e("v_and_b32 v%d, 15, v%d" % (vT0, vLane))
    k.e("v_lshrrev_b32 v%d, 4, v%d" % (vT1, vLane))
    k.e("v_lshrrev_b32 v%d, 2, v%d" % (vT2, vT0))
    k.e("v_sub_u32 v%d, 0, v%d" % (vT2, vT2))
    k.e("v_xor_b32 v%d, v%d, v%d" % (vT2, vT2, vT1))
    k.e("v_and_b32 v%d, 3, v%d" % (vT2, vT2))
    k.e("v_lshlrev_b32 v%d, 4, v%d" % (vT2, vT2))
    k.e("v_lshl_add_u32 v%d, v%d, 6, v%d" % (vT2, vT0, vT2))
    k.e("s_and_b32 s%d, s%d, 3" % (sTmp, sW))
    k.e("s_lshl_b32 s%d, s%d, 12" % (sTmp, sTmp))
    k.e("v_add_u32 v%d, s%d, v%d" % (vT3, sTmp, vT2))
    for b in range(NBUF):
        k.e("v_add_u32 v%d, 0x%x, v%d" % (vRN[b], b * STB, vT3))
    tr_raddr(k, vT2, vLane, vT3)
    for b in range(NBUF):
        k.e("v_add_u32 v%d, 0x%x, v%d" % (vRM[b], b * STB + NTB, vT2))
    k.e("s_lshl_b32 s44, s37, 3")
    k.e("s_and_b32 s46, s%d, 3" % sW)
    k.e("s_lshl_b32 s46, s46, 1")
    k.e("s_add_u32 s44, s44, s46")
    k.e("s_mul_i32 s44, s44, 288")
    k.e("s_mul_i32 s46, s38, 9")
    k.e("s_add_u32 s44, s44, s46")
    k.e("s_lshl_b32 s44, s44, 10")
    srd(k, SRO, 4, h, 44, h + HB)
    k.e("v_lshlrev_b32 v%d, 4, v%d" % (vO, vLane))
    k.e("s_mov_b32 s46, 0x%08x" % f32bits(-1.4426950408889634))
    k.e("s_mov_b32 s47, s46")
    stamp(k, 1)
    k.vneed("D0")
    k.e("s_barrier")
    stamp(k, 2)
    ljoin = k.newlabel("LJ")
    lg1 = k.newlabel("LG")
    k.e("s_cmp_ge_u32 s%d, 4" % sW)
    k.e("s_cbranch_scc1 %s" % lg1)
    vm_save = list(k.vm)
    for gi, js in enumerate((list(range(5)), list(range(5, 9)))):
        if gi:
            k.label(lg1)
            k.vm = list(vm_save)
        tiles = [(m, j) for j in js for m in range(2)]
        vA = {(t, i): vAbase + 4 * (ti * NFR + i) for ti, t in enumerate(tiles) for i in range(NFR)}

        def rd_m(stg, ks, t, reg, tag):
            o = t[0] * 9216 + t[1] * 32
            k.lds("ds_read_b64_tr_b16 %s, v%d offset:%d" % (vr(reg, 2), vRM[stg % NBUF], o), tag)
            k.lds("ds_read_b64_tr_b16 %s, v%d offset:%d" % (vr(reg + 2, 2), vRM[stg % NBUF], o + 2304), tag)

        def rd_n(stg, ks, i, reg, tag):
            k.lds("ds_read_b128 %s, v%d offset:%d" % (vr(reg), vRN[stg % NBUF], i * 1024), tag)

        Wg = min(W, len(tiles))
        SKEW = int(OPT.get('skew', 0))
        sx_ = (lambda t: pfp if t == 1 else []) if pf2 else None
        if not SKEW:
            engine(k, tiles, NFR, KS, NS, NBUF, Wg, 2, int(OPT.get('delta', 2)), rd_m, rd_n, dma,
                   lambda t, tl, i: vA[(tl, i)], lambda t, ks: t == 0, vM, vN, sLoop, stage_extra=sx_)
        else:
            engine(k, tiles, NFR, KS, NS - NBUF, NBUF, Wg, 2, int(OPT.get('delta', 2)), rd_m, rd_n, dma,
                   lambda t, tl, i: vA[(tl, i)], lambda t, ks: t == 0, vM, vN, sLoop, stage_extra=sx_, ns_total=NS)
            gt = [t for t in tiles if t[0] == 0]
            ut = [t for t in tiles if t[0] == 1]
            engine(k, gt, NFR, KS, NBUF, NBUF, Wg, 2, 1, rd_m, rd_n, dma,
                   lambda t, tl, i: vA[(tl, i)], lambda t, ks: False, vM, vN, sLoop, s0=NS - NBUF, ns_total=NS)
            work = []
            for j in js:
                for i in range(NFR):
                    g = vA[((0, j), i)]
                    work += ["v_mul_f32 v%d, s46, v%d" % (g + r, g + r) for r in range(4)]
                    work += ["v_exp_f32 v%d, v%d" % (g + r, g + r) for r in range(4)]
                    work += ["v_add_f32 v%d, 1.0, v%d" % (g + r, g + r) for r in range(4)]
                    work += ["v_rcp_f32 v%d, v%d" % (g + r, g + r) for r in range(4)]
            nuse = NBUF * len(ut)
            per = (len(work) + nuse - 2) // (nuse - 1)
            cnt_ = [0]

            def au(t, r):
                cnt_[0] += 1
                if cnt_[0] == 1:
                    return
                for _ in range(per):
                    if work:
                        k.e(work.pop(0))
            engine(k, ut, NFR, KS, NBUF, NBUF, Wg, 2, 1, rd_m, rd_n, dma,
                   lambda t, tl, i: vA[(tl, i)], lambda t, ks: False, vM, vN, sLoop, s0=NS - NBUF, ns_total=NS, static=True, after_use=au)
            assert not work
        k.e("s_nop 7")
        k.e("s_nop 3")
        stamp(k, 3)
        if nxt_phase and PRE:
            k.e("s_barrier")
            pre_issue(k, nxt_phase, 40)
        TB = 20
        n = 0
        for pr in range(2):
            for jn, j in enumerate(js):
                o = TB + 4 * (n % 4)
                n += 1
                for i in range(2):
                    g = vA[((0, j), 2 * pr + i)]
                    u_ = vA[((1, j), 2 * pr + i)]
                    if OPT.get('nosig'):
                        pass
                    elif SKEW:
                        for r in range(4):
                            k.e("v_mul_f32 v%d, v%d, v%d" % (g + r, g + r, u_ + r))
                    elif int(OPT.get('pk', 0)):
                        for r in (0, 2):
                            k.e("v_pk_mul_f32 %s, %s, s[46:47]" % (vr(g + r, 2), vr(g + r, 2)))
                        for r in range(4):
                            k.e("v_exp_f32 v%d, v%d" % (g + r, g + r))
                        for r in (0, 2):
                            k.e("v_pk_add_f32 %s, %s, 1.0 op_sel_hi:[1,0]" % (vr(g + r, 2), vr(g + r, 2)))
                        for r in range(4):
                            k.e("v_rcp_f32 v%d, v%d" % (g + r, g + r))
                        k.e("s_nop 0")
                        for r in (0, 2):
                            k.e("v_pk_mul_f32 %s, %s, %s" % (vr(g + r, 2), vr(g + r, 2), vr(u_ + r, 2)))
                    else:
                        for r in range(4):
                            k.e("v_mul_f32 v%d, s46, v%d" % (g + r, g + r))
                        for r in range(4):
                            k.e("v_exp_f32 v%d, v%d" % (g + r, g + r))
                        for r in range(4):
                            k.e("v_add_f32 v%d, 1.0, v%d" % (g + r, g + r))
                        for r in range(4):
                            k.e("v_rcp_f32 v%d, v%d" % (g + r, g + r))
                        for r in range(4):
                            k.e("v_mul_f32 v%d, v%d, v%d" % (g + r, g + r, u_ + r))
                    k.e("v_cvt_pk_bf16_f32 v%d, v%d, v%d" % (o + 2 * i, g, g + 1))
                    k.e("v_cvt_pk_bf16_f32 v%d, v%d, v%d" % (o + 2 * i + 1, g + 2, g + 3))
                if jn % 4 == 0:
                    k.e("s_mov_b32 s%d, %d" % (sTmp, (pr * 288 + j) * 1024))
                else:
                    k.e("s_nop 0")
                k.e("s_nop 0")
                k.e("v_permlane16_swap_b32 v%d, v%d" % (o, o + 2))
                k.e("v_permlane16_swap_b32 v%d, v%d" % (o + 1, o + 3))
                k.e("s_nop 0")
                if not OPT.get('nohst'):
                    k.e("buffer_store_dwordx4 %s, v%d, %s, s%d offen offset:%d%s" % (vr(o), vO, sr(SRO), sTmp, (jn % 4) * 1024, OPT.get('hflag', '').replace('_', ' ')))
        if gi == 0:
            k.e("s_branch %s" % ljoin)
    k.label(ljoin)
    stamp(k, 4)
    stamp_store(k, kidx)
    if pub is not None:
        k.e("s_lshl_b32 s44, s37, 5")
        k.e("s_add_u32 s44, s44, s38")
        publish(k, pub, 44, sW)
    return nvgpr, NBUF * STB


def main():
    phases = [
        lambda k, d, p, nx: gen_gemm(k, 'A1L', None, 0, ab=WS_AB, pf2=((KA_CR, S * S * 2), (KA_CI, S * S * 2)), dep=d, pub=p, nxt_phase=nx),
        lambda k, d, p, nx: gen_gemm(k, 'A2', (0, ('in', KA_X), ('ws', WS_X1), True), 1, xn=WS_XN, ab=WS_AB, pf2=((KA_WG, D * F * 2), (KA_WU, D * F * 2)), dep=d, pub=p, nxt_phase=nx),
        lambda k, d, p, nx: gen_b1(k, 2, xn=WS_XN, h=WS_H, pf2=((KA_WD, D * F * 2),), dep=d, pub=p, nxt_phase=nx),
        lambda k, d, p, nx: gen_gemm(k, 'B2', (1, ('ws', WS_X1), ('ws', WS_X2), True), 3, xn=WS_XNB, h=WS_H, dep=d, pub=p, nxt_phase=nx),
        lambda k, d, p, nx: gen_gemm(k, 'A1', None, 4, xn=WS_XNB, ab=WS_AB2, dep=d, pub=p, nxt_phase=nx),
        lambda k, d, p, nx: gen_gemm(k, 'A2', (2, ('ws', WS_X2), ('ws', WS_X3), True), 5, xn=WS_XNC, ab=WS_AB2, dep=d, pub=p, nxt_phase=nx),
        lambda k, d, p, nx: gen_b1(k, 6, xn=WS_XNC, h=WS_H2, dep=d, pub=p, nxt_phase=nx),
        lambda k, d, p, nx: gen_gemm(k, 'B2', (3, ('ws', WS_X3), ('out', 0), False), 7, h=WS_H2, dep=d, pub=p, nxt_phase=nx),
    ]
    grouping = [[int(c) for c in g] for g in OPT.get('merge', '01234567').split('-')]
    ks = {}
    order = []
    for gi, g in enumerate(grouping):
        name = MAIN + "_kernel" if gi == 0 else "p%s_kernel" % "".join(str(x) for x in g)
        k = K(name)
        header(k, 256)
        nv, lds = 0, 0
        for n, ph in enumerate(g):
            a, b = phases[ph](k, (ph - 1) if n else None, ph if n + 1 < len(g) else None, phases[ph + 1] if n + 1 < len(g) else None)
            nv, lds = max(nv, a), max(lds, b)
        footer(k, nv, 102)
        ks[name] = (k, 256, 512, lds)
        order.append(name)
    out = ["; FNet (DFT matmul) + GLU interleaved layers; generated by gen3.py"]
    for n in order:
        kk, nwg, blk, lds = ks[n]
        out.append("; @launch kernel=%s grid=(%d,1,1) block=(%d,1,1) lds=%d" % (kk.name, nwg, blk, lds))
    out.append('.amdgcn_target "amdgcn-amd-amdhsa--gfx950"')
    out.append(".text")
    for n, (kk, nwg, blk, lds) in ks.items():
        out.append(".globl %s" % kk.name)
        out += kk.lines
    open(sys.argv[1] if len(sys.argv) > 1 else "cdna_kernels/%s.s" % MAIN, "w").write("\n".join(out) + "\n")


if __name__ == "__main__":
    main()
```

```python
import sys, os, struct
OPT = dict(x.split('=') for x in os.environ.get('GENOPT', '').split(',') if x)
STAMP = int(OPT.get('stamp', 0))
PF = int(OPT.get('pf', 0))
STF = {'': '', 'sc1': ' sc1', 'nt': ' nt', 'sc01': ' sc0 sc1'}[OPT.get('stf', 'sc01')]
XF = {'sc1': ' sc1', 'sc01': ' sc0 sc1'}[OPT.get('xf', 'sc01')]

LF = {'x': XF, 'p': '', 'sc1': ' sc1', 'nt': ' nt'}[OPT.get('lf', 'x')]
PRE = int(OPT.get('pre', 0))
POLLF = int(OPT.get('pollf', 0))
H2 = int(OPT.get('h2', 0))
MIRROR = int(OPT.get('mirror', 1))
MAIN = "interleave_layers__spectral_fnet__glu_gated_glu__prompt"
S, D, F = 2048, 576, 4608
KA_X, KA_CR, KA_CI, KA_WR, KA_WI, KA_BX, KA_WG, KA_WU, KA_WD, KA_OUT, KA_DBG, KA_WS = [8 * i for i in range(12)]
WS_XN = 0x0000000
WS_X1 = 0x0400000
WS_X2 = 0x0800000
WS_AB = 0x0C00000
WS_XNB = 0x2000000
WS_XNC = 0x2400000
WS_X3 = 0x2800000
WS_AB2 = 0x5800000
WS_H2 = 0x4400000
WS_FL = 0x1200000
WS_P = 0x1400000
WS_P2 = 0x1E00000
WS_H = 0x3000000
HB = S * F * 2
WS_DBG = 0x8000000
XB = S * D * 2
MTB = 18432


def f32bits(x):
    return struct.unpack("<I", struct.pack("<f", x))[0]


class K:
    def __init__(self, name):
        self.name = name
        self.lines = []
        self.pend = []
        self.vm = []
        self.nlab = 0

    def e(self, s, vtag=None):
        if s.startswith('buffer_store') and ' sc' not in s:
            s += STF
        if s.endswith(' lds') and OPT.get('dmaf'):
            s = s[:-4] + ' ' + OPT['dmaf'].replace('_', ' ') + ' lds'
        if s.startswith('buffer_') or s.startswith('global_'):
            self.vm.append(vtag)
        self.lines.append("    " + s)

    def label(self, l):
        self.lines.append(l + ":")

    def newlabel(self, p="L"):
        self.nlab += 1
        return "%s_%s_%d" % (p, self.name[-12:], self.nlab)

    def lds(self, s, tag):
        if OPT.get('nolds') and tag[0] in OPT.get('nolds'):
            return
        if len(self.pend) >= 15:
            self.e("s_waitcnt lgkmcnt(13)")
            self.pend = self.pend[-13:]
        self.e(s)
        self.pend.append(tag)

    def need(self, *tags):
        idx = -1
        for i, p in enumerate(self.pend):
            if p in tags:
                idx = i
        if idx < 0:
            return
        n = min(len(self.pend) - 1 - idx, 14)
        self.e("s_waitcnt lgkmcnt(%d)" % n)
        self.pend = self.pend[len(self.pend) - n:] if n else []

    def vneed(self, tag, lgkm0=False):
        idx = -1
        for i, p in enumerate(self.vm):
            if p == tag:
                idx = i
        extra = " lgkmcnt(0)" if lgkm0 else ""
        if lgkm0:
            self.pend = []
        if idx < 0:
            if lgkm0:
                self.e("s_waitcnt lgkmcnt(0)")
            return
        n = len(self.vm) - 1 - idx
        assert n < 63
        self.e("s_waitcnt vmcnt(%d)%s" % (n, extra))
        self.vm = self.vm[len(self.vm) - n:] if n else []

    def vm0(self):
        self.e("s_waitcnt vmcnt(0)")
        self.vm = []


def vr(b, n=4):
    return "v[%d:%d]" % (b, b + n - 1)


def sr(b, n=4):
    return "s[%d:%d]" % (b, b + n - 1)


def header(k, nwg):
    k.lines.append(".p2align 8")
    k.lines.append(".type %s,@function" % k.name)
    k.label(k.name)
    k.e("s_cmp_ge_u32 s2, %d" % nwg)
    k.e("s_cbranch_scc1 L_end_%s" % k.name)


def footer(k, nvgpr, nsgpr=64):
    k.label("L_end_%s" % k.name)
    k.e("s_endpgm")
    acc = (nvgpr + 3) // 4 * 4
    k.lines.append(""".section .rodata,"a"
.p2align 6
.amdhsa_kernel %s
  .amdhsa_next_free_vgpr %d
  .amdhsa_next_free_sgpr %d
  .amdhsa_accum_offset %d
  .amdhsa_group_segment_fixed_size 0
  .amdhsa_kernarg_size 96
  .amdhsa_user_sgpr_count 2
  .amdhsa_user_sgpr_kernarg_segment_ptr 1
  .amdhsa_system_sgpr_workgroup_id_x 1
.end_amdhsa_kernel
.text""" % (k.name, nvgpr, nsgpr, acc))


def srd(k, d, pbase, off_const, off_sgpr, total):
    k.e("s_add_u32 s%d, s%d, 0x%x" % (d, pbase, off_const))
    k.e("s_addc_u32 s%d, s%d, 0" % (d + 1, pbase + 1))
    if off_sgpr is None:
        k.e("s_mov_b32 s%d, 0x%x" % (d + 2, total - off_const))
    else:
        k.e("s_add_u32 s%d, s%d, s%d" % (d, d, off_sgpr))
        k.e("s_addc_u32 s%d, s%d, 0" % (d + 1, d + 1))
        k.e("s_sub_u32 s%d, 0x%x, s%d" % (d + 2, total - off_const, off_sgpr))
    k.e("s_and_b32 s%d, s%d, 0xffff" % (d + 1, d + 1))
    k.e("s_mov_b32 s%d, 0x20000" % (d + 3))


SB = 76


def stamp(k, idx, real=0):
    if not STAMP or (STAMP == 2 and not real):
        return
    if OPT.get('pst') and idx in (4, 5, 6) and getattr(k, 'st%d' % idx, False):
        return
    if OPT.get('pst') and idx == 4:
        return
    setattr(k, 'st%d' % idx, True)
    k.e("s_memtime s[%d:%d]" % (SB + 2 * idx, SB + 1 + 2 * idx))
    if real:
        k.e("s_memrealtime s[%d:%d]" % (SB + 16 + 2 * real - 2, SB + 17 + 2 * real - 2))
    k.e("s_waitcnt lgkmcnt(0)")
    k.pend = []


def stamp_store(k, kidx):
    if not STAMP:
        return
    k.vm0()
    stamp(k, 7, 2)
    if STAMP == 2:
        k.e("s_cmp_lg_u32 s2, 100")
        k.e("s_cbranch_scc1 L_end_%s" % k.name)
        k.e("s_load_dwordx2 s[24:25], s[0:1], %d" % KA_DBG)
        k.e("s_waitcnt lgkmcnt(0)")
        k.e("s_add_u32 s24, s24, %d" % ((7 - kidx) * 512 + kidx * 8))
        k.e("s_addc_u32 s25, s25, 0")
        k.e("s_and_b32 s25, s25, 0xffff")
        k.e("s_mov_b32 s26, 8")
        k.e("s_mov_b32 s27, 0x20000")
        k.e("v_cmp_eq_u32 vcc, 0, v0")
        k.e("s_and_saveexec_b64 s[46:47], vcc")
        k.e("s_cbranch_execz L_end_%s" % k.name)
        k.e("v_mov_b32 v1, 0")
        k.e("v_mov_b32 v2, s%d" % (SB + 16))
        k.e("v_mov_b32 v3, s%d" % (SB + 18))
        k.e("buffer_store_dwordx2 v[2:3], v1, s[24:27], 0 offen")
        return
    k.e("s_lshl_b32 s44, s2, 7")
    k.e("s_add_u32 s44, s44, 0x%x" % (kidx * 65536))
    srd(k, 24, 4, WS_DBG, 44, WS_DBG + 16 * 65536)
    lsk = k.newlabel("LSS")
    k.e("v_cmp_eq_u32 vcc, %d, v0" % (64 * int(OPT.get('sw', 0))))
    k.e("s_and_saveexec_b64 s[46:47], vcc")
    k.e("s_cbranch_execz %s" % lsk)
    k.e("v_mov_b32 v1, 0")
    for i in range(10):
        k.e("v_mov_b32 v2, s%d" % (SB + 2 * i))
        k.e("v_mov_b32 v3, s%d" % (SB + 1 + 2 * i))
        k.e("buffer_store_dwordx2 v[2:3], v1, s[24:27], 0 offen offset:%d" % (8 * i))
        k.e("s_nop 1")
    k.label(lsk)
    k.e("s_mov_b64 exec, -1")
    k.vm0()


import re as _re


def remap_line(line, vb, sb=52):
    def rv(m):
        n = int(m.group(1))
        return "v%d" % (n + vb if n else 0)

    def rvr(m):
        return "v[%d:%d]" % (int(m.group(1)) + vb, int(m.group(2)) + vb)

    def rs(m):
        n = int(m.group(1))
        return "s%d" % (n + sb if n >= 6 else n)

    def rsr(m):
        a, b = int(m.group(1)), int(m.group(2))
        return "s[%d:%d]" % ((a + sb, b + sb) if a >= 6 else (a, b))
    line = _re.sub(r"\bv\[(\d+):(\d+)\]", rvr, line)
    line = _re.sub(r"\bv(\d+)\b", rv, line)
    line = _re.sub(r"\bs\[(\d+):(\d+)\]", rsr, line)
    line = _re.sub(r"\bs(\d+)\b", rs, line)
    return line


class PreDone(Exception):
    pass


def pre_issue(k, phase, vb):
    t = K(k.name)
    t.nlab = k.nlab + 1000
    try:
        phase(t, 'pre', None, None)
    except PreDone:
        pass
    k.nlab = t.nlab
    for l in t.lines:
        if l.strip().startswith(("s_load_dwordx2 s[4:5]", "s_load_dwordx2 s[48:49]", "s_load_dwordx2 s[50:51]")):
            continue
        k.lines.append(remap_line(l, vb))
    k.vm += ["PRE"] * len(t.vm)
    k.pend = []


def publish(k, farr, sIdx, sW):
    k.vm0()
    k.e("s_barrier")
    lsk = k.newlabel("LPB")
    k.e("s_cmp_lg_u32 s%d, 0" % sW)
    k.e("s_cbranch_scc1 %s" % lsk)
    if farr == 0:
        k.e("s_load_dwordx2 s[72:73], s[0:1], %d" % KA_DBG)
        k.e("s_waitcnt lgkmcnt(0)")
        srd(k, 72, 72, 0, None, 256)
        k.e("s_mov_b64 exec, 1")
        k.e("s_and_b32 s46, s2, 7")
        k.e("s_lshl_b32 s46, s46, 5")
        k.e("v_mov_b32 v2, s46")
        k.e("v_mov_b32 v3, 1")
        k.e("buffer_atomic_add v3, v2, s[72:75], 0 offen sc1")
    else:
        srd(k, 72, 4, WS_FL + farr * 1024, None, WS_FL + 8192)
        k.e("s_mov_b64 exec, 1")
        k.e("s_lshl_b32 s46, s%d, 2" % sIdx)
        k.e("v_mov_b32 v2, s46")
        k.e("v_mov_b32 v3, 1")
        k.e("buffer_store_dword v3, v2, s[72:75], 0 offen" + XF)
    k.e("s_mov_b64 exec, -1")
    k.label(lsk)
    k.vm = ["F"]


def handoff2(k, farr, nl, vIdx, vT, emit_indep, sW=28):
    l0 = k.newlabel("LH0")
    l1 = k.newlabel("LH1")
    vm0_ = list(k.vm)
    k.e("s_cmp_eq_u32 s%d, 0" % sW)
    k.e("s_cbranch_scc1 %s" % l0)
    emit_indep()
    vmA = list(k.vm)
    k.e("s_barrier")
    k.e("s_branch %s" % l1)
    k.label(l0)
    k.vm = vm0_
    old = OPT.get('w1poll')
    OPT['w1poll'] = '0'
    wait_flags(k, farr, nl, vIdx, vT)
    if old is None:
        del OPT['w1poll']
    else:
        OPT['w1poll'] = old
    k.e("s_barrier")
    emit_indep()
    k.label(l1)
    k.vm = vmA


def wait_flags(k, farr, nl, vIdx, vT, sW=28):
    one = int(OPT.get('w1poll', 1))
    slp = int(OPT.get('fsleep', 0))
    lsk = k.newlabel("LFS")
    if one:
        k.e("s_cmp_lg_u32 s%d, 0" % sW)
        k.e("s_cbranch_scc1 %s" % lsk)
    vm_keep = list(k.vm)
    want = 1
    if farr == 0:
        k.e("s_load_dwordx2 s[72:73], s[0:1], %d" % KA_DBG)
        k.e("s_waitcnt lgkmcnt(0)")
        srd(k, 72, 72, 0, None, 256)
        k.e("v_and_b32 v%d, 63, v0" % vIdx)
        k.e("v_lshlrev_b32 v%d, 3, v%d" % (vIdx, vIdx))
        nl, want = 8, 32
    else:
        srd(k, 72, 4, WS_FL + farr * 1024, None, WS_FL + 8192)
    lp = k.newlabel("LFW")
    ld = k.newlabel("LFD")
    k.e("v_lshlrev_b32 v%d, 2, v%d" % (vIdx, vIdx))
    if nl < 64:
        k.e("s_mov_b64 exec, 0x%x" % ((1 << nl) - 1))
    k.e("s_mov_b32 s45, 0")
    k.label(lp)
    if slp:
        k.e("s_sleep %d" % slp)
    k.e("buffer_load_dword v%d, v%d, s[72:75], 0 offen%s" % (vT, vIdx, XF))
    k.vm0()
    k.e("v_cmp_ne_u32 vcc, %d, v%d" % (want, vT))
    k.e("s_nop 3")
    k.e("s_cmp_eq_u64 vcc, 0")
    k.e("s_cbranch_scc1 %s" % ld)
    k.e("s_add_u32 s45, s45, 1")
    k.e("s_cmp_lt_u32 s45, 0x100000")
    k.e("s_cbranch_scc1 %s" % lp)
    k.label(ld)
    k.e("s_mov_b64 exec, -1")
    if one:
        k.label(lsk)
        k.e("s_barrier")
        k.vm = vm_keep


def pf2_loads(k, items):
    for n, (ka, nb_) in enumerate(items):
        k.e("s_load_dwordx2 s[%d:%d], s[0:1], %d" % (56 + 2 * n, 57 + 2 * n, ka))


def pf2_setup(k, items, sW, vLane, vA_):
    stride = int(OPT.get('pfs', 128))
    ch = 64 * stride
    k.e("s_lshl_b32 s64, s2, 3")
    k.e("s_add_u32 s64, s64, s%d" % sW)
    k.e("s_mul_i32 s64, s64, %d" % ch)
    k.e("s_mov_b32 s60, s56")
    k.e("s_mov_b32 s61, s57")
    k.e("s_mov_b32 s62, 0x%x" % items[0][1])
    if len(items) == 2:
        lim = (items[0][1] + ch - 1) // ch * ch
        k.e("s_cmp_ge_u32 s64, 0x%x" % lim)
        k.e("s_cselect_b32 s60, s58, s60")
        k.e("s_cselect_b32 s61, s59, s61")
        k.e("s_cselect_b32 s65, 0x%x, 0" % lim)
        k.e("s_sub_u32 s64, s64, s65")
    k.e("s_and_b32 s61, s61, 0xffff")
    k.e("s_mov_b32 s63, 0x20000")
    k.e("v_mul_u32_u24 v%d, %d, v%d" % (vA_, stride, vLane))
    k.e("v_add_u32 v%d, s64, v%d" % (vA_, vA_))


def code_prefetch(k, sW, vLane, vA_, vD, SR, sTmp):
    if not int(OPT.get('cpf', 1)):
        return
    lab = k.newlabel("LPC")
    k.e("s_getpc_b64 s[%d:%d]" % (SR, SR + 1))
    k.label(lab)
    k.e("s_sub_u32 s%d, s%d, %s-%s" % (SR, SR, lab, k.name))
    k.e("s_subb_u32 s%d, s%d, 0" % (SR + 1, SR + 1))
    k.e("s_and_b32 s%d, s%d, 0xffff" % (SR + 1, SR + 1))
    k.e("s_mov_b32 s%d, L_end_%s-%s" % (SR + 2, k.name, k.name))
    k.e("s_mov_b32 s%d, 0x20000" % (SR + 3))
    k.e("s_lshr_b32 s%d, s2, 3" % sTmp)
    k.e("s_and_b32 s%d, s%d, 1" % (sTmp, sTmp))
    k.e("s_lshl_b32 s%d, s%d, 3" % (sTmp, sTmp))
    k.e("s_add_u32 s%d, s%d, s%d" % (sTmp, sTmp, sW))
    k.e("s_lshl_b32 s%d, s%d, 13" % (sTmp, sTmp))
    k.e("v_lshl_add_u32 v%d, v%d, 7, s%d" % (vA_, vLane, sTmp))
    k.e("buffer_load_dword v%d, v%d, %s, 0 offen" % (vD, vA_, sr(SR)), "C")


def wave_sum(k, v, sbase):
    for ctl in ("quad_perm:[1,0,3,2]", "quad_perm:[2,3,0,1]", "row_half_mirror", "row_mirror"):
        k.e("s_nop 1")
        k.e("v_add_f32_dpp %s, %s, %s %s row_mask:0xf bank_mask:0xf" % (v, v, v, ctl))
    k.e("s_nop 1")
    for i in range(4):
        k.e("v_readlane_b32 s%d, %s, %d" % (sbase + i, v, 16 * i))
    k.e("s_nop 1")
    k.e("v_mov_b32 %s, s%d" % (v, sbase))
    for i in range(1, 4):
        k.e("v_add_f32 %s, s%d, %s" % (v, sbase + i, v))


def r_body(k, vrow, vlane, ysrc, has_xout, ln, SX, SO, SN, hook=None, sLds=None):
    k.e("v_mul_u32_u24 v4, 1152, v%d" % vrow)
    k.e("v_lshl_add_u32 v7, v%d, 3, v4" % vlane)
    k.e("v_lshl_add_u32 v8, v%d, 1, v4" % vlane)
    k.e("buffer_load_dwordx2 v[10:11], v7, %s, 0 offen" % sr(SX), "X")
    k.e("buffer_load_dwordx2 v[12:13], v7, %s, 0 offen offset:512" % sr(SX), "X")
    k.e("buffer_load_ushort v14, v8, %s, 0 offen offset:1024" % sr(SX), "X")
    if hook:
        hook()
    X = 30
    A = 16
    if ysrc:
        ysrc()

    def row_store(p, SR, off, t):
        k.e("ds_write_b64 v40, %s offset:%d" % (vr(p, 2), off))
        k.e("ds_write_b64 v40, %s offset:%d" % (vr(p + 2, 2), off + 512))
        k.e("ds_write_b16 v41, v%d offset:%d" % (p + 4, off + 1024))
        k.e("s_waitcnt lgkmcnt(0)")
        k.e("ds_read_b128 %s, v42 offset:%d" % (vr(t), off))
        k.e("ds_read_b128 %s, v42 offset:%d" % (vr(t + 4), off + 1024))
        return lambda: (k.e("s_waitcnt lgkmcnt(0)"),
                        k.e("buffer_store_dwordx4 %s, v43, %s, 0 offen" % (vr(t), sr(SR))),
                        k.e("s_mov_b64 exec, 0xff"),
                        k.e("buffer_store_dwordx4 %s, v43, %s, 0 offen offset:1024" % (vr(t + 4), sr(SR))),
                        k.e("s_mov_b64 exec, -1"))
    if sLds is not None:
        k.e("v_lshl_add_u32 v40, v%d, 3, s%d" % (vlane, sLds))
        k.e("v_lshl_add_u32 v41, v%d, 1, s%d" % (vlane, sLds))
        k.e("v_lshl_add_u32 v42, v%d, 4, s%d" % (vlane, sLds))
        k.e("v_lshl_add_u32 v43, v%d, 4, v4" % vlane)
    fin_x = None
    k.vneed("X")
    for i, src in enumerate([10, 11, 12, 13]):
        k.e("v_lshlrev_b32 v%d, 16, v%d" % (X + 2 * i, src))
        k.e("v_and_b32 v%d, 0xffff0000, v%d" % (X + 2 * i + 1, src))
    k.e("v_lshlrev_b32 v%d, 16, v14" % (X + 8))
    if ysrc:
        for e in range(9):
            k.e("v_add_f32 v%d, v%d, v%d" % (X + e, X + e, A + e))
        for i in range(4):
            k.e("v_cvt_pk_bf16_f32 v%d, v%d, v%d" % (10 + i, X + 2 * i, X + 2 * i + 1))
        k.e("v_cvt_pk_bf16_f32 v14, v%d, v%d" % (X + 8, X + 8))
        if has_xout and sLds is not None:
            fin_x = row_store(10, SO, 0, 44)
            if not ln:
                fin_x()
        elif has_xout:
            k.e("buffer_store_dwordx2 v[10:11], v7, %s, 0 offen" % sr(SO))
            k.e("buffer_store_dwordx2 v[12:13], v7, %s, 0 offen offset:512" % sr(SO))
            k.e("buffer_store_short v14, v8, %s, 0 offen offset:1024" % sr(SO))
        if ln:
            for i, src in enumerate([10, 11, 12, 13]):
                k.e("v_lshlrev_b32 v%d, 16, v%d" % (X + 2 * i, src))
                k.e("v_and_b32 v%d, 0xffff0000, v%d" % (X + 2 * i + 1, src))
            k.e("v_lshlrev_b32 v%d, 16, v14" % (X + 8))
    if ln:
        k.e("v_add_f32 v20, v%d, v%d" % (X, X + 1))
        k.e("v_add_f32 v21, v%d, v%d" % (X + 2, X + 3))
        k.e("v_add_f32 v22, v%d, v%d" % (X + 4, X + 5))
        k.e("v_add_f32 v23, v%d, v%d" % (X + 6, X + 7))
        k.e("v_add_f32 v20, v20, v21")
        k.e("v_add_f32 v22, v22, v23")
        k.e("v_add_f32 v20, v20, v%d" % (X + 8))
        k.e("v_add_f32 v20, v20, v22")
        wave_sum(k, "v20", 32)
        k.e("v_mul_f32 v20, 0x%08x, v20" % f32bits(1.0 / D))
        if MIRROR:
            k.e("v_cvt_pk_bf16_f32 v23, v20, v20")
            k.e("v_lshlrev_b32 v23, 16, v23")
            k.e("v_sub_f32 v20, v20, v23")
            for e in range(9):
                k.e("v_sub_f32 v%d, v%d, v23" % (X + e, X + e))
        else:
            for e in range(9):
                k.e("v_sub_f32 v%d, v%d, v20" % (X + e, X + e))
        k.e("v_mul_f32 v21, v%d, v%d" % (X, X))
        k.e("v_mul_f32 v22, v%d, v%d" % (X + 1, X + 1))
        for e in range(2, 9):
            k.e("v_fmac_f32 v%d, v%d, v%d" % (21 + (e & 1), X + e, X + e))
        k.e("v_add_f32 v21, v21, v22")
        wave_sum(k, "v21", 32)
        if MIRROR:
            k.e("v_mul_f32 v21, 0x%08x, v21" % f32bits(1.0 / D))
            k.e("v_fma_f32 v21, -v20, v20, v21")
            k.e("v_max_f32 v21, 0, v21")
            k.e("v_cvt_pk_bf16_f32 v22, v21, v21")
            k.e("v_lshlrev_b32 v22, 16, v22")
            k.e("v_add_f32 v22, 0x%08x, v22" % f32bits(1e-5))
            k.e("v_cvt_pk_bf16_f32 v22, v22, v22")
            k.e("v_lshlrev_b32 v22, 16, v22")
            k.e("v_sqrt_f32 v22, v22")
            for i in range(4):
                k.e("v_cvt_pk_bf16_f32 v%d, v%d, v%d" % (24 + i, X + 2 * i, X + 2 * i + 1))
            k.e("v_cvt_pk_bf16_f32 v28, v%d, v%d" % (X + 8, X + 8))
            k.e("v_cvt_pk_bf16_f32 v22, v22, v22")
            k.e("v_lshlrev_b32 v22, 16, v22")
            k.e("v_rcp_f32 v22, v22")
            for i in range(4):
                k.e("v_lshlrev_b32 v%d, 16, v%d" % (X + 2 * i, 24 + i))
                k.e("v_and_b32 v%d, 0xffff0000, v%d" % (X + 2 * i + 1, 24 + i))
            k.e("v_lshlrev_b32 v%d, 16, v28" % (X + 8))
        else:
            k.e("v_mov_b32 v22, 0x%08x" % f32bits(1e-5))
            k.e("v_fmac_f32 v22, 0x%08x, v21" % f32bits(1.0 / D))
            k.e("v_rsq_f32 v22, v22")
            k.e("s_nop 0")
        for e in range(9):
            k.e("v_mul_f32 v%d, v%d, v22" % (X + e, X + e))
        for i in range(4):
            k.e("v_cvt_pk_bf16_f32 v%d, v%d, v%d" % (24 + i, X + 2 * i, X + 2 * i + 1))
        k.e("v_cvt_pk_bf16_f32 v28, v%d, v%d" % (X + 8, X + 8))
        if sLds is not None:
            fin_n = row_store(24, SN, 1168, 52)
            fin_n()
            if fin_x:
                fin_x()
        else:
            k.e("buffer_store_dwordx2 v[24:25], v7, %s, 0 offen" % sr(SN))
            k.e("buffer_store_dwordx2 v[26:27], v7, %s, 0 offen offset:512" % sr(SN))
            k.e("buffer_store_short v28, v8, %s, 0 offen offset:1024" % sr(SN))


def gen_r0(name):
    k = K(name)
    nwg = S // 4
    header(k, nwg)
    k.e("s_load_dwordx2 s[4:5], s[0:1], %d" % KA_WS)
    k.e("s_load_dwordx2 s[6:7], s[0:1], %d" % KA_X)
    pf = [(KA_WR, D * D * 2), (KA_WI, D * D * 2), (KA_CR, S * S * 2), (KA_CI, S * S * 2)] if PF else []
    for n, (ka, nb_) in enumerate(pf):
        k.e("s_load_dwordx2 s[%d:%d], s[0:1], %d" % (40 + 4 * n, 41 + 4 * n, ka))
    k.e("v_lshrrev_b32 v1, 6, v0")
    k.e("v_and_b32 v2, 63, v0")
    k.e("s_lshl_b32 s3, s2, 2")
    k.e("v_add_u32 v1, s3, v1")
    k.e("s_waitcnt lgkmcnt(0)")
    srd(k, 12, 6, 0, None, XB)
    srd(k, 24, 4, WS_XN, None, WS_XN + XB)
    for n, (ka, nb_) in enumerate(pf):
        srd(k, 40 + 4 * n, 40 + 4 * n, 0, None, nb_)
    k.e("s_mul_i32 s3, s2, 18432")
    srd(k, 16, 4, WS_P, 3, WS_P + 4 * XB)
    k.e("s_mov_b32 s18, 18432")
    k.e("v_lshrrev_b32 v3, 6, v0")
    k.e("v_mul_u32_u24 v3, 5120, v3")
    k.e("v_lshl_add_u32 v3, v2, 4, v3")
    for r in range(4):
        k.e("v_mov_b32 v%d, 0" % (36 + r))
    for n in range(4):
        k.e("buffer_store_dwordx4 v[36:39], v3, s[16:19], 0 offen offset:%d" % (n * 1024))
    k.e("s_mov_b32 s3, 4096")
    k.e("buffer_store_dwordx4 v[36:39], v3, s[16:19], s3 offen")

    def hook():
        if pf:
            k.e("v_lshlrev_b32 v42, 12, v1")
            k.e("v_lshl_add_u32 v42, v2, 6, v42")
            for n in range(len(pf)):
                k.e("buffer_load_dword v43, v42, %s, 0 offen" % sr(40 + 4 * n))
    r_body(k, 1, 2, None, False, True, 12, None, 24, hook=hook)
    footer(k, 44, 60)
    return k, nwg, 256, 0


def engine(k, tiles, NFR, KS, NS, NBUF, W, NSET, DELTA, rd_m, rd_n, dma, acc, first, vM, vN, sLoop,
           n_static=False, after_use=None, after_last_dma=None, npre=None, stage_extra=None, s0=0, ns_total=None, static=False):
    nt = len(tiles)
    UPS = KS * nt
    total = NS * UPS
    NSL = W
    W = W - int(OPT.get('lag', 2))
    st = {'nrM': 0, 'nrN': 0, 'pub': (NS if static else 0), 'ald': False}
    k.pend = []
    if ns_total is None:
        ns_total = NS

    BUD = int(OPT.get('bud', 3))

    def pump(udone, maxm=2):
        bud = BUD if maxm < 50 else 999
        while bud > 0:
            f = st['nrN']
            s_ = f // NFR
            okN = s_ < NS * KS and (n_static or s_ // KS <= st['pub']) and s_ - NSET < udone // nt
            u = st['nrM']
            okM = u < total and u // UPS <= st['pub'] and u - W < udone
            if okN and (not okM or s_ * nt <= u):
                rd_n(s0 + s_ // KS, s_ % KS, f % NFR, vN[s_ % NSET][f % NFR], "N%d" % (s_ % NSET))
                st['nrN'] += 1
                bud -= 1
            elif okM:
                stg, rem = divmod(u, UPS)
                ks, ti = divmod(rem, nt)
                rd_m(s0 + stg, ks, tiles[ti], vM[u % NSL], "M%d" % (u % NSL))
                st['nrM'] += 1
                bud -= 2
            else:
                break

    pump(0, maxm=99)
    pre = k.lines
    k.lines = []
    blocks = []
    pos = max(1, min(UPS, UPS - W + DELTA))
    for t in range(NS):
        last = (s0 + t == ns_total - 1) or static
        extras = []
        for r in range(UPS):
            u = t * UPS + r
            ks, ti = divmod(r, nt)
            s = t * KS + ks
            k.need("M%d" % (u % NSL), "N%d" % (s % NSET))
            for i in range(NFR):
                a = acc(t, tiles[ti], i)
                c = "0" if first(t, ks) else vr(a)
                if not (OPT.get('nomfma') and t > 0):
                    k.e("v_mfma_f32_16x16x32_bf16 %s, %s, %s, %s" % (vr(a), vr(vM[u % NSL]), vr(vN[s % NSET][i]), c))
            if not last and r + 1 == pos:
                assert st['nrM'] == (t + 1) * UPS, (st, t)
                assert n_static or st['nrN'] >= (t + 1) * KS * NFR, (st, t)
                k.vneed("D%d" % (s0 + t + 1), lgkm0=True)
                k.e("s_barrier")
                st['pub'] = t + 1
                if s0 + t + NBUF < ns_total:
                    extras = dma(s0 + t + NBUF)
                    if OPT.get('nodma'):
                        extras = [(tg, [x for x in L if not x.startswith('buffer_load')]) for tg, L in extras]
                    if OPT.get('dropdma'):
                        pat = {'n': 'v8,', 'm': ('v9,', 'v10,', 'v11,'), 'q': 'v11,'}[OPT['dropdma']]
                        pats = pat if isinstance(pat, tuple) else (pat,)
                        extras = [(tg, [x for x in L if not (x.startswith('buffer_load') and any(p in x for p in pats))]) for tg, L in extras]
                elif after_last_dma and not st['ald']:
                    st['ald'] = True
                    extras = after_last_dma()
                if stage_extra:
                    extras = extras + stage_extra(t)
            pump(u + 1)
            if after_use:
                after_use(t, r)
            if extras:
                left = UPS - r
                n = (len(extras) + left - 1) // left
                for _ in range(n):
                    tag, L = extras.pop(0)
                    for x in L:
                        k.e(x, tag)
        assert not extras
        blocks.append(k.lines)
        k.lines = []
    best = None
    for U in (1, 2, 3, 4, 6):
        for a in range(NS):
            bnd = a + U
            while bnd + U <= NS and all(blocks[bnd + x] == blocks[a + x] for x in range(U)):
                bnd += U
            cnt = (bnd - a) // U
            if cnt >= 2 and (best is None or (cnt - 1) * U > (best[2] - 1) * best[3]):
                best = (a, bnd, cnt, U)
    out = pre
    if best is None:
        for bl in blocks:
            out += bl
    else:
        a, bnd, cnt, U = best
        for bl in blocks[:a]:
            out += bl
        lab = k.newlabel("LP")
        out.append("    s_mov_b32 s%d, %d" % (sLoop, cnt))
        out.append(lab + ":")
        for bl in blocks[a:a + U]:
            out += bl
        out.append("    s_sub_u32 s%d, s%d, 1" % (sLoop, sLoop))
        out.append("    s_cmp_lg_u32 s%d, 0" % sLoop)
        out.append("    s_cbranch_scc1 %s" % lab)
        for bl in blocks[bnd:]:
            out += bl
    k.lines = out


def tr_voff(k, vdst, sslot, vLane, T, stride, posmask):
    t0, t1, t2, t3, t4 = T
    k.e("v_add_u32 v%d, s%d, v%d" % (t0, sslot, vLane))
    k.e("v_mul_u32_u24 v%d, 3641, v%d" % (t1, t0))
    k.e("v_lshrrev_b32 v%d, 16, v%d" % (t1, t1))
    k.e("v_mul_u32_u24 v%d, 18, v%d" % (t2, t1))
    k.e("v_sub_u32 v%d, v%d, v%d" % (t2, t0, t2))
    k.e("v_and_b32 v%d, 0x%x, v%d" % (t3, posmask, t1))
    k.e("v_and_b32 v%d, 4, v%d" % (t4, t1))
    k.e("v_lshl_or_b32 v%d, v%d, 1, v%d" % (t3, t4, t3))
    k.e("v_and_b32 v%d, 8, v%d" % (t4, t1))
    k.e("v_lshrrev_b32 v%d, 1, v%d" % (t4, t4))
    k.e("v_or_b32 v%d, v%d, v%d" % (t3, t3, t4))
    k.e("v_mul_u32_u24 v%d, %d, v%d" % (vdst, stride, t3))
    k.e("v_lshl_add_u32 v%d, v%d, 4, v%d" % (vdst, t2, vdst))


def tr_raddr(k, vdst, vLane, t):
    k.e("v_lshrrev_b32 v%d, 5, v%d" % (vdst, vLane))
    k.e("v_lshlrev_b32 v%d, 4, v%d" % (vdst, vdst))
    k.e("v_bfe_u32 v%d, v%d, 4, 1" % (t, vLane))
    k.e("v_lshl_add_u32 v%d, v%d, 2, v%d" % (vdst, t, vdst))
    k.e("v_bfe_u32 v%d, v%d, 2, 2" % (t, vLane))
    k.e("v_add_u32 v%d, v%d, v%d" % (vdst, vdst, t))
    k.e("v_mul_u32_u24 v%d, 288, v%d" % (vdst, vdst))
    k.e("v_and_b32 v%d, 3, v%d" % (t, vLane))
    k.e("v_lshl_add_u32 v%d, v%d, 3, v%d" % (vdst, t, vdst))


def store_tiles_bf16(k, js, accf, vO, vO2, SRO, soff, sfl, TB, neg=None, colbase=0):
    idx = 0
    slot = 0
    while idx < len(js):
        pr = js[idx:idx + 2]
        if len(pr) == 2 and pr[1] != pr[0] + 1:
            pr = pr[:1]
        o = TB + 4 * (slot % 4)
        for n_, j in enumerate(pr):
            a = accf(j)
            k.e("v_cvt_pk_bf16_f32 v%d, v%d, v%d" % (o + 2 * n_, a, a + 1))
            k.e("v_cvt_pk_bf16_f32 v%d, v%d, v%d" % (o + 2 * n_ + 1, a + 2, a + 3))
            if neg is not None:
                k.e("v_xor_b32 v%d, s%d, v%d" % (o + 2 * n_, neg, o + 2 * n_))
                k.e("v_xor_b32 v%d, s%d, v%d" % (o + 2 * n_ + 1, neg, o + 2 * n_ + 1))
        if len(pr) == 2:
            k.e("s_nop 1")
            k.e("v_permlane16_swap_b32 v%d, v%d" % (o, o + 2))
            k.e("v_permlane16_swap_b32 v%d, v%d" % (o + 1, o + 3))
            k.e("s_nop 0")
            if SRO is None:
                k.e("ds_write_b128 v%d, %s offset:%d" % (vO, vr(o), colbase + pr[0] * 32))
            else:
                k.e("buffer_store_dwordx4 %s, v%d, %s, s%d offen offset:%d%s" % (vr(o), vO, sr(SRO), soff, colbase + pr[0] * 32, sfl))
        elif SRO is None:
            k.e("ds_write_b64 v%d, %s offset:%d" % (vO2, vr(o, 2), colbase + pr[0] * 32))
        else:
            k.e("buffer_store_dwordx2 %s, v%d, %s, s%d offen offset:%d%s" % (vr(o, 2), vO2, sr(SRO), soff, colbase + pr[0] * 32, sfl))
        idx += len(pr)
        slot += 1


PREG = 36864


def store_native(k, tiles, accf, vP, SRO, sTmp, blk0, sblk, TB, par):
    for n, j in enumerate(tiles):
        o = TB + 4 * (n % 4)
        for i in range(2):
            a = accf(j, i)
            if par:
                k.e("v_and_b32 v%d, 0xfffe0000, v%d" % (a, a))
                k.e("v_or_b32 v%d, 0x10000, v%d" % (a, a))
            else:
                k.e("v_add_u32 v%d, 0x10000, v%d" % (a, a))
                k.e("v_and_b32 v%d, 0xfffe0000, v%d" % (a, a))
            k.e("v_cvt_pk_bf16_f32 v%d, v%d, v%d" % (o + 2 * i, a, a + 1))
            k.e("v_cvt_pk_bf16_f32 v%d, v%d, v%d" % (o + 2 * i + 1, a + 2, a + 3))
            k.e(("v_or_b32 v%d, 1, v%d" if par else "v_and_b32 v%d, -2, v%d") % (o + 2 * i, o + 2 * i))
        if n % 4 == 0:
            if sblk is None:
                k.e("s_mov_b32 s%d, %d" % (sTmp, (blk0 + j) * 1024))
            else:
                k.e("s_add_u32 s%d, s%d, %d" % (sTmp, sblk, (blk0 + j) * 1024))
        else:
            k.e("s_nop 0")
        k.e("s_nop 0")
        k.e("v_permlane16_swap_b32 v%d, v%d" % (o, o + 2))
        k.e("v_permlane16_swap_b32 v%d, v%d" % (o + 1, o + 3))
        k.e("s_nop 0")
        k.e("buffer_store_dwordx4 %s, v%d, %s, s%d offen offset:%d%s" % (vr(o), vP, sr(SRO), sTmp, (n % 4) * 1024, XF))


def r_tail(k, rcfg, npart, sW, vLane, sGroup, sMember, XBUF, WSP, XNO, nxt_phase=None):
    freg, xin, xout, ln = rcfg
    if xin[0] == 'in':
        srd(k, 12, 48, 0, None, XB)
    else:
        srd(k, 12, 4, xin[1], None, xin[1] + XB)
    k.e("s_lshr_b32 s46, s%d, 2" % sMember)
    k.e("s_lshl_b32 s47, s%d, 2" % sGroup)
    k.e("s_add_u32 s46, s46, s47")
    k.e("s_mul_i32 s46, s46, %d" % PREG)
    srd(k, 20, 4, WSP, 46, WSP + npart * XB)
    if xout[0] == 'out':
        srd(k, 24, 50, 0, None, XB)
    else:
        srd(k, 24, 4, xout[1], None, xout[1] + XB)
    if ln:
        srd(k, 52, 4, XNO, None, XNO + XB)
    stamp(k, 4)
    k.e("s_lshl_b32 s46, s%d, 7" % sGroup)
    k.e("s_lshl_b32 s47, s%d, 3" % sMember)
    k.e("s_add_u32 s46, s46, s47")
    k.e("s_add_u32 s46, s46, s%d" % sW)
    k.e("v_mov_b32 v2, s46")
    PB0 = 44
    par = (rcfg[0] + 1) & 1

    def ysrc():
        k.e("s_lshr_b32 s46, s%d, 1" % sMember)
        k.e("s_and_b32 s46, s46, 1")
        k.e("s_lshl_b32 s46, s46, 8")
        k.e("s_and_b32 s47, s%d, 1" % sMember)
        k.e("s_lshl_b32 s47, s47, 7")
        k.e("s_add_u32 s46, s46, s47")
        for n, (mul, add) in enumerate(((64, 0), (8, 512))):
            k.e("s_mul_i32 s47, s%d, %d" % (sW, mul))
            k.e("s_add_u32 s47, s47, %d" % add)
            k.e("v_add_u32 v3, s47, v%d" % vLane)
            k.e("v_lshrrev_b32 v5, 4, v3")
            k.e("v_lshlrev_b32 v5, 10, v5")
            k.e("v_bfe_u32 v6, v3, 3, 1")
            k.e("v_lshl_add_u32 v5, v6, 9, v5")
            k.e("v_and_b32 v6, 7, v3")
            k.e("v_lshl_add_u32 v5, v6, 4, v5")
            k.e("v_add_u32 v%d, s46, v5" % (40 + n))
            k.e("v_mul_u32_u24 v5, 2336, v6")
            k.e("v_lshrrev_b32 v6, 3, v3")
            k.e("v_lshl_add_u32 v5, v6, 5, v5")
            k.e("v_add_u32 v%d, 0x%x, v5" % (42 + n, XBUF))
        for z in range(npart):
            for r in range(4):
                k.e("v_mov_b32 v%d, %d" % (PB0 + 8 * z + 4 + r, par))
        AB_ = PB0 + 8 * npart
        lp = k.newlabel("LW")
        ld = k.newlabel("LD")
        k.e("s_mov_b32 s45, 0")
        k.label(lp)
        if int(OPT.get('psleep', 0)):
            k.e("s_sleep %d" % int(OPT.get('psleep', 0)))
        for z in range(npart):
            k.e("s_mov_b32 s47, 0x%x" % (z * 64 * PREG))
            k.e("buffer_load_dwordx4 %s, v40, s[20:23], s47 offen%s" % (vr(PB0 + 8 * z), XF))
            k.e("s_mov_b64 exec, 0xff")
            k.e("buffer_load_dwordx4 %s, v41, s[20:23], s47 offen%s" % (vr(PB0 + 8 * z + 4), XF))
            k.e("s_mov_b64 exec, -1")
        k.vm0()
        regs = list(range(PB0, PB0 + 8 * npart, 2))
        op3 = "v_and_b32" if par else "v_or_b32"
        k.e("%s v26, v%d, v%d" % (op3, regs[0], regs[1]))
        k.e("%s v27, v%d, v%d" % (op3, regs[2], regs[3]))
        rest = regs[4:]
        n = 0
        while rest:
            d = 26 + (n & 1)
            if par:
                k.e("v_and_b32 v%d, v%d, v%d" % (d, d, rest[0]))
                rest = rest[1:]
            else:
                k.e("v_or3_b32 v%d, v%d, v%d, v%d" % (d, d, rest[0], rest[1]))
                rest = rest[2:]
            n += 1
        k.e("%s v26, v26, v27" % op3)
        k.e("v_and_b32 v26, 1, v26")
        k.e("v_cmp_ne_u32 vcc, %d, v26" % par)
        k.e("s_nop 3")
        k.e("s_cmp_eq_u64 vcc, 0")
        k.e("s_cbranch_scc1 %s" % ld)
        k.e("s_add_u32 s45, s45, 1")
        k.e("s_cmp_lt_u32 s45, 0x100000")
        k.e("s_cbranch_scc1 %s" % lp)
        k.label(ld)
        stamp(k, 5)
        if False:
            for r in range(4):
                k.e("v_mov_b32 v%d, -1" % (AB_ + 16 + r))
            for z in range(npart):
                k.e("s_mov_b32 s47, 0x%x" % (z * 64 * PREG))
                k.e("buffer_store_dwordx4 %s, v40, s[20:23], s47 offen" % vr(AB_ + 16))
                k.e("s_mov_b64 exec, 0xff")
                k.e("buffer_store_dwordx4 %s, v41, s[20:23], s47 offen" % vr(AB_ + 16))
                k.e("s_mov_b64 exec, -1")
        for z in range(npart):
            for h in range(2):
                for r in range(4):
                    src = PB0 + 8 * z + 4 * h + r
                    a = AB_ + 8 * h + 2 * r
                    if z == 0:
                        k.e("v_lshlrev_b32 v%d, 16, v%d" % (a, src))
                        k.e("v_and_b32 v%d, 0xffff0000, v%d" % (a + 1, src))
                    else:
                        k.e("v_lshlrev_b32 v26, 16, v%d" % src)
                        k.e("v_and_b32 v27, 0xffff0000, v%d" % src)
                        k.e("v_add_f32 v%d, v%d, v26" % (a, a))
                        k.e("v_add_f32 v%d, v%d, v27" % (a + 1, a + 1))
        k.e("ds_write_b128 v42, %s" % vr(AB_))
        k.e("ds_write_b128 v42, %s offset:16" % vr(AB_ + 4))
        k.e("s_mov_b64 exec, 0xff")
        k.e("ds_write_b128 v43, %s" % vr(AB_ + 8))
        k.e("ds_write_b128 v43, %s offset:16" % vr(AB_ + 12))
        k.e("s_mov_b64 exec, -1")
        k.e("s_mul_i32 s47, s%d, 2336" % sW)
        k.e("s_add_u32 s47, s47, 0x%x" % XBUF)
        k.e("v_lshl_add_u32 v5, v%d, 4, s47" % vLane)
        k.e("v_lshl_add_u32 v6, v%d, 2, s47" % vLane)
        k.e("s_waitcnt lgkmcnt(0)")
        k.e("s_barrier")
        k.e("ds_read_b128 v[16:19], v5")
        k.e("ds_read_b128 v[20:23], v5 offset:1024")
        k.e("ds_read_b32 v24, v6 offset:2048")
        if nxt_phase and PRE:
            pre_issue(k, nxt_phase, 180)
        k.e("s_waitcnt lgkmcnt(0)")
    r_body(k, 2, vLane, ysrc, True, ln, 12, 24, 52, sLds=47 if int(OPT.get('rst', 0)) else None)
    return PB0 + 8 * npart + 20


def preset_pieces(k, sW, vLane, vA_, vD4, SR, sTmp, WSP):
    L = ["s_mul_i32 s%d, s2, %d" % (sTmp, PREG),
         "s_add_u32 s%d, s4, 0x%x" % (SR, WSP), "s_addc_u32 s%d, s5, 0" % (SR + 1),
         "s_add_u32 s%d, s%d, s%d" % (SR, SR, sTmp), "s_addc_u32 s%d, s%d, 0" % (SR + 1, SR + 1),
         "s_and_b32 s%d, s%d, 0xffff" % (SR + 1, SR + 1),
         "s_mov_b32 s%d, %d" % (SR + 2, PREG), "s_mov_b32 s%d, 0x20000" % (SR + 3),
         "s_mul_i32 s%d, s%d, 5120" % (sTmp, sW),
         "v_lshl_add_u32 v%d, v%d, 4, s%d" % (vA_, vLane, sTmp)]
    for r in range(4):
        L.append("v_mov_b32 v%d, -1" % (vD4 + r))
    P = [("S", L + ["buffer_store_dwordx4 %s, v%d, %s, 0 offen" % (vr(vD4), vA_, sr(SR))])]
    for n in range(1, 4):
        P.append(("S", ["buffer_store_dwordx4 %s, v%d, %s, 0 offen offset:%d" % (vr(vD4), vA_, sr(SR), n * 1024)]))
    P.append(("S", ["s_mov_b32 s%d, 4096" % sTmp, "buffer_store_dwordx4 %s, v%d, %s, s%d offen" % (vr(vD4), vA_, sr(SR), sTmp)]))
    return P


def gen_gemm(k, kind, rcfg=None, kidx=0, pf=(), xn=None, ab=None, h=None, dep=None, pub=None, nxt_phase=None, pf2=()):
    nwg = 256
    k.pend = []
    if not int(OPT.get('pf2', 1)):
        pf2 = ()
    LNF = (kind == 'A1L')
    if LNF:
        kind = 'A1'
    if kind == 'A2':
        NFR, NBUF, mmode, NS = 2, 4, 'tr', 16
        strideN, strideM = 4096, 288
    elif kind == 'B2':
        NFR, NBUF, mmode, NS = 2, 4, 'tr', 18
        strideN, strideM = 0, 1152
    else:
        NFR, NBUF, mmode, NS = 1, 4, 'row', 9
        strideN, strideM = 1152, 1152
    WSP, WSPO = WS_P, WS_P
    groups = [list(range(5)), list(range(5, 9))]
    NSET = 4
    NT = 4 * NFR * 16
    NTB = NT * 128
    STB = NTB + MTB
    NDN = NT // 64
    LDSB = NBUF * STB + (8 * 2336 if rcfg else 0)
    MB0 = NTB
    if LNF:
        STB, NDN, MB0 = MTB, 0, 73728
        LDSB = 73728 + NBUF * MTB
    KS = 2
    Wmul = float(OPT.get('twmul', 2.0))
    Wmax = int(5 * Wmul + 0.5)

    vLane, vT0, vT1, vT2, vT3, vT4 = 1, 2, 3, 4, 5, 6
    vO = 7
    vDN = 8
    vDM = [9, 10, 11]
    nxt = 12
    nrm = KS if mmode == 'row' else 1
    vRN = [[0] * KS for _ in range(NBUF)]
    vRM = [[0] * nrm for _ in range(NBUF)]
    for b in range(NBUF):
        for s_ in range(KS):
            vRN[b][s_] = nxt; nxt += 1
        for s_ in range(nrm):
            vRM[b][s_] = nxt; nxt += 1
    nxt = (nxt + 3) // 4 * 4
    vPA, vPS, vPD = nxt, nxt + 2, nxt + 3
    nxt += 4
    PD = int(OPT.get('pd', 0)) if kind in ('A2', 'B2') else 0
    vM = [nxt + 4 * j for j in range(Wmax)]; nxt += 4 * Wmax
    vN = [[nxt + 4 * (p * NFR + i) for i in range(NFR)] for p in range(NSET)]; nxt += 4 * NSET * NFR
    vAbase = nxt
    nxt += 4 * 5 * NFR
    nxt = max(nxt, 192 if LNF else 96, 196 if nxt_phase else 0)
    vPF = nxt
    vPFA = nxt + 1
    nxt += 2
    nvgpr = nxt
    sW, sW1024, sW256, sKN, sKM, sTmp, sLoop = 28, 29, 30, 31, 32, 33, 40
    SRN, SRM, SRO = 12, 16, 24
    if not PF:
        pf = ()

    stamp(k, 0, 1)
    if LNF and int(OPT.get('prio', 1)):
        k.e("s_setprio 3")
    k.e("s_load_dwordx2 s[4:5], s[0:1], %d" % KA_WS)
    if kind == 'A2':
        k.e("s_load_dwordx4 s[8:11], s[0:1], %d" % KA_CR)
    elif kind == 'B2':
        k.e("s_load_dwordx2 s[8:9], s[0:1], %d" % KA_WD)
    else:
        k.e("s_load_dwordx2 s[8:9], s[0:1], %d" % KA_WR)
        k.e("s_load_dwordx2 s[10:11], s[0:1], %d" % KA_WI)
    if LNF:
        k.e("s_load_dwordx2 s[48:49], s[0:1], %d" % KA_X)
    if rcfg:
        if rcfg[1][0] == 'in':
            k.e("s_load_dwordx2 s[48:49], s[0:1], %d" % rcfg[1][1])
        if rcfg[2][0] == 'out':
            k.e("s_load_dwordx2 s[50:51], s[0:1], %d" % KA_OUT)
    pf2_loads(k, pf2)
    k.e("v_and_b32 v%d, 63, v0" % vLane)
    k.e("v_lshrrev_b32 v%d, 6, v0" % vT0)
    k.e("s_nop 0")
    k.e("v_readfirstlane_b32 s%d, v%d" % (sW, vT0))
    k.e("s_and_b32 s34, s2, 7")
    k.e("s_lshr_b32 s35, s2, 3")
    if kind in ('A2', 'B2'):
        k.e("s_and_b32 s36, s34, 3")
        k.e("s_lshr_b32 s37, s34, 2")
        k.e("s_lshl_b32 s37, s37, 3")
        k.e("s_lshr_b32 s38, s35, 2")
        k.e("s_add_u32 s37, s37, s38")
        k.e("s_and_b32 s38, s35, 3")
    else:
        k.e("s_mov_b32 s38, s34")
        k.e("s_mov_b32 s37, s35")
    if LNF and OPT.get('cpos', 'x') == 'first':
        code_prefetch(k, sW, vLane, vT0, vPF, 72, sTmp)
    k.e("s_lshl_b32 s%d, s%d, 10" % (sW1024, sW))
    k.e("s_lshl_b32 s%d, s%d, 8" % (sW256, sW))
    k.e("v_lshrrev_b32 v%d, 3, v%d" % (vT0, vLane))
    k.e("s_lshl_b32 s%d, s%d, 3" % (sTmp, sW))
    k.e("v_add_u32 v%d, s%d, v%d" % (vT0, sTmp, vT0))
    k.e("v_bfe_u32 v%d, v%d, 1, 3" % (vT1, vT0))
    k.e("v_and_b32 v%d, 7, v%d" % (vT2, vLane))
    k.e("v_xor_b32 v%d, v%d, v%d" % (vT1, vT1, vT2))
    if kind == 'B2':
        k.e("s_lshr_b32 s44, s%d, 2" % sW)
        k.e("s_mul_i32 s44, s44, %d" % (288 * 1024))
        k.e("s_and_b32 s45, s%d, 3" % sW)
        k.e("s_lshl_b32 s45, s45, 10")
        k.e("s_add_u32 s44, s44, s45")
        k.e("v_lshl_add_u32 v%d, v%d, 4, s44" % (vDN, vLane))
    else:
        k.e("v_mul_u32_u24 v%d, %d, v%d" % (vDN, strideN, vT0))
        k.e("v_lshl_add_u32 v%d, v%d, 4, v%d" % (vDN, vT1, vDN))
    if mmode == 'row':
        k.e("v_mul_u32_u24 v%d, %d, v%d" % (vDM[0], strideM, vT0))
        k.e("v_lshl_add_u32 v%d, v%d, 4, v%d" % (vDM[0], vT1, vDM[0]))
        k.e("v_lshrrev_b32 v%d, 3, v%d" % (vT0, vLane))
        k.e("s_lshl_b32 s%d, s%d, 1" % (sTmp, sW))
        k.e("s_add_u32 s%d, s%d, 128" % (sTmp, sTmp))
        k.e("v_add_u32 v%d, s%d, v%d" % (vT0, sTmp, vT0))
        k.e("v_bfe_u32 v%d, v%d, 1, 3" % (vT1, vT0))
        k.e("v_xor_b32 v%d, v%d, v%d" % (vT1, vT1, vT2))
        k.e("v_mul_u32_u24 v%d, %d, v%d" % (vDM[2], strideM, vT0))
        k.e("v_lshl_add_u32 v%d, v%d, 4, v%d" % (vDM[2], vT1, vDM[2]))
        if LNF:
            k.e("v_subrev_u32 v%d, %d, v%d" % (vDM[1], 32 * strideM, vDM[0]))
            k.e("v_lshrrev_b32 v%d, 3, v%d" % (vT0, vLane))
            k.e("s_and_b32 s%d, s%d, 3" % (sTmp, sW))
            k.e("s_lshl_b32 s41, s%d, 9" % sTmp)
            k.e("s_lshl_b32 s%d, s%d, 2" % (sTmp, sTmp))
            k.e("s_add_u32 s%d, s%d, 128" % (sTmp, sTmp))
            k.e("v_add_u32 v%d, s%d, v%d" % (vT0, sTmp, vT0))
            k.e("v_bfe_u32 v%d, v%d, 1, 3" % (vT1, vT0))
            k.e("v_xor_b32 v%d, v%d, v%d" % (vT1, vT1, vT2))
            k.e("v_mul_u32_u24 v%d, %d, v%d" % (vDN, strideM, vT0))
            k.e("v_lshl_add_u32 v%d, v%d, 4, v%d" % (vDN, vT1, vDN))
    else:
        for q in range(3):
            if q < 2:
                k.e("s_lshl_b32 s%d, s%d, 6" % (sTmp, sW))
                k.e("s_add_u32 s%d, s%d, %d" % (sTmp, sTmp, 512 * q))
            else:
                k.e("s_lshl_b32 s%d, s%d, 4" % (sTmp, sW))
                k.e("s_add_u32 s%d, s%d, 1024" % (sTmp, sTmp))
            tr_voff(k, vDM[q], sTmp, vLane, (vT0, vT1, vT2, vT3, vT4), strideM, 0x33)
    k.e("s_mov_b32 s%d, 0" % sKN)
    k.e("s_mov_b32 s%d, 0" % sKM)
    if OPT.get('pst'):
        k.e("s_memtime s[%d:%d]" % (SB + 8, SB + 9))
    k.e("s_waitcnt lgkmcnt(0)")
    if OPT.get('pst'):
        stamp(k, 5)
    if kind == 'A2':
        k.e("s_cmp_lt_u32 s36, 2")
        k.e("s_cselect_b32 s6, s8, s10")
        k.e("s_cselect_b32 s7, s9, s11")
        k.e("s_mul_i32 s44, s37, %d" % (128 * 4096))
        k.e("s_and_b32 s45, s36, 1")
        k.e("s_lshl_b32 s45, s45, 11")
        k.e("s_add_u32 s44, s44, s45")
        srd(k, SRN, 6, 0, 44, S * S * 2)
        k.e("s_lshr_b32 s44, s36, 1")
        k.e("s_lshl_b32 s44, s44, 2")
        k.e("s_add_u32 s44, s44, s38")
        k.e("s_lshl_b32 s44, s44, 1")
        k.e("s_and_b32 s45, s36, 1")
        k.e("s_add_u32 s44, s44, s45")
        k.e("s_mul_i32 s44, s44, %d" % (1024 * 288))
        srd(k, SRM, 4, ab, 44, ab + 2 * XB)
    elif kind == 'B2':
        k.e("s_mul_i32 s44, s37, %d" % (4 * 288 * 1024))
        k.e("s_mul_i32 s45, s36, %d" % (72 * 1024))
        k.e("s_add_u32 s44, s44, s45")
        srd(k, SRN, 4, h, 44, h + HB)
        k.e("s_mul_i32 s44, s36, %d" % (1152 * 1152))
        k.e("s_mul_i32 s45, s38, 288")
        k.e("s_add_u32 s44, s44, s45")
        srd(k, SRM, 8, 0, 44, F * D * 2)
    else:
        k.e("s_mul_i32 s44, s37, %d" % (64 * 1152))
        if LNF:
            srd(k, SRN, 48, 0, 44, XB)
            k.e("s_mul_i32 s44, s%d, %d" % (sW, 8 * 1152))
            k.e("v_lshl_add_u32 v%d, v%d, 4, s44" % (vT0, vLane))
            k.e("v_lshrrev_b32 v%d, 3, v%d" % (vT1, vLane))
            k.e("v_mul_u32_u24 v%d, 1152, v%d" % (vT1, vT1))
            k.e("v_and_b32 v%d, 7, v%d" % (vT2, vLane))
            k.e("v_lshl_add_u32 v%d, v%d, 4, v%d" % (vT1, vT2, vT1))
            k.e("v_add_u32 v%d, s44, v%d" % (vT1, vT1))
            for rr in range(8):
                k.e("s_mov_b32 s44, %d" % (rr * 1152))
                k.e("buffer_load_dwordx4 %s, v%d, %s, s44 offen" % (vr(32 + 16 * rr + 8), vT0, sr(SRN)), "X")
            k.e("buffer_load_dwordx4 %s, v%d, %s, 0 offen offset:1024" % (vr(32 + 16 * 8 + 8), vT1, sr(SRN)), "X")
            if OPT.get('cpos', 'x') == 'x':
                code_prefetch(k, sW, vLane, vT0, vPF, 72, sTmp)
        else:
            srd(k, SRN, 4, xn, 44, xn + XB)
        k.e("s_cmp_lt_u32 s38, 4")
        k.e("s_cselect_b32 s6, s8, s10")
        k.e("s_cselect_b32 s7, s9, s11")
        k.e("s_and_b32 s45, s38, 3")
        k.e("s_mul_i32 s44, s45, %d" % (144 * 1152))
        srd(k, SRM, 6, 0, 44, D * D * 2)
    if PD:
        k.e("s_mul_i32 s45, s38, 288")
        k.e("s_sub_u32 s44, s%d, s45" % SRM)
        k.e("s_subb_u32 s45, s%d, 0" % (SRM + 1))
        k.e("s_lshl_b32 s46, s38, 5")
        k.e("s_lshl_b32 s47, s%d, 2" % sW)
        k.e("s_add_u32 s46, s46, s47")
        k.e("v_add_u32 v%d, s46, v%d" % (vT0, vLane))
        if kind == 'A2':
            k.e("v_lshlrev_b32 v%d, 12, v%d" % (vT1, vT0))
            SN = 128
        else:
            k.e("v_lshrrev_b32 v%d, 5, v%d" % (vT1, vT0))
            k.e("v_mul_u32_u24 v%d, %d, v%d" % (vT1, 288 * 1024, vT1))
            k.e("v_and_b32 v%d, 31, v%d" % (vT2, vT0))
            k.e("v_lshl_add_u32 v%d, v%d, 7, v%d" % (vT1, vT2, vT1))
            SN = 4096
        k.e("v_add_u32 v%d, 0x%x, v%d" % (vT1, PD * SN, vT1))
        k.e("s_mul_i32 s46, s%d, 3" % sW)
        k.e("s_sub_u32 s46, s46, 4")
        k.e("v_add_u32 v%d, s46, v%d" % (vT0, vLane))
        k.e("v_min_u32 v%d, 17, v%d" % (vT0, vT0))
        k.e("s_mul_i32 s46, s35, 18")
        k.e("v_add_u32 v%d, s46, v%d" % (vT0, vT0))
        k.e("v_mul_u32_u24 v%d, 7282, v%d" % (vT2, vT0))
        k.e("v_lshrrev_b32 v%d, 16, v%d" % (vT2, vT2))
        k.e("v_mul_u32_u24 v%d, 9, v%d" % (vT3, vT2))
        k.e("v_sub_u32 v%d, v%d, v%d" % (vT3, vT0, vT3))
        k.e("v_mul_u32_u24 v%d, 1152, v%d" % (vT2, vT2))
        k.e("v_lshl_add_u32 v%d, v%d, 7, v%d" % (vT2, vT3, vT2))
        k.e("v_add_u32 v%d, 0x%x, v%d" % (vT2, PD * 64 * 1152, vT2))
        k.e("v_cmp_gt_u32 vcc, 4, v%d" % vLane)
        k.e("v_mov_b32 v%d, s44" % vT0)
        k.e("v_mov_b32 v%d, s%d" % (vT3, SRN))
        k.e("v_cndmask_b32 v%d, v%d, v%d, vcc" % (vPA, vT0, vT3))
        k.e("v_mov_b32 v%d, s45" % vT0)
        k.e("v_mov_b32 v%d, s%d" % (vT3, SRN + 1))
        k.e("v_cndmask_b32 v%d, v%d, v%d, vcc" % (vPA + 1, vT0, vT3))
        k.e("v_cndmask_b32 v%d, v%d, v%d, vcc" % (vT1, vT2, vT1))
        k.e("v_mov_b32 v%d, 0x%x" % (vT0, 64 * 1152))
        k.e("v_mov_b32 v%d, %d" % (vT3, SN))
        k.e("v_cndmask_b32 v%d, v%d, v%d, vcc" % (vPS, vT0, vT3))
        k.e("v_add_co_u32 v%d, vcc, v%d, v%d" % (vPA, vT1, vPA))
        k.e("s_nop 1")
        k.e("v_addc_co_u32 v%d, vcc, 0, v%d, vcc" % (vPA + 1, vPA + 1))

    def dma_n(stage):
        b = stage % NBUF
        tag = "D%d" % stage
        P = []
        for j in range(NDN):
            L = ["s_add_u32 m0, s%d, 0x%x" % (sW1024, b * STB + j * 8192)]
            if j:
                L.append("s_add_u32 s%d, s%d, 0x%x" % (sTmp, sKN, j * (2 * 288 * 1024 if kind == 'B2' else 64 * strideN)))
                L.append("buffer_load_dwordx4 v%d, %s, s%d offen lds" % (vDN, sr(SRN), sTmp))
            else:
                L.append("s_nop 0")
                L.append("buffer_load_dwordx4 v%d, %s, s%d offen lds" % (vDN, sr(SRN), sKN))
            P.append((tag, L))
        if P:
            P[-1] = (tag, P[-1][1] + ["s_add_u32 s%d, s%d, %d" % (sKN, sKN, 4096 if kind == 'B2' else 128)])
        return P

    def dma_m(stage):
        b = stage % NBUF
        tag = "D%d" % stage
        P = []
        mb_ = b * STB + MB0
        for q in range(3):
            L = []
            if q < 2:
                L.append("s_add_u32 m0, s%d, 0x%x" % (sW1024, mb_ + q * 8192))
            else:
                L.append("s_add_u32 m0, s%d, 0x%x" % (sW256, mb_ + 16384))
            if mmode == 'row' and q == 1:
                L.append("s_add_u32 s%d, s%d, 0x%x" % (sTmp, sKM, 64 * strideM))
                so, vo = sTmp, vDM[0]
            else:
                so, vo = sKM, vDM[q]
                L.append("s_nop 0")
            if q == 2:
                L.append("s_mov_b64 exec, 0xffff")
            L.append("buffer_load_dwordx4 v%d, %s, s%d offen lds" % (vo, sr(SRM), so))
            if q == 2:
                L.append("s_mov_b64 exec, -1")
            P.append((tag, L))
        P[-1] = (tag, P[-1][1] + ["s_add_u32 s%d, s%d, 0x%x" % (sKM, sKM, 128 if mmode == 'row' else 64 * strideM)])
        return P

    def dma(stage):
        return dma_n(stage) + dma_m(stage)

    def dma4(stage):
        tag = "D%d" % stage
        mb_ = (stage % NBUF) * STB + MB0
        P = []
        for n in range(4):
            P.append((tag, ["s_add_u32 m0, s%d, 0x%x" % (sW1024, mb_ - 4096 + n * 4096),
                            "s_add_u32 s%d, s%d, 0x%x" % (sTmp, sKM, n * 32 * strideM),
                            "buffer_load_dwordx4 v%d, %s, s%d offen lds" % (vDM[1], sr(SRM), sTmp)]))
        P.append((tag, ["s_add_u32 m0, s41, 0x%x" % (mb_ + 16384), "s_mov_b64 exec, 0xffffffff",
                        "buffer_load_dwordx4 v%d, %s, s%d offen lds" % (vDN, sr(SRM), sKM),
                        "s_mov_b64 exec, -1", "s_add_u32 s%d, s%d, 128" % (sKM, sKM)]))
        return P

    def emit(P):
        for tag, L in P:
            for x in L:
                k.e(x, tag)

    NPRO = int(OPT.get('npro', 2)) if LNF else NBUF
    if dep is None:
        for stg in range(NPRO):
            emit(dma(stg))
    else:
        first, second = (dma_n, dma_m) if kind == 'A2' else (dma_m, dma_n)
        if dep == 'pre':
            for stg in range(NBUF):
                emit(first(stg))
            raise PreDone()
        if PRE:
            if kind == 'A2':
                k.e("s_mov_b32 s%d, %d" % (sKN, NBUF * 128))
            else:
                k.e("s_mov_b32 s%d, 0x%x" % (sKM, NBUF * (128 if mmode == 'row' else 64 * strideM)))
        elif not POLLF and not H2:
            for stg in range(NBUF):
                emit(first(stg))
        elif POLLF == 2:
            emit(first(0))
        if kind == 'A2':
            k.e("s_and_b32 s44, s36, 1")
            k.e("s_lshl_b32 s44, s44, 7")
            k.e("s_lshr_b32 s45, s36, 1")
            k.e("s_lshl_b32 s45, s45, 2")
            k.e("s_add_u32 s44, s44, s45")
            k.e("s_add_u32 s44, s44, s38")
            k.e("v_lshl_add_u32 v%d, v%d, 3, s44" % (vT0, vLane))
            nl = 16
        elif kind == 'B2':
            k.e("s_lshr_b32 s44, s37, 1")
            k.e("s_lshl_b32 s44, s44, 5")
            k.e("s_lshl_b32 s45, s36, 3")
            k.e("s_add_u32 s44, s44, s45")
            k.e("v_add_u32 v%d, s44, v%d" % (vT0, vLane))
            nl = 8
        else:
            k.e("s_lshl_b32 s44, s37, 3")
            k.e("v_add_u32 v%d, s44, v%d" % (vT0, vLane))
            nl = 8
        if pf2 and int(OPT.get('pfb', -1)) == -1:
            pf2_setup(k, pf2, sW, vLane, vPFA)
            lsk_ = k.newlabel("LPF")
            k.e("s_cmp_eq_u32 s%d, 0" % sW)
            k.e("s_cbranch_scc1 %s" % lsk_)
            k.e("buffer_load_dword v%d, v%d, s[60:63], 0 offen" % (vPF, vPFA), "PF")
            k.vm.pop()
            k.label(lsk_)
        if H2:
            handoff2(k, dep, nl, vT0, vT1, lambda: [emit(first(stg)) for stg in range(NBUF)])
        else:
            wait_flags(k, dep, nl, vT0, vT1)
        for stg in range(NBUF):
            emit(second(stg))
            if POLLF and not PRE and not (POLLF == 2 and stg == 0):
                emit(first(stg))
    if pf2:
        pf2_setup(k, pf2, sW, vLane, vPFA)
    pfp = [("PF", ["buffer_load_dword v%d, v%d, s[60:63], 0 offen" % (vPF, vPFA)])]
    if pf2 and LNF and OPT.get('pfa', 'afterx') == 'early':
        emit(pfp)
    k.e("s_and_b32 s%d, s%d, 3" % (sTmp, sW))
    k.e("s_mul_i32 s%d, s%d, %d" % (sTmp, sTmp, NFR * 16 * 128))
    k.e("v_and_b32 v%d, 15, v%d" % (vT0, vLane))
    k.e("v_lshrrev_b32 v%d, 4, v%d" % (vT1, vLane))
    k.e("v_bfe_u32 v%d, v%d, 1, 3" % (vT2, vLane))
    k.e("v_xor_b32 v%d, v%d, v%d" % (vT2, vT1, vT2))
    k.e("v_lshlrev_b32 v%d, 4, v%d" % (vT2, vT2))
    k.e("v_lshl_add_u32 v%d, v%d, 7, v%d" % (vT2, vT0, vT2))
    k.e("v_add_u32 v%d, s%d, v%d" % (vT3, sTmp, vT2))
    if kind == 'B2':
        k.e("v_lshlrev_b32 v%d, 9, v%d" % (vT3, vT1))
        k.e("v_lshl_add_u32 v%d, v%d, 4, v%d" % (vT3, vT0, vT3))
        k.e("v_add_u32 v%d, s%d, v%d" % (vT3, sTmp, vT3))
        for b in range(NBUF):
            k.e("v_add_u32 v%d, 0x%x, v%d" % (vRN[b][0], b * STB, vT3))
            k.e("v_add_u32 v%d, 2048, v%d" % (vRN[b][1], vRN[b][0]))
    else:
        for b in range(NBUF):
            k.e("v_add_u32 v%d, 0x%x, v%d" % (vRN[b][0], (b * 65536 if LNF else b * STB), vT3))
            k.e("v_xor_b32 v%d, 64, v%d" % (vRN[b][1], vRN[b][0]))
    if mmode == 'row':
        for b in range(NBUF):
            k.e("v_add_u32 v%d, 0x%x, v%d" % (vRM[b][0], b * STB + MB0, vT2))
            k.e("v_xor_b32 v%d, 64, v%d" % (vRM[b][1], vRM[b][0]))
    else:
        tr_raddr(k, vT2, vLane, vT3)
        for b in range(NBUF):
            k.e("v_add_u32 v%d, 0x%x, v%d" % (vRM[b][0], b * STB + NTB, vT2))
    k.e("s_and_b32 s%d, s%d, 3" % (sTmp, sW))
    k.e("s_mul_i32 s%d, s%d, %d" % (sTmp, sTmp, NFR * 16))
    k.e("v_and_b32 v%d, 15, v%d" % (vT3, vLane))
    k.e("v_add_u32 v%d, s%d, v%d" % (vT3, sTmp, vT3))
    k.e("v_lshrrev_b32 v%d, 4, v%d" % (vT4, vLane))
    k.e("v_mul_u32_u24 v%d, 288, v%d" % (vT3, vT3))
    k.e("v_and_b32 v%d, 1, v%d" % (vT0, vT4))
    k.e("v_lshl_add_u32 v%d, v%d, 5, v%d" % (vO, vT0, vT3))
    k.e("v_lshrrev_b32 v%d, 1, v%d" % (vT0, vT4))
    k.e("v_lshl_add_u32 v%d, v%d, 4, v%d" % (vO, vT0, vO))
    k.e("v_lshl_add_u32 v%d, v%d, 3, v%d" % (vT4, vT4, vT3))
    vO2 = vT4
    if kind == 'A1':
        k.e("s_lshr_b32 s45, s38, 2")
        k.e("s_lshl_b32 s44, s38, 5")
        k.e("s_add_u32 s44, s44, s37")
        k.e("s_mul_i32 s44, s44, 18432")
        srd(k, SRO, 4, ab, 44, ab + 2 * XB)
        k.e("s_mov_b32 s%d, 18432" % (SRO + 2))
        k.e("s_mul_i32 s47, s45, 0x80008000")
    else:
        k.e("s_lshl_b32 s44, s36, 4")
        k.e("s_add_u32 s44, s44, s37")
        k.e("s_lshl_b32 s44, s44, 2")
        k.e("s_and_b32 s46, s%d, 3" % sW)
        k.e("s_add_u32 s44, s44, s46")
        k.e("s_mul_i32 s44, s44, %d" % PREG)
        k.e("s_mul_i32 s46, s38, 9216")
        k.e("s_add_u32 s44, s44, s46")
        srd(k, SRO, 4, WSP, 44, WSP + 4 * XB)
        k.e("v_lshlrev_b32 v%d, 4, v%d" % (vO, vLane))
    def pf_emit():
        k.e("s_lshl_b32 s%d, s2, 3" % sTmp)
        k.e("s_add_u32 s%d, s%d, s%d" % (sTmp, sTmp, sW))
        k.e("s_lshl_b32 s%d, s%d, 12" % (sTmp, sTmp))
        k.e("v_lshl_add_u32 v%d, v%d, 6, s%d" % (vT0, vLane, sTmp))
        for n in range(len(pf)):
            k.e("buffer_load_dword v%d, v%d, %s, 0 offen" % (vPF, vT0, sr(56 + 4 * n)), "PF")

    stamp(k, 1)
    if LNF:
        if pf and OPT.get('pfpos', 'end') == 'early':
            pf_emit()
        R = range(8)
        R9 = range(9)
        B = lambda rr: 32 + 16 * rr
        LA = 176
        k.e("v_lshrrev_b32 v%d, 3, v%d" % (vT0, vLane))
        k.e("v_and_b32 v%d, 7, v%d" % (vT1, vLane))
        k.e("v_lshlrev_b32 v%d, 4, v%d" % (vT1, vT1))
        k.e("v_lshl_add_u32 v%d, v%d, 13, v%d" % (vT2, vT0, vT1))
        k.e("v_add_u32 v%d, s%d, v%d" % (vT2, sW1024, vT2))
        for pr in range(4):
            k.e("s_lshl_b32 s44, s%d, 2" % sW)
            k.e("s_add_u32 s44, s44, %d" % pr)
            k.e("s_and_b32 s44, s44, 7")
            k.e("s_lshl_b32 s44, s44, 4")
            k.e("v_xor_b32 v%d, s44, v%d" % (LA + pr, vT2))
        k.e("s_lshl_b32 s44, s%d, 2" % sW)
        k.e("v_lshrrev_b32 v%d, 4, v%d" % (vT2, vLane))
        k.e("v_add_u32 v%d, s44, v%d" % (vT2, vT2))
        k.e("v_and_b32 v%d, 7, v%d" % (vT2, vT2))
        k.e("v_lshlrev_b32 v%d, 4, v%d" % (vT2, vT2))
        k.e("v_xor_b32 v%d, v%d, v%d" % (vT2, vT2, vT1))
        k.e("v_lshl_add_u32 v%d, v%d, 7, v%d" % (vT2, vT0, vT2))
        k.e("v_add_u32 v%d, s%d, v%d" % (vT2, sW1024, vT2))
        k.e("v_add_u32 v%d, 0x10000, v%d" % (LA + 4, vT2))
        for rr in R:
            k.e("v_cmp_eq_u32 vcc, %d, v%d" % (rr, vT0))
            k.e("s_nop 1")
            k.e("v_cndmask_b32 v%d, 0, 1.0, vcc" % (LA + 5 + rr))
        stamp(k, 5)
        if int(OPT.get('prio', 1)):
            k.e("s_setprio 0")
        k.vneed("X")
        stamp(k, 4)
        for stg in range(NPRO, NBUF):
            emit(dma(stg))
        if pf2 and OPT.get('pfa', 'afterx') == 'afterx':
            emit(pfp)
        if pf2 and OPT.get('pfa', 'afterx') == 'bar':
            k.vneed("D3")
            k.e("s_barrier")
            emit(pfp)
        if pf2 and OPT.get('pfa', 'afterx') == 'split':
            lsk_ = k.newlabel("LPF")
            k.e("s_cmp_ge_u32 s%d, 4" % sW)
            k.e("s_cbranch_scc1 %s" % lsk_)
            k.e("s_mov_b32 s%d, 32768" % sTmp)
            k.e("buffer_load_dword v%d, v%d, s[60:63], 0 offen" % (vPF, vPFA))
            k.e("buffer_load_dword v%d, v%d, s[60:63], s%d offen" % (vPF, vPFA, sTmp))
            k.vm.pop(); k.vm.pop()
            k.label(lsk_)

        def allrows(fmt, *offs, rows=R):
            for rr in rows:
                k.e(fmt % tuple(B(rr) + o for o in offs))

        def pk(op, d, a, b, c=None, rows=R9):
            for rr in rows:
                x = B(rr)
                ops = [vr(x + d, 2), vr(x + a, 2), vr(x + b, 2)] + ([vr(x + c, 2)] if c is not None else [])
                k.e("%s %s" % (op, ", ".join(ops)))

        def xsum(o, t):
            for ctl in ("quad_perm:[1,0,3,2]", "quad_perm:[2,3,0,1]", "row_half_mirror", "row_mirror"):
                allrows("v_add_f32_dpp v%d, v%d, v%d " + ctl + " row_mask:0xf bank_mask:0xf", o, o, o)
            for sw_ in ("v_permlane16_swap_b32", "v_permlane32_swap_b32"):
                allrows("v_mov_b32 v%d, v%d", t, o)
                allrows(sw_ + " v%d, v%d", o, t)
                allrows("v_add_f32 v%d, v%d, v%d", o, o, t)

        def add_tail(o):
            for rr in R:
                k.e("v_fmac_f32 v%d, v%d, v%d" % (B(rr) + o, LA + 5 + rr, B(8) + o))

        def sel_tail(o):
            k.e("v_mul_f32 v%d, v%d, v%d" % (B(8) + o, LA + 5, B(0) + o))
            for rr in range(1, 8):
                k.e("v_fmac_f32 v%d, v%d, v%d" % (B(8) + o, LA + 5 + rr, B(rr) + o))
        for i in range(4):
            allrows("v_lshlrev_b32 v%d, 16, v%d", 2 * i, 8 + i, rows=R9)
            allrows("v_and_b32 v%d, 0xffff0000, v%d", 2 * i + 1, 8 + i, rows=R9)
        pk("v_pk_add_f32", 8, 0, 2)
        pk("v_pk_add_f32", 10, 4, 6)
        pk("v_pk_add_f32", 8, 8, 10)
        allrows("v_add_f32 v%d, v%d, v%d", 12, 8, 9, rows=R9)
        add_tail(12)
        xsum(12, 13)
        allrows("v_mul_f32 v%%d, 0x%08x, v%%d" % f32bits(-1.0 / D), 12, 12)
        sel_tail(12)
        if MIRROR:
            allrows("v_cvt_pk_bf16_f32 v%d, v%d, v%d", 13, 12, 12, rows=R9)
            allrows("v_lshlrev_b32 v%d, 16, v%d", 13, 13, rows=R9)
            allrows("v_sub_f32 v%d, v%d, v%d", 14, 13, 12)
            allrows("v_mov_b32 v%d, v%d", 12, 13, rows=R9)
        else:
            allrows("v_mov_b32 v%d, v%d", 13, 12, rows=R9)
        for e in range(0, 8, 2):
            pk("v_pk_add_f32", e, e, 12)
        pk("v_pk_mul_f32", 8, 0, 0)
        pk("v_pk_mul_f32", 10, 2, 2)
        pk("v_pk_fma_f32", 8, 4, 4, 8)
        pk("v_pk_fma_f32", 10, 6, 6, 10)
        pk("v_pk_add_f32", 8, 8, 10)
        allrows("v_add_f32 v%d, v%d, v%d", 12, 8, 9, rows=R9)
        add_tail(12)
        xsum(12, 13)
        if MIRROR:
            allrows("v_mul_f32 v%%d, 0x%08x, v%%d" % f32bits(1.0 / D), 12, 12)
            allrows("v_fma_f32 v%d, -v%d, v%d, v%d", 12, 14, 14, 12)
            allrows("v_max_f32 v%d, 0, v%d", 12, 12)
            allrows("v_cvt_pk_bf16_f32 v%d, v%d, v%d", 12, 12, 12)
            allrows("v_lshlrev_b32 v%d, 16, v%d", 12, 12)
            allrows("v_add_f32 v%%d, 0x%08x, v%%d" % f32bits(1e-5), 12, 12)
            allrows("v_cvt_pk_bf16_f32 v%d, v%d, v%d", 12, 12, 12)
            allrows("v_lshlrev_b32 v%d, 16, v%d", 12, 12)
            allrows("v_sqrt_f32 v%d, v%d", 12, 12)
            allrows("v_cvt_pk_bf16_f32 v%d, v%d, v%d", 12, 12, 12)
            allrows("v_lshlrev_b32 v%d, 16, v%d", 12, 12)
            allrows("v_rcp_f32 v%d, v%d", 12, 12)
            for i in range(4):
                allrows("v_cvt_pk_bf16_f32 v%d, v%d, v%d", 8 + i, 2 * i, 2 * i + 1, rows=R9)
            for i in range(4):
                allrows("v_lshlrev_b32 v%d, 16, v%d", 2 * i, 8 + i, rows=R9)
                allrows("v_and_b32 v%d, 0xffff0000, v%d", 2 * i + 1, 8 + i, rows=R9)
        else:
            allrows("v_mov_b32 v%%d, 0x%08x" % f32bits(1e-5), 13)
            allrows("v_fmac_f32 v%%d, 0x%08x, v%%d" % f32bits(1.0 / D), 13, 12)
            allrows("v_rsq_f32 v%d, v%d", 12, 13)
            k.e("s_nop 0")
        sel_tail(12)
        allrows("v_mov_b32 v%d, v%d", 13, 12, rows=R9)
        for e in range(0, 8, 2):
            pk("v_pk_mul_f32", e, e, 12)
        for i in range(4):
            allrows("v_cvt_pk_bf16_f32 v%d, v%d, v%d", 8 + i, 2 * i, 2 * i + 1, rows=R9)
        stamp(k, 6)
        for rr in R:
            k.e("ds_write_b128 v%d, %s offset:%d" % (LA + rr // 2, vr(B(rr) + 8), rr * 128))
        k.e("ds_write_b128 v%d, %s" % (LA + 4, vr(B(8) + 8)))
        for tg, L in preset_pieces(k, sW, vLane, vT2, vPA, 72, sTmp, WS_P):
            for x in L:
                k.e(x.replace(", -1", ", 0") if x.startswith("v_mov") else x, "S")
        lz = k.newlabel("LZ")
        k.e("s_cmp_ge_u32 s2, 1")
        k.e("s_cbranch_scc1 %s" % lz)
        srd(k, 72, 4, WS_FL, None, WS_FL + 8192)
        k.e("v_lshlrev_b32 v%d, 4, v0" % vT2)
        k.e("buffer_store_dwordx4 %s, v%d, s[72:75], 0 offen" % (vr(vPA), vT2))
        k.vm.pop()
        k.label(lz)
        k.e("s_waitcnt lgkmcnt(0)")
    k.vneed("D0")
    k.e("s_barrier")
    stamp(k, 2)

    ljoin = k.newlabel("LJ")
    lg1 = k.newlabel("LG")
    k.e("s_cmp_ge_u32 s%d, 4" % sW)
    k.e("s_cbranch_scc1 %s" % lg1)
    vm_save = list(k.vm)
    for gi, tiles in enumerate(groups):
        if gi:
            k.label(lg1)
            k.vm = list(vm_save)
        nt = len(tiles)
        W = int(nt * Wmul + 0.5)
        vA = {(j, i): vAbase + 4 * (ti * NFR + i) for ti, j in enumerate(tiles) for i in range(NFR)}

        def rd_m(stg, ks, j, reg, tag):
            b = stg % NBUF
            if mmode == 'row':
                k.lds("ds_read_b128 %s, v%d offset:%d" % (vr(reg), vRM[b][ks], j * 2048), tag)
            else:
                o = ks * 9216 + j * 32
                k.lds("ds_read_b64_tr_b16 %s, v%d offset:%d" % (vr(reg, 2), vRM[b][0], o), tag)
                k.lds("ds_read_b64_tr_b16 %s, v%d offset:%d" % (vr(reg + 2, 2), vRM[b][0], o + 2304), tag)

        def rd_n(stg, ks, i, reg, tag):
            if LNF:
                k.lds("ds_read_b128 %s, v%d offset:%d" % (vr(reg), vRN[stg // 8][ks], (stg % 8) * 8192), tag)
            else:
                k.lds("ds_read_b128 %s, v%d offset:%d" % (vr(reg), vRN[stg % NBUF][ks], i * (256 if kind == 'B2' else 2048)), tag)

        def ald():
            L = ["s_lshl_b32 s%d, s2, 3" % sTmp, "s_add_u32 s%d, s%d, s%d" % (sTmp, sTmp, sW), "s_lshl_b32 s%d, s%d, 12" % (sTmp, sTmp),
                 "v_lshl_add_u32 v%d, v%d, 6, s%d" % (vT0, vLane, sTmp)]
            for n in range(len(pf)):
                L.append("buffer_load_dword v%d, v%d, %s, 0 offen" % (vPF, vT0, sr(56 + 4 * n)))
            P = [("PF", L)] if pf else []
            return P

        pp = preset_pieces(k, sW, vLane, vT2, vPA, 72, sTmp, WSPO)

        def sx(t):
            return [pp[t]] if t < len(pp) else []

        dmaf = dma
        if LNF and OPT.get('pfa', 'afterx') == 'split':
            dmaf = dma4 if gi == 1 else (lambda st_: [])
            if gi == 0 and pf2:
                k.vm += ["PF", "PF"]
        engine(k, tiles, NFR, KS, NS, NBUF, W, NSET, int(OPT.get('tdelta', 1)), rd_m, rd_n, dmaf,
               lambda t, j, i: vA[(j, i)], lambda t, ks: t == 0 and ks == 0, vM, vN, sLoop,
               after_last_dma=ald if (pf and not (LNF and OPT.get('pfpos', 'end') != 'mid')) else None, stage_extra=(lambda t: pfp if t == int(OPT.get('pfb', -1)) else []) if (pf2 and not LNF) else None, n_static=LNF)
        k.e("s_nop 7")
        k.e("s_nop 3")
        stamp(k, 3)
        if kind == 'A1' and nxt_phase and PRE:
            k.e("s_barrier")
            pre_issue(k, nxt_phase, 180)
        if kind in ('A2', 'B2'):
            store_native(k, tiles, lambda j, i: vA[(j, i)], vO, SRO, sTmp, 0, None, 28, (rcfg[0] + 1) & 1)
        else:
            k.e("s_barrier")
            store_tiles_bf16(k, tiles, lambda j: vA[(j, 0)], vO, vO2, None, None, "", 28, neg=47)
        if gi == 0:
            k.e("s_branch %s" % ljoin)
    k.label(ljoin)
    if kind == 'A1':
        k.e("v_lshlrev_b32 v%d, 4, v0" % vT0)
        k.e("s_waitcnt lgkmcnt(0)")
        k.e("s_barrier")
        for n in range(3):
            k.e("ds_read_b128 %s, v%d offset:%d" % (vr(28 + 4 * n), vT0, n * 8192))
        for n in range(3):
            k.e("s_mov_b32 s%d, %d" % (sTmp, n * 8192))
            k.e("s_waitcnt lgkmcnt(%d)" % (2 - n))
            k.e("buffer_store_dwordx4 %s, v%d, %s, s%d offen" % (vr(28 + 4 * n), vT0, sr(SRO), sTmp))
    if LNF and pf and OPT.get('pfpos', 'end') == 'end':
        pf_emit()
    if rcfg:
        k.e("s_lshl_b32 s39, s36, 2")
        k.e("s_add_u32 s39, s39, s38")
        nv = r_tail(k, rcfg, 4, sW, vLane, 37, 39, NBUF * STB, WSP, xn, nxt_phase)
        nvgpr = max(nvgpr, nv)
    elif not LNF:
        stamp(k, 4)
    if not LNF:
        stamp(k, 6)
    stamp_store(k, kidx)
    if pub is not None:
        if rcfg:
            k.e("s_lshl_b32 s44, s37, 4")
            k.e("s_add_u32 s44, s44, s39")
        else:
            k.e("s_mov_b32 s44, s2")
        publish(k, pub, 44, sW)
    return nvgpr, LDSB


def gen_b1(k, kidx=0, pf=(), xn=None, h=None, dep=None, pub=None, nxt_phase=None, pf2=()):
    nwg = 256
    k.pend = []
    if not int(OPT.get('pf2', 1)):
        pf2 = ()
    NBUF, NS, KS = int(OPT.get('b1nb', 3)), 18, 1
    NTB = 256 * 64
    STB = NTB + 2 * 9216
    W = int(OPT.get('b1w', 10))
    NFR = 4
    vLane, vT0, vT1, vT2, vT3, vT4 = 1, 2, 3, 4, 5, 6
    vO = 7
    vDN = 8
    vDM = [9, 10]
    vRN = [12 + b for b in range(NBUF)]
    vRM = [16 + b for b in range(NBUF)]
    nxt = 20
    vM = [nxt + 4 * j for j in range(W)]; nxt += 4 * W
    vN = [[nxt + 4 * (p * NFR + i) for i in range(NFR)] for p in range(2)]; nxt += 8 * NFR
    vAbase = nxt
    nxt += 160
    vPF = nxt
    vPFA = nxt + 1
    nxt += 2
    nvgpr = nxt
    assert nvgpr <= 256
    sW, sW1024, sW256, sKN, sKM, sTmp, sLoop = 28, 29, 30, 31, 32, 33, 39
    SRN, SRM, SRO, SRQ = 12, [16, 20], 24, 40
    if not PF:
        pf = ()
    stamp(k, 0, 1)
    k.e("s_load_dwordx2 s[4:5], s[0:1], %d" % KA_WS)
    k.e("s_load_dwordx4 s[8:11], s[0:1], %d" % KA_WG)
    pf2_loads(k, pf2)
    k.e("v_and_b32 v%d, 63, v0" % vLane)
    k.e("v_lshrrev_b32 v%d, 6, v0" % vT0)
    k.e("s_nop 0")
    k.e("v_readfirstlane_b32 s%d, v%d" % (sW, vT0))
    k.e("s_and_b32 s34, s2, 7")
    k.e("s_lshr_b32 s35, s2, 3")
    k.e("s_lshl_b32 s38, s34, 2")
    k.e("s_and_b32 s36, s35, 3")
    k.e("s_add_u32 s38, s38, s36")
    k.e("s_lshr_b32 s37, s35, 2")
    k.e("s_lshl_b32 s%d, s%d, 10" % (sW1024, sW))
    k.e("s_and_b32 s44, s%d, 3" % sW)
    k.e("s_lshl_b32 s%d, s44, 8" % sW256)
    k.e("s_lshr_b32 s45, s%d, 2" % sW)
    k.e("s_mul_i32 s45, s45, 9216")
    k.e("s_add_u32 s%d, s%d, s45" % (sW256, sW256))
    k.e("v_lshrrev_b32 v%d, 2, v%d" % (vT0, vLane))
    k.e("s_lshl_b32 s%d, s%d, 4" % (sTmp, sW))
    k.e("v_add_u32 v%d, s%d, v%d" % (vT0, sTmp, vT0))
    k.e("v_lshrrev_b32 v%d, 2, v%d" % (vT1, vT0))
    k.e("v_sub_u32 v%d, 0, v%d" % (vT1, vT1))
    k.e("v_xor_b32 v%d, v%d, v%d" % (vT1, vT1, vLane))
    k.e("v_and_b32 v%d, 3, v%d" % (vT1, vT1))
    k.e("v_mul_u32_u24 v%d, 1152, v%d" % (vDN, vT0))
    k.e("v_lshl_add_u32 v%d, v%d, 4, v%d" % (vDN, vT1, vDN))
    T5 = (vT0, vT1, vT2, vT3, vT4)
    k.e("s_lshl_b32 s%d, s%d, 6" % (sTmp, sW))
    tr_voff(k, vDM[0], sTmp, vLane, T5, 9216, 0x13)
    k.e("s_lshl_b32 s%d, s44, 4" % sTmp)
    k.e("s_add_u32 s%d, s%d, 512" % (sTmp, sTmp))
    tr_voff(k, vDM[1], sTmp, vLane, T5, 9216, 0x13)
    k.e("s_mov_b32 s%d, 0" % sKN)
    k.e("s_mov_b32 s%d, 0" % sKM)
    k.e("s_waitcnt lgkmcnt(0)")
    k.e("s_mul_i32 s44, s37, %d" % (256 * 1152))
    srd(k, SRN, 4, xn, 44, xn + XB)
    k.e("s_mul_i32 s44, s38, 288")
    srd(k, SRM[0], 8, 0, 44, D * F * 2)
    srd(k, SRM[1], 10, 0, 44, D * F * 2)
    k.e("s_cmp_lt_u32 s%d, 4" % sW)
    for x in range(3):
        k.e("s_cselect_b32 s%d, s%d, s%d" % (SRQ + x, SRM[0] + x, SRM[1] + x))
    k.e("s_mov_b32 s%d, 0x20000" % (SRQ + 3))

    def dma_n(stage):
        tag = "D%d" % stage
        base = (stage % NBUF) * STB
        return [(tag, ["s_add_u32 m0, s%d, 0x%x" % (sW1024, base), "s_nop 0",
                       "buffer_load_dwordx4 v%d, %s, s%d offen lds" % (vDN, sr(SRN), sKN)]),
                (tag, ["s_add_u32 m0, s%d, 0x%x" % (sW1024, base + 8192), "s_add_u32 s%d, s%d, 0x%x" % (sTmp, sKN, 128 * 1152),
                       "buffer_load_dwordx4 v%d, %s, s%d offen lds" % (vDN, sr(SRN), sTmp),
                       "s_add_u32 s%d, s%d, 64" % (sKN, sKN)])]

    def dma_m(stage):
        tag = "D%d" % stage
        base = (stage % NBUF) * STB
        P = []
        for mat in range(2):
            P.append((tag, ["s_add_u32 m0, s%d, 0x%x" % (sW1024, base + NTB + mat * 9216), "s_nop 0",
                            "buffer_load_dwordx4 v%d, %s, s%d offen lds" % (vDM[0], sr(SRM[mat]), sKM)]))
        P.append((tag, ["s_add_u32 m0, s%d, 0x%x" % (sW256, base + NTB + 8192), "s_mov_b64 exec, 0xffff",
                        "buffer_load_dwordx4 v%d, %s, s%d offen lds" % (vDM[1], sr(SRQ), sKM),
                        "s_mov_b64 exec, -1",
                        "s_add_u32 s%d, s%d, 0x%x" % (sKM, sKM, 32 * 9216)]))
        return P

    def dma(stage):
        return dma_n(stage) + dma_m(stage)

    def emit(P):
        for tag, L in P:
            for x in L:
                k.e(x, tag)

    if dep is None:
        for stg in range(NBUF):
            emit(dma(stg))
    else:
        if dep == 'pre':
            for stg in range(NBUF):
                emit(dma_m(stg))
            raise PreDone()
        if PRE:
            k.e("s_mov_b32 s%d, 0x%x" % (sKM, NBUF * 32 * 9216))
        elif not POLLF and not H2:
            for stg in range(NBUF):
                emit(dma_m(stg))
        elif POLLF == 2:
            emit(dma_m(0))
        k.e("s_lshl_b32 s44, s37, 5")
        k.e("v_add_u32 v%d, s44, v%d" % (vT0, vLane))
        if H2:
            handoff2(k, dep, 32, vT0, vT1, lambda: [emit(dma_m(stg)) for stg in range(NBUF)])
        else:
            wait_flags(k, dep, 32, vT0, vT1)
        for stg in range(NBUF):
            emit(dma_n(stg))
            if POLLF and not PRE and not (POLLF == 2 and stg == 0):
                emit(dma_m(stg))
    if pf2:
        pf2_setup(k, pf2, sW, vLane, vPFA)
    pfp = [("PF", ["buffer_load_dword v%d, v%d, s[60:63], 0 offen" % (vPF, vPFA)])]
    k.e("v_and_b32 v%d, 15, v%d" % (vT0, vLane))
    k.e("v_lshrrev_b32 v%d, 4, v%d" % (vT1, vLane))
    k.e("v_lshrrev_b32 v%d, 2, v%d" % (vT2, vT0))
    k.e("v_sub_u32 v%d, 0, v%d" % (vT2, vT2))
    k.e("v_xor_b32 v%d, v%d, v%d" % (vT2, vT2, vT1))
    k.e("v_and_b32 v%d, 3, v%d" % (vT2, vT2))
    k.e("v_lshlrev_b32 v%d, 4, v%d" % (vT2, vT2))
    k.e("v_lshl_add_u32 v%d, v%d, 6, v%d" % (vT2, vT0, vT2))
    k.e("s_and_b32 s%d, s%d, 3" % (sTmp, sW))
    k.e("s_lshl_b32 s%d, s%d, 12" % (sTmp, sTmp))
    k.e("v_add_u32 v%d, s%d, v%d" % (vT3, sTmp, vT2))
    for b in range(NBUF):
        k.e("v_add_u32 v%d, 0x%x, v%d" % (vRN[b], b * STB, vT3))
    tr_raddr(k, vT2, vLane, vT3)
    for b in range(NBUF):
        k.e("v_add_u32 v%d, 0x%x, v%d" % (vRM[b], b * STB + NTB, vT2))
    k.e("s_lshl_b32 s44, s37, 3")
    k.e("s_and_b32 s46, s%d, 3" % sW)
    k.e("s_lshl_b32 s46, s46, 1")
    k.e("s_add_u32 s44, s44, s46")
    k.e("s_mul_i32 s44, s44, 288")
    k.e("s_mul_i32 s46, s38, 9")
    k.e("s_add_u32 s44, s44, s46")
    k.e("s_lshl_b32 s44, s44, 10")
    srd(k, SRO, 4, h, 44, h + HB)
    k.e("v_lshlrev_b32 v%d, 4, v%d" % (vO, vLane))
    k.e("s_mov_b32 s46, 0x%08x" % f32bits(-1.4426950408889634))
    k.e("s_mov_b32 s47, s46")
    stamp(k, 1)
    k.vneed("D0")
    k.e("s_barrier")
    stamp(k, 2)
    ljoin = k.newlabel("LJ")
    lg1 = k.newlabel("LG")
    k.e("s_cmp_ge_u32 s%d, 4" % sW)
    k.e("s_cbranch_scc1 %s" % lg1)
    vm_save = list(k.vm)
    for gi, js in enumerate((list(range(5)), list(range(5, 9)))):
        if gi:
            k.label(lg1)
            k.vm = list(vm_save)
        tiles = [(m, j) for j in js for m in range(2)]
        vA = {(t, i): vAbase + 4 * (ti * NFR + i) for ti, t in enumerate(tiles) for i in range(NFR)}

        def rd_m(stg, ks, t, reg, tag):
            o = t[0] * 9216 + t[1] * 32
            k.lds("ds_read_b64_tr_b16 %s, v%d offset:%d" % (vr(reg, 2), vRM[stg % NBUF], o), tag)
            k.lds("ds_read_b64_tr_b16 %s, v%d offset:%d" % (vr(reg + 2, 2), vRM[stg % NBUF], o + 2304), tag)

        def rd_n(stg, ks, i, reg, tag):
            k.lds("ds_read_b128 %s, v%d offset:%d" % (vr(reg), vRN[stg % NBUF], i * 1024), tag)

        Wg = min(W, len(tiles))
        SKEW = int(OPT.get('skew', 0))
        sx_ = (lambda t: pfp if t == 1 else []) if pf2 else None
        if not SKEW:
            engine(k, tiles, NFR, KS, NS, NBUF, Wg, 2, int(OPT.get('delta', 2)), rd_m, rd_n, dma,
                   lambda t, tl, i: vA[(tl, i)], lambda t, ks: t == 0, vM, vN, sLoop, stage_extra=sx_)
        else:
            engine(k, tiles, NFR, KS, NS - NBUF, NBUF, Wg, 2, int(OPT.get('delta', 2)), rd_m, rd_n, dma,
                   lambda t, tl, i: vA[(tl, i)], lambda t, ks: t == 0, vM, vN, sLoop, stage_extra=sx_, ns_total=NS)
            gt = [t for t in tiles if t[0] == 0]
            ut = [t for t in tiles if t[0] == 1]
            engine(k, gt, NFR, KS, NBUF, NBUF, Wg, 2, 1, rd_m, rd_n, dma,
                   lambda t, tl, i: vA[(tl, i)], lambda t, ks: False, vM, vN, sLoop, s0=NS - NBUF, ns_total=NS)
            work = []
            for j in js:
                for i in range(NFR):
                    g = vA[((0, j), i)]
                    work += ["v_mul_f32 v%d, s46, v%d" % (g + r, g + r) for r in range(4)]
                    work += ["v_exp_f32 v%d, v%d" % (g + r, g + r) for r in range(4)]
                    work += ["v_add_f32 v%d, 1.0, v%d" % (g + r, g + r) for r in range(4)]
                    work += ["v_rcp_f32 v%d, v%d" % (g + r, g + r) for r in range(4)]
            nuse = NBUF * len(ut)
            per = (len(work) + nuse - 2) // (nuse - 1)
            cnt_ = [0]

            def au(t, r):
                cnt_[0] += 1
                if cnt_[0] == 1:
                    return
                for _ in range(per):
                    if work:
                        k.e(work.pop(0))
            engine(k, ut, NFR, KS, NBUF, NBUF, Wg, 2, 1, rd_m, rd_n, dma,
                   lambda t, tl, i: vA[(tl, i)], lambda t, ks: False, vM, vN, sLoop, s0=NS - NBUF, ns_total=NS, static=True, after_use=au)
            assert not work
        k.e("s_nop 7")
        k.e("s_nop 3")
        stamp(k, 3)
        if nxt_phase and PRE:
            k.e("s_barrier")
            pre_issue(k, nxt_phase, 40)
        TB = 20
        n = 0
        for pr in range(2):
            for jn, j in enumerate(js):
                o = TB + 4 * (n % 4)
                n += 1
                for i in range(2):
                    g = vA[((0, j), 2 * pr + i)]
                    u_ = vA[((1, j), 2 * pr + i)]
                    if OPT.get('nosig'):
                        pass
                    elif SKEW:
                        for r in range(4):
                            k.e("v_mul_f32 v%d, v%d, v%d" % (g + r, g + r, u_ + r))
                    elif int(OPT.get('pk', 0)):
                        for r in (0, 2):
                            k.e("v_pk_mul_f32 %s, %s, s[46:47]" % (vr(g + r, 2), vr(g + r, 2)))
                        for r in range(4):
                            k.e("v_exp_f32 v%d, v%d" % (g + r, g + r))
                        for r in (0, 2):
                            k.e("v_pk_add_f32 %s, %s, 1.0 op_sel_hi:[1,0]" % (vr(g + r, 2), vr(g + r, 2)))
                        for r in range(4):
                            k.e("v_rcp_f32 v%d, v%d" % (g + r, g + r))
                        k.e("s_nop 0")
                        for r in (0, 2):
                            k.e("v_pk_mul_f32 %s, %s, %s" % (vr(g + r, 2), vr(g + r, 2), vr(u_ + r, 2)))
                    else:
                        for r in range(4):
                            k.e("v_mul_f32 v%d, s46, v%d" % (g + r, g + r))
                        for r in range(4):
                            k.e("v_exp_f32 v%d, v%d" % (g + r, g + r))
                        for r in range(4):
                            k.e("v_add_f32 v%d, 1.0, v%d" % (g + r, g + r))
                        for r in range(4):
                            k.e("v_rcp_f32 v%d, v%d" % (g + r, g + r))
                        for r in range(4):
                            k.e("v_mul_f32 v%d, v%d, v%d" % (g + r, g + r, u_ + r))
                    k.e("v_cvt_pk_bf16_f32 v%d, v%d, v%d" % (o + 2 * i, g, g + 1))
                    k.e("v_cvt_pk_bf16_f32 v%d, v%d, v%d" % (o + 2 * i + 1, g + 2, g + 3))
                if jn % 4 == 0:
                    k.e("s_mov_b32 s%d, %d" % (sTmp, (pr * 288 + j) * 1024))
                else:
                    k.e("s_nop 0")
                k.e("s_nop 0")
                k.e("v_permlane16_swap_b32 v%d, v%d" % (o, o + 2))
                k.e("v_permlane16_swap_b32 v%d, v%d" % (o + 1, o + 3))
                k.e("s_nop 0")
                if not OPT.get('nohst'):
                    k.e("buffer_store_dwordx4 %s, v%d, %s, s%d offen offset:%d%s" % (vr(o), vO, sr(SRO), sTmp, (jn % 4) * 1024, OPT.get('hflag', '').replace('_', ' ')))
        if gi == 0:
            k.e("s_branch %s" % ljoin)
    k.label(ljoin)
    stamp(k, 4)
    stamp_store(k, kidx)
    if pub is not None:
        k.e("s_lshl_b32 s44, s37, 5")
        k.e("s_add_u32 s44, s44, s38")
        publish(k, pub, 44, sW)
    return nvgpr, NBUF * STB


def main():
    phases = [
        lambda k, d, p, nx: gen_gemm(k, 'A1L', None, 0, ab=WS_AB, pf2=((KA_CR, S * S * 2), (KA_CI, S * S * 2)), dep=d, pub=p, nxt_phase=nx),
        lambda k, d, p, nx: gen_gemm(k, 'A2', (0, ('in', KA_X), ('ws', WS_X1), True), 1, xn=WS_XN, ab=WS_AB, pf2=((KA_WG, D * F * 2), (KA_WU, D * F * 2)), dep=d, pub=p, nxt_phase=nx),
        lambda k, d, p, nx: gen_b1(k, 2, xn=WS_XN, h=WS_H, pf2=((KA_WD, D * F * 2),), dep=d, pub=p, nxt_phase=nx),
        lambda k, d, p, nx: gen_gemm(k, 'B2', (1, ('ws', WS_X1), ('ws', WS_X2), True), 3, xn=WS_XNB, h=WS_H, dep=d, pub=p, nxt_phase=nx),
        lambda k, d, p, nx: gen_gemm(k, 'A1', None, 4, xn=WS_XNB, ab=WS_AB2, dep=d, pub=p, nxt_phase=nx),
        lambda k, d, p, nx: gen_gemm(k, 'A2', (2, ('ws', WS_X2), ('ws', WS_X3), True), 5, xn=WS_XNC, ab=WS_AB2, dep=d, pub=p, nxt_phase=nx),
        lambda k, d, p, nx: gen_b1(k, 6, xn=WS_XNC, h=WS_H2, dep=d, pub=p, nxt_phase=nx),
        lambda k, d, p, nx: gen_gemm(k, 'B2', (3, ('ws', WS_X3), ('out', 0), False), 7, h=WS_H2, dep=d, pub=p, nxt_phase=nx),
    ]
    grouping = [[int(c) for c in g] for g in OPT.get('merge', '01234567').split('-')]
    ks = {}
    order = []
    for gi, g in enumerate(grouping):
        name = MAIN + "_kernel" if gi == 0 else "p%s_kernel" % "".join(str(x) for x in g)
        k = K(name)
        header(k, 256)
        nv, lds = 0, 0
        for n, ph in enumerate(g):
            a, b = phases[ph](k, (ph - 1) if n else None, ph if n + 1 < len(g) else None, phases[ph + 1] if n + 1 < len(g) else None)
            nv, lds = max(nv, a), max(lds, b)
        footer(k, nv, 102)
        ks[name] = (k, 256, 512, lds)
        order.append(name)
    out = ["; FNet (DFT matmul) + GLU interleaved layers; generated by gen3.py"]
    for n in order:
        kk, nwg, blk, lds = ks[n]
        out.append("; @launch kernel=%s grid=(%d,1,1) block=(%d,1,1) lds=%d" % (kk.name, nwg, blk, lds))
    out.append('.amdgcn_target "amdgcn-amd-amdhsa--gfx950"')
    out.append(".text")
    for n, (kk, nwg, blk, lds) in ks.items():
        out.append(".globl %s" % kk.name)
        out += kk.lines
    open(sys.argv[1] if len(sys.argv) > 1 else "cdna_kernels/%s.s" % MAIN, "w").write("\n".join(out) + "\n")


if __name__ == "__main__":
    main()
```
